```python
import torch

def _softmax(x, axis=-1):
    return torch.softmax(x, dim=axis)
def _gelu(x):
    return torch.nn.functional.gelu(x, approximate="tanh")
def _silu(x):
    return torch.nn.functional.silu(x)
def _sigmoid(x):
    return torch.sigmoid(x)
def _layernorm(x, axis=-1, eps=1e-5):
    m = x.mean(dim=axis, keepdim=True)
    v = x.var(dim=axis, keepdim=True, unbiased=False)
    return (x - m) / torch.sqrt(v + eps)
def _scatter_add(tgt, idx, src, axis=0):
    return tgt.clone().index_add_(axis, idx, src)
def _segment_sum(src, seg, n):
    out = torch.zeros((n,) + src.shape[1:], dtype=src.dtype)
    return out.index_add_(0, seg, src)
def _pad(x, pw):
    flat = tuple(v for pair in reversed(pw) for v in pair)
    return torch.nn.functional.pad(x, flat)

kernel_name = 'parallel_sum__ssm_conv_s4d__glu_gated_swiglu__prompt'

def setup_inputs():

    _w = (lambda a: (lambda t: t.to(torch.bfloat16) if t.is_floating_point() else t)(torch.as_tensor(a)))
    def _A_setup():
        Bsz, L, D, N = 1, 2048, 640, 192
        return {
            "u": _w((lambda *s: torch.randn(*s, dtype=torch.bfloat16) * 0.05)(Bsz, L, D)),
            "log_A_real": _w((lambda *s: torch.randn(*s, dtype=torch.bfloat16) * 3.2)(D, N) * 0.5),
            "A_imag": _w((lambda *s: torch.randn(*s, dtype=torch.bfloat16) * 0.05)(D, N) * 3.14),
            "C_real": _w((lambda *s: torch.randn(*s, dtype=torch.bfloat16) * 0.2)(D, N) / N ** 0.5),
            "C_imag": _w((lambda *s: torch.randn(*s, dtype=torch.bfloat16) * 0.2)(D, N) / N ** 0.5),
            "log_dt": _w((lambda *s: torch.randn(*s, dtype=torch.bfloat16) * 0.05)(D) * 0.5 - 4.0),
            "D_skip": _w((lambda *s: torch.randn(*s, dtype=torch.bfloat16) * 0.05)(D)),
        }
    _A_in = _A_setup()

    def _B_setup():
        B, S, D, F = 1, 2048, 640, 1536
        return {
            "x": _w((lambda *s: torch.randn(*s, dtype=torch.bfloat16) * 0.05)(B, S, D)),
            "w1": _w((lambda *s: torch.randn(*s, dtype=torch.bfloat16) * 0.4)(D, F) * (2.0 / D) ** 0.5),
            "w3": _w((lambda *s: torch.randn(*s, dtype=torch.bfloat16) * 0.4)(D, F) * (2.0 / D) ** 0.5),
            "w2": _w((lambda *s: torch.randn(*s, dtype=torch.bfloat16) * 0.4)(F, D) * (2.0 / F) ** 0.5),
        }
    _B_in = _B_setup()

    return {
        "A_u": _A_in["u"],
        "A_log_A_real": _A_in["log_A_real"],
        "A_A_imag": _A_in["A_imag"],
        "A_C_real": _A_in["C_real"],
        "A_C_imag": _A_in["C_imag"],
        "A_log_dt": _A_in["log_dt"],
        "A_D_skip": _A_in["D_skip"],
        "B_x": _B_in["x"],
        "B_w1": _B_in["w1"],
        "B_w3": _B_in["w3"],
        "B_w2": _B_in["w2"],
    }

def reference(A_u, A_log_A_real, A_A_imag, A_C_real, A_C_imag, A_log_dt, A_D_skip, B_x, B_w1, B_w3, B_w2):
    def _A_ref(u, log_A_real, A_imag, C_real, C_imag, log_dt, D_skip):
        L = u.shape[1]
        dt = torch.exp(log_dt)
        A = -torch.exp(log_A_real) + 1j * A_imag
        C = (C_real + 1j * C_imag) * dt[:, None]
        pos = (lambda x, dt: x.to(dt))(torch.arange(L), log_dt.dtype)
        P = torch.exp((A * dt[:, None])[:, :, None] * pos[None, None, :])
        K = 2.0 * torch.einsum("dn,dnl->dl", C, P).real
        L2 = 2 * L
        u_t = (lambda x, *d: x.permute(*d))(u, 0, 2, 1)
        Kf = (lambda x, *a, **k: torch.fft.rfft(x.float(), *a, **k))(K, L2)
        Uf = (lambda x, *a, **k: torch.fft.rfft(x.float(), *a, **k))(u_t, L2)
        y = (lambda x, *a, **k: torch.fft.irfft(x, *a, **k).to(torch.bfloat16))(Uf * Kf[None, :, :], L2)[:, :, :L]
        y = (lambda x, *d: x.permute(*d))(y, 0, 2, 1)
        return y + u * D_skip[None, None, :]

    def _B_ref(x, w1, w3, w2):
        gate = torch.einsum("bsd,df->bsf", x, w1)
        up = torch.einsum("bsd,df->bsf", x, w3)
        h = _silu(gate) * up
        out = torch.einsum("bsf,fd->bsd", h, w2)
        return out

    x = A_u
    xn = _layernorm(x, axis=-1)
    return x + _A_ref(xn, A_log_A_real, A_A_imag, A_C_real, A_C_imag, A_log_dt, A_D_skip) + _B_ref(xn, B_w1, B_w3, B_w2)
```

```python
import re

REG_RE = re.compile(r'(?<![\w.])([vsa])(?:(\d+)|\[(\d+):(\d+)\])(?![\w])')

def regs_of(tok):
    out = set()
    t = tok.strip()
    for m in REG_RE.finditer(t):
        f = m.group(1)
        if m.group(2) is not None:
            out.add((f, int(m.group(2))))
        else:
            for i in range(int(m.group(3)), int(m.group(4)) + 1):
                out.add((f, i))
    if re.search(r'\bvcc\b', t): out.add(('s', 'vcc'))
    if re.search(r'\bexec\b', t): out.add(('s', 'exec'))
    if re.search(r'\bm0\b', t): out.add(('s', 'm0'))
    return out

TRANS = ('v_exp_f32', 'v_log_f32', 'v_rcp_f32', 'v_rsq_f32', 'v_sqrt_f32', 'v_sin_f32', 'v_cos_f32', 'v_rcp_iflag_f32')
RMW = ('v_fmac_f32', 'v_dot2c_f32_bf16', 'v_pk_fmac_f16', 'v_writelane_b32', 'v_fmac_f32_e32', 'v_fmac_f32_dpp')

class Ins:
    __slots__ = ('text', 'op', 'dst', 'src', 'kind', 'passes', 'srcC', 'srcAB', 'wide_store', 'sdata', 'is_label', 'label', 'target', 'dpp', 'lds_dma')
    def __init__(self, text):
        self.text = text
        self.is_label = False; self.label = None; self.target = None
        t = text.split(';')[0].strip()
        self.dst = set(); self.src = set(); self.kind = 'other'; self.passes = 0
        self.srcC = set(); self.srcAB = set(); self.wide_store = False; self.sdata = set(); self.dpp = False; self.lds_dma = False
        if t.endswith(':'):
            self.is_label = True; self.label = t[:-1]; self.op = 'label'; self.kind = 'label'; return
        if t.startswith('.') or t == '':
            self.op = 'directive'; self.kind = 'directive'; return
        parts = t.split(None, 1)
        op = parts[0]; self.op = op
        rest = parts[1] if len(parts) > 1 else ''
        ops = []; depth = 0; cur = ''
        for ch in rest:
            if ch == '[' or ch == '(':
                depth += 1
            if ch == ']' or ch == ')':
                depth -= 1
            if ch == ',' and depth == 0:
                ops.append(cur.strip()); cur = ''
            else:
                cur += ch
        if cur.strip(): ops.append(cur.strip())
        mods = ''
        if ops:
            last = ops[-1]; depth = 0
            for i, ch in enumerate(last):
                if ch in '[(': depth += 1
                if ch in '])': depth -= 1
                if ch == ' ' and depth == 0:
                    mods = last[i:]; ops[-1] = last[:i]; break
        base = re.sub(r'_(e32|e64|dpp|sdwa)$', '', op)
        R = regs_of
        if op.startswith('v_mfma'):
            self.kind = 'mfma'
            self.passes = 8 if '32x32' in op else 4
            self.dst = R(ops[0]); self.srcAB = R(ops[1]) | R(ops[2]); self.srcC = R(ops[3])
            self.src = self.srcAB | self.srcC
        elif op.startswith('v_cmp'):
            self.kind = 'valu'; self.dst = R(ops[0])
            for o in ops[1:]: self.src |= R(o)
            if op.startswith('v_cmpx'): self.dst.add(('s', 'exec'))
        elif op.startswith('v_permlane') and 'swap' in op:
            self.kind = 'permlane'; self.dst = R(ops[0]) | R(ops[1]); self.src = set(self.dst)
        elif base in ('v_readfirstlane_b32', 'v_readlane_b32'):
            self.kind = 'readlane'; self.dst = R(ops[0])
            for o in ops[1:]: self.src |= R(o)
        elif base in ('v_add_co_u32', 'v_sub_co_u32', 'v_addc_co_u32', 'v_subb_co_u32', 'v_subrev_co_u32'):
            self.kind = 'valu'; self.dst = R(ops[0]) | R(ops[1])
            for o in ops[2:]: self.src |= R(o)
        elif op.startswith('v_'):
            self.kind = 'trans' if base in TRANS else 'valu'
            self.dst = R(ops[0])
            for o in ops[1:]: self.src |= R(o)
            if base in RMW: self.src |= self.dst
            if base == 'v_cndmask_b32' and len(ops) == 3: self.src.add(('s', 'vcc'))
            if 'row_' in mods or 'wave_' in mods or 'quad_perm' in mods or op.endswith('_dpp'): self.dpp = True
            if self.dpp and ('bound_ctrl' not in mods): self.src |= self.dst
        elif op.startswith('ds_'):
            self.kind = 'ds'
            if op.startswith('ds_read') or op.startswith('ds_bpermute') or op.startswith('ds_permute') or op.startswith('ds_swizzle'):
                self.dst = R(ops[0])
                for o in ops[1:]: self.src |= R(o)
                if 'd16' in op: self.src |= self.dst
            else:
                for o in ops: self.src |= R(o)
        elif op.startswith('buffer_') or op.startswith('global_'):
            self.kind = 'vmem'
            lds = re.search(r'\blds\b', mods) is not None or '_lds_' in op
            if op in ('buffer_inv', 'buffer_wbl2'):
                pass
            elif 'load' in op and not lds:
                self.dst = R(ops[0])
                for o in ops[1:]: self.src |= R(o)
                if 'd16' in op: self.src |= self.dst
            elif 'load' in op and lds:
                self.lds_dma = True
                for o in ops: self.src |= R(o)
                self.src.add(('s', 'm0'))
            elif 'store' in op:
                for o in ops: self.src |= R(o)
                data = ops[0] if op.startswith('buffer_') else ops[1]
                self.sdata = R(data)
                self.wide_store = ('x3' in op or 'x4' in op)
            elif 'atomic' in op:
                for o in ops: self.src |= R(o)
                if re.search(r'\bsc0\b', mods): self.dst = R(ops[0])
        elif op.startswith('s_'):
            self.kind = 'salu'
            if op.startswith('s_cbranch') or op == 's_branch':
                self.kind = 'branch'; self.target = ops[0]
                if 'vcc' in op: self.src.add(('s', 'vcc'))
                if 'exec' in op: self.src.add(('s', 'exec'))
            elif op.startswith('s_cmp') or op.startswith('s_bitcmp'):
                for o in ops: self.src |= R(o)
            elif op in ('s_waitcnt', 's_nop', 's_barrier', 's_endpgm', 's_sleep', 's_setprio'):
                pass
            elif op.startswith('s_load') or op.startswith('s_memtime') or op.startswith('s_memrealtime') or op.startswith('s_buffer_load'):
                self.kind = 'smem'; self.dst = R(ops[0])
                for o in ops[1:]: self.src |= R(o)
            else:
                self.dst = R(ops[0])
                for o in ops[1:]: self.src |= R(o)
                if 'saveexec' in op: self.dst.add(('s', 'exec')); self.src.add(('s', 'exec'))
                if op in ('s_addk_i32', 's_mulk_i32'): self.src |= self.dst
        else:
            raise ValueError('unparsed: ' + text)

    def states(self):
        if self.kind in ('label', 'directive'): return 0
        if self.op == 's_nop':
            return int(self.text.split()[1], 0) + 1
        return 1

VALU_KINDS = ('valu', 'trans', 'permlane', 'readlane')

def vregs(s): return {r for r in s if r[0] in 'va'}
def sregs(s): return {r for r in s if r[0] == 's'}

def need(prod, cons):
    n = 0
    pv = prod.kind in VALU_KINDS
    if pv:
        wv = vregs(prod.dst); wsr = sregs(prod.dst)
        if cons.kind == 'mfma' and wv & cons.src: n = max(n, 2)
        if cons.kind in VALU_KINDS and cons.dpp and wv & cons.src: n = max(n, 2)
        if cons.kind == 'permlane' and wv & cons.src: n = max(n, 2)
        if cons.kind == 'readlane' and wv & cons.src: n = max(n, 1)
        if prod.kind == 'trans' and cons.kind in VALU_KINDS + ('mfma',) and wv & cons.src: n = max(n, 1)
        if wsr:
            if cons.kind in VALU_KINDS and wsr & cons.src: n = max(n, 4 if cons.kind == 'readlane' else 2)
            if cons.kind == 'vmem' and wsr & cons.src: n = max(n, 5)
            if ('s', 'exec') in wsr:
                if cons.kind == 'mfma': n = max(n, 4)
                if cons.dpp: n = max(n, 5)
                if cons.kind in ('readlane', 'permlane'): n = max(n, 4)
            if cons.kind in ('salu', 'branch', 'smem') and wsr & cons.src: n = max(n, 4)
    if prod.kind == 'mfma':
        p = prod.passes
        raw = {4: 8, 8: 12}[p]
        if cons.kind == 'mfma':
            if prod.dst & cons.srcAB: n = max(n, raw)
            if prod.dst & cons.srcC:
                if not (prod.dst == cons.srcC and prod.passes == cons.passes): n = max(n, {4: 6, 8: 10}[p])
            if prod.dst & cons.dst and not (prod.dst & cons.srcC):
                n = max(n, raw)
        elif cons.kind in VALU_KINDS:
            if prod.dst & (cons.src | cons.dst): n = max(n, raw)
            if prod.srcC & cons.dst: n = max(n, {4: 3, 8: 7}[p])
        elif cons.kind in ('vmem', 'ds'):
            if prod.dst & (cons.src | cons.dst): n = max(n, raw)
    if prod.kind == 'salu' and ('s', 'm0') in prod.dst:
        if cons.lds_dma: n = max(n, 1)
    if prod.kind == 'vmem' and prod.wide_store:
        if cons.kind in VALU_KINDS + ('mfma',) and prod.sdata & cons.dst: n = max(n, 2)
        elif prod.sdata & cons.dst: n = max(n, 2)
    return n

MAXW = 20

class Asm:
    def __init__(self):
        self.ins = []
        self.uid = 0
    def __call__(self, text):
        for line in text.split('\n'):
            line = line.strip()
            if line: self.ins.append(Ins(line))
    def label(self, name): self.ins.append(Ins(name + ':'))
    def newlabel(self, stem='L'):
        self.uid += 1
        return f'{stem}_{self.uid}'
    def raw(self, text):
        i = Ins('.x'); i.text = text; self.ins.append(i)

    def pad(self):
        out = []
        for x in self.ins:
            if x.kind in ('label', 'directive'):
                out.append(x); continue
            req = 0; dist = 0
            for y in reversed(out):
                if y.kind in ('label', 'directive'): continue
                if y.op in ('s_branch', 's_endpgm'): break
                r = need(y, x)
                if r > dist: req = max(req, r - dist)
                dist += y.states()
                if dist >= MAXW: break
            while req > 0:
                k = min(req, 16)
                out.append(Ins(f's_nop {k-1}')); req -= k
            out.append(x)
        self.ins = out
        labels = {x.label: i for i, x in enumerate(self.ins) if x.is_label}
        probs = []
        for i, x in enumerate(self.ins):
            if x.kind == 'branch' and x.target in labels:
                pre = []; d = 0; j = i
                while j >= 0 and d < MAXW:
                    y = self.ins[j]
                    if y.kind not in ('label', 'directive'):
                        pre.append(y); d += y.states()
                        if j != i and y.op in ('s_branch', 's_endpgm'): pre.pop(); break
                    j -= 1
                pre.reverse()
                j = labels[x.target]; d = 0
                seq = list(pre)
                while j < len(self.ins) and d < MAXW:
                    y = self.ins[j]
                    if y.kind not in ('label', 'directive'):
                        dist = 0
                        for z in reversed(seq):
                            r = need(z, y)
                            if r > dist: probs.append((z.text, y.text, r, dist))
                            dist += z.states()
                            if dist >= MAXW: break
                        seq.append(y); d += y.states()
                        if y.op in ('s_branch', 's_endpgm'): break
                    j += 1
        if probs:
            for p in probs[:20]: print('HAZARD on branch path:', p)
            raise SystemExit('hazards on branch paths')
    def text(self):
        return '\n'.join(('' if (x.is_label or x.kind == 'directive') else '  ') + x.text for x in self.ins) + '\n'

def vr(a, n=1):
    return f'v{a}' if n == 1 else f'v[{a}:{a+n-1}]'
def sr(a, n=1):
    return f's{a}' if n == 1 else f's[{a}:{a+n-1}]'

KD = """.section .rodata,"a"
.p2align 6
.amdhsa_kernel {name}
  .amdhsa_next_free_vgpr {vgpr}
  .amdhsa_next_free_sgpr {sgpr}
  .amdhsa_accum_offset {acc}
  .amdhsa_group_segment_fixed_size 0
  .amdhsa_kernarg_size 112
  .amdhsa_user_sgpr_count 2
  .amdhsa_user_sgpr_kernarg_segment_ptr 1
  .amdhsa_system_sgpr_workgroup_id_x 1
  .amdhsa_float_denorm_mode_32 3
.end_amdhsa_kernel
"""
```

```python
from asmlib import *
L=2048; D=640; F=1536; N=192
X_BYTES=L*D*2
WS_XNT=0x000000
WS_H  =0x300000
WS_W2P=0x900000
WS_AT =0xB00000
WS_FLAG=0xE00000
WS_SIZE=0x1000000
KA=dict(u=0,logA=8,Aim=16,Cre=24,Cim=32,logdt=40,Dskip=48,x=56,w1=64,w3=72,w2=80,out=88,dbg=96,ws=104)

def srd(a, q, ptr, nbytes):
    a(f"s_mov_b32 s{q}, s{ptr}")
    a(f"s_and_b32 s{q+1}, s{ptr+1}, 0xffff")
    a(f"s_mov_b32 s{q+2}, {hex(nbytes)}")
    a(f"s_mov_b32 s{q+3}, 0x20000")

class LdsTrack:
    def __init__(s, a): s.a=a; s.q=[]
    def issue(s, text, tag=None):
        s.a(text); s.q.append(tag)
    def wait(s, tag):
        idx=[i for i,t in enumerate(s.q) if t==tag]
        if not idx: return
        n=len(s.q)-1-idx[-1]
        n=min(n,15)
        s.a(f"s_waitcnt lgkmcnt({n})")
        s.q=s.q[len(s.q)-n:] if n>0 else []
    def wait_all(s):
        s.a("s_waitcnt lgkmcnt(0)"); s.q=[]

class VmTrack:
    def __init__(s, a): s.a=a; s.q=[]
    def issue(s, text, tag=None):
        s.a(text); s.q.append(tag)
    def wait(s, tag):
        idx=[i for i,t in enumerate(s.q) if t==tag]
        if not idx: return
        n=len(s.q)-1-idx[-1]
        assert n<=63
        s.a(f"s_waitcnt vmcnt({n})")
        s.q=s.q[len(s.q)-n:] if n>0 else []
    def wait_all(s):
        s.a("s_waitcnt vmcnt(0)"); s.q=[]
```

```python
from common import *
def emit_down(a, sT, sCT, SWS, SX, SOUT, ldw='', ldh='', lda='', sb=40, wait_h=None, wait_a=None):
    lane=1; t0=2; t1=3; vL16=4; vRed=5; vXo=6; vAt=7
    ACC=64
    FB=[144,180,216]
    sWv=sb; sA=sb+1 ; sB=sb+6; sTmp=sb+10; sTmp2=sb+11
    a(f"v_and_b32 v{lane}, 63, v0")
    a(f"v_lshrrev_b32 v{t0}, 6, v0")
    a(f"v_readfirstlane_b32 s{sWv}, v{t0}")
    a(f"v_lshlrev_b32 v{vL16}, 4, v{lane}")
    a(f"s_mul_i32 s{sTmp}, s{sWv}, {12*1024}")
    a(f"s_mul_i32 s{sTmp2}, s{sCT}, {5*49152}")
    a(f"s_add_u32 s{sTmp2}, s{sTmp2}, s{sTmp}")
    for m in range(5): a(f"s_add_u32 s{sA+m}, s{sTmp2}, {WS_W2P+m*49152}")
    a(f"s_mul_i32 s{sTmp2}, s{sT}, {4*49152}")
    a(f"s_add_u32 s{sTmp2}, s{sTmp2}, s{sTmp}")
    for n in range(4): a(f"s_add_u32 s{sB+n}, s{sTmp2}, {WS_H+n*49152}")
    for r in range(80): a(f"v_mov_b32 v{ACC+r}, 0")
    vt=VmTrack(a)
    def loadA(k):
        fb=FB[k%3]
        for m in range(5):
            vt.issue(f"buffer_load_dwordx4 v[{fb+4*m}:{fb+4*m+3}], v{vL16}, s[{SWS}:{SWS+3}], s{sA+m} offen offset:{(k%4)*1024}{ldw}", f"k{k}")
        if k%4==3:
            for m in range(5): a(f"s_add_u32 s{sA+m}, s{sA+m}, 4096")
    def loadB(k):
        fb=FB[k%3]
        for n in range(4):
            vt.issue(f"buffer_load_dwordx4 v[{fb+20+4*n}:{fb+20+4*n+3}], v{vL16}, s[{SWS}:{SWS+3}], s{sB+n} offen offset:{(k%4)*1024}{ldh}", f"k{k}")
        if k%4==3:
            for n in range(4): a(f"s_add_u32 s{sB+n}, s{sB+n}, 4096")
    loadA(0); loadA(1)
    if wait_h: wait_h()
    loadB(0); loadB(1)
    a(f"v_and_b32 v{t0}, 15, v{lane}")
    a(f"s_lshl_b32 s{sTmp}, s{sT}, 6")
    a(f"s_lshl_b32 s{sTmp2}, s{sWv}, 4")
    a(f"s_add_u32 s{sTmp}, s{sTmp}, s{sTmp2}")
    a(f"v_add_u32 v{t0}, s{sTmp}, v{t0}")
    a(f"v_lshrrev_b32 v{t1}, 4, v{lane}")
    a(f"v_mul_u32_u24 v{vXo}, 1280, v{t0}")
    a(f"v_lshl_add_u32 v{vXo}, v{t1}, 3, v{vXo}")
    a(f"s_mul_i32 s{sTmp}, s{sCT}, 160")
    a(f"v_add_u32 v{vXo}, s{sTmp}, v{vXo}")
    a(f"v_lshlrev_b32 v{vAt}, 14, v{t1}")
    a(f"v_lshl_add_u32 v{vAt}, v{t0}, 1, v{vAt}")
    a(f"s_mul_i32 s{sTmp}, s{sCT}, {80*4096}")
    a(f"s_add_u32 s{sTmp}, s{sTmp}, {WS_AT}")
    a(f"v_add_u32 v{vAt}, s{sTmp}, v{vAt}")
    for k in range(12):
        if k+2<12:
            loadA(k+2); loadB(k+2)
        vt.wait(f"k{k}")
        fb=FB[k%3]
        for n in range(4):
            for m in range(5):
                d=ACC+4*(m*4+n)
                a(f"v_mfma_f32_16x16x32_bf16 v[{d}:{d+3}], v[{fb+4*m}:{fb+4*m+3}], v[{fb+20+4*n}:{fb+20+4*n+3}], v[{d}:{d+3}]")
    XR=144; AR=156
    if wait_a: wait_a()
    for m in range(5):
        a(f"buffer_load_dwordx2 v[{XR+2*m}:{XR+2*m+1}], v{vXo}, s[{SX}:{SX+3}], 0 offen offset:{32*m}")
    for m in range(5):
        for r in range(4):
            a(f"s_mov_b32 s{sTmp}, {(16*m+r)*4096}")
            a(f"buffer_load_ushort v{AR+4*m+r}, v{vAt}, s[{SWS}:{SWS+3}], s{sTmp} offen{lda}")
    a(f"v_mov_b32 v{vRed}, v{vL16}")
    for dn in range(1,4):
        pass
    labs=[a.newlabel('Lred') for _ in range(4)]; lend=a.newlabel('Lrede')
    for w in range(4):
        if w<3:
            a(f"s_cmp_lg_u32 s{sWv}, {w}")
            a(f"s_cbranch_scc1 {labs[w+1]}")
        for n in range(4):
            if n==w: continue
            si=(w-n-1)%4
            for m in range(5):
                d=ACC+4*(m*4+n)
                a(f"ds_write_b128 v{vRed}, v[{d}:{d+3}] offset:{((n*3+si)*5+m)*1024}")
        for m in range(5):
            d=ACC+4*(m*4+w)
            for r in range(4): a(f"v_mov_b32 v{200+4*m+r}, v{d+r}")
        a(f"s_branch {lend}")
        if w<3: a.label(labs[w+1])
    a.label(lend)
    a("s_waitcnt lgkmcnt(0)")
    a("s_barrier")
    a(f"s_mul_i32 s{sTmp}, s{sWv}, {15*1024}")
    a(f"v_add_u32 v{vRed}, s{sTmp}, v{vL16}")
    RB=64
    for si in range(3):
        for m in range(5):
            a(f"ds_read_b128 v[{RB+(si*5+m)*4}:{RB+(si*5+m)*4+3}], v{vRed} offset:{(si*5+m)*1024}")
    for si in range(3):
        a(f"s_waitcnt lgkmcnt({10-5*si})")
        for m in range(5):
            for p in range(2):
                x=200+4*m+2*p; y=RB+(si*5+m)*4+2*p
                a(f"v_pk_add_f32 v[{x}:{x+1}], v[{x}:{x+1}], v[{y}:{y+1}]")
    a("s_waitcnt vmcnt(0)")
    T=128
    for m in range(5):
        x0=XR+2*m
        a(f"v_lshlrev_b32 v{T}, 16, v{x0}\nv_and_b32 v{T+1}, 0xffff0000, v{x0}")
        a(f"v_lshlrev_b32 v{T+2}, 16, v{x0+1}\nv_and_b32 v{T+3}, 0xffff0000, v{x0+1}")
        for r in range(4): a(f"v_lshlrev_b32 v{AR+4*m+r}, 16, v{AR+4*m+r}")
        for p in range(2): a(f"v_pk_add_f32 v[{T+2*p}:{T+2*p+1}], v[{T+2*p}:{T+2*p+1}], v[{AR+4*m+2*p}:{AR+4*m+2*p+1}]")
        for p in range(2): a(f"v_cvt_pk_bf16_f32 v{T+4+p}, v{T+2*p}, v{T+2*p+1}")
        for p in range(2): a(f"v_cvt_pk_bf16_f32 v{T+6+p}, v{200+4*m+2*p}, v{200+4*m+2*p+1}")
        for p in range(2):
            a(f"v_lshlrev_b32 v{T}, 16, v{T+4+p}\nv_and_b32 v{T+1}, 0xffff0000, v{T+4+p}")
            a(f"v_lshlrev_b32 v{T+2}, 16, v{T+6+p}\nv_and_b32 v{T+3}, 0xffff0000, v{T+6+p}")
            a(f"v_pk_add_f32 v[{T}:{T+1}], v[{T}:{T+1}], v[{T+2}:{T+3}]")
            a(f"v_cvt_pk_bf16_f32 v{T+8+2*(m%2)+p}, v{T}, v{T+1}")
        o=T+8+2*(m%2)
        a(f"buffer_store_dwordx2 v[{o}:{o+1}], v{vXo}, s[{SOUT}:{SOUT+3}], 0 offen offset:{32*m}")
```

```python
from common import *
def emit_ln(a, sLam, SX, SWS, st='', vb=1, sb=40, ldsbase=0):
    v=lambda i: vb+i
    lane=v(0); w=v(1); off=v(2); t0=v(3); t1=v(4); mu=v(6);
    acc=v(8)
    rr=v(10)
    raw=[v(12),v(16),v(20)]
    Xr=v(24)
    ldsa=v(48); tra=v(49); sto=v(50); outb=v(52)
    sM=sb
    assert vb%2==1 or True
    a(f"v_and_b32 v{lane}, 63, v0")
    a(f"v_lshrrev_b32 v{w}, 6, v0")
    a(f"v_lshrrev_b32 v{t0}, 5, v{lane}")
    a(f"v_lshl_add_u32 v{t0}, v{w}, 1, v{t0}")
    a(f"s_lshl_b32 s{sb+2}, s{sLam}, 3")
    a(f"v_add_u32 v{t1}, s{sb+2}, v{t0}")
    a(f"s_movk_i32 s{sb+3}, 1280")
    a(f"v_mul_lo_u32 v{off}, v{t1}, s{sb+3}")
    a(f"v_and_b32 v{t1}, 31, v{lane}")
    a(f"v_lshl_add_u32 v{off}, v{t1}, 4, v{off}")
    a(f"s_mov_b32 s{sM}, 0x0000ffff\ns_mov_b32 s{sM+1}, 0x0000ffff")
    for r in range(4): a(f"v_mov_b32 v{raw[2]+r}, 0")
    a(f"buffer_load_dwordx4 v[{raw[0]}:{raw[0]+3}], v{off}, s[{SX}:{SX+3}], 0 offen")
    a(f"buffer_load_dwordx4 v[{raw[1]}:{raw[1]+3}], v{off}, s[{SX}:{SX+3}], 0 offen offset:512")
    a(f"s_mov_b64 exec, s[{sM}:{sM+1}]")
    a(f"buffer_load_dwordx4 v[{raw[2]}:{raw[2]+3}], v{off}, s[{SX}:{SX+3}], 0 offen offset:1024")
    a(f"s_mov_b64 exec, -1")
    a(f"s_movk_i32 s{sb+3}, 1344")
    a(f"v_mul_lo_u32 v{ldsa}, v{t0}, s{sb+3}")
    a(f"v_lshl_add_u32 v{ldsa}, v{t1}, 4, v{ldsa}")
    if ldsbase: a(f"v_add_u32 v{ldsa}, {ldsbase}, v{ldsa}")
    a(f"v_bfe_u32 v{t0}, v{lane}, 2, 2")
    a(f"v_mul_lo_u32 v{tra}, v{t0}, s{sb+3}")
    a(f"v_lshrrev_b32 v{t0}, 4, v{lane}")
    a(f"v_lshl_add_u32 v{tra}, v{t0}, 5, v{tra}")
    a(f"v_and_b32 v{t1}, 3, v{lane}")
    a(f"v_lshl_add_u32 v{tra}, v{t1}, 3, v{tra}")
    a(f"v_lshl_add_u32 v{tra}, v{w}, 7, v{tra}")
    if ldsbase: a(f"v_add_u32 v{tra}, {ldsbase}, v{tra}")
    a(f"v_bfe_u32 v{t1}, v{lane}, 3, 1")
    a(f"v_lshl_add_u32 v{t1}, v{t0}, 1, v{t1}")
    a(f"v_lshlrev_b32 v{sto}, 15, v{t1}")
    a(f"v_and_b32 v{t1}, 7, v{lane}")
    a(f"v_lshl_add_u32 v{sto}, v{t1}, 4, v{sto}")
    a(f"v_lshl_add_u32 v{sto}, v{w}, 18, v{sto}")
    a(f"s_lshl_b32 s{sb+2}, s{sLam}, 7")
    if WS_XNT: a(f"s_add_u32 s{sb+2}, s{sb+2}, {WS_XNT}")
    a(f"v_add_u32 v{sto}, s{sb+2}, v{sto}")
    a("s_waitcnt vmcnt(0)")
    for i in range(3):
        for r in range(4):
            a(f"v_lshlrev_b32 v{Xr+8*i+2*r}, 16, v{raw[i]+r}")
            a(f"v_and_b32 v{Xr+8*i+2*r+1}, 0xffff0000, v{raw[i]+r}")
    a(f"v_pk_add_f32 v[{acc}:{acc+1}], v[{Xr}:{Xr+1}], v[{Xr+2}:{Xr+3}]")
    for p in range(2,12):
        a(f"v_pk_add_f32 v[{acc}:{acc+1}], v[{acc}:{acc+1}], v[{Xr+2*p}:{Xr+2*p+1}]")
    def reduce32(r, tmp):
        for sh in (8,4,2,1):
            a(f"v_add_f32_dpp v{r}, v{r}, v{r} row_ror:{sh} row_mask:0xf bank_mask:0xf")
        a(f"v_mov_b32 v{tmp}, v{r}")
        a(f"v_permlane16_swap_b32 v{r}, v{tmp}")
        a(f"v_add_f32 v{r}, v{r}, v{tmp}")
    a(f"v_add_f32 v{mu}, v{acc}, v{acc+1}")
    reduce32(mu, t0)
    a(f"v_mul_f32 v{mu}, {hex(0x3acccccd)}, v{mu}")
    for p in range(8):
        a(f"v_pk_add_f32 v[{Xr+2*p}:{Xr+2*p+1}], v[{Xr+2*p}:{Xr+2*p+1}], v[{mu}:{mu+1}] op_sel_hi:[1,0] neg_lo:[0,1] neg_hi:[0,1]")
    a(f"s_mov_b64 exec, s[{sM}:{sM+1}]")
    for p in range(8,12):
        a(f"v_pk_add_f32 v[{Xr+2*p}:{Xr+2*p+1}], v[{Xr+2*p}:{Xr+2*p+1}], v[{mu}:{mu+1}] op_sel_hi:[1,0] neg_lo:[0,1] neg_hi:[0,1]")
    a(f"s_mov_b64 exec, -1")
    a(f"v_pk_mul_f32 v[{acc}:{acc+1}], v[{Xr}:{Xr+1}], v[{Xr}:{Xr+1}]")
    for p in range(1,12):
        a(f"v_pk_fma_f32 v[{acc}:{acc+1}], v[{Xr+2*p}:{Xr+2*p+1}], v[{Xr+2*p}:{Xr+2*p+1}], v[{acc}:{acc+1}]")
    a(f"v_add_f32 v{rr}, v{acc}, v{acc+1}")
    reduce32(rr, t0)
    a(f"v_mul_f32 v{rr}, {hex(0x3acccccd)}, v{rr}")
    def rbf(r):
        a(f"v_cvt_pk_bf16_f32 v{r}, v{r}, v{r}")
        a(f"v_and_b32 v{r}, 0xffff0000, v{r}")
    rbf(rr)
    a(f"v_add_f32 v{rr}, {hex(0x3727c5ac)}, v{rr}")
    rbf(rr)
    a(f"v_sqrt_f32 v{rr}, v{rr}")
    rbf(rr)
    a(f"v_rcp_f32 v{rr}, v{rr}")
    for p in range(12):
        a(f"v_pk_mul_f32 v[{Xr+2*p}:{Xr+2*p+1}], v[{Xr+2*p}:{Xr+2*p+1}], v[{rr}:{rr+1}] op_sel_hi:[1,0]")
    for i in range(3):
        for r in range(4):
            a(f"v_cvt_pk_bf16_f32 v{raw[i]+r}, v{Xr+8*i+2*r}, v{Xr+8*i+2*r+1}")
    a(f"ds_write_b128 v{ldsa}, v[{raw[0]}:{raw[0]+3}]")
    a(f"ds_write_b128 v{ldsa}, v[{raw[1]}:{raw[1]+3}] offset:512")
    a(f"s_mov_b64 exec, s[{sM}:{sM+1}]")
    a(f"ds_write_b128 v{ldsa}, v[{raw[2]}:{raw[2]+3}] offset:1024")
    a(f"s_mov_b64 exec, -1")
    a("s_waitcnt lgkmcnt(0)")
    a("s_barrier")
    a(f"v_readfirstlane_b32 s{sb+4}, v{w}")
    for j in range(2):
        for q in range(2):
            a(f"ds_read_b64_tr_b16 v[{outb+4*j+2*q}:{outb+4*j+2*q+1}], v{tra} offset:{q*5376+j*512}")
    lab=a.newlabel('Lln'+st)
    a(f"s_cmp_ge_u32 s{sb+4}, 2")
    a(f"s_cbranch_scc1 {lab}")
    for q in range(2):
        a(f"ds_read_b64_tr_b16 v[{outb+8+2*q}:{outb+8+2*q+1}], v{tra} offset:{q*5376+2*512}")
    a("s_waitcnt lgkmcnt(0)")
    a(f"s_mov_b32 s{sb+5}, {2*4*262144}")
    a(f"buffer_store_dwordx4 v[{outb+8}:{outb+11}], v{sto}, s[{SWS}:{SWS+3}], s{sb+5} offen{st}")
    a.label(lab)
    a("s_waitcnt lgkmcnt(0)")
    a(f"s_mov_b32 s{sb+5}, {4*262144}")
    a(f"buffer_store_dwordx4 v[{outb}:{outb+3}], v{sto}, s[{SWS}:{SWS+3}], 0 offen{st}")
    a(f"buffer_store_dwordx4 v[{outb+4}:{outb+7}], v{sto}, s[{SWS}:{SWS+3}], s{sb+5} offen{st}")

def emit_pack_w2(a, sUnit, sLds, SW2, SWS, st='', vb=1, sb=48):
    v=lambda i: vb+i
    lane=v(0); ga=v(1); t0=v(2); t1=v(3); ra=v(4); so=v(5); d=v(7)
    if d%2: d+=1
    sS=sb; sLg=sb+1; sT=sb+2; sO=sb+3
    a(f"v_and_b32 v{lane}, 63, v0")
    a(f"s_mul_i32 s{sS}, s{sUnit}, 6554\ns_lshr_b32 s{sS}, s{sS}, 16")
    a(f"s_mul_i32 s{sT}, s{sS}, 10\ns_sub_u32 s{sLg}, s{sUnit}, s{sT}")
    a(f"v_lshrrev_b32 v{t0}, 3, v{lane}")
    a(f"v_mul_u32_u24 v{ga}, 1280, v{t0}")
    a(f"v_and_b32 v{t1}, 7, v{lane}")
    a(f"v_lshl_add_u32 v{ga}, v{t1}, 4, v{ga}")
    a(f"s_mul_i32 s{sT}, s{sS}, {32*1280}")
    a(f"s_lshl_b32 s{sO}, s{sLg}, 7\ns_add_u32 s{sT}, s{sT}, s{sO}")
    for i in range(4):
        a(f"s_add_u32 m0, s{sLds}, {i*1024}")
        a(f"buffer_load_dwordx4 v{ga}, s[{SW2}:{SW2+3}], s{sT} offen lds")
        if i<3: a(f"s_add_u32 s{sT}, s{sT}, {8*1280}")
    a(f"v_lshrrev_b32 v{t0}, 4, v{lane}")
    a(f"v_lshlrev_b32 v{ra}, 3, v{t0}")
    a(f"v_bfe_u32 v{t1}, v{lane}, 2, 2")
    a(f"v_add_u32 v{ra}, v{ra}, v{t1}")
    a(f"v_lshlrev_b32 v{ra}, 7, v{ra}")
    a(f"v_and_b32 v{t1}, 3, v{lane}")
    a(f"v_lshl_add_u32 v{ra}, v{t1}, 3, v{ra}")
    a(f"v_add_u32 v{ra}, s{sLds}, v{ra}")
    a(f"v_lshlrev_b32 v{so}, 4, v{lane}")
    a(f"s_mul_i32 s{sT}, s{sLg}, {4*49152}")
    a(f"s_lshl_b32 s{sO}, s{sS}, 10\ns_add_u32 s{sT}, s{sT}, s{sO}")
    a(f"s_add_u32 s{sT}, s{sT}, {WS_W2P}")
    a("s_waitcnt vmcnt(0)")
    for mt in range(4):
        for q in range(2):
            a(f"ds_read_b64_tr_b16 v[{d+4*mt+2*q}:{d+4*mt+2*q+1}], v{ra} offset:{q*512+mt*32}")
    for mt in range(4):
        a(f"s_waitcnt lgkmcnt({6-2*mt})")
        a(f"buffer_store_dwordx4 v[{d+4*mt}:{d+4*mt+3}], v{so}, s[{SWS}:{SWS+3}], s{sT} offen{st}")
        if mt<3: a(f"s_add_u32 s{sT}, s{sT}, 49152")
```

```python
from common import *
TBL=18432
ROW=288
KN_OFF=[0, 32448, 36864, 69312]
U_OFF=4416
R_OFF=[U_OFF+18432, 41280, 41280+8448, 41280+2*8448]
RC=2112
LOG2E=0x3fb8aa3b
INV2PI=0x3e22f983

def cmul(a, d, x, w):
    a(f"v_pk_mul_f32 v[{d}:{d+1}], v[{x}:{x+1}], v[{w}:{w+1}] op_sel:[0,0] op_sel_hi:[0,1]")
    a(f"v_pk_fma_f32 v[{d}:{d+1}], v[{x}:{x+1}], v[{w}:{w+1}], v[{d}:{d+1}] op_sel:[1,1,0] op_sel_hi:[1,0,1] neg_lo:[0,1,0]")

def emit_ssm(a, sQ, SWS, SP, sPtrDt, sPtrD, st='', ld='', sb=56, wait_x=None):
    sWv=sb; sCh=sb+1; sTmp=sb+2; sTmp2=sb+3; sDt=sb+4; sD=sb+5; sTb=sb+6; sCnt=sb+7; sPo=sb+8; sKn=sb+9; sR=sb+10; sMask=sb+12; sBf=sb+14
    lane=1; t0=2; t1=3; vP=4; vTw=5; vTrA=6; vTrB=7
    a(f"v_and_b32 v{lane}, 63, v0")
    a(f"v_lshrrev_b32 v{t0}, 6, v0")
    a(f"v_readfirstlane_b32 s{sWv}, v{t0}")
    a(f"s_lshl_b32 s{sCh}, s{sQ}, 2")
    a(f"s_add_u32 s{sCh}, s{sCh}, s{sWv}")
    a(f"s_lshr_b32 s{sTmp}, s{sCh}, 1\ns_lshl_b32 s{sTmp}, s{sTmp}, 2")
    a(f"s_load_dword s{sDt}, s[{sPtrDt}:{sPtrDt+1}], s{sTmp}")
    a(f"s_load_dword s{sD}, s[{sPtrD}:{sPtrD+1}], s{sTmp}")
    PR=8
    a(f"s_mul_i32 s{sPo}, s{sCh}, 384")
    a(f"v_lshlrev_b32 v{vP}, 1, v{lane}")
    for p in range(3):
        for i,nm in enumerate(("logA","Aim","Cre","Cim")):
            a(f"buffer_load_ushort v{PR+4*p+i}, v{vP}, s[{SP[nm]}:{SP[nm]+3}], s{sPo} offen offset:{128*p}")
    a(f"s_mul_i32 s{sTb}, s{sWv}, {TBL}")
    a(f"v_mul_u32_u24 v{vTw}, {ROW}, v{lane}")
    a(f"v_add_u32 v{vTw}, s{sTb}, v{vTw}")
    a(f"v_bfe_u32 v{t0}, v{lane}, 4, 1")
    a(f"v_lshlrev_b32 v{t0}, 2, v{t0}")
    a(f"v_bfe_u32 v{t1}, v{lane}, 2, 2")
    a(f"v_add_u32 v{t0}, v{t0}, v{t1}")
    a(f"v_mul_u32_u24 v{vTrA}, {ROW}, v{t0}")
    a(f"v_and_b32 v{t1}, 3, v{lane}")
    a(f"v_lshl_add_u32 v{vTrA}, v{t1}, 3, v{vTrA}")
    a(f"v_add_u32 v{vTrA}, s{sTb}, v{vTrA}")
    a(f"v_lshrrev_b32 v{t0}, 5, v{lane}")
    a(f"v_mul_u32_u24 v{t1}, 32, v{t0}")
    a(f"v_add_u32 v{vTrB}, v{vTrA}, v{t1}")
    a(f"v_add_u32 v{vTrB}, 192, v{vTrB}")
    a(f"v_mul_u32_u24 v{t1}, 96, v{t0}")
    a(f"v_add_u32 v{vTrA}, v{vTrA}, v{t1}")
    vDt=20; vDs=21
    a("s_waitcnt lgkmcnt(0)")
    a(f"s_and_b32 s{sTmp}, s{sCh}, 1\ns_lshl_b32 s{sTmp}, s{sTmp}, 4")
    a(f"s_lshr_b32 s{sDt}, s{sDt}, s{sTmp}\ns_lshl_b32 s{sDt}, s{sDt}, 16")
    a(f"s_lshr_b32 s{sD}, s{sD}, s{sTmp}\ns_lshl_b32 s{sD}, s{sD}, 16")
    a(f"v_mov_b32 v{vDt}, s{sDt}")
    a(f"v_mul_f32 v{vDt}, {hex(LOG2E)}, v{vDt}")
    a(f"v_exp_f32 v{vDt}, v{vDt}")
    a(f"v_cvt_pk_bf16_f32 v{vDt}, v{vDt}, v{vDt}")
    a(f"v_and_b32 v{vDt}, 0xffff0000, v{vDt}")
    KACC=24
    for r in range(12): a(f"v_mov_b32 v{KACC+r}, 0")
    CUR=36
    AR=40; TH=41; Z1=42; Z8=44; Z128=46; M=48; TT=49
    H=52
    S1=84
    S2=100
    S3=116
    Lr=136
    PK=172
    FR=204
    a("s_waitcnt vmcnt(0)")
    a(f"s_mov_b32 s{sCnt}, 3")
    lab=a.newlabel('Lkg'); a.label(lab)
    for i in range(4): a(f"v_lshlrev_b32 v{CUR+i}, 16, v{PR+i}")
    for i in range(8): a(f"v_mov_b32 v{PR+i}, v{PR+4+i}")
    a(f"v_mul_f32 v{AR}, {hex(LOG2E)}, v{CUR}")
    a(f"v_exp_f32 v{AR}, v{AR}")
    a(f"v_cvt_pk_bf16_f32 v{AR}, v{AR}, v{AR}")
    a(f"v_and_b32 v{AR}, 0xffff0000, v{AR}")
    a(f"v_mul_f32 v{AR}, v{AR}, v{vDt}")
    a(f"v_mul_f32 v{AR}, {hex(LOG2E|0x80000000)}, v{AR}")
    a(f"v_mul_f32 v{TH}, v{CUR+1}, v{vDt}")
    a(f"v_mul_f32 v{TH}, {hex(INV2PI)}, v{TH}")
    def zpow(dst, mult):
        if mult==1:
            a(f"v_exp_f32 v{M}, v{AR}")
            a(f"v_fract_f32 v{TT}, v{TH}")
        else:
            a(f"v_mul_f32 v{M}, {float(mult)}, v{AR}" if mult in (2,4) else f"v_mul_f32 v{M}, {hex(0x41000000)}, v{AR}")
            a(f"v_exp_f32 v{M}, v{M}")
            a(f"v_mul_f32 v{TT}, {hex(0x41000000)}, v{TH}")
            a(f"v_fract_f32 v{TT}, v{TT}")
        a(f"v_cos_f32 v{dst}, v{TT}")
        a(f"v_sin_f32 v{dst+1}, v{TT}")
        a(f"v_mul_f32 v{dst}, v{M}, v{dst}")
        a(f"v_mul_f32 v{dst+1}, v{M}, v{dst+1}")
    zpow(Z1,1); zpow(Z8,8)
    a(f"v_add_f32 v{M}, v{vDt}, v{vDt}")
    a(f"v_mul_f32 v{H}, v{CUR+2}, v{M}")
    a(f"v_mul_f32 v{H+1}, v{CUR+3}, v{M}")
    a(f"v_mov_b32 v{Lr}, 1.0\nv_mov_b32 v{Lr+1}, 0")
    a(f"v_mov_b32 v{Lr+2}, v{Z8}\nv_mov_b32 v{Lr+3}, v{Z8+1}")
    for j in range(2,17):
        cmul(a, Lr+2*j, Lr+2*(j-1), Z8)
        if j<=8:
            r=j-1
            cmul(a, H+2*r, H+2*(r-1), Z1)
    z128=Lr+32
    for r in range(8): cmul(a, H+2*(8+r), H+2*r, z128)
    for r in range(4): cmul(a, S1+2*r, H+2*(8+2*r), z128)
    for r in range(4): cmul(a, S1+2*(4+r), S1+2*r, z128)
    cmul(a, S2, S1+8, z128); cmul(a, S2+2, S1+8+4, z128)
    for i in range(1,4):
        for r in range(2): cmul(a, S2+4*i+2*r, S2+4*(i-1)+2*r, z128)
    cmul(a, S3, S2+12, z128)
    for i in range(1,9): cmul(a, S3+2*i, S3+2*(i-1), z128)
    a(f"v_mov_b32 v{S3+18}, 0\nv_mov_b32 v{S3+19}, 0")
    rows=[H+2*i for i in range(16)]+[S1+2*i for i in range(8)]+[S2+2*i for i in range(8)]+[S3+2*i for i in range(10)]
    pk=0
    def flush(regs, off):
        pass
    nchunk=0
    def write_plane(vals, im, neg, off0):
        nonlocal nchunk
        n=len(vals)
        for c0 in range(0,n,8):
            part=vals[c0:c0+8]
            base=PK+4*(nchunk%8); nchunk+=1
            cnt=(len(part)+1)//2
            for p in range(cnt):
                x=part[2*p]+im; y=part[2*p+1]+im
                if neg: a(f"v_cvt_pk_bf16_f32 v{base+p}, -v{x}, -v{y}")
                else: a(f"v_cvt_pk_bf16_f32 v{base+p}, v{x}, v{y}")
            if cnt==4: a(f"ds_write_b128 v{vTw}, v[{base}:{base+3}] offset:{off0+c0*2}")
            elif cnt==1: a(f"ds_write_b32 v{vTw}, v{base} offset:{off0+c0*2}")
            else: raise ValueError(cnt)
    write_plane(rows,0,False,0)
    write_plane(rows,1,True,96)
    Lrows=[Lr+2*j for j in range(16)]
    write_plane(Lrows,0,False,192)
    write_plane(Lrows,1,False,224)
    a("s_waitcnt lgkmcnt(0)")
    for s in range(4):
        fb=FR+16*(s%2)
        lt=LdsTrack(a)
        for q in range(2):
            a(f"ds_read_b64_tr_b16 v[{fb+12+2*q}:{fb+12+2*q+1}], v{vTrB} offset:{(16*s+8*q)*ROW}")
        for t in range(3):
            for q in range(2):
                a(f"ds_read_b64_tr_b16 v[{fb+4*t+2*q}:{fb+4*t+2*q+1}], v{vTrA} offset:{(16*s+8*q)*ROW+32*t}")
        for t in range(3):
            a(f"s_waitcnt lgkmcnt({4-2*t})")
            a(f"v_mfma_f32_16x16x32_bf16 v[{KACC+4*t}:{KACC+4*t+3}], v[{fb+4*t}:{fb+4*t+3}], v[{fb+12}:{fb+15}], v[{KACC+4*t}:{KACC+4*t+3}]")
    a(f"s_sub_u32 s{sCnt}, s{sCnt}, 1")
    a(f"s_cmp_lg_u32 s{sCnt}, 0")
    a("s_nop 4")
    a(f"s_cbranch_scc1 {lab}")
    for w in range(4):
        pass
    a(f"s_mov_b32 s{sKn}, {KN_OFF[0]}\ns_mov_b32 s{sR}, {R_OFF[0]}")
    for w in range(1,4):
        a(f"s_cmp_eq_u32 s{sWv}, {w}\ns_cselect_b32 s{sKn}, {KN_OFF[w]}, s{sKn}\ns_cselect_b32 s{sR}, {R_OFF[w]}, s{sR}")
    vJ=36; vG=37; vK=38; vK2=39; B=40
    a(f"v_and_b32 v{vJ}, 15, v{lane}")
    a(f"v_lshrrev_b32 v{vG}, 4, v{lane}")
    a(f"v_lshlrev_b32 v{vK}, 2, v{lane}")
    a(f"v_add_u32 v{vK}, s{sKn}, v{vK}")
    a(f"v_mov_b32 v{B}, 0")
    a(f"s_mov_b64 s[{sMask}:{sMask+1}], 0xfff")
    a(f"s_mov_b64 exec, s[{sMask}:{sMask+1}]")
    a(f"ds_write_b32 v{vK}, v{B}")
    a(f"s_mov_b64 exec, -1")
    a(f"v_lshlrev_b32 v{vK}, 4, v{vJ}")
    a(f"v_add_u32 v{vK}, s{sKn}, v{vK}")
    a(f"v_add_u32 v{vK}, 48, v{vK}")
    T2=KACC+8
    a(f"v_lshlrev_b32 v{vK2}, 10, v{vG}")
    a(f"v_add_u32 v{vK2}, v{vK}, v{vK2}")
    a(f"v_add_u32 v{vK2}, 2048, v{vK2}")
    a(f"v_and_b32 v{t0}, 1, v{vJ}")
    a(f"v_lshlrev_b32 v{t0}, 3, v{t0}")
    a(f"v_sub_u32 v{t1}, v{vK2}, v{t0}")
    for r in range(4):
        a(f"v_cvt_pk_bf16_f32 v{B+2*r}, v{T2+r}, v{T2+r}")
        a(f"v_mov_b32 v{B+2*r+1}, v{B+2*r}")
    def seg3(r):
        a(f"ds_write_b64 v{vK2}, v[{B+2*r}:{B+2*r+1}] offset:{r*256}")
    a(f"v_subrev_u32 v{vK2}, 8, v{vK2}")
    for r in range(4):
        a(f"s_mov_b64 exec, {hex(0x1ffffffff) if r==0 else hex(0xffffffff)}" if False else f"s_mov_b32 exec_lo, -1\ns_mov_b32 exec_hi, {1 if r==0 else 0}")
        a(f"ds_write_b64 v{vK2}, v[{B+2*r}:{B+2*r+1}] offset:{r*256}")
        a(f"ds_write_b64 v{vK2}, v[{B+2*r}:{B+2*r+1}] offset:{r*256+8}")
    for r in range(4):
        a(f"s_mov_b32 exec_lo, -1\ns_mov_b32 exec_hi, {1 if r==0 else 0}")
        a(f"ds_write_b16 v{t1}, v{B+2*r} offset:{r*256+8}")
    a("s_mov_b64 exec, -1")
    T1=KACC+4
    a(f"v_subrev_u32 v{t0}, 2, v{vG}")
    a(f"v_lshlrev_b32 v{t0}, 9, v{t0}")
    a(f"v_add_u32 v{vK2}, v{vK}, v{t0}")
    a(f"v_add_u32 v{vK2}, {1024-4}, v{vK2}")
    a(f"s_mov_b32 exec_lo, 0\ns_mov_b32 exec_hi, -1")
    for b in range(2):
        v0_=T1+2*b; v1_=T1+2*b+1
        a(f"v_cvt_pk_bf16_f32 v{B}, v{v0_}, v{v0_}")
        a(f"v_cvt_pk_bf16_f32 v{B+1}, v{v0_}, v{v1_}")
        a(f"v_cvt_pk_bf16_f32 v{B+2}, v{v1_}, v{v1_}")
        a(f"ds_write_b32 v{vK2}, v{B} offset:{b*256}")
        a(f"ds_write_b64 v{vK2}, v[{B}:{B+1}] offset:{b*256+4}")
        a(f"ds_write_b32 v{vK2}, v{B+2} offset:{b*256+12}")
        a("s_nop 1")
    a(f"s_mov_b32 exec_lo, -1\ns_mov_b32 exec_hi, 0")
    a(f"v_lshlrev_b32 v{t0}, 8, v{vG}")
    a(f"v_add_u32 v{vK2}, v{vK}, v{t0}")
    a(f"v_add_u32 v{vK2}, {512-2}, v{vK2}")
    a(f"v_cvt_pk_bf16_f32 v{B}, v{T1}, v{T1}")
    a(f"v_cvt_pk_bf16_f32 v{B+1}, v{T1+1}, v{T1+2}")
    a(f"v_cvt_pk_bf16_f32 v{B+2}, v{T1+2}, v{T1+2}")
    a(f"v_cvt_pk_bf16_f32 v{B+3}, v{T1+3}, v{T1+3}")
    a(f"ds_write_b16 v{vK2}, v{B}")
    a(f"v_add_u32 v{vK2}, 2, v{vK2}")
    a(f"ds_write_b64 v{vK2}, v[{B}:{B+1}]")
    a(f"ds_write_b32 v{vK2}, v{B+2} offset:8")
    a(f"ds_write_b16 v{vK2}, v{B+3} offset:12")
    a("s_mov_b64 exec, -1")
    a(f"v_lshrrev_b32 v{t0}, 1, v{vG}")
    a(f"v_lshlrev_b32 v{t0}, 8, v{t0}")
    a(f"v_add_u32 v{vK2}, v{vK}, v{t0}")
    a(f"v_and_b32 v{t0}, 1, v{vG}")
    a(f"v_lshl_add_u32 v{vK2}, v{t0}, 3, v{vK2}")
    a(f"v_cvt_pk_bf16_f32 v{B+4}, v{KACC}, v{KACC+1}")
    a(f"v_cvt_pk_bf16_f32 v{B+5}, v{KACC+2}, v{KACC+3}")
    a(f"ds_write_b64 v{vK2}, v[{B+4}:{B+5}]")
    a("s_waitcnt lgkmcnt(0)")
    a("s_barrier")
    vU=36
    a(f"v_lshlrev_b32 v{t0}, 3, v0")
    a(f"v_mov_b32 v{B}, 0\nv_mov_b32 v{B+1}, 0")
    a(f"ds_write_b64 v{t0}, v[{B}:{B+1}] offset:{U_OFF}")
    if wait_x: wait_x()
    a(f"v_lshrrev_b32 v{t0}, 2, v{lane}")
    a(f"v_lshlrev_b32 v{vU}, 7, v{t0}")
    a(f"v_bfe_u32 v{t0}, v{lane}, 4, 2")
    a(f"v_and_b32 v{t1}, 3, v{lane}")
    a(f"v_xor_b32 v{t0}, v{t0}, v{t1}")
    a(f"v_lshl_add_u32 v{vU}, v{t0}, 4, v{vU}")
    a(f"s_lshr_b32 s{sTmp}, s{sQ}, 1\ns_lshl_b32 s{sTmp}, s{sTmp}, 15")
    a(f"s_and_b32 s{sTmp2}, s{sQ}, 1\ns_lshl_b32 s{sTmp2}, s{sTmp2}, 6\ns_add_u32 s{sTmp}, s{sTmp}, s{sTmp2}")
    a(f"s_lshl_b32 s{sTmp2}, s{sWv}, 13\ns_add_u32 s{sTmp}, s{sTmp}, s{sTmp2}")
    if WS_XNT: a(f"s_add_u32 s{sTmp}, s{sTmp}, {WS_XNT}")
    a(f"s_lshl_b32 s{sTmp2}, s{sWv}, 12\ns_add_u32 s{sTmp2}, s{sTmp2}, {U_OFF+2048}")
    for i in range(4):
        a(f"s_add_u32 m0, s{sTmp2}, {i*1024}")
        a(f"buffer_load_dwordx4 v{vU}, s[{SWS}:{SWS+3}], s{sTmp} offen{ld} lds")
        if i<3: a(f"s_add_u32 s{sTmp}, s{sTmp}, 2048")
    CACC=24
    for r in range(32): a(f"v_mov_b32 v{CACC+r}, 0")
    vAa=56; vBa=[57,58,59,60]; vRw=61; vKr=62
    AF=64
    BF=96
    vb_=184; vg_=185
    a(f"v_and_b32 v{vb_}, 15, v{lane}")
    a(f"v_lshrrev_b32 v{vg_}, 4, v{lane}")
    a(f"v_and_b32 v{t0}, 3, v{vb_}")
    a(f"v_mul_u32_u24 v{vAa}, {RC}, v{t0}")
    a(f"v_lshrrev_b32 v{t0}, 2, v{vb_}")
    a(f"v_lshlrev_b32 v{t0}, 3, v{t0}")
    a(f"v_sub_u32 v{vAa}, v{vAa}, v{t0}")
    a(f"v_lshrrev_b32 v{t0}, 1, v{vg_}")
    a(f"v_lshlrev_b32 v{t0}, 5, v{t0}")
    a(f"v_sub_u32 v{vAa}, v{vAa}, v{t0}")
    a(f"v_and_b32 v{t0}, 1, v{vg_}")
    a(f"v_lshl_add_u32 v{vAa}, v{t0}, 4, v{vAa}")
    a(f"v_add_u32 v{vAa}, s{sR}, v{vAa}")
    a(f"v_lshlrev_b32 v{t0}, 1, v{vb_}")
    a(f"v_add_u32 v{t0}, 32, v{t0}")
    a(f"v_and_b32 v{t1}, 1, v{vg_}")
    a(f"v_add_u32 v{t0}, v{t0}, v{t1}")
    a(f"v_and_b32 v{t1}, 2, v{vg_}")
    a(f"v_sub_u32 v{t0}, v{t0}, v{t1}")
    for rm in range(4):
        a(f"v_lshrrev_b32 v{t1}, 2, v{t0}")
        a(f"v_subrev_u32 v{t1}, {rm}, v{t1}")
        a(f"v_and_b32 v{t1}, 3, v{t1}")
        a(f"v_xor_b32 v{t1}, s{sWv}, v{t1}")
        a(f"v_lshlrev_b32 v{t1}, 4, v{t1}")
        a(f"v_lshl_add_u32 v{vBa[rm]}, v{t0}, 6, v{t1}")
        a(f"v_add_u32 v{vBa[rm]}, {U_OFF-256*7}, v{vBa[rm]}")
    a(f"v_lshlrev_b32 v{vRw}, 4, v{lane}")
    a(f"v_add_u32 v{vRw}, s{sR}, v{vRw}")
    vL16=63
    a(f"v_lshlrev_b32 v{vL16}, 4, v{lane}")
    a(f"s_mov_b32 s{sBf}, 0xffff")
    RB=160
    def build_R(ps):
        M0=127 if ps==0 else 255
        for rd in range(3):
            if rd==2:
                a(f"s_mov_b32 exec_lo, 3\ns_mov_b32 exec_hi, 0")
            off=40+16*(M0-64*rd)
            a(f"s_add_u32 s{sTmp}, s{sKn}, {off}")
            a(f"v_sub_u32 v{vKr}, s{sTmp}, v{vL16}")
            p=RB
            a(f"ds_read_b64 v[{p}:{p+1}], v{vKr}")
            a(f"ds_read_b128 v[{p+2}:{p+5}], v{vKr} offset:8")
            a("s_waitcnt lgkmcnt(0)")
            o=RB+8
            for mu_ in range(4):
                a(f"v_bfi_b32 v{o+mu_}, s{sBf}, v{p+4-mu_}, v{p+3-mu_}")
                a(f"v_alignbit_b32 v{o+4+mu_}, v{p+4-mu_}, v{p+4-mu_}, 16")
                a(f"v_bfi_b32 v{o+8+mu_}, s{sBf}, v{p+5-mu_}, v{p+4-mu_}")
                a(f"v_alignbit_b32 v{o+12+mu_}, v{p+5-mu_}, v{p+5-mu_}, 16")
            for sg in range(4):
                a(f"ds_write_b128 v{vRw}, v[{o+4*sg}:{o+4*sg+3}] offset:{sg*RC+1024*rd}")
            if rd==2: a("s_mov_b64 exec, -1")
        a("s_waitcnt lgkmcnt(0)")
    def conv_pass(ps):
        nB=8-4*ps
        def rdA(rho,setp):
            out=[]
            for il in range(4):
                kl=rho+8*il
                for hf in range(2):
                    r=AF+16*setp+4*il+2*hf
                    out.append(f"ds_read_b64 v[{r}:{r+1}], v{vAa} offset:{2040-64*kl+8*hf}")
            return out
        def rdB(rho,setp):
            out=[]
            for tau in range(nB):
                r=BF+32*setp+4*tau
                out.append(f"ds_read_b128 v[{r}:{r+3}], v{vBa[rho%4]} offset:{2048*tau+256*(7-rho)}")
            return out
        for x in rdA(0,0)+rdB(0,0): a(x)
        for rho in range(8):
            sp=rho%2
            a("s_waitcnt lgkmcnt(0)")
            nxt=(rdA(rho+1,1-sp)+rdB(rho+1,1-sp)) if rho<7 else []
            ms=[]
            for il in range(4):
                i=il+4*ps
                for tau in range(nB):
                    t=i+tau
                    if t>7: continue
                    ms.append((t,il,tau))
            ni=0
            for n,(t,il,tau) in enumerate(ms):
                d=CACC+4*t; A_=AF+16*sp+4*il; B_=BF+32*sp+4*tau
                a(f"v_mfma_f32_16x16x32_bf16 v[{d}:{d+3}], v[{A_}:{A_+3}], v[{B_}:{B_+3}], v[{d}:{d+3}]")
                k=-(-len(nxt)//len(ms)) if n<len(ms) else 0
                for _ in range(k):
                    if ni<len(nxt): a(nxt[ni]); ni+=1
    build_R(0)
    a("s_waitcnt vmcnt(0) lgkmcnt(0)")
    a("s_barrier")
    conv_pass(0)
    build_R(1)
    conv_pass(1)
    vE=186; vS=187; vDp=188
    a(f"v_and_b32 v{t0}, 15, v{lane}")
    a(f"v_lshlrev_b32 v{t0}, 1, v{t0}")
    a(f"v_lshrrev_b32 v{t1}, 5, v{lane}")
    a(f"v_add_u32 v{t0}, v{t0}, v{t1}")
    a(f"v_bfe_u32 v{t1}, v{t0}, 2, 2")
    a(f"v_xor_b32 v{t1}, s{sWv}, v{t1}")
    a(f"v_lshlrev_b32 v{t1}, 4, v{t1}")
    a(f"v_lshl_add_u32 v{vE}, v{t0}, 6, v{t1}")
    a(f"v_bfe_u32 v{t1}, v{lane}, 4, 1")
    a(f"v_lshl_add_u32 v{vE}, v{t1}, 3, v{vE}")
    a(f"v_add_u32 v{vE}, {U_OFF+2048}, v{vE}")
    a(f"v_and_b32 v{t0}, 15, v{lane}")
    a(f"v_lshlrev_b32 v{vS}, 5, v{t0}")
    a(f"v_lshrrev_b32 v{t1}, 4, v{lane}")
    a(f"v_lshl_add_u32 v{vS}, v{t1}, 3, v{vS}")
    a(f"s_lshl_b32 s{sTmp}, s{sCh}, 12\ns_add_u32 s{sTmp}, s{sTmp}, {WS_AT}")
    a(f"v_add_u32 v{vS}, s{sTmp}, v{vS}")
    a(f"v_mov_b32 v{vDp}, s{sD}\nv_mov_b32 v{vDp+1}, s{sD}")
    UB=64
    for t in range(8):
        a(f"ds_read_b64 v[{UB+2*t}:{UB+2*t+1}], v{vE} offset:{2048*t}")
    T=96
    for t in range(8):
        a(f"s_waitcnt lgkmcnt({7-t})")
        d=CACC+4*t; u=UB+2*t; o=T+16+2*(t%2)
        a(f"v_lshlrev_b32 v{T}, 16, v{u}\nv_and_b32 v{T+1}, 0xffff0000, v{u}")
        a(f"v_lshlrev_b32 v{T+2}, 16, v{u+1}\nv_and_b32 v{T+3}, 0xffff0000, v{u+1}")
        for p in range(2): a(f"v_pk_mul_f32 v[{T+2*p}:{T+2*p+1}], v[{T+2*p}:{T+2*p+1}], v[{vDp}:{vDp+1}]")
        for p in range(2): a(f"v_cvt_pk_bf16_f32 v{T+4+p}, v{T+2*p}, v{T+2*p+1}")
        for p in range(2): a(f"v_cvt_pk_bf16_f32 v{T+6+p}, v{d+2*p}, v{d+2*p+1}")
        for p in range(2):
            a(f"v_lshlrev_b32 v{T}, 16, v{T+4+p}\nv_and_b32 v{T+1}, 0xffff0000, v{T+4+p}")
            a(f"v_lshlrev_b32 v{T+2}, 16, v{T+6+p}\nv_and_b32 v{T+3}, 0xffff0000, v{T+6+p}")
            a(f"v_pk_add_f32 v[{T}:{T+1}], v[{T}:{T+1}], v[{T+2}:{T+3}]")
            a(f"v_cvt_pk_bf16_f32 v{o+p}, v{T}, v{T+1}")
        a(f"buffer_store_dwordx2 v[{o}:{o+1}], v{vS}, s[{SWS}:{SWS+3}], 0 offen offset:{512*t}{st}")
```

```python
from common import *
STAGE=20480
def emit_up(a, sT, sFT, SWS, SW1, SW3, st='', ld='', sb=40, pre_wait=None):
    lane=1; t0=2; t1=3; vWa=[4,5,6]; vTok=7; vA=8; vA5=9; vB=[10,11]; vSt=12; vBh=[13,14]
    ACC=64
    P=160; Q=180
    EP=200
    SW=sb
    assert sb%4==0
    sWv=sb+4; sWoff=sb+5; sToff=sb+6; sMW=sb+7; sMT=sb+8; sTmp=sb+9; sCnt=sb+10; sTmp2=sb+11
    a(f"v_and_b32 v{lane}, 63, v0")
    a(f"v_lshrrev_b32 v{t0}, 6, v0")
    a(f"v_readfirstlane_b32 s{sWv}, v{t0}")
    a(f"s_cmp_lt_u32 s{sWv}, 2")
    a(f"s_cselect_b32 s{SW}, s{SW1}, s{SW3}")
    a(f"s_cselect_b32 s{SW+1}, s{SW1+1}, s{SW3+1}")
    a(f"s_mov_b32 s{SW+2}, {640*1536*2}")
    a(f"s_mov_b32 s{SW+3}, 0x20000")
    a(f"s_cselect_b32 s{sTmp2}, 0, 10")
    a(f"s_and_b32 s{sTmp}, s{sWv}, 1")
    a(f"s_mul_i32 s{sTmp}, s{sTmp}, 192")
    for t in range(3):
        a(f"v_add_u32 v{t0}, s{sTmp}, v{lane}")
        if t: a(f"v_add_u32 v{t0}, {64*t}, v{t0}")
        a(f"v_mul_u32_u24 v{t1}, 5462, v{t0}")
        a(f"v_lshrrev_b32 v{t1}, 16, v{t1}")
        a(f"v_mul_u32_u24 v{vWa[t]}, 12, v{t1}")
        a(f"v_sub_u32 v{t0}, v{t0}, v{vWa[t]}")
        a(f"v_add_u32 v{t0}, s{sTmp2}, v{t0}")
        a(f"v_subrev_u32 v{vWa[t]}, 12, v{t0}")
        a(f"v_cmp_le_u32 vcc, 12, v{t0}")
        a(f"v_cndmask_b32 v{t0}, v{t0}, v{vWa[t]}, vcc")
        a(f"v_mul_u32_u24 v{t1}, 3072, v{t1}")
        a(f"v_lshl_add_u32 v{vWa[t]}, v{t0}, 4, v{t1}")
        if t: a(f"v_subrev_u32 v{vWa[t]}, {1024*t}, v{vWa[t]}")
    a(f"s_mul_i32 s{sWoff}, s{sFT}, 192")
    a(f"s_mul_i32 s{sMW}, s{sWv}, 3072")
    a(f"s_lshl_b32 s{sMT}, s{sWv}, 11")
    a(f"s_add_u32 s{sMT}, s{sMT}, 12288")
    a(f"v_lshrrev_b32 v{t0}, 3, v{lane}")
    a(f"v_lshlrev_b32 v{vTok}, 7, v{t0}")
    a(f"v_bfe_u32 v{t0}, v{lane}, 4, 1")
    a(f"v_lshlrev_b32 v{t0}, 2, v{t0}")
    a(f"v_and_b32 v{t1}, 7, v{lane}")
    a(f"v_xor_b32 v{t0}, v{t0}, v{t1}")
    a(f"v_lshl_add_u32 v{vTok}, v{t0}, 4, v{vTok}")
    a(f"s_lshl_b32 s{sToff}, s{sWv}, 15")
    a(f"s_lshl_b32 s{sTmp}, s{sT}, 11")
    a(f"s_add_u32 s{sToff}, s{sToff}, s{sTmp}")
    if WS_XNT: a(f"s_add_u32 s{sToff}, s{sToff}, {WS_XNT}")
    a(f"v_lshrrev_b32 v{t0}, 5, v{lane}")
    a(f"v_lshlrev_b32 v{t0}, 3, v{t0}")
    a(f"v_bfe_u32 v{t1}, v{lane}, 2, 2")
    a(f"v_add_u32 v{t0}, v{t0}, v{t1}")
    a(f"v_mul_u32_u24 v{vA}, 192, v{t0}")
    a(f"v_and_b32 v{t1}, 3, v{lane}")
    a(f"v_lshl_add_u32 v{vA}, v{t1}, 3, v{vA}")
    a(f"v_bfe_u32 v{t1}, v{lane}, 4, 1")
    a(f"v_mul_u32_u24 v{t0}, {6144+32}, v{t1}")
    a(f"v_add_u32 v{vA}, v{vA}, v{t0}")
    a(f"s_lshr_b32 s{sTmp}, s{sWv}, 1")
    a(f"s_mul_i32 s{sTmp2}, s{sTmp}, 96")
    a(f"v_add_u32 v{vA}, s{sTmp2}, v{vA}")
    a(f"s_mul_i32 s{sTmp2}, s{sTmp}, 192")
    a(f"v_mul_u32_u24 v{t0}, s{sTmp2}, v{t1}")
    a(f"v_sub_u32 v{vA5}, v{vA}, v{t0}")
    a(f"v_lshrrev_b32 v{t0}, 5, v{lane}")
    a(f"v_lshlrev_b32 v{vB[0]}, 11, v{t0}")
    a(f"v_bfe_u32 v{t0}, v{lane}, 4, 1")
    a(f"v_lshl_add_u32 v{vB[0]}, v{t0}, 8, v{vB[0]}")
    a(f"v_bfe_u32 v{t1}, v{lane}, 1, 1")
    a(f"v_lshl_add_u32 v{vB[0]}, v{t1}, 7, v{vB[0]}")
    a(f"v_bfe_u32 v{t1}, v{lane}, 2, 2")
    a(f"v_lshl_add_u32 v{vB[0]}, v{t1}, 4, v{vB[0]}")
    a(f"v_and_b32 v{t1}, 1, v{lane}")
    a(f"v_lshl_add_u32 v{vB[0]}, v{t1}, 3, v{vB[0]}")
    a(f"s_and_b32 s{sTmp}, s{sWv}, 1")
    a(f"s_lshl_b32 s{sTmp}, s{sTmp}, 10")
    a(f"s_add_u32 s{sTmp}, s{sTmp}, 12288")
    a(f"v_add_u32 v{vB[0]}, s{sTmp}, v{vB[0]}")
    a(f"v_lshlrev_b32 v{t0}, 6, v{t0}")
    a(f"v_sub_u32 v{vB[1]}, v{vB[0]}, v{t0}")
    a(f"v_add_u32 v{vB[1]}, 64, v{vB[1]}")
    a(f"v_add_u32 v{vB[0]}, v{vB[0]}, v{t0}")
    for q in range(2): a(f"v_add_u32 v{vBh[q]}, {2*STAGE}, v{vB[q]}")
    a(f"v_bfe_u32 v{t0}, v{lane}, 4, 1")
    a(f"v_mul_u32_u24 v{vSt}, 49152, v{t0}")
    a(f"v_lshrrev_b32 v{t0}, 5, v{lane}")
    a(f"v_lshl_add_u32 v{vSt}, v{t0}, 8, v{vSt}")
    a(f"v_and_b32 v{t0}, 15, v{lane}")
    a(f"v_lshl_add_u32 v{vSt}, v{t0}, 4, v{vSt}")
    a(f"s_lshl_b32 s{sTmp}, s{sT}, 3")
    a(f"s_and_b32 s{sTmp2}, s{sWv}, 1")
    a(f"s_lshl_b32 s{sTmp2}, s{sTmp2}, 2")
    a(f"s_add_u32 s{sTmp}, s{sTmp}, s{sTmp2}")
    a(f"s_mul_i32 s{sTmp}, s{sTmp}, 49152")
    a(f"s_mul_i32 s{sTmp2}, s{sFT}, {12*256}")
    a(f"s_add_u32 s{sTmp}, s{sTmp}, s{sTmp2}")
    a(f"s_lshr_b32 s{sTmp2}, s{sWv}, 1")
    a(f"s_mul_i32 s{sTmp2}, s{sTmp2}, {6*256}")
    a(f"s_add_u32 s{sTmp}, s{sTmp}, s{sTmp2}")
    a(f"s_add_u32 s{sTmp}, s{sTmp}, {WS_H}")
    a(f"v_add_u32 v{vSt}, s{sTmp}, v{vSt}")
    for r in range(96): a(f"v_mov_b32 v{ACC+r}, 0")

    def dma_w(slot):
        a(f"s_add_u32 m0, s{sMW}, {slot*STAGE}")
        for t in range(3):
            a(f"buffer_load_dwordx4 v{vWa[t]}, s[{SW}:{SW+3}], s{sWoff} offen offset:{1024*t} lds")
        a(f"s_add_u32 s{sWoff}, s{sWoff}, {32*3072}")
    def dma_t(slot):
        a(f"s_add_u32 m0, s{sMT}, {slot*STAGE}")
        for h in range(2):
            a(f"buffer_load_dwordx4 v{vTok}, s[{SWS}:{SWS+3}], s{sToff} offen offset:{1024*h}{ld} lds")
        a(f"s_add_u32 s{sToff}, s{sToff}, {4*32768}")
    for sl in range(3): dma_w(sl)
    if pre_wait: pre_wait()
    for sl in range(3): dma_t(sl)

    def reads(setb, slot, s):
        R=[]
        def rb(nt):
            for q in range(2):
                R.append((f"ds_read_b64_tr_b16 v[{setb+12+4*nt+2*q}:{setb+12+4*nt+2*q+1}], v{(vB if slot<2 else vBh)[q]} offset:{(slot%2)*STAGE+s*4096+nt*512}", f"B{nt}"))
        def ra(j):
            for q in range(2):
                reg=vA5 if j==2 else vA
                R.append((f"ds_read_b64_tr_b16 v[{setb+4*j+2*q}:{setb+4*j+2*q+1}], v{reg} offset:{slot*STAGE+(16*s+4*q)*192+32*j}", f"A{j}"))
        rb(0); ra(0); ra(1); ra(2); rb(1)
        return R
    def mfma(setb, j, nt):
        d=ACC+16*(2*j+nt)
        a(f"v_mfma_f32_32x32x16_bf16 v[{d}:{d+15}], v[{setb+4*j}:{setb+4*j+3}], v[{setb+12+4*nt}:{setb+12+4*nt+3}], v[{d}:{d+15}]")
    ORDER=[(0,0),(1,0),(2,0),(0,1),(1,1),(2,1)]
    NEED={(0,0):"A0",(1,0):"A1",(2,0):"A2",(0,1):"B1",(1,1):None,(2,1):None}

    def stage(slot, vmwait, dma, first=False):
        a(f"s_waitcnt vmcnt({vmwait}) lgkmcnt(0)")
        a("s_barrier")
        lt=LdsTrack(a)
        R=reads(P, slot, 0)
        ri=0
        for n,(j,nt) in enumerate(ORDER):
            if not first: mfma(Q,j,nt)
            for _ in range(2):
                if ri<len(R): lt.issue(R[ri][0], 'P'+R[ri][1]); ri+=1
        if dma: dma_w((slot+3)%4)
        R=reads(Q, slot, 1); ri=0
        for n,(j,nt) in enumerate(ORDER):
            if NEED[(j,nt)]: lt.wait('P'+NEED[(j,nt)])
            mfma(P,j,nt)
            for _ in range(2):
                if ri<len(R): lt.issue(R[ri][0], 'Q'+R[ri][1]); ri+=1
            if n==4 and dma: dma_t((slot+3)%4)
    stage(0, 4, True, first=True)
    stage(1, 7, True)
    stage(2, 10, True)
    stage(3, 10, True)
    a(f"s_mov_b32 s{sCnt}, 3")
    lab=a.newlabel('Lup')
    a.label(lab)
    for sl in range(4): stage(sl, 10, True)
    a(f"s_sub_u32 s{sCnt}, s{sCnt}, 1")
    a(f"s_cmp_lg_u32 s{sCnt}, 0")
    a(f"s_cbranch_scc1 {lab}")
    stage(0, 10, True)
    stage(1, 10, False)
    stage(2, 5, False)
    stage(3, 0, False)
    a("s_waitcnt lgkmcnt(0)")
    for (j,nt) in ORDER: mfma(Q,j,nt)
    NL=EP;
    a(f"v_mov_b32 v{NL}, 0xbfb8aa3b\nv_mov_b32 v{NL+1}, 0xbfb8aa3b")
    a(f"v_mov_b32 v{NL+2}, 1.0\nv_mov_b32 v{NL+3}, 1.0")
    T=EP+4
    O=EP+12
    k=0
    for (j,nt) in ORDER:
        d=ACC+16*(2*j+nt); o=O+4*(k%2); k+=1
        for p in range(4):
            a(f"v_pk_mul_f32 v[{T+2*p}:{T+2*p+1}], v[{d+2*p}:{d+2*p+1}], v[{NL}:{NL+1}]")
        for i in range(8): a(f"v_exp_f32 v{T+i}, v{T+i}")
        for p in range(4):
            a(f"v_pk_add_f32 v[{T+2*p}:{T+2*p+1}], v[{T+2*p}:{T+2*p+1}], v[{NL+2}:{NL+3}]")
        for i in range(8): a(f"v_rcp_f32 v{T+i}, v{T+i}")
        for p in range(4):
            a(f"v_pk_mul_f32 v[{d+2*p}:{d+2*p+1}], v[{d+2*p}:{d+2*p+1}], v[{d+8+2*p}:{d+8+2*p+1}]")
        for p in range(4):
            a(f"v_pk_mul_f32 v[{T+2*p}:{T+2*p+1}], v[{T+2*p}:{T+2*p+1}], v[{d+2*p}:{d+2*p+1}]")
        for p in range(4):
            a(f"v_cvt_pk_bf16_f32 v{o+p}, v{T+2*p}, v{T+2*p+1}")
        a(f"v_permlane32_swap_b32 v{o}, v{o+2}")
        a(f"v_permlane32_swap_b32 v{o+1}, v{o+3}")
        so=nt*2*49152+j*512
        a(f"s_mov_b32 s{sTmp}, {so}")
        a(f"buffer_store_dwordx4 v[{o}:{o+3}], v{vSt}, s[{SWS}:{SWS+3}], s{sTmp} offen{st}")
```

```python
import sys
from common import *
from k_ln import *
from k_up import *
from k_down import *
from k_ssm import *
NAME="parallel_sum__ssm_conv_s4d__glu_gated_swiglu__prompt"
HEAD=open(f"cdna_kernels/{NAME}.s.ref").read().split("; Override launch")[0]

def load_ptrs(a, names, base):
    d={}
    for i,n in enumerate(names):
        a(f"s_load_dwordx2 s[{base+2*i}:{base+2*i+1}], s[0:1], {KA[n]}")
        d[n]=base+2*i
    a("s_waitcnt lgkmcnt(0)")
    return d

def k_ln():
    a=Asm()
    a("s_cmp_ge_u32 s2, 376\ns_cbranch_scc1 Lln_end")
    p=load_ptrs(a,["u","ws","w2"],4)
    srd(a,12,p["u"],X_BYTES); srd(a,16,p["ws"],WS_SIZE); srd(a,20,p["w2"],F*D*2)
    a("s_cmp_ge_u32 s2, 256\ns_cbranch_scc1 Lln_pack")
    emit_ln(a, 2, 12, 16, vb=2, sb=40)
    a("s_branch Lln_end")
    a.label("Lln_pack")
    a("v_lshrrev_b32 v1, 6, v0\nv_readfirstlane_b32 s30, v1")
    a("s_sub_u32 s31, s2, 256\ns_lshl_b32 s31, s31, 2\ns_add_u32 s31, s31, s30")
    a("s_lshl_b32 s32, s30, 12")
    emit_pack_w2(a, 31, 32, 20, 16, vb=2, sb=48)
    a.label("Lln_end")
    a("s_endpgm")
    a.pad(); return a

def k_mid():
    a=Asm()
    a("s_cmp_ge_u32 s2, 416\ns_cbranch_scc1 Lmid_end")
    p=load_ptrs(a,["ws","w1","w3","logA","Aim","Cre","Cim","logdt","Dskip"],4)
    srd(a,24,p["ws"],WS_SIZE)
    a("s_cmp_ge_u32 s2, 256\ns_cbranch_scc1 Lmid_ssm")
    srd(a,28,p["w1"],D*F*2); srd(a,32,p["w3"],D*F*2)
    a("s_and_b32 s36, s2, 7\ns_lshr_b32 s37, s2, 3")
    a("s_lshr_b32 s38, s36, 2\ns_lshl_b32 s38, s38, 3\ns_and_b32 s39, s37, 7\ns_add_u32 s38, s38, s39")
    a("s_and_b32 s36, s36, 3\ns_lshl_b32 s36, s36, 2\ns_lshr_b32 s37, s37, 3\ns_add_u32 s39, s36, s37")
    emit_up(a, 38, 39, 24, 28, 32, sb=40)
    a("s_branch Lmid_end")
    a.label("Lmid_ssm")
    SP={}
    for i,n in enumerate(("logA","Aim","Cre","Cim")):
        srd(a,28+4*i,p[n],D*N*2); SP[n]=28+4*i
    a("s_sub_u32 s44, s2, 256")
    emit_ssm(a, 44, 24, SP, p["logdt"], p["Dskip"], sb=56)
    a.label("Lmid_end")
    a("s_endpgm")
    a.pad(); return a

def k_down():
    a=Asm()
    a("s_cmp_ge_u32 s2, 256\ns_cbranch_scc1 Ldown_end")
    p=load_ptrs(a,["ws","u","out"],4)
    srd(a,12,p["ws"],WS_SIZE); srd(a,16,p["u"],X_BYTES); srd(a,20,p["out"],X_BYTES)
    a("s_and_b32 s36, s2, 7\ns_lshr_b32 s37, s2, 3")
    a("s_lshr_b32 s38, s36, 1\ns_lshl_b32 s38, s38, 3\ns_and_b32 s39, s37, 7\ns_add_u32 s38, s38, s39")
    a("s_and_b32 s36, s36, 1\ns_lshl_b32 s36, s36, 2\ns_lshr_b32 s37, s37, 3\ns_add_u32 s39, s36, s37")
    emit_down(a, 38, 39, 12, 16, 20, sb=40)
    a.label("Ldown_end")
    a("s_endpgm")
    a.pad(); return a

def kernel_text(name, a):
    return f".globl {name}\n.p2align 8\n.type {name},@function\n{name}:\n"+a.text()

if __name__=="__main__":
    out=sys.argv[1]
    ks=[("ln_kernel",k_ln(),376,16384),("mid_kernel",k_mid(),416,81920),("down_kernel",k_down(),256,65536)]
    s=HEAD
    for n,a,g,l in ks: s+=f"; @launch kernel={n} grid=({g},1,1) block=(256,1,1) lds={l}\n"
    s+='.amdgcn_target "amdgcn-amd-amdhsa--gfx950"\n.text\n'
    for n,a,g,l in ks: s+=kernel_text(n,a)
    for n,a,g,l in ks: s+=KD.format(name=n,vgpr=256,sgpr=102,acc=256)
    open(out,"w").write(s)
    print("written",out,len(s))
```

```python
import re

REG_RE = re.compile(r'(?<![\w.])([vsa])(?:(\d+)|\[(\d+):(\d+)\])(?![\w])')

def regs_of(tok):
    out = set()
    t = tok.strip()
    for m in REG_RE.finditer(t):
        f = m.group(1)
        if m.group(2) is not None:
            out.add((f, int(m.group(2))))
        else:
            for i in range(int(m.group(3)), int(m.group(4)) + 1):
                out.add((f, i))
    if re.search(r'\bvcc\b', t): out.add(('s', 'vcc'))
    if re.search(r'\bexec\b', t): out.add(('s', 'exec'))
    if re.search(r'\bm0\b', t): out.add(('s', 'm0'))
    return out

TRANS = ('v_exp_f32', 'v_log_f32', 'v_rcp_f32', 'v_rsq_f32', 'v_sqrt_f32', 'v_sin_f32', 'v_cos_f32', 'v_rcp_iflag_f32')
RMW = ('v_fmac_f32', 'v_dot2c_f32_bf16', 'v_pk_fmac_f16', 'v_writelane_b32', 'v_fmac_f32_e32', 'v_fmac_f32_dpp')

class Ins:
    __slots__ = ('text', 'op', 'dst', 'src', 'kind', 'passes', 'srcC', 'srcAB', 'wide_store', 'sdata', 'is_label', 'label', 'target', 'dpp', 'lds_dma')
    def __init__(self, text):
        self.text = text
        self.is_label = False; self.label = None; self.target = None
        t = text.split(';')[0].strip()
        self.dst = set(); self.src = set(); self.kind = 'other'; self.passes = 0
        self.srcC = set(); self.srcAB = set(); self.wide_store = False; self.sdata = set(); self.dpp = False; self.lds_dma = False
        if t.endswith(':'):
            self.is_label = True; self.label = t[:-1]; self.op = 'label'; self.kind = 'label'; return
        if t.startswith('.') or t == '':
            self.op = 'directive'; self.kind = 'directive'; return
        parts = t.split(None, 1)
        op = parts[0]; self.op = op
        rest = parts[1] if len(parts) > 1 else ''
        ops = []; depth = 0; cur = ''
        for ch in rest:
            if ch == '[' or ch == '(':
                depth += 1
            if ch == ']' or ch == ')':
                depth -= 1
            if ch == ',' and depth == 0:
                ops.append(cur.strip()); cur = ''
            else:
                cur += ch
        if cur.strip(): ops.append(cur.strip())
        mods = ''
        if ops:
            last = ops[-1]; depth = 0
            for i, ch in enumerate(last):
                if ch in '[(': depth += 1
                if ch in '])': depth -= 1
                if ch == ' ' and depth == 0:
                    mods = last[i:]; ops[-1] = last[:i]; break
        base = re.sub(r'_(e32|e64|dpp|sdwa)$', '', op)
        R = regs_of
        if op.startswith('v_mfma'):
            self.kind = 'mfma'
            self.passes = 8 if '32x32' in op else 4
            self.dst = R(ops[0]); self.srcAB = R(ops[1]) | R(ops[2]); self.srcC = R(ops[3]) if len(ops)>3 else set()
            self.src = self.srcAB | self.srcC
        elif op.startswith('v_cmp'):
            self.kind = 'valu'; self.dst = R(ops[0])
            for o in ops[1:]: self.src |= R(o)
            if op.startswith('v_cmpx'): self.dst.add(('s', 'exec'))
        elif op.startswith('v_permlane') and 'swap' in op:
            self.kind = 'permlane'; self.dst = R(ops[0]) | R(ops[1]); self.src = set(self.dst)
        elif base in ('v_readfirstlane_b32', 'v_readlane_b32'):
            self.kind = 'readlane'; self.dst = R(ops[0])
            for o in ops[1:]: self.src |= R(o)
        elif base in ('v_add_co_u32', 'v_sub_co_u32', 'v_addc_co_u32', 'v_subb_co_u32', 'v_subrev_co_u32'):
            self.kind = 'valu'; self.dst = R(ops[0]) | R(ops[1])
            for o in ops[2:]: self.src |= R(o)
        elif op.startswith('v_'):
            self.kind = 'trans' if base in TRANS else 'valu'
            self.dst = R(ops[0])
            for o in ops[1:]: self.src |= R(o)
            if base in RMW: self.src |= self.dst
            if base == 'v_cndmask_b32' and len(ops) == 3: self.src.add(('s', 'vcc'))
            if 'row_' in mods or 'wave_' in mods or 'quad_perm' in mods or op.endswith('_dpp'): self.dpp = True
            if self.dpp and ('bound_ctrl' not in mods): self.src |= self.dst
        elif op.startswith('ds_'):
            self.kind = 'ds'
            if op.startswith('ds_read') or op.startswith('ds_bpermute') or op.startswith('ds_permute') or op.startswith('ds_swizzle'):
                self.dst = R(ops[0])
                for o in ops[1:]: self.src |= R(o)
                if 'd16' in op: self.src |= self.dst
            else:
                for o in ops: self.src |= R(o)
        elif op.startswith('buffer_') or op.startswith('global_'):
            self.kind = 'vmem'
            lds = re.search(r'\blds\b', mods) is not None or '_lds_' in op
            if op in ('buffer_inv', 'buffer_wbl2'):
                pass
            elif 'load' in op and not lds:
                self.dst = R(ops[0])
                for o in ops[1:]: self.src |= R(o)
                if 'd16' in op: self.src |= self.dst
            elif 'load' in op and lds:
                self.lds_dma = True
                for o in ops: self.src |= R(o)
                self.src.add(('s', 'm0'))
            elif 'store' in op:
                for o in ops: self.src |= R(o)
                data = ops[0] if op.startswith('buffer_') else ops[1]
                self.sdata = R(data)
                self.wide_store = ('x3' in op or 'x4' in op)
            elif 'atomic' in op:
                for o in ops: self.src |= R(o)
                if re.search(r'\bsc0\b', mods): self.dst = R(ops[0])
        elif op.startswith('s_'):
            self.kind = 'salu'
            if op.startswith('s_cbranch') or op == 's_branch':
                self.kind = 'branch'; self.target = ops[0]
                if 'vcc' in op: self.src.add(('s', 'vcc'))
                if 'exec' in op: self.src.add(('s', 'exec'))
            elif op.startswith('s_cmp') or op.startswith('s_bitcmp'):
                for o in ops: self.src |= R(o)
            elif op in ('s_waitcnt', 's_nop', 's_barrier', 's_endpgm', 's_sleep', 's_setprio'):
                pass
            elif op.startswith('s_load') or op.startswith('s_memtime') or op.startswith('s_memrealtime') or op.startswith('s_buffer_load'):
                self.kind = 'smem'; self.dst = R(ops[0])
                for o in ops[1:]: self.src |= R(o)
            else:
                self.dst = R(ops[0])
                for o in ops[1:]: self.src |= R(o)
                if 'saveexec' in op: self.dst.add(('s', 'exec')); self.src.add(('s', 'exec'))
                if op in ('s_addk_i32', 's_mulk_i32'): self.src |= self.dst
        else:
            raise ValueError('unparsed: ' + text)

    def states(self):
        if self.kind in ('label', 'directive'): return 0
        if self.op == 's_nop':
            return int(self.text.split()[1], 0) + 1
        return 1

VALU_KINDS = ('valu', 'trans', 'permlane', 'readlane')

def vregs(s): return {r for r in s if r[0] in 'va'}
def sregs(s): return {r for r in s if r[0] == 's'}

def need(prod, cons):
    n = 0
    pv = prod.kind in VALU_KINDS
    if pv:
        wv = vregs(prod.dst); wsr = sregs(prod.dst)
        if cons.kind == 'mfma' and wv & cons.src: n = max(n, 2)
        if cons.kind in VALU_KINDS and cons.dpp and wv & cons.src: n = max(n, 2)
        if cons.kind == 'permlane' and wv & cons.src: n = max(n, 2)
        if cons.kind == 'readlane' and wv & cons.src: n = max(n, 1)
        if prod.kind == 'trans' and cons.kind in VALU_KINDS + ('mfma',) and wv & cons.src: n = max(n, 1)
        if wsr:
            if cons.kind in VALU_KINDS and wsr & cons.src: n = max(n, 4 if cons.kind == 'readlane' else 2)
            if cons.kind == 'vmem' and wsr & cons.src: n = max(n, 5)
            if ('s', 'exec') in wsr:
                if cons.kind == 'mfma': n = max(n, 4)
                if cons.dpp: n = max(n, 5)
                if cons.kind in ('readlane', 'permlane'): n = max(n, 4)
            if cons.kind in ('salu', 'branch', 'smem') and wsr & cons.src: n = max(n, 4)
    if prod.kind == 'mfma':
        p = prod.passes
        raw = {4: 8, 8: 12}[p]
        if cons.kind == 'mfma':
            if prod.dst & cons.srcAB: n = max(n, raw)
            if prod.dst & cons.srcC:
                if not (prod.dst == cons.srcC and prod.passes == cons.passes): n = max(n, {4: 6, 8: 10}[p])
            if prod.dst & cons.dst and not (prod.dst & cons.srcC):
                n = max(n, raw)
        elif cons.kind in VALU_KINDS:
            if prod.dst & (cons.src | cons.dst): n = max(n, raw)
            if prod.srcC & cons.dst: n = max(n, {4: 3, 8: 7}[p])
        elif cons.kind in ('vmem', 'ds'):
            if prod.dst & (cons.src | cons.dst): n = max(n, raw)
    if prod.kind == 'salu' and ('s', 'm0') in prod.dst:
        if cons.lds_dma: n = max(n, 1)
    if prod.kind == 'vmem' and prod.wide_store:
        if cons.kind in VALU_KINDS + ('mfma',) and prod.sdata & cons.dst: n = max(n, 2)
        elif prod.sdata & cons.dst: n = max(n, 2)
    return n

MAXW = 20
_UID = 0

class Asm:
    def __init__(self):
        self.ins = []
        self.uid = 0
    def __call__(self, text):
        for line in text.split('\n'):
            line = line.strip()
            if line: self.ins.append(Ins(line))
    def label(self, name): self.ins.append(Ins(name + ':'))
    def newlabel(self, stem='L'):
        global _UID
        _UID += 1
        return f'{stem}_{_UID}'
    def raw(self, text):
        i = Ins('.x'); i.text = text; self.ins.append(i)

    def pad(self):
        out = []
        for x in self.ins:
            if x.kind in ('label', 'directive'):
                out.append(x); continue
            req = 0; dist = 0
            for y in reversed(out):
                if y.kind in ('label', 'directive'): continue
                if y.op in ('s_branch', 's_endpgm'): break
                r = need(y, x)
                if r > dist: req = max(req, r - dist)
                dist += y.states()
                if dist >= MAXW: break
            while req > 0:
                k = min(req, 16)
                out.append(Ins(f's_nop {k-1}')); req -= k
            out.append(x)
        self.ins = out
        labels = {x.label: i for i, x in enumerate(self.ins) if x.is_label}
        probs = []
        for i, x in enumerate(self.ins):
            if x.kind == 'branch' and x.target in labels:
                pre = []; d = 0; j = i
                while j >= 0 and d < MAXW:
                    y = self.ins[j]
                    if y.kind not in ('label', 'directive'):
                        pre.append(y); d += y.states()
                        if j != i and y.op in ('s_branch', 's_endpgm'): pre.pop(); break
                    j -= 1
                pre.reverse()
                j = labels[x.target]; d = 0
                seq = list(pre)
                while j < len(self.ins) and d < MAXW:
                    y = self.ins[j]
                    if y.kind not in ('label', 'directive'):
                        dist = 0
                        for z in reversed(seq):
                            r = need(z, y)
                            if r > dist: probs.append((z.text, y.text, r, dist))
                            dist += z.states()
                            if dist >= MAXW: break
                        seq.append(y); d += y.states()
                        if y.op in ('s_branch', 's_endpgm'): break
                    j += 1
        if probs:
            for p in probs[:20]: print('HAZARD on branch path:', p)
            raise SystemExit('hazards on branch paths')
    def text(self):
        return '\n'.join(('' if (x.is_label or x.kind == 'directive') else '  ') + x.text for x in self.ins) + '\n'

def vr(a, n=1):
    return f'v{a}' if n == 1 else f'v[{a}:{a+n-1}]'
def sr(a, n=1):
    return f's{a}' if n == 1 else f's[{a}:{a+n-1}]'

KD = """.section .rodata,"a"
.p2align 6
.amdhsa_kernel {name}
  .amdhsa_next_free_vgpr {vgpr}
  .amdhsa_next_free_sgpr {sgpr}
  .amdhsa_accum_offset {acc}
  .amdhsa_group_segment_fixed_size 0
  .amdhsa_kernarg_size 112
  .amdhsa_user_sgpr_count 2
  .amdhsa_user_sgpr_kernarg_segment_ptr 1
  .amdhsa_system_sgpr_workgroup_id_x 1
  .amdhsa_float_denorm_mode_32 3
.end_amdhsa_kernel
"""
```

```python
from asmlib import *
L=2048; D=640; F=1536; N=192
X_BYTES=L*D*2
WS_XNT=0x000000
WS_H  =0x300000
WS_W2P=0x900000
WS_AT =0xB00000
WS_FLAG=0xE00000
WS_SIZE=0x1000000
KA=dict(u=0,logA=8,Aim=16,Cre=24,Cim=32,logdt=40,Dskip=48,x=56,w1=64,w3=72,w2=80,out=88,dbg=96,ws=104)

def srd(a, q, ptr, nbytes):
    a(f"s_mov_b32 s{q}, s{ptr}")
    a(f"s_and_b32 s{q+1}, s{ptr+1}, 0xffff")
    a(f"s_mov_b32 s{q+2}, {hex(nbytes)}")
    a(f"s_mov_b32 s{q+3}, 0x20000")

class LdsTrack:
    def __init__(s, a): s.a=a; s.q=[]
    def issue(s, text, tag=None):
        s.a(text); s.q.append(tag)
    def wait(s, tag):
        idx=[i for i,t in enumerate(s.q) if t==tag]
        if not idx: return
        n=len(s.q)-1-idx[-1]
        n=min(n,15)
        s.a(f"s_waitcnt lgkmcnt({n})")
        s.q=s.q[len(s.q)-n:] if n>0 else []
    def wait_all(s):
        s.a("s_waitcnt lgkmcnt(0)"); s.q=[]

class VmTrack:
    def __init__(s, a): s.a=a; s.q=[]
    def issue(s, text, tag=None):
        s.a(text); s.q.append(tag)
    def wait(s, tag):
        idx=[i for i,t in enumerate(s.q) if t==tag]
        if not idx: return
        n=len(s.q)-1-idx[-1]
        assert n<=63
        s.a(f"s_waitcnt vmcnt({n})")
        s.q=s.q[len(s.q)-n:] if n>0 else []
    def wait_all(s):
        s.a("s_waitcnt vmcnt(0)"); s.q=[]

STAMP_ON=False
WS_STAMP=0xF00000
class Stamps:
    def __init__(s,a,kid): s.a=a; s.kid=kid; s.n=0
    def __call__(s,i=None):
        if not STAMP_ON: return
        i=s.n if i is None else i; s.n=i+1
        s.a("s_waitcnt lgkmcnt(0)")
        s.a(f"s_memrealtime s[{84+2*i}:{85+2*i}]")
        s.a("s_waitcnt lgkmcnt(0)")
    def flush(s,SWS,extra=None):
        if not STAMP_ON: return
        a=s.a
        lab=a.newlabel('Lst')
        a("v_cmp_eq_u32 vcc, 0, v0")
        a("s_and_saveexec_b64 s[82:83], vcc")
        a(f"s_cbranch_execz {lab}")
        a(f"s_lshl_b32 s81, s2, 6\ns_add_u32 s81, s81, {WS_STAMP+s.kid*0x8000}")
        a("v_mov_b32 v250, 0")
        for i in range(8):
            a(f"v_mov_b32 v251, s{84+2*i}")
            a(f"buffer_store_dword v251, v250, s[{SWS}:{SWS+3}], s81 offen offset:{4*i}")
            a("s_waitcnt vmcnt(0)")
        if extra is not None:
            a(f"buffer_store_dword v{extra}, v250, s[{SWS}:{SWS+3}], s81 offen offset:32")
            a("s_waitcnt vmcnt(0)")
        a.label(lab)
        a("s_mov_b64 exec, s[82:83]")
```

```python
from f_common import *
from k_ln import emit_pack_w2
def emit_aux(a, S):
    sU=46; sWv=47; sT=48; sT2=49; sMat=50; sLg=51; SW=52; SW2=56; sUnit=60; sLds=61
    lane=1; t0=2; t1=3; va=4; ACC=8; LD=16
    a(f"s_sub_u32 s{sU}, s2, 416")
    a(f"v_and_b32 v{lane}, 63, v0\nv_lshrrev_b32 v{t0}, 6, v0\nv_readfirstlane_b32 s{sWv}, v{t0}")
    a(f"s_lshr_b32 s{sT}, s{sU}, 3")
    a(f"s_cmp_ge_u32 s{sT}, 6\ns_cselect_b32 s{sMat}, 1, 0")
    a(f"s_cselect_b32 s{SW}, s{P['w3']}, s{P['w1']}\ns_cselect_b32 s{SW+1}, s{P['w3']+1}, s{P['w1']+1}")
    a(f"s_and_b32 s{SW+1}, s{SW+1}, 0xffff\ns_mov_b32 s{SW+2}, {D*F*2}\ns_mov_b32 s{SW+3}, 0x20000")
    a(f"s_mul_i32 s{sT2}, s{sMat}, 6\ns_sub_u32 s{sT}, s{sT}, s{sT2}")
    a(f"s_and_b32 s{sLg}, s{sU}, 3\ns_mul_i32 s{sLg}, s{sLg}, 6\ns_add_u32 s{sLg}, s{sLg}, s{sT}")
    a(f"s_mul_i32 s{sT}, s{sWv}, {160*3072}\ns_lshl_b32 s{sT2}, s{sLg}, 7\ns_add_u32 s{sT}, s{sT}, s{sT2}")
    a(f"v_lshrrev_b32 v{t0}, 3, v{lane}\nv_mul_u32_u24 v{va}, 3072, v{t0}")
    a(f"v_and_b32 v{t1}, 7, v{lane}\nv_lshl_add_u32 v{va}, v{t1}, 4, v{va}")
    for i in range(20):
        a(f"buffer_load_dwordx4 v[{LD+4*i}:{LD+4*i+3}], v{va}, s[{SW}:{SW+3}], s{sT} offen")
        if i<19: a(f"s_add_u32 s{sT}, s{sT}, {8*3072}")
    srd(a,SW2,P["w2"],F*D*2)
    for r in range(8): a(f"v_mov_b32 v{ACC+r}, 0")
    S(1)
    for i in range(20):
        a(f"s_waitcnt vmcnt({19-i})")
        for r in range(4):
            x=LD+4*i+r
            a(f"v_lshlrev_b32 v{t0}, 16, v{x}\nv_and_b32 v{t1}, 0xffff0000, v{x}")
            a(f"v_add_f32 v{ACC+2*r}, v{ACC+2*r}, v{t0}\nv_add_f32 v{ACC+2*r+1}, v{ACC+2*r+1}, v{t1}")
    for r in range(8): a(f"v_add_f32_dpp v{ACC+r}, v{ACC+r}, v{ACC+r} row_ror:8 row_mask:0xf bank_mask:0xf")
    for r in range(8):
        a(f"v_mov_b32 v{LD+r}, v{ACC+r}")
    for r in range(8):
        a(f"v_permlane16_swap_b32 v{ACC+r}, v{LD+r}")
    for r in range(8): a(f"v_add_f32 v{ACC+r}, v{ACC+r}, v{LD+r}")
    for r in range(8): a(f"v_mov_b32 v{LD+r}, v{ACC+r}")
    for r in range(8): a(f"v_permlane32_swap_b32 v{ACC+r}, v{LD+r}")
    for r in range(8): a(f"v_add_f32 v{ACC+r}, v{ACC+r}, v{LD+r}")
    a(f"v_lshlrev_b32 v{t0}, 5, v{lane}\ns_lshl_b32 s{sT}, s{sWv}, 8\nv_add_u32 v{t0}, s{sT}, v{t0}")
    a("s_mov_b64 exec, 0xff")
    a(f"ds_write_b128 v{t0}, v[{ACC}:{ACC+3}] offset:16384\nds_write_b128 v{t0}, v[{ACC+4}:{ACC+7}] offset:16400")
    a("s_mov_b64 exec, -1")
    a("s_waitcnt lgkmcnt(0)\ns_barrier")
    nonce_ready(a)
    lab=a.newlabel('Laux')
    a(f"s_cmp_lg_u32 s{sWv}, 0\ns_cbranch_scc1 {lab}")
    a(f"v_lshlrev_b32 v{t0}, 2, v{lane}")
    for w in range(4): a(f"ds_read_b32 v{LD+w}, v{t0} offset:{16384+256*w}")
    a("s_waitcnt lgkmcnt(0)")
    a(f"v_add_f32 v{LD}, v{LD}, v{LD+1}\nv_add_f32 v{LD+2}, v{LD+2}, v{LD+3}\nv_add_f32 v{LD}, v{LD}, v{LD+2}")
    a(f"s_bfe_u32 s{sT}, s{sU}, 0x10002\ns_lshl_b32 s{sT}, s{sT}, 1\ns_add_u32 s{sT}, s{sT}, s{sMat}")
    a(f"s_mul_i32 s{sT}, s{sT}, 6144\ns_lshl_b32 s{sT2}, s{sLg}, 8\ns_add_u32 s{sT}, s{sT}, s{sT2}\ns_add_u32 s{sT}, s{sT}, {WS_CS}")
    a(f"buffer_store_dword v{LD}, v{t0}, s[{SWS}:{SWS+3}], s{sT} offen sc1")
    a("s_waitcnt vmcnt(0)")
    a(f"s_lshl_b32 s{sT}, s{sU}, 6\ns_add_u32 s{sT}, s{sT}, {FL_CS}")
    flag_store(a, sT, t0)
    a.label(lab)
    S(2)
    a(f"s_lshl_b32 s{sUnit}, s{sU}, 2\ns_add_u32 s{sUnit}, s{sUnit}, s{sWv}")
    a(f"s_lshl_b32 s{sLds}, s{sWv}, 12")
    emit_pack_w2(a, sUnit, sLds, SW2, SWS, st=' sc1', vb=2, sb=62)
    lab2=a.newlabel('Laux')
    a(f"s_cmp_ge_u32 s{sUnit}, 96\ns_cbranch_scc1 {lab2}")
    a(f"s_add_u32 s{sUnit}, s{sUnit}, 384")
    emit_pack_w2(a, sUnit, sLds, SW2, SWS, st=' sc1', vb=2, sb=62)
    a.label(lab2)
    a("s_waitcnt vmcnt(0)\ns_barrier")
    a(f"s_lshl_b32 s{sT}, s{sU}, 6\ns_add_u32 s{sT}, s{sT}, {FL_PK}")
    flag_store(a, sT, 2)
    S(7)
```

```python
from common import *
import common
WS_STATS=0xD80000
WS_CS   =0xD90000
WS_NONCE=0xDA0000
FL_LN=0xE00000
FL_CS=0xE04000
FL_PK=0xE08000
FL_H =0xE0C000
FL_A =0xE10000
S_PTR=4
P=dict(u=4,logA=6,Aim=8,Cre=10,Cim=12,logdt=14,Dskip=16,x=18,w1=20,w3=22,w2=24,out=26,dbg=28,ws=30)
SWS=32
SX =36
S_NONCE=40

def prologue(a, opts={}):
    a("s_load_dwordx16 s[4:19], s[0:1], 0")
    a("s_load_dwordx8 s[20:27], s[0:1], 64")
    a("s_load_dwordx4 s[28:31], s[0:1], 96")
    if opts.get('codetouch',1):
        lab=a.newlabel('Lct')
        a("s_getpc_b64 s[100:101]")
        a.label("Lpcbase")
        a("s_lshr_b32 s41, s2, 3")
        a.raw("  s_mul_i32 s41, s41, ((Lcode_end-Lpcbase+8191)/8192)")
        a("v_add_u32 v1, s41, v0")
        a("v_lshlrev_b32 v1, 7, v1")
        a.raw("  v_cmp_gt_u32 vcc, ((Lcode_end-Lpcbase+8191)/8192), v0")
        a("s_and_saveexec_b64 s[42:43], vcc")
        a(f"s_cbranch_execz {lab}")
        a.raw("  v_min_u32 v1, (Lcode_end-Lpcbase-4), v1")
        a("v_and_b32 v1, 0xfffffffc, v1")
        a("global_load_dword v255, v1, s[100:101]")
        a.label(lab)
        a("s_mov_b64 exec, s[42:43]")
    a("s_waitcnt lgkmcnt(0)")
    a(f"s_mov_b32 s41, {WS_NONCE}")
    a(f"s_load_dword s{S_NONCE}, s[30:31], s41")
    srd(a,SWS,P["ws"],WS_SIZE); srd(a,SX,P["u"],X_BYTES)

def nonce_ready(a):
    a(f"s_add_u32 s{S_NONCE}, s{S_NONCE}, 0x9e3779b1")

def flag_store(a, sIdxOff, vt):
    lab=a.newlabel('Lfs')
    a(f"v_cmp_eq_u32 vcc, 0, v0")
    a(f"s_and_saveexec_b64 s[42:43], vcc")
    a(f"s_cbranch_execz {lab}")
    a(f"v_mov_b32 v{vt}, 0\nv_mov_b32 v{vt+1}, s{S_NONCE}")
    a(f"buffer_store_dword v{vt+1}, v{vt}, s[{SWS}:{SWS+3}], s{sIdxOff} offen sc1")
    a.label(lab)
    a("s_mov_b64 exec, s[42:43]")

NOPOLL=[False]
def poll(a, vaddrs, vtmp, force=False):
    if NOPOLL[0] and not force:
        a("s_waitcnt vmcnt(0)"); return
    lab=a.newlabel('Lpoll'); out=a.newlabel('Lpout')
    a("s_mov_b32 s41, 0x40000")
    a.label(lab)
    for i,va in enumerate(vaddrs):
        a(f"buffer_load_dword v{vtmp+i}, v{va}, s[{SWS}:{SWS+3}], 0 offen sc1")
    a("s_sub_u32 s41, s41, 1")
    a(f"s_cbranch_scc1 {out}")
    a("s_waitcnt vmcnt(0)")
    poll_check(a, len(vaddrs), vtmp)
    a(f"s_cbranch_scc1 {lab}")
    a.label(out)
    a("s_waitcnt vmcnt(0)")

def poll_check(a, n, vtmp):
    for i in range(n):
        a(f"v_cmp_ne_u32 vcc, s{S_NONCE}, v{vtmp+i}")
        if i==0: a("s_mov_b64 s[44:45], vcc")
        else: a("s_or_b64 s[44:45], s[44:45], vcc")
    a("s_cmp_lg_u64 s[44:45], 0")
```

```python
from f_common import *
WST=12288
TST=16384
TOK0=4*WST

def emit_gemm(a, S, opts):
    started=[False]
    sT=46; sFT=47; sJT=48; sJF=49
    SW=52
    sWv=56; sWoff=57; sToff=58; sMW=59; sMT=60; sTmp=61; sCnt=62; sTmp2=63; sX=64
    lane=1; t0=2; t1=3; vWa=[4,5,6]; vTok=[7,8,9,10]; vA=11; vA5=12; vB=[13,14,15,16]; vSt=17; vFl=[18]; vPk=[19,20]; vDum=22; vTch=[23,24]
    vStat=24
    ACC=64; Pq=160; Qq=176
    Qq=180
    a("s_setprio 2") if opts.get('prio') else None
    a(f"s_and_b32 s{sX}, s2, 7\ns_lshr_b32 s{sTmp}, s2, 3\ns_and_b32 s{sJT}, s{sTmp}, 7\ns_lshr_b32 s{sJF}, s{sTmp}, 3")
    a(f"s_lshr_b32 s{sT}, s{sX}, 2\ns_lshl_b32 s{sT}, s{sT}, 3\ns_add_u32 s{sT}, s{sT}, s{sJT}")
    a(f"s_and_b32 s{sFT}, s{sX}, 3\ns_lshl_b32 s{sFT}, s{sFT}, 2\ns_add_u32 s{sFT}, s{sFT}, s{sJF}")
    a(f"v_and_b32 v{lane}, 63, v0\nv_lshrrev_b32 v{t0}, 6, v0\nv_readfirstlane_b32 s{sWv}, v{t0}")
    a(f"s_cmp_lt_u32 s{sWv}, 2")
    a(f"s_cselect_b32 s{SW}, s{P['w1']}, s{P['w3']}\ns_cselect_b32 s{SW+1}, s{P['w1']+1}, s{P['w3']+1}")
    a(f"s_cselect_b32 s{sTmp2}, 0, 10")
    a(f"s_and_b32 s{SW+1}, s{SW+1}, 0xffff\ns_mov_b32 s{SW+2}, {640*1536*2}\ns_mov_b32 s{SW+3}, 0x20000")
    a(f"s_and_b32 s{sTmp}, s{sWv}, 1\ns_mul_i32 s{sTmp}, s{sTmp}, 192")
    for t in range(3):
        a(f"v_add_u32 v{t0}, s{sTmp}, v{lane}")
        if t: a(f"v_add_u32 v{t0}, {64*t}, v{t0}")
        a(f"v_mul_u32_u24 v{t1}, 5462, v{t0}\nv_lshrrev_b32 v{t1}, 16, v{t1}")
        a(f"v_mul_u32_u24 v{vWa[t]}, 12, v{t1}\nv_sub_u32 v{t0}, v{t0}, v{vWa[t]}")
        a(f"v_add_u32 v{t0}, s{sTmp2}, v{t0}\nv_subrev_u32 v{vWa[t]}, 12, v{t0}")
        a(f"v_cmp_le_u32 vcc, 12, v{t0}\nv_cndmask_b32 v{t0}, v{t0}, v{vWa[t]}, vcc")
        a(f"v_mul_u32_u24 v{t1}, 3072, v{t1}\nv_lshl_add_u32 v{vWa[t]}, v{t0}, 4, v{t1}")
        if t: a(f"v_subrev_u32 v{vWa[t]}, {1024*t}, v{vWa[t]}")
    a(f"s_mul_i32 s{sWoff}, s{sFT}, 192\ns_mul_i32 s{sMW}, s{sWv}, 3072")
    def dma_w(slot):
        if opts.get('nodmaw') and started[0]: return
        a(f"s_add_u32 m0, s{sMW}, {slot*WST}")
        for t in range(3):
            a(f"buffer_load_dwordx4 v{vWa[t]}, s[{SW}:{SW+3}], s{sWoff} offen offset:{1024*t} lds")
        a(f"s_add_u32 s{sWoff}, s{sWoff}, {32*3072}")
    if opts.get('bench'):
        a(f"s_mov_b32 s78, {opts['bench']}")
        a(f"s_mov_b32 s79, s{sWoff}")
    dma_w(0)
    for ii in range(4):
        a(f"v_lshrrev_b32 v{t0}, 3, v{lane}")
        if ii: a(f"v_add_u32 v{t0}, {8*ii}, v{t0}")
        a(f"v_mul_u32_u24 v{vTok[ii]}, 1280, v{t0}")
        a(f"v_bfe_u32 v{t0}, v{t0}, 1, 3\nv_and_b32 v{t1}, 7, v{lane}\nv_xor_b32 v{t0}, v{t0}, v{t1}")
        a(f"v_lshl_add_u32 v{vTok[ii]}, v{t0}, 4, v{vTok[ii]}")
        if ii: a(f"v_subrev_u32 v{vTok[ii]}, {1024*ii}, v{vTok[ii]}")
    a(f"s_lshl_b32 s{sToff}, s{sT}, 7\ns_lshl_b32 s{sTmp}, s{sWv}, 5\ns_add_u32 s{sToff}, s{sToff}, s{sTmp}\ns_mul_i32 s{sToff}, s{sToff}, 1280")
    a(f"s_lshl_b32 s{sMT}, s{sWv}, 12\ns_add_u32 s{sMT}, s{sMT}, {TOK0}")
    if opts.get('bench'): a(f"s_mov_b32 s77, s{sToff}")
    def dma_t(buf):
        if opts.get('nodmat') and started[0]: return
        a(f"s_add_u32 m0, s{sMT}, {buf*TST}")
        for ii in range(4):
            a(f"buffer_load_dwordx4 v{vTok[ii]}, s[{SX}:{SX+3}], s{sToff} offen offset:{1024*ii} lds")
        a(f"s_add_u32 s{sToff}, s{sToff}, 128")
    dma_t(0); dma_w(1); dma_w(2); dma_t(1)
    started[0]=True
    ntouch=0
    if opts.get('touch',True):
        ntouch=2
        if opts.get('wtouch',1):
            a(f"s_lshr_b32 s{sTmp}, s2, 3\ns_lshl_b32 s{sTmp}, s{sTmp}, 1\ns_and_b32 s{sTmp2}, s{sWv}, 1\ns_add_u32 s{sTmp}, s{sTmp}, s{sTmp2}\ns_mul_i32 s{sTmp}, s{sTmp}, {10*3072}")
            a(f"s_and_b32 s{sTmp2}, s{sX}, 3\ns_mul_i32 s{sTmp2}, s{sTmp2}, 768\ns_add_u32 s{sTmp}, s{sTmp}, s{sTmp2}")
            a(f"v_mul_u32_u24 v{t0}, 10923, v{lane}\nv_lshrrev_b32 v{t0}, 16, v{t0}\nv_mul_u32_u24 v{t1}, 6, v{t0}\nv_sub_u32 v{t1}, v{lane}, v{t1}")
            a(f"v_mul_u32_u24 v{vTch[0]}, 3072, v{t0}\nv_lshl_add_u32 v{vTch[0]}, v{t1}, 7, v{vTch[0]}")
            a(f"s_mov_b32 exec_hi, 0x0fffffff")
            a(f"buffer_load_dword v{vDum}, v{vTch[0]}, s[{SW}:{SW+3}], s{sTmp} offen")
            a("s_mov_b64 exec, -1")
            ntouch=3
        a(f"s_lshl_b32 s{sTmp}, s{sT}, 7\ns_lshl_b32 s{sTmp2}, s{sJF}, 5\ns_add_u32 s{sTmp}, s{sTmp}, s{sTmp2}\ns_lshl_b32 s{sTmp2}, s{sWv}, 3\ns_add_u32 s{sTmp}, s{sTmp}, s{sTmp2}\ns_mul_i32 s{sTmp}, s{sTmp}, 1280")
        a(f"v_lshlrev_b32 v{vTch[0]}, 7, v{lane}")
        a(f"buffer_load_dword v{vDum}, v{vTch[0]}, s[{SX}:{SX+3}], s{sTmp} offen")
        a(f"s_add_u32 s{sTmp}, s{sTmp}, 8192\ns_mov_b64 exec, 0xffff")
        a(f"buffer_load_dword v{vDum}, v{vTch[0]}, s[{SX}:{SX+3}], s{sTmp} offen")
        a("s_mov_b64 exec, -1")
    a(f"v_lshrrev_b32 v{t0}, 5, v{lane}\nv_lshlrev_b32 v{t0}, 3, v{t0}\nv_bfe_u32 v{t1}, v{lane}, 2, 2\nv_add_u32 v{t0}, v{t0}, v{t1}")
    a(f"v_mul_u32_u24 v{vA}, 192, v{t0}\nv_and_b32 v{t1}, 3, v{lane}\nv_lshl_add_u32 v{vA}, v{t1}, 3, v{vA}")
    a(f"v_bfe_u32 v{t1}, v{lane}, 4, 1\nv_mul_u32_u24 v{t0}, {6144+32}, v{t1}\nv_add_u32 v{vA}, v{vA}, v{t0}")
    a(f"s_lshr_b32 s{sTmp}, s{sWv}, 1\ns_mul_i32 s{sTmp2}, s{sTmp}, 96\nv_add_u32 v{vA}, s{sTmp2}, v{vA}")
    a(f"s_mul_i32 s{sTmp2}, s{sTmp}, 192\nv_mul_u32_u24 v{t0}, s{sTmp2}, v{t1}\nv_sub_u32 v{vA5}, v{vA}, v{t0}")
    a(f"v_and_b32 v{t0}, 31, v{lane}\ns_and_b32 s{sTmp}, s{sWv}, 1\ns_lshl_b32 s{sTmp}, s{sTmp}, 6\nv_add_u32 v{t0}, s{sTmp}, v{t0}")
    a(f"v_bfe_u32 v{t1}, v{t0}, 1, 3\nv_lshrrev_b32 v{vB[3]}, 5, v{lane}\nv_xor_b32 v{t1}, v{t1}, v{vB[3]}")
    a(f"v_lshlrev_b32 v{t0}, 7, v{t0}\nv_add_u32 v{t0}, {TOK0}, v{t0}")
    for sp in range(4):
        a(f"v_xor_b32 v{vB[sp]}, {2*sp}, v{t1}\nv_lshl_add_u32 v{vB[sp]}, v{vB[sp]}, 4, v{t0}")
    a(f"v_bfe_u32 v{t0}, v{lane}, 4, 1\nv_mul_u32_u24 v{vSt}, 49152, v{t0}\nv_lshrrev_b32 v{t0}, 5, v{lane}\nv_lshl_add_u32 v{vSt}, v{t0}, 8, v{vSt}")
    a(f"v_and_b32 v{t0}, 15, v{lane}\nv_lshl_add_u32 v{vSt}, v{t0}, 4, v{vSt}")
    a(f"s_lshl_b32 s{sTmp}, s{sT}, 3\ns_and_b32 s{sTmp2}, s{sWv}, 1\ns_lshl_b32 s{sTmp2}, s{sTmp2}, 2\ns_add_u32 s{sTmp}, s{sTmp}, s{sTmp2}\ns_mul_i32 s{sTmp}, s{sTmp}, 49152")
    a(f"s_mul_i32 s{sTmp2}, s{sFT}, {12*256}\ns_add_u32 s{sTmp}, s{sTmp}, s{sTmp2}\ns_lshr_b32 s{sTmp2}, s{sWv}, 1\ns_mul_i32 s{sTmp2}, s{sTmp2}, {6*256}\ns_add_u32 s{sTmp}, s{sTmp}, s{sTmp2}")
    a(f"s_add_u32 s{sTmp}, s{sTmp}, {WS_H}\nv_add_u32 v{vSt}, s{sTmp}, v{vSt}")
    a(f"v_and_b32 v{t0}, 7, v{lane}\ns_lshl_b32 s{sTmp}, s{sT}, 3\nv_add_u32 v{t0}, s{sTmp}, v{t0}")
    a(f"v_and_b32 v{t1}, 15, v{t0}\nv_lshlrev_b32 v{t1}, 3, v{t1}\nv_lshrrev_b32 v{t0}, 4, v{t0}\nv_add_u32 v{t0}, v{t0}, v{t1}")
    a(f"v_lshlrev_b32 v{t0}, 6, v{t0}\nv_add_u32 v{vFl[0]}, {FL_LN}, v{t0}")
    a(f"s_mul_i32 s{sTmp}, s{sFT}, 3\ns_lshr_b32 s{sTmp}, s{sTmp}, 1\ns_and_b32 s{sTmp2}, s{sX}, 3\ns_mul_i32 s{sTmp2}, s{sTmp2}, 6\ns_sub_u32 s{sTmp}, s{sTmp}, s{sTmp2}")
    a(f"v_bfe_u32 v{t0}, v{lane}, 1, 1\nv_mul_u32_u24 v{t0}, 6, v{t0}\nv_and_b32 v{t1}, 1, v{lane}\nv_add_u32 v{t0}, v{t0}, v{t1}\nv_add_u32 v{t0}, s{sTmp}, v{t0}")
    a(f"v_lshlrev_b32 v{t0}, 3, v{t0}\nv_add_u32 v{t0}, s{sX}, v{t0}\nv_lshlrev_b32 v{t0}, 6, v{t0}\nv_add_u32 v{t0}, {FL_CS}, v{t0}")
    a(f"v_cmp_le_u32 vcc, 8, v{lane}\nv_cndmask_b32 v{vFl[0]}, v{vFl[0]}, v{t0}, vcc")
    a(f"v_lshlrev_b32 v{vPk[0]}, 6, v{lane}\nv_add_u32 v{vPk[0]}, {FL_PK}, v{vPk[0]}")
    a(f"v_min_u32 v{t0}, 31, v{lane}\nv_lshlrev_b32 v{t0}, 6, v{t0}\nv_add_u32 v{vPk[1]}, {FL_PK+4096}, v{t0}")
    for r in range(96): a(f"v_mov_b32 v{ACC+r}, 0")
    a("s_waitcnt lgkmcnt(0)")
    nonce_ready(a)
    S(1)
    if opts.get('bench'):
        a("s_branch Lbench_go")
        a.label("Lbench_top")
        a(f"s_mov_b32 s{sWoff}, s79\ns_mov_b32 s{sToff}, s77")
        a("s_barrier")
        started[0]=False
        dma_w(0); dma_t(0); dma_w(1); dma_w(2); dma_t(1)
        if ntouch:
            for _ in range(ntouch): a(f"buffer_load_dword v{vDum}, v{vTch[0]}, s[{SX}:{SX+3}], 0 offen")
        started[0]=True
        a.label("Lbench_go")
        a("s_memtime s[74:75]\ns_waitcnt lgkmcnt(0)")
    def reads(setb, st, s):
        slot=st%4; buf=(st//2)%2; sp=2*(st%2)+s
        R=[]
        def rb(nt): R.append((f"ds_read_b128 v[{setb+12+4*nt}:{setb+12+4*nt+3}], v{vB[sp]} offset:{buf*TST+nt*4096}", f"B{nt}"))
        def ra(j):
            for q in range(2):
                reg=vA5 if j==2 else vA
                R.append((f"ds_read_b64_tr_b16 v[{setb+4*j+2*q}:{setb+4*j+2*q+1}], v{reg} offset:{slot*WST+(16*s+4*q)*192+32*j}", f"A{j}"))
        rb(0); ra(0); ra(1); ra(2); rb(1)
        if opts.get('nods'): R=[]
        if opts.get('nodsB'): R=[x for x in R if x[1][0]!='B']
        if opts.get('nodsA'): R=[x for x in R if x[1][0]!='A']
        return R
    def mfma(setb, j, nt):
        if opts.get('nomfma'): return
        d=ACC+16*(2*j+nt)
        a(f"v_mfma_f32_32x32x16_bf16 v[{d}:{d+15}], v[{setb+4*j}:{setb+4*j+3}], v[{setb+12+4*nt}:{setb+12+4*nt+3}], v[{d}:{d+15}]")
    ORDER=[(0,0),(1,0),(2,0),(0,1),(1,1),(2,1)]
    NEED={(0,0):"A0",(1,0):"A1",(2,0):"A2",(0,1):"B1",(1,1):None,(2,1):None}
    vq=['W0']*3+['T0']*4+['W1']*3+['W2']*3+['T1']*4+['x']*ntouch
    def vwait(tags):
        nonlocal vq
        idx=max(i for i,t in enumerate(vq) if t in tags)
        n=len(vq)-1-idx
        vq=vq[idx+1:]
        return n
    def dma_list(st):
        L=[]
        if st+3<20 and not opts.get('nodmaw'):
            slot=(st+3)%4
            for t in range(3):
                pre=f"s_add_u32 m0, s{sMW}, {slot*WST}\ns_nop 0\n" if t==0 else ""
                post=f"\ns_add_u32 s{sWoff}, s{sWoff}, {32*3072}" if t==2 else ""
                L.append((pre+f"buffer_load_dwordx4 v{vWa[t]}, s[{SW}:{SW+3}], s{sWoff} offen offset:{1024*t} lds"+post, f"W{st+3}"))
        if st%2==0 and st>=2 and st//2+1<10 and not opts.get('nodmat'):
            buf=(st//2+1)%2
            for ii in range(4):
                pre=f"s_add_u32 m0, s{sMT}, {buf*TST}\ns_nop 0\n" if ii==0 else ""
                post=f"\ns_add_u32 s{sToff}, s{sToff}, 128" if ii==3 else ""
                L.append((pre+f"buffer_load_dwordx4 v{vTok[ii]}, s[{SX}:{SX+3}], s{sToff} offen offset:{1024*ii} lds"+post, f"T{st//2+1}"))
        return L
    def stage(st, first=False, extra1=None, extra2=None, fixed=None):
        need=[f"W{st}", f"T{st//2}"]
        n=vwait([t for t in need if t in vq]) if any(t in vq for t in need) else len(vq)
        if fixed is not None: assert n==fixed,(st,n,fixed)
        a(f"s_waitcnt vmcnt({n}) lgkmcnt(0)\ns_barrier")
        lt=LdsTrack(a)
        DL=dma_list(st); di=0
        spread=opts.get('spread',1)
        if spread==1: order=[4,5,10,11,3,9,2,8]
        elif spread==2: order=[0,1,2,3,4,5,6,7,8,9,10,11]
        elif spread==3: order=[5,5,5,10,10,10,10]
        elif spread==4: order=[0,2,4,6,8,10,11]
        gaps={}
        srt=sorted(order[:len(DL)])
        for i,g in enumerate(srt): gaps.setdefault(g,[]).append(DL[i])
        def do_dma(g):
            for (t,tag) in gaps.get(g,[]):
                a(t); vq.append(tag)
        rdn=opts.get('rdn',2)
        R=reads(Pq, st, 0); ri=0
        for k,(j,nt) in enumerate(ORDER):
            if not first: mfma(Qq,j,nt)
            for _ in range(rdn):
                if ri<len(R): lt.issue(R[ri][0], 'P'+R[ri][1]); ri+=1
            do_dma(k)
        if extra1: extra1()
        R=reads(Qq, st, 1); ri=0
        for k,(j,nt) in enumerate(ORDER):
            if NEED[(j,nt)]: lt.wait('P'+NEED[(j,nt)])
            mfma(Pq,j,nt)
            for _ in range(rdn):
                if ri<len(R): lt.issue(R[ri][0], 'Q'+R[ri][1]); ri+=1
            do_dma(6+k)
        if extra2: extra2()
        return n
    for st in range(0,4): stage(st, first=(st==0))
    S(2) if not opts.get("bench") else None
    a(f"s_mov_b32 s{sCnt}, 2")
    lab=a.newlabel('Lup'); a.label(lab)
    pat=[stage(st) for st in range(4,8)]
    a(f"s_sub_u32 s{sCnt}, s{sCnt}, 1\ns_cmp_lg_u32 s{sCnt}, 0\ns_cbranch_scc1 {lab}")
    class Null:
        def __call__(s,*x): pass
    sav=a.ins; a.ins=[]
    pat2=[stage(st) for st in range(8,12)]
    a.ins=sav
    assert pat==pat2,(pat,pat2)
    FLG=200
    def issue_flags():
        a(f"buffer_load_dword v{FLG}, v{vFl[0]}, s[{SWS}:{SWS+3}], 0 offen sc1"); vq.append('F')
    stage(12, extra2=issue_flags)
    stage(13)
    STAT=204
    CSR=208
    PKF=212
    def check_and_load():
        nonlocal vq
        n=vwait(['F'])
        a(f"s_waitcnt vmcnt({n})")
        poll_check(a, 1, FLG)
        lab2=a.newlabel('Lok')
        a(f"s_cbranch_scc0 {lab2}")
        poll(a, vFl, FLG)
        a.label(lab2)
        a(f"v_and_b32 v{t0}, 31, v{lane}\ns_lshl_b32 s{sTmp}, s{sT}, 7\ns_and_b32 s{sTmp2}, s{sWv}, 1\ns_lshl_b32 s{sTmp2}, s{sTmp2}, 6\ns_add_u32 s{sTmp}, s{sTmp}, s{sTmp2}")
        a(f"v_add_u32 v{t0}, s{sTmp}, v{t0}\nv_lshlrev_b32 v{t0}, 3, v{t0}\ns_mov_b32 s{sTmp}, {WS_STATS}")
        for nt in range(2):
            a(f"buffer_load_dwordx2 v[{STAT+2*nt}:{STAT+2*nt+1}], v{t0}, s[{SWS}:{SWS+3}], s{sTmp} offen offset:{256*nt} sc1"); vq.append('S')
        a(f"v_bfe_u32 v{t0}, v{lane}, 4, 1\nv_mul_u32_u24 v{t0}, 6144, v{t0}\nv_and_b32 v{t1}, 15, v{lane}\nv_lshl_add_u32 v{t0}, v{t1}, 2, v{t0}")
        a(f"s_mul_i32 s{sTmp}, s{sFT}, 384\ns_lshr_b32 s{sTmp2}, s{sWv}, 1\ns_mul_i32 s{sTmp2}, s{sTmp2}, 192\ns_add_u32 s{sTmp}, s{sTmp}, s{sTmp2}\ns_add_u32 s{sTmp}, s{sTmp}, {WS_CS}")
        a(f"s_lshr_b32 s{sTmp2}, s{sX}, 2\ns_mul_i32 s{sTmp2}, s{sTmp2}, 12288\ns_add_u32 s{sTmp}, s{sTmp}, s{sTmp2}")
        for j in range(3):
            a(f"buffer_load_dword v{CSR+j}, v{t0}, s[{SWS}:{SWS+3}], s{sTmp} offen offset:{64*j} sc1"); vq.append('S')
        for i in range(2):
            a(f"buffer_load_dword v{PKF+i}, v{vPk[i]}, s[{SWS}:{SWS+3}], 0 offen sc1"); vq.append('S')
    stage(14, extra2=check_and_load)
    for st in range(15,20): stage(st)
    a("s_waitcnt lgkmcnt(0)")
    for (j,nt) in ORDER: mfma(Qq,j,nt)
    if opts.get('bench'):
        a("s_waitcnt vmcnt(0)")
        a("s_memtime s[72:73]\ns_waitcnt lgkmcnt(0)\ns_sub_u32 s72, s72, s74")
        for r in range(opts['bench']):
            a(f"s_cmp_eq_u32 s78, {opts['bench']-r}\ns_cselect_b32 s{84+2*(4+r)}, s72, s{84+2*(4+r)}")
        a("s_sub_u32 s78, s78, 1\ns_cmp_lg_u32 s78, 0\ns_cbranch_scc1 Lbench_top")
        return
    S(3)
    a("s_waitcnt vmcnt(0)")
    poll_check(a, 2, PKF)
    labp=a.newlabel('Lok'); a(f"s_cbranch_scc0 {labp}")
    poll(a, vPk, PKF)
    a.label(labp)
    EA=Pq; EB=Pq+12
    a(f"v_cmp_gt_u32 vcc, 32, v{lane}")
    for j in range(3):
        a(f"v_mov_b32 v{t0}, v{CSR+j}")
        a(f"v_cvt_pk_bf16_f32 v{t1}, v{t0}, v{t0}\nv_and_b32 v{t1}, 0xffff0000, v{t1}")
        a(f"v_sub_f32 v{t0}, v{t0}, v{t1}")
        a(f"v_cvt_pk_bf16_f32 v{t0}, v{t1}, v{t0}")
        a(f"v_cndmask_b32 v{EA+4*j}, 0, v{t0}, vcc")
        for r in range(1,4): a(f"v_mov_b32 v{EA+4*j+r}, 0")
    for nt in range(2):
        a(f"v_cvt_pk_bf16_f32 v{t0}, v{STAT+2*nt}, v{STAT+2*nt}")
        a(f"v_cndmask_b32 v{EB+4*nt}, 0, v{t0}, vcc")
        for r in range(1,4): a(f"v_mov_b32 v{EB+4*nt+r}, 0")
    for (j,nt) in ORDER: mfma(Pq,j,nt)
    C1=[214,215]; IR2=[216,217]
    for nt in range(2):
        r=STAT+2*nt+1
        a(f"v_mul_f32 v{C1[nt]}, 0xbfb8aa3b, v{r}")
        a(f"v_mul_f32 v{IR2[nt]}, v{r}, v{r}\nv_rcp_f32 v{IR2[nt]}, v{IR2[nt]}")
    T=220; O=232
    k=0
    for (j,nt) in ORDER:
        d=ACC+16*(2*j+nt); o=O+4*(k%2); k+=1
        for i in range(8): a(f"v_mul_f32 v{T+i}, v{d+i}, v{C1[nt]}")
        for i in range(8): a(f"v_exp_f32 v{T+i}, v{T+i}")
        for i in range(8): a(f"v_mul_f32 v{d+i}, v{d+i}, v{d+8+i}")
        for i in range(8): a(f"v_fma_f32 v{T+i}, v{T+i}, v{IR2[nt]}, v{IR2[nt]}")
        for i in range(8): a(f"v_rcp_f32 v{T+i}, v{T+i}")
        for i in range(8): a(f"v_mul_f32 v{T+i}, v{T+i}, v{d+i}")
        for p in range(4): a(f"v_cvt_pk_bf16_f32 v{o+p}, v{T+2*p}, v{T+2*p+1}")
        a(f"v_permlane32_swap_b32 v{o}, v{o+2}\nv_permlane32_swap_b32 v{o+1}, v{o+3}")
        a(f"s_mov_b32 s{sTmp}, {nt*2*49152+j*512}")
        a(f"buffer_store_dwordx4 v[{o}:{o+3}], v{vSt}, s[{SWS}:{SWS+3}], s{sTmp} offen sc1")
    S(4)
    sT64=65; sCT=66; sA=67; sB=72; sHf=76
    vL16=4; vRed=5; vXo=6; vAt=7; vHf=8; vAf=9
    DACC=24
    NA=opts.get('NA',5); NB=3
    AF=104
    BF=AF+20*NA
    assert BF+16*NB<=256-0, BF+16*NB
    a(f"s_lshr_b32 s{sT64}, s{sX}, 1\ns_lshl_b32 s{sT64}, s{sT64}, 3\ns_add_u32 s{sT64}, s{sT64}, s{sJT}")
    a(f"s_and_b32 s{sCT}, s{sX}, 1\ns_lshl_b32 s{sCT}, s{sCT}, 2\ns_add_u32 s{sCT}, s{sCT}, s{sJF}")
    a(f"v_lshlrev_b32 v{vL16}, 4, v{lane}")
    a(f"s_mul_i32 s{sTmp}, s{sWv}, {12*1024}\ns_mul_i32 s{sTmp2}, s{sCT}, {5*49152}\ns_add_u32 s{sTmp2}, s{sTmp2}, s{sTmp}")
    for m in range(5): a(f"s_add_u32 s{sA+m}, s{sTmp2}, {WS_W2P+m*49152}")
    a(f"s_mul_i32 s{sTmp2}, s{sT64}, {4*49152}\ns_add_u32 s{sTmp2}, s{sTmp2}, s{sTmp}\ns_add_u32 s{sTmp2}, s{sTmp2}, {WS_H}")
    for n in range(4):
        a(f"s_add_u32 s{sB+n}, s{sWv}, {n}\ns_and_b32 s{sB+n}, s{sB+n}, 3\ns_mul_i32 s{sB+n}, s{sB+n}, 49152\ns_add_u32 s{sB+n}, s{sB+n}, s{sTmp2}")
    vt=VmTrack(a); vt.q=['h']*6
    def loadA(k):
        fb=AF+20*(k%NA)
        for m in range(5):
            vt.issue(f"buffer_load_dwordx4 v[{fb+4*m}:{fb+4*m+3}], v{vL16}, s[{SWS}:{SWS+3}], s{sA+m} offen offset:{(k%4)*1024} sc1", f"a{k}")
        if k%4==3:
            for m in range(5): a(f"s_add_u32 s{sA+m}, s{sA+m}, 4096")
    def loadB(k):
        fb=BF+16*(k%NB)
        for n in range(4):
            vt.issue(f"buffer_load_dwordx4 v[{fb+4*n}:{fb+4*n+3}], v{vL16}, s[{SWS}:{SWS+3}], s{sB+n} offen offset:{(k%4)*1024} sc1", f"b{k}")
        if k%4==3:
            for n in range(4): a(f"s_add_u32 s{sB+n}, s{sB+n}, 4096")
    for k in range(NA): loadA(k)
    vt.wait('h')
    a("s_barrier")
    a(f"s_lshl_b32 s{sTmp}, s{sT}, 4\ns_add_u32 s{sTmp}, s{sTmp}, s{sFT}\ns_lshl_b32 s{sTmp}, s{sTmp}, 6\ns_add_u32 s{sTmp}, s{sTmp}, {FL_H}")
    flag_store(a, sTmp, t0); vt.q.append('f')
    S(5)
    for r in range(80): a(f"v_mov_b32 v{DACC+r}, 0")
    a(f"v_and_b32 v{t0}, 15, v{lane}\ns_lshl_b32 s{sTmp}, s{sT64}, 6\ns_lshl_b32 s{sTmp2}, s{sWv}, 4\ns_add_u32 s{sTmp}, s{sTmp}, s{sTmp2}\nv_add_u32 v{t0}, s{sTmp}, v{t0}")
    a(f"v_lshrrev_b32 v{t1}, 4, v{lane}\nv_mul_u32_u24 v{vXo}, 1280, v{t0}\nv_lshl_add_u32 v{vXo}, v{t1}, 3, v{vXo}")
    a(f"s_mul_i32 s{sTmp}, s{sCT}, 160\nv_add_u32 v{vXo}, s{sTmp}, v{vXo}")
    a(f"v_lshlrev_b32 v{vAt}, 14, v{t1}\nv_lshl_add_u32 v{vAt}, v{t0}, 1, v{vAt}")
    a(f"s_mul_i32 s{sTmp}, s{sCT}, {80*4096}\ns_add_u32 s{sTmp}, s{sTmp}, {WS_AT}\nv_add_u32 v{vAt}, s{sTmp}, v{vAt}")
    a(f"s_lshr_b32 s{sTmp}, s{sT64}, 1\ns_lshl_b32 s{sTmp}, s{sTmp}, 10\ns_add_u32 s{sTmp}, s{sTmp}, {FL_H}")
    a(f"v_and_b32 v{t0}, 15, v{lane}\nv_lshlrev_b32 v{t0}, 6, v{t0}\nv_add_u32 v{vHf}, s{sTmp}, v{t0}")
    a(f"s_mul_i32 s{sTmp}, s{sCT}, {20*64}\ns_add_u32 s{sTmp}, s{sTmp}, {FL_A}")
    a(f"v_min_u32 v{t0}, 19, v{lane}\nv_lshlrev_b32 v{t0}, 6, v{t0}\nv_add_u32 v{vAf}, s{sTmp}, v{t0}")
    poll(a, [vHf], 10, force=True); vt.q=[]
    S(6)
    if opts.get('touch_h',True):
        a(f"s_lshl_b32 s{sTmp}, s{sT64}, 2\ns_add_u32 s{sTmp}, s{sTmp}, s{sJF}\ns_mul_i32 s{sTmp}, s{sTmp}, 49152\ns_mul_i32 s{sTmp2}, s{sWv}, {12*1024}\ns_add_u32 s{sTmp}, s{sTmp}, s{sTmp2}\ns_add_u32 s{sTmp}, s{sTmp}, {WS_H}")
        a(f"v_lshlrev_b32 v{t0}, 7, v{lane}")
    for k in range(NB): loadB(k)
    if opts.get('touch_h',True):
        vt.issue(f"buffer_load_dword v{vDum}, v{t0}, s[{SWS}:{SWS+3}], s{sTmp} offen", 'x')
        a(f"s_add_u32 s{sTmp}, s{sTmp}, 8192\ns_mov_b32 exec_hi, 0")
        vt.issue(f"buffer_load_dword v{vDum}, v{t0}, s[{SWS}:{SWS+3}], s{sTmp} offen", 'x')
        a("s_mov_b64 exec, -1")
    for k in range(12):
        vt.wait(f"b{k}")
        assert f"a{k}" not in vt.q
        fa=AF+20*(k%NA); fb=BF+16*(k%NB)
        order=[(m,n) for n in ((1,2,3,0) if k==11 else (0,1,2,3)) for m in range(5)]
        for (m,n) in order:
            d=DACC+4*(m*4+n)
            a(f"v_mfma_f32_16x16x32_bf16 v[{d}:{d+3}], v[{fa+4*m}:{fa+4*m+3}], v[{fb+4*n}:{fb+4*n+3}], v[{d}:{d+3}]")
        if k+NA<12: loadA(k+NA)
        if k+NB<12: loadB(k+NB)
        if k==8:
            vt.issue(f"buffer_load_dword v10, v{vAf}, s[{SWS}:{SWS+3}], 0 offen sc1", 'af')
    S(7)
    vt.wait('af') if 'af' in vt.q else None
    poll_check(a, 1, 10)
    lab3=a.newlabel('Lok'); a(f"s_cbranch_scc0 {lab3}")
    poll(a, [vAf], 10)
    a.label(lab3)
    XR=104; AR=116
    for m in range(5):
        a(f"buffer_load_dwordx2 v[{XR+2*m}:{XR+2*m+1}], v{vXo}, s[{SX}:{SX+3}], 0 offen offset:{32*m}")
    for m in range(5):
        for r in range(4):
            a(f"s_mov_b32 s{sTmp}, {(16*m+r)*4096}")
            a(f"buffer_load_ushort v{AR+4*m+r}, v{vAt}, s[{SWS}:{SWS+3}], s{sTmp} offen sc1")
    for n in range(1,4):
        a(f"s_add_u32 s{sTmp}, s{sWv}, {n}\ns_and_b32 s{sTmp}, s{sTmp}, 3\ns_mul_i32 s{sTmp}, s{sTmp}, {15*1024}\ns_add_u32 s{sTmp}, s{sTmp}, {(n-1)*5*1024}")
        a(f"v_add_u32 v{vRed}, s{sTmp}, v{vL16}")
        for m in range(5):
            d=DACC+4*(m*4+n)
            a(f"ds_write_b128 v{vRed}, v[{d}:{d+3}] offset:{m*1024}")
    a("s_waitcnt lgkmcnt(0)\ns_barrier")
    a(f"s_mul_i32 s{sTmp}, s{sWv}, {15*1024}\nv_add_u32 v{vRed}, s{sTmp}, v{vL16}")
    RB=140
    for si in range(3):
        for m in range(5):
            a(f"ds_read_b128 v[{RB+(si*5+m)*4}:{RB+(si*5+m)*4+3}], v{vRed} offset:{(si*5+m)*1024}")
    for si in range(3):
        a(f"s_waitcnt lgkmcnt({10-5*si})")
        for m in range(5):
            for r in range(4):
                x=DACC+4*(m*4)+r; y=RB+(si*5+m)*4+r
                a(f"v_add_f32 v{x}, v{x}, v{y}")
    a("s_waitcnt vmcnt(0)")
    SRO=52
    srd(a,SRO,P["out"],X_BYTES)
    T=200
    for m in range(5):
        x0=XR+2*m; f0=DACC+16*m
        a(f"v_lshlrev_b32 v{T}, 16, v{x0}\nv_and_b32 v{T+1}, 0xffff0000, v{x0}\nv_lshlrev_b32 v{T+2}, 16, v{x0+1}\nv_and_b32 v{T+3}, 0xffff0000, v{x0+1}")
        for r in range(4): a(f"v_lshlrev_b32 v{AR+4*m+r}, 16, v{AR+4*m+r}")
        for r in range(4): a(f"v_add_f32 v{T+r}, v{T+r}, v{AR+4*m+r}")
        for p in range(2): a(f"v_cvt_pk_bf16_f32 v{T+4+p}, v{T+2*p}, v{T+2*p+1}")
        for p in range(2): a(f"v_cvt_pk_bf16_f32 v{T+6+p}, v{f0+2*p}, v{f0+2*p+1}")
        o=T+8+2*(m%2)
        for p in range(2):
            a(f"v_lshlrev_b32 v{T}, 16, v{T+4+p}\nv_and_b32 v{T+1}, 0xffff0000, v{T+4+p}\nv_lshlrev_b32 v{T+2}, 16, v{T+6+p}\nv_and_b32 v{T+3}, 0xffff0000, v{T+6+p}")
            a(f"v_add_f32 v{T}, v{T}, v{T+2}\nv_add_f32 v{T+1}, v{T+1}, v{T+3}\nv_cvt_pk_bf16_f32 v{o+p}, v{T}, v{T+1}")
        a(f"buffer_store_dwordx2 v[{o}:{o+1}], v{vXo}, s[{SRO}:{SRO+3}], 0 offen offset:{32*m}")
    lab4=a.newlabel('Lnn')
    a(f"s_cmp_lg_u32 s2, 0\ns_cbranch_scc1 {lab4}\ns_cmp_lg_u32 s{sWv}, 0\ns_cbranch_scc1 {lab4}")
    for i in range(4): a(f"v_add_u32 v{10+i}, {64*i}, v{lane}\nv_lshlrev_b32 v{10+i}, 6, v{10+i}\nv_add_u32 v{10+i}, {FL_H}, v{10+i}")
    for i in range(3): a(f"v_add_u32 v{14+i}, {64*i}, v{lane}\nv_min_u32 v{14+i}, 159, v{14+i}\nv_lshlrev_b32 v{14+i}, 6, v{14+i}\nv_add_u32 v{14+i}, {FL_A}, v{14+i}")
    poll(a, [10,11,12,13,14,15,16], 104)
    a(f"s_mov_b32 s{sTmp}, {WS_NONCE}")
    flag_store(a, sTmp, t0)
    a.label(lab4)
```

```python
from f_common import *
def emit_ln16(a, sQ, sb, S):
    lane=1; w=2; off=3; t0=4; t1=5; mu=6; rr=7; acc=8; acc2=9; ldsa=10; tra=11; sto=12; sta=13
    raw=16
    X=40
    outb=80
    sT=sb; sT2=sb+1; sW=sb+2; sB=sb+3
    a(f"s_and_b32 s{sB}, s{sQ}, 7\ns_lshl_b32 s{sB}, s{sB}, 4\ns_lshr_b32 s{sT}, s{sQ}, 3\ns_add_u32 s{sB}, s{sB}, s{sT}")
    a(f"v_and_b32 v{lane}, 63, v0\nv_lshrrev_b32 v{w}, 6, v0")
    a(f"v_lshrrev_b32 v{t0}, 4, v{lane}")
    a(f"v_lshl_add_u32 v{t0}, v{w}, 2, v{t0}")
    a(f"s_lshl_b32 s{sT}, s{sB}, 4")
    a(f"v_add_u32 v{t1}, s{sT}, v{t0}")
    a(f"v_mul_u32_u24 v{off}, 1280, v{t1}")
    a(f"v_lshlrev_b32 v{sta}, 3, v{t1}")
    a(f"v_and_b32 v{t1}, 15, v{lane}")
    a(f"v_lshl_add_u32 v{off}, v{t1}, 4, v{off}")
    for i in range(5):
        a(f"buffer_load_dwordx4 v[{raw+4*i}:{raw+4*i+3}], v{off}, s[{SX}:{SX+3}], 0 offen offset:{256*i}")
    a(f"v_readfirstlane_b32 s{sW}, v{w}")
    a(f"v_mul_u32_u24 v{ldsa}, 1344, v{t0}")
    a(f"v_lshl_add_u32 v{ldsa}, v{t1}, 4, v{ldsa}")
    a(f"v_bfe_u32 v{t0}, v{lane}, 2, 2\nv_mul_u32_u24 v{tra}, 1344, v{t0}")
    a(f"v_lshrrev_b32 v{t0}, 4, v{lane}")
    a(f"v_lshl_add_u32 v{tra}, v{t0}, 5, v{tra}")
    a(f"v_and_b32 v{t1}, 3, v{lane}\nv_lshl_add_u32 v{tra}, v{t1}, 3, v{tra}")
    a(f"s_lshr_b32 s{sT}, s{sW}, 1\ns_mul_i32 s{sT}, s{sT}, {8*1344}\ns_and_b32 s{sT2}, s{sW}, 1\ns_mul_i32 s{sT2}, s{sT2}, 640\ns_add_u32 s{sT}, s{sT}, s{sT2}")
    a(f"v_add_u32 v{tra}, s{sT}, v{tra}")
    a(f"v_bfe_u32 v{t1}, v{lane}, 3, 1\nv_lshl_add_u32 v{t1}, v{t0}, 1, v{t1}\nv_lshlrev_b32 v{sto}, 15, v{t1}")
    a(f"v_and_b32 v{t1}, 7, v{lane}\nv_lshl_add_u32 v{sto}, v{t1}, 4, v{sto}")
    a(f"s_lshl_b32 s{sT}, s{sB}, 1\ns_lshr_b32 s{sT2}, s{sW}, 1\ns_add_u32 s{sT}, s{sT}, s{sT2}\ns_lshl_b32 s{sT}, s{sT}, 7")
    a(f"s_and_b32 s{sT2}, s{sW}, 1\ns_mul_i32 s{sT2}, s{sT2}, {5*262144}\ns_add_u32 s{sT}, s{sT}, s{sT2}")
    a(f"v_add_u32 v{sto}, s{sT}, v{sto}")

    for i in range(5):
        a(f"s_waitcnt vmcnt({4-i})")
        for r in range(4):
            a(f"v_lshlrev_b32 v{X+8*i+2*r}, 16, v{raw+4*i+r}\nv_and_b32 v{X+8*i+2*r+1}, 0xffff0000, v{raw+4*i+r}")
    a(f"v_add_f32 v{acc}, v{X}, v{X+2}\nv_add_f32 v{acc2}, v{X+1}, v{X+3}")
    for p in range(2,20): a(f"v_add_f32 v{acc}, v{acc}, v{X+2*p}\nv_add_f32 v{acc2}, v{acc2}, v{X+2*p+1}")
    def red16(r):
        for sh in (8,4,2,1): a(f"v_add_f32_dpp v{r}, v{r}, v{r} row_ror:{sh} row_mask:0xf bank_mask:0xf")
    a(f"v_add_f32 v{mu}, v{acc}, v{acc2}")
    red16(mu)
    a(f"v_mul_f32 v{mu}, {hex(0x3acccccd)}, v{mu}")
    for p in range(40): a(f"v_sub_f32 v{X+p}, v{X+p}, v{mu}")
    a(f"v_mul_f32 v{acc}, v{X}, v{X}\nv_mul_f32 v{acc2}, v{X+1}, v{X+1}")
    for p in range(1,20): a(f"v_fmac_f32 v{acc}, v{X+2*p}, v{X+2*p}\nv_fmac_f32 v{acc2}, v{X+2*p+1}, v{X+2*p+1}")
    a(f"v_add_f32 v{rr}, v{acc}, v{acc2}")
    red16(rr)
    a(f"v_mul_f32 v{rr}, {hex(0x3acccccd)}, v{rr}")
    def rbf(r): a(f"v_cvt_pk_bf16_f32 v{r}, v{r}, v{r}\nv_and_b32 v{r}, 0xffff0000, v{r}")
    rbf(rr); a(f"v_add_f32 v{rr}, {hex(0x3727c5ac)}, v{rr}"); rbf(rr)
    a(f"v_sqrt_f32 v{rr}, v{rr}"); rbf(rr); a(f"v_rcp_f32 v{rr}, v{rr}")
    a(f"v_cvt_pk_bf16_f32 v{acc}, v{mu}, v{mu}\nv_and_b32 v{acc}, 0xffff0000, v{acc}\nv_xor_b32 v{acc}, 0x80000000, v{acc}")
    a(f"v_mov_b32 v{acc2}, v{rr}")
    a(f"s_mov_b32 s{sT}, {WS_STATS}")
    a(f"s_mov_b32 exec_lo, 0x00010001\ns_mov_b32 exec_hi, 0x00010001")
    a(f"buffer_store_dwordx2 v[{acc}:{acc+1}], v{sta}, s[{SWS}:{SWS+3}], s{sT} offen sc1")
    a("s_mov_b64 exec, -1")
    for p in range(40): a(f"v_mul_f32 v{X+p}, v{X+p}, v{rr}")
    for i in range(5):
        for r in range(4): a(f"v_cvt_pk_bf16_f32 v{raw+4*i+r}, v{X+8*i+2*r}, v{X+8*i+2*r+1}")
        a(f"ds_write_b128 v{ldsa}, v[{raw+4*i}:{raw+4*i+3}] offset:{256*i}")
    a("s_waitcnt lgkmcnt(0)\ns_barrier")
    for i in range(5):
        for q in range(2):
            a(f"ds_read_b64_tr_b16 v[{outb+4*i+2*q}:{outb+4*i+2*q+1}], v{tra} offset:{q*4*1344+i*128}")
    for i in range(5):
        a(f"s_waitcnt lgkmcnt({8-2*i})")
        a(f"s_mov_b32 s{sT}, {WS_XNT+i*262144}")
        a(f"buffer_store_dwordx4 v[{outb+4*i}:{outb+4*i+3}], v{sto}, s[{SWS}:{SWS+3}], s{sT} offen sc1")
```

```python
from f_common import *
from f_ln16 import emit_ln16
TBL=18432
ROW=288
KN_OFF=[0, 32448, 36864, 69312]
U_OFF=4416
R_OFF=[U_OFF+18432, 41280, 41280+8448, 41280+2*8448]
RC=2112
LOG2E=0x3fb8aa3b
INV2PI=0x3e22f983

def cmul(a, d, x, w):
    a(f"v_mul_f32 v{d}, v{x}, v{w}")
    a(f"v_mul_f32 v{d+1}, v{x}, v{w+1}")
    a(f"v_fma_f32 v{d}, -v{x+1}, v{w+1}, v{d}")
    a(f"v_fma_f32 v{d+1}, v{x+1}, v{w}, v{d+1}")

def emit_ssm(a, S_, st=' sc1', ld=' sc1', sb=64):
    st_=S_; sQ=46; sPtrDt=P['logdt']; sPtrD=P['Dskip']
    SP=dict(logA=48,Aim=52,Cre=56,Cim=60)
    a(f's_sub_u32 s{sQ}, s2, 256')
    for n_ in SP: srd(a,SP[n_],P[n_],D*N*2)
    S=st_ if st_ else (lambda i: None)
    sWv=sb; sCh=sb+1; sTmp=sb+2; sTmp2=sb+3; sDt=sb+4; sD=sb+5; sTb=sb+6; sCnt=sb+7; sPo=sb+8; sKn=sb+9; sR=sb+10; sMask=sb+12; sBf=sb+14
    lane=1; t0=2; t1=3; vP=238; vTw=5; vTrA=6; vTrB=7
    a(f"v_and_b32 v{lane}, 63, v0")
    a(f"v_lshrrev_b32 v{t0}, 6, v0")
    a(f"v_readfirstlane_b32 s{sWv}, v{t0}")
    a(f"s_lshl_b32 s{sCh}, s{sQ}, 2")
    a(f"s_add_u32 s{sCh}, s{sCh}, s{sWv}")
    a(f"s_lshr_b32 s{sTmp}, s{sCh}, 1\ns_lshl_b32 s{sTmp}, s{sTmp}, 2")
    a(f"s_load_dword s{sDt}, s[{sPtrDt}:{sPtrDt+1}], s{sTmp}")
    a(f"s_load_dword s{sD}, s[{sPtrD}:{sPtrD+1}], s{sTmp}")
    PR=240
    a(f"s_mul_i32 s{sPo}, s{sCh}, 384")
    a(f"v_lshlrev_b32 v{vP}, 1, v{lane}")
    for p in range(3):
        for i,nm in enumerate(("logA","Aim","Cre","Cim")):
            a(f"buffer_load_ushort v{PR+4*p+i}, v{vP}, s[{SP[nm]}:{SP[nm]+3}], s{sPo} offen offset:{128*p}")
    labln=a.newlabel('Lnoln')
    a(f"s_cmp_ge_u32 s{sQ}, 128\ns_cbranch_scc1 {labln}")
    emit_ln16(a, sQ, sb+16, S)
    a("s_barrier")
    a.label(labln)
    a(f"v_and_b32 v{lane}, 63, v0")
    a(f"s_mul_i32 s{sTb}, s{sWv}, {TBL}")
    a(f"v_mul_u32_u24 v{vTw}, {ROW}, v{lane}")
    a(f"v_add_u32 v{vTw}, s{sTb}, v{vTw}")
    a(f"v_bfe_u32 v{t0}, v{lane}, 4, 1")
    a(f"v_lshlrev_b32 v{t0}, 2, v{t0}")
    a(f"v_bfe_u32 v{t1}, v{lane}, 2, 2")
    a(f"v_add_u32 v{t0}, v{t0}, v{t1}")
    a(f"v_mul_u32_u24 v{vTrA}, {ROW}, v{t0}")
    a(f"v_and_b32 v{t1}, 3, v{lane}")
    a(f"v_lshl_add_u32 v{vTrA}, v{t1}, 3, v{vTrA}")
    a(f"v_add_u32 v{vTrA}, s{sTb}, v{vTrA}")
    a(f"v_lshrrev_b32 v{t0}, 5, v{lane}")
    a(f"v_mul_u32_u24 v{t1}, 32, v{t0}")
    a(f"v_add_u32 v{vTrB}, v{vTrA}, v{t1}")
    a(f"v_add_u32 v{vTrB}, 192, v{vTrB}")
    a(f"v_mul_u32_u24 v{t1}, 96, v{t0}")
    a(f"v_add_u32 v{vTrA}, v{vTrA}, v{t1}")
    vDt=20; vDs=21
    a("s_waitcnt lgkmcnt(0)")
    nonce_ready(a)
    a(f"s_and_b32 s{sTmp}, s{sCh}, 1\ns_lshl_b32 s{sTmp}, s{sTmp}, 4")
    a(f"s_lshr_b32 s{sDt}, s{sDt}, s{sTmp}\ns_lshl_b32 s{sDt}, s{sDt}, 16")
    a(f"s_lshr_b32 s{sD}, s{sD}, s{sTmp}\ns_lshl_b32 s{sD}, s{sD}, 16")
    a(f"v_mov_b32 v{vDt}, s{sDt}")
    a(f"v_mul_f32 v{vDt}, {hex(LOG2E)}, v{vDt}")
    a(f"v_exp_f32 v{vDt}, v{vDt}")
    a(f"v_cvt_pk_bf16_f32 v{vDt}, v{vDt}, v{vDt}")
    a(f"v_and_b32 v{vDt}, 0xffff0000, v{vDt}")
    KACC=24
    for r in range(12): a(f"v_mov_b32 v{KACC+r}, 0")
    CUR=36
    AR=40; TH=41; Z1=42; Z8=44; Z128=46; M=48; TT=49
    H=52
    S1=84
    S2=100
    S3=116
    Lr=136
    PK=172
    FR=204
    labw=a.newlabel('Lw')
    a(f"s_cmp_lt_u32 s{sQ}, 128\ns_cbranch_scc1 {labw}")
    a("s_waitcnt vmcnt(0)")
    a.label(labw)
    S(1)
    a(f"s_mov_b32 s{sCnt}, 3")
    lab=a.newlabel('Lkg'); a.label(lab)
    for i in range(4): a(f"v_lshlrev_b32 v{CUR+i}, 16, v{PR+i}")
    for i in range(8): a(f"v_mov_b32 v{PR+i}, v{PR+4+i}")
    a(f"v_mul_f32 v{AR}, {hex(LOG2E)}, v{CUR}")
    a(f"v_exp_f32 v{AR}, v{AR}")
    a(f"v_cvt_pk_bf16_f32 v{AR}, v{AR}, v{AR}")
    a(f"v_and_b32 v{AR}, 0xffff0000, v{AR}")
    a(f"v_mul_f32 v{AR}, v{AR}, v{vDt}")
    a(f"v_mul_f32 v{AR}, {hex(LOG2E|0x80000000)}, v{AR}")
    a(f"v_mul_f32 v{TH}, v{CUR+1}, v{vDt}")
    a(f"v_mul_f32 v{TH}, {hex(INV2PI)}, v{TH}")
    def zpow(dst, mult):
        if mult==1:
            a(f"v_exp_f32 v{M}, v{AR}")
            a(f"v_fract_f32 v{TT}, v{TH}")
        else:
            a(f"v_mul_f32 v{M}, {float(mult)}, v{AR}" if mult in (2,4) else f"v_mul_f32 v{M}, {hex(0x41000000)}, v{AR}")
            a(f"v_exp_f32 v{M}, v{M}")
            a(f"v_mul_f32 v{TT}, {hex(0x41000000)}, v{TH}")
            a(f"v_fract_f32 v{TT}, v{TT}")
        a(f"v_cos_f32 v{dst}, v{TT}")
        a(f"v_sin_f32 v{dst+1}, v{TT}")
        a(f"v_mul_f32 v{dst}, v{M}, v{dst}")
        a(f"v_mul_f32 v{dst+1}, v{M}, v{dst+1}")
    zpow(Z1,1); zpow(Z8,8)
    a(f"v_add_f32 v{M}, v{vDt}, v{vDt}")
    a(f"v_mul_f32 v{H}, v{CUR+2}, v{M}")
    a(f"v_mul_f32 v{H+1}, v{CUR+3}, v{M}")
    a(f"v_mov_b32 v{Lr}, 1.0\nv_mov_b32 v{Lr+1}, 0")
    a(f"v_mov_b32 v{Lr+2}, v{Z8}\nv_mov_b32 v{Lr+3}, v{Z8+1}")
    for j in range(2,17):
        cmul(a, Lr+2*j, Lr+2*(j-1), Z8)
        if j<=8:
            r=j-1
            cmul(a, H+2*r, H+2*(r-1), Z1)
    z128=Lr+32
    for r in range(8): cmul(a, H+2*(8+r), H+2*r, z128)
    for r in range(4): cmul(a, S1+2*r, H+2*(8+2*r), z128)
    for r in range(4): cmul(a, S1+2*(4+r), S1+2*r, z128)
    cmul(a, S2, S1+8, z128); cmul(a, S2+2, S1+8+4, z128)
    for i in range(1,4):
        for r in range(2): cmul(a, S2+4*i+2*r, S2+4*(i-1)+2*r, z128)
    cmul(a, S3, S2+12, z128)
    for i in range(1,9): cmul(a, S3+2*i, S3+2*(i-1), z128)
    a(f"v_mov_b32 v{S3+18}, 0\nv_mov_b32 v{S3+19}, 0")
    rows=[H+2*i for i in range(16)]+[S1+2*i for i in range(8)]+[S2+2*i for i in range(8)]+[S3+2*i for i in range(10)]
    pk=0
    def flush(regs, off):
        pass
    nchunk=0
    def write_plane(vals, im, neg, off0):
        nonlocal nchunk
        n=len(vals)
        for c0 in range(0,n,8):
            part=vals[c0:c0+8]
            base=PK+4*(nchunk%8); nchunk+=1
            cnt=(len(part)+1)//2
            for p in range(cnt):
                x=part[2*p]+im; y=part[2*p+1]+im
                if neg: a(f"v_cvt_pk_bf16_f32 v{base+p}, -v{x}, -v{y}")
                else: a(f"v_cvt_pk_bf16_f32 v{base+p}, v{x}, v{y}")
            if cnt==4: a(f"ds_write_b128 v{vTw}, v[{base}:{base+3}] offset:{off0+c0*2}")
            elif cnt==1: a(f"ds_write_b32 v{vTw}, v{base} offset:{off0+c0*2}")
            else: raise ValueError(cnt)
    write_plane(rows,0,False,0)
    write_plane(rows,1,True,96)
    Lrows=[Lr+2*j for j in range(16)]
    write_plane(Lrows,0,False,192)
    write_plane(Lrows,1,False,224)
    a("s_waitcnt lgkmcnt(0)")
    for s in range(4):
        fb=FR+16*(s%2)
        lt=LdsTrack(a)
        for q in range(2):
            a(f"ds_read_b64_tr_b16 v[{fb+12+2*q}:{fb+12+2*q+1}], v{vTrB} offset:{(16*s+8*q)*ROW}")
        for t in range(3):
            for q in range(2):
                a(f"ds_read_b64_tr_b16 v[{fb+4*t+2*q}:{fb+4*t+2*q+1}], v{vTrA} offset:{(16*s+8*q)*ROW+32*t}")
        for t in range(3):
            a(f"s_waitcnt lgkmcnt({4-2*t})")
            a(f"v_mfma_f32_16x16x32_bf16 v[{KACC+4*t}:{KACC+4*t+3}], v[{fb+4*t}:{fb+4*t+3}], v[{fb+12}:{fb+15}], v[{KACC+4*t}:{KACC+4*t+3}]")
    labf=a.newlabel('Lnf')
    a(f"s_cmp_lg_u32 s{sCnt}, 3\ns_cbranch_scc1 {labf}")
    a(f"s_cmp_ge_u32 s{sQ}, 128\ns_cbranch_scc1 {labf}")
    a("s_waitcnt vmcnt(0)\ns_barrier")
    a(f"s_lshl_b32 s{sTmp}, s{sQ}, 6\ns_add_u32 s{sTmp}, s{sTmp}, {FL_LN}")
    flag_store(a, sTmp, 170)
    a.label(labf)
    a(f"s_sub_u32 s{sCnt}, s{sCnt}, 1")
    a(f"s_cmp_lg_u32 s{sCnt}, 0")
    a("s_nop 4")
    a(f"s_cbranch_scc1 {lab}")
    S(2)
    for w in range(4):
        pass
    a(f"s_mov_b32 s{sKn}, {KN_OFF[0]}\ns_mov_b32 s{sR}, {R_OFF[0]}")
    for w in range(1,4):
        a(f"s_cmp_eq_u32 s{sWv}, {w}\ns_cselect_b32 s{sKn}, {KN_OFF[w]}, s{sKn}\ns_cselect_b32 s{sR}, {R_OFF[w]}, s{sR}")
    vJ=36; vG=37; vK=38; vK2=39; B=40
    a(f"v_and_b32 v{vJ}, 15, v{lane}")
    a(f"v_lshrrev_b32 v{vG}, 4, v{lane}")
    a(f"v_lshlrev_b32 v{vK}, 2, v{lane}")
    a(f"v_add_u32 v{vK}, s{sKn}, v{vK}")
    a(f"v_mov_b32 v{B}, 0")
    a(f"s_mov_b64 s[{sMask}:{sMask+1}], 0xfff")
    a(f"s_mov_b64 exec, s[{sMask}:{sMask+1}]")
    a(f"ds_write_b32 v{vK}, v{B}")
    a(f"s_mov_b64 exec, -1")
    a(f"v_lshlrev_b32 v{vK}, 4, v{vJ}")
    a(f"v_add_u32 v{vK}, s{sKn}, v{vK}")
    a(f"v_add_u32 v{vK}, 48, v{vK}")
    T2=KACC+8
    a(f"v_lshlrev_b32 v{vK2}, 10, v{vG}")
    a(f"v_add_u32 v{vK2}, v{vK}, v{vK2}")
    a(f"v_add_u32 v{vK2}, 2048, v{vK2}")
    a(f"v_and_b32 v{t0}, 1, v{vJ}")
    a(f"v_lshlrev_b32 v{t0}, 3, v{t0}")
    a(f"v_sub_u32 v{t1}, v{vK2}, v{t0}")
    for r in range(4):
        a(f"v_cvt_pk_bf16_f32 v{B+2*r}, v{T2+r}, v{T2+r}")
        a(f"v_mov_b32 v{B+2*r+1}, v{B+2*r}")
    def seg3(r):
        a(f"ds_write_b64 v{vK2}, v[{B+2*r}:{B+2*r+1}] offset:{r*256}")
    a(f"v_subrev_u32 v{vK2}, 8, v{vK2}")
    for r in range(4):
        a(f"s_mov_b64 exec, {hex(0x1ffffffff) if r==0 else hex(0xffffffff)}" if False else f"s_mov_b32 exec_lo, -1\ns_mov_b32 exec_hi, {1 if r==0 else 0}")
        a(f"ds_write_b64 v{vK2}, v[{B+2*r}:{B+2*r+1}] offset:{r*256}")
        a(f"ds_write_b64 v{vK2}, v[{B+2*r}:{B+2*r+1}] offset:{r*256+8}")
    for r in range(4):
        a(f"s_mov_b32 exec_lo, -1\ns_mov_b32 exec_hi, {1 if r==0 else 0}")
        a(f"ds_write_b16 v{t1}, v{B+2*r} offset:{r*256+8}")
    a("s_mov_b64 exec, -1")
    T1=KACC+4
    a(f"v_subrev_u32 v{t0}, 2, v{vG}")
    a(f"v_lshlrev_b32 v{t0}, 9, v{t0}")
    a(f"v_add_u32 v{vK2}, v{vK}, v{t0}")
    a(f"v_add_u32 v{vK2}, {1024-4}, v{vK2}")
    a(f"s_mov_b32 exec_lo, 0\ns_mov_b32 exec_hi, -1")
    for b in range(2):
        v0_=T1+2*b; v1_=T1+2*b+1
        a(f"v_cvt_pk_bf16_f32 v{B}, v{v0_}, v{v0_}")
        a(f"v_cvt_pk_bf16_f32 v{B+1}, v{v0_}, v{v1_}")
        a(f"v_cvt_pk_bf16_f32 v{B+2}, v{v1_}, v{v1_}")
        a(f"ds_write_b32 v{vK2}, v{B} offset:{b*256}")
        a(f"ds_write_b64 v{vK2}, v[{B}:{B+1}] offset:{b*256+4}")
        a(f"ds_write_b32 v{vK2}, v{B+2} offset:{b*256+12}")
        a("s_nop 1")
    a(f"s_mov_b32 exec_lo, -1\ns_mov_b32 exec_hi, 0")
    a(f"v_lshlrev_b32 v{t0}, 8, v{vG}")
    a(f"v_add_u32 v{vK2}, v{vK}, v{t0}")
    a(f"v_add_u32 v{vK2}, {512-2}, v{vK2}")
    a(f"v_cvt_pk_bf16_f32 v{B}, v{T1}, v{T1}")
    a(f"v_cvt_pk_bf16_f32 v{B+1}, v{T1+1}, v{T1+2}")
    a(f"v_cvt_pk_bf16_f32 v{B+2}, v{T1+2}, v{T1+2}")
    a(f"v_cvt_pk_bf16_f32 v{B+3}, v{T1+3}, v{T1+3}")
    a(f"ds_write_b16 v{vK2}, v{B}")
    a(f"v_add_u32 v{vK2}, 2, v{vK2}")
    a(f"ds_write_b64 v{vK2}, v[{B}:{B+1}]")
    a(f"ds_write_b32 v{vK2}, v{B+2} offset:8")
    a(f"ds_write_b16 v{vK2}, v{B+3} offset:12")
    a("s_mov_b64 exec, -1")
    a(f"v_lshrrev_b32 v{t0}, 1, v{vG}")
    a(f"v_lshlrev_b32 v{t0}, 8, v{t0}")
    a(f"v_add_u32 v{vK2}, v{vK}, v{t0}")
    a(f"v_and_b32 v{t0}, 1, v{vG}")
    a(f"v_lshl_add_u32 v{vK2}, v{t0}, 3, v{vK2}")
    a(f"v_cvt_pk_bf16_f32 v{B+4}, v{KACC}, v{KACC+1}")
    a(f"v_cvt_pk_bf16_f32 v{B+5}, v{KACC+2}, v{KACC+3}")
    a(f"ds_write_b64 v{vK2}, v[{B+4}:{B+5}]")
    a("s_waitcnt lgkmcnt(0)")
    a("s_barrier")
    S(3)
    vU=36
    a(f"v_lshlrev_b32 v{t0}, 3, v0")
    a(f"v_mov_b32 v{B}, 0\nv_mov_b32 v{B+1}, 0")
    a(f"ds_write_b64 v{t0}, v[{B}:{B+1}] offset:{U_OFF}")
    a(f"v_lshlrev_b32 v{B+4}, 6, v{lane}\nv_add_u32 v{B+4}, {FL_LN}, v{B+4}\nv_add_u32 v{B+5}, 4096, v{B+4}")
    poll(a, [B+4,B+5], B+6)
    a(f"v_lshrrev_b32 v{t0}, 2, v{lane}")
    a(f"v_lshlrev_b32 v{vU}, 7, v{t0}")
    a(f"v_bfe_u32 v{t0}, v{lane}, 4, 2")
    a(f"v_and_b32 v{t1}, 3, v{lane}")
    a(f"v_xor_b32 v{t0}, v{t0}, v{t1}")
    a(f"v_lshl_add_u32 v{vU}, v{t0}, 4, v{vU}")
    a(f"s_lshr_b32 s{sTmp}, s{sQ}, 1\ns_lshl_b32 s{sTmp}, s{sTmp}, 15")
    a(f"s_and_b32 s{sTmp2}, s{sQ}, 1\ns_lshl_b32 s{sTmp2}, s{sTmp2}, 6\ns_add_u32 s{sTmp}, s{sTmp}, s{sTmp2}")
    a(f"s_lshl_b32 s{sTmp2}, s{sWv}, 13\ns_add_u32 s{sTmp}, s{sTmp}, s{sTmp2}")
    if WS_XNT: a(f"s_add_u32 s{sTmp}, s{sTmp}, {WS_XNT}")
    a(f"s_lshl_b32 s{sTmp2}, s{sWv}, 12\ns_add_u32 s{sTmp2}, s{sTmp2}, {U_OFF+2048}")
    for i in range(4):
        a(f"s_add_u32 m0, s{sTmp2}, {i*1024}")
        a(f"buffer_load_dwordx4 v{vU}, s[{SWS}:{SWS+3}], s{sTmp} offen{ld} lds")
        if i<3: a(f"s_add_u32 s{sTmp}, s{sTmp}, 2048")
    CACC=24
    for r in range(32): a(f"v_mov_b32 v{CACC+r}, 0")
    vAa=56; vBa=[57,58,59,60]; vRw=61; vKr=62
    AF=64
    BF=96
    vb_=184; vg_=185
    a(f"v_and_b32 v{vb_}, 15, v{lane}")
    a(f"v_lshrrev_b32 v{vg_}, 4, v{lane}")
    a(f"v_and_b32 v{t0}, 3, v{vb_}")
    a(f"v_mul_u32_u24 v{vAa}, {RC}, v{t0}")
    a(f"v_lshrrev_b32 v{t0}, 2, v{vb_}")
    a(f"v_lshlrev_b32 v{t0}, 3, v{t0}")
    a(f"v_sub_u32 v{vAa}, v{vAa}, v{t0}")
    a(f"v_lshrrev_b32 v{t0}, 1, v{vg_}")
    a(f"v_lshlrev_b32 v{t0}, 5, v{t0}")
    a(f"v_sub_u32 v{vAa}, v{vAa}, v{t0}")
    a(f"v_and_b32 v{t0}, 1, v{vg_}")
    a(f"v_lshl_add_u32 v{vAa}, v{t0}, 4, v{vAa}")
    a(f"v_add_u32 v{vAa}, s{sR}, v{vAa}")
    a(f"v_lshlrev_b32 v{t0}, 1, v{vb_}")
    a(f"v_add_u32 v{t0}, 32, v{t0}")
    a(f"v_and_b32 v{t1}, 1, v{vg_}")
    a(f"v_add_u32 v{t0}, v{t0}, v{t1}")
    a(f"v_and_b32 v{t1}, 2, v{vg_}")
    a(f"v_sub_u32 v{t0}, v{t0}, v{t1}")
    for rm in range(4):
        a(f"v_lshrrev_b32 v{t1}, 2, v{t0}")
        a(f"v_subrev_u32 v{t1}, {rm}, v{t1}")
        a(f"v_and_b32 v{t1}, 3, v{t1}")
        a(f"v_xor_b32 v{t1}, s{sWv}, v{t1}")
        a(f"v_lshlrev_b32 v{t1}, 4, v{t1}")
        a(f"v_lshl_add_u32 v{vBa[rm]}, v{t0}, 6, v{t1}")
        a(f"v_add_u32 v{vBa[rm]}, {U_OFF-256*7}, v{vBa[rm]}")
    a(f"v_lshlrev_b32 v{vRw}, 4, v{lane}")
    a(f"v_add_u32 v{vRw}, s{sR}, v{vRw}")
    vL16=63
    a(f"v_lshlrev_b32 v{vL16}, 4, v{lane}")
    a(f"s_mov_b32 s{sBf}, 0xffff")
    RB=160
    def build_R(ps):
        M0=127 if ps==0 else 255
        for rd in range(3):
            if rd==2:
                a(f"s_mov_b32 exec_lo, 3\ns_mov_b32 exec_hi, 0")
            off=40+16*(M0-64*rd)
            a(f"s_add_u32 s{sTmp}, s{sKn}, {off}")
            a(f"v_sub_u32 v{vKr}, s{sTmp}, v{vL16}")
            p=RB
            a(f"ds_read_b64 v[{p}:{p+1}], v{vKr}")
            a(f"ds_read_b128 v[{p+2}:{p+5}], v{vKr} offset:8")
            a("s_waitcnt lgkmcnt(0)")
            o=RB+8
            for mu_ in range(4):
                a(f"v_bfi_b32 v{o+mu_}, s{sBf}, v{p+4-mu_}, v{p+3-mu_}")
                a(f"v_alignbit_b32 v{o+4+mu_}, v{p+4-mu_}, v{p+4-mu_}, 16")
                a(f"v_bfi_b32 v{o+8+mu_}, s{sBf}, v{p+5-mu_}, v{p+4-mu_}")
                a(f"v_alignbit_b32 v{o+12+mu_}, v{p+5-mu_}, v{p+5-mu_}, 16")
            for sg in range(4):
                a(f"ds_write_b128 v{vRw}, v[{o+4*sg}:{o+4*sg+3}] offset:{sg*RC+1024*rd}")
            if rd==2: a("s_mov_b64 exec, -1")
        a("s_waitcnt lgkmcnt(0)")
    def conv_pass(ps):
        nB=8-4*ps
        def rdA(rho,setp):
            out=[]
            for il in range(4):
                kl=rho+8*il
                for hf in range(2):
                    r=AF+16*setp+4*il+2*hf
                    out.append(f"ds_read_b64 v[{r}:{r+1}], v{vAa} offset:{2040-64*kl+8*hf}")
            return out
        def rdB(rho,setp):
            out=[]
            for tau in range(nB):
                r=BF+32*setp+4*tau
                out.append(f"ds_read_b128 v[{r}:{r+3}], v{vBa[rho%4]} offset:{2048*tau+256*(7-rho)}")
            return out
        for x in rdA(0,0)+rdB(0,0): a(x)
        for rho in range(8):
            sp=rho%2
            a("s_waitcnt lgkmcnt(0)")
            nxt=(rdA(rho+1,1-sp)+rdB(rho+1,1-sp)) if rho<7 else []
            ms=[]
            for il in range(4):
                i=il+4*ps
                for tau in range(nB):
                    t=i+tau
                    if t>7: continue
                    ms.append((t,il,tau))
            ni=0
            for n,(t,il,tau) in enumerate(ms):
                d=CACC+4*t; A_=AF+16*sp+4*il; B_=BF+32*sp+4*tau
                a(f"v_mfma_f32_16x16x32_bf16 v[{d}:{d+3}], v[{A_}:{A_+3}], v[{B_}:{B_+3}], v[{d}:{d+3}]")
                k=-(-len(nxt)//len(ms)) if n<len(ms) else 0
                for _ in range(k):
                    if ni<len(nxt): a(nxt[ni]); ni+=1
    build_R(0)
    a("s_waitcnt vmcnt(0) lgkmcnt(0)")
    a("s_barrier")
    S(4)
    conv_pass(0)
    S(5)
    build_R(1)
    conv_pass(1)
    S(6)
    vE=186; vS=187; vDp=188
    a(f"v_and_b32 v{t0}, 15, v{lane}")
    a(f"v_lshlrev_b32 v{t0}, 1, v{t0}")
    a(f"v_lshrrev_b32 v{t1}, 5, v{lane}")
    a(f"v_add_u32 v{t0}, v{t0}, v{t1}")
    a(f"v_bfe_u32 v{t1}, v{t0}, 2, 2")
    a(f"v_xor_b32 v{t1}, s{sWv}, v{t1}")
    a(f"v_lshlrev_b32 v{t1}, 4, v{t1}")
    a(f"v_lshl_add_u32 v{vE}, v{t0}, 6, v{t1}")
    a(f"v_bfe_u32 v{t1}, v{lane}, 4, 1")
    a(f"v_lshl_add_u32 v{vE}, v{t1}, 3, v{vE}")
    a(f"v_add_u32 v{vE}, {U_OFF+2048}, v{vE}")
    a(f"v_and_b32 v{t0}, 15, v{lane}")
    a(f"v_lshlrev_b32 v{vS}, 5, v{t0}")
    a(f"v_lshrrev_b32 v{t1}, 4, v{lane}")
    a(f"v_lshl_add_u32 v{vS}, v{t1}, 3, v{vS}")
    a(f"s_lshl_b32 s{sTmp}, s{sCh}, 12\ns_add_u32 s{sTmp}, s{sTmp}, {WS_AT}")
    a(f"v_add_u32 v{vS}, s{sTmp}, v{vS}")
    a(f"v_mov_b32 v{vDp}, s{sD}\nv_mov_b32 v{vDp+1}, s{sD}")
    UB=64
    for t in range(8):
        a(f"ds_read_b64 v[{UB+2*t}:{UB+2*t+1}], v{vE} offset:{2048*t}")
    T=96
    for t in range(8):
        a(f"s_waitcnt lgkmcnt({7-t})")
        d=CACC+4*t; u=UB+2*t; o=T+16+2*(t%2)
        a(f"v_lshlrev_b32 v{T}, 16, v{u}\nv_and_b32 v{T+1}, 0xffff0000, v{u}")
        a(f"v_lshlrev_b32 v{T+2}, 16, v{u+1}\nv_and_b32 v{T+3}, 0xffff0000, v{u+1}")
        for p in range(4): a(f"v_mul_f32 v{T+p}, v{T+p}, v{vDp}")
        for p in range(2): a(f"v_cvt_pk_bf16_f32 v{T+4+p}, v{T+2*p}, v{T+2*p+1}")
        for p in range(2): a(f"v_cvt_pk_bf16_f32 v{T+6+p}, v{d+2*p}, v{d+2*p+1}")
        for p in range(2):
            a(f"v_lshlrev_b32 v{T}, 16, v{T+4+p}\nv_and_b32 v{T+1}, 0xffff0000, v{T+4+p}")
            a(f"v_lshlrev_b32 v{T+2}, 16, v{T+6+p}\nv_and_b32 v{T+3}, 0xffff0000, v{T+6+p}")
            a(f"v_add_f32 v{T}, v{T}, v{T+2}\nv_add_f32 v{T+1}, v{T+1}, v{T+3}")
            a(f"v_cvt_pk_bf16_f32 v{o+p}, v{T}, v{T+1}")
        a(f"buffer_store_dwordx2 v[{o}:{o+1}], v{vS}, s[{SWS}:{SWS+3}], 0 offen offset:{512*t}{st}")
    a("s_waitcnt vmcnt(0)\ns_barrier")
    a(f"s_lshl_b32 s{sTmp}, s{sQ}, 6\ns_add_u32 s{sTmp}, s{sTmp}, {FL_A}")
    flag_store(a, sTmp, 2)
    S(7)
```

```python
import sys
import common
if 'stamp' in sys.argv: common.STAMP_ON=True
from f_common import *
from f_gemm import emit_gemm
from f_ssm import emit_ssm
from f_aux import emit_aux
NAME="parallel_sum__ssm_conv_s4d__glu_gated_swiglu__prompt"
HEAD=open(f"cdna_kernels/{NAME}.s.ref").read().split("; Override launch")[0]
def build(opts):
    a=Asm()
    a("s_cmp_ge_u32 s2, 512\ns_cbranch_scc1 Lend")
    prologue(a, opts)
    st=Stamps(a,0)
    if common.STAMP_ON:
        for i in range(84,100): a(f"s_mov_b32 s{i}, 0")
    st(0)
    only=opts.get('only',0)
    if only==1:
        a("s_cmp_ge_u32 s2, 256\ns_cbranch_scc1 Lend")
        import f_common; f_common.NOPOLL[0]=True
    if only==5:
        a("s_cmp_ge_u32 s2, 416\ns_cbranch_scc1 Lend")
        import f_common; f_common.NOPOLL[0]=True
    if only==2:
        a("s_cmp_lt_u32 s2, 256\ns_cbranch_scc1 Lend")
    if only==3:
        pass
    a("s_cmp_ge_u32 s2, 256\ns_cbranch_scc1 Lnotgemm")
    emit_gemm(a, st, opts)
    fin(a,st)
    a("s_endpgm")
    a.label("Lnotgemm")
    a("s_cmp_ge_u32 s2, 416\ns_cbranch_scc1 Laux")
    if only==4: a("s_branch Lend")
    emit_ssm(a, st, opts)
    fin(a,st)
    a("s_endpgm")
    a.label("Laux")
    emit_aux(a, st, opts)
    fin(a,st)
    a.label("Lend")
    a("s_endpgm")
    a.label("Lcode_end")
    a.pad()
    return a
def fin(a,st):
    if common.STAMP_ON:
        a("s_waitcnt vmcnt(0) lgkmcnt(0)")
        a("s_memrealtime s[82:83]\ns_waitcnt lgkmcnt(0)\ns_mov_b32 s80, s82")
        a(f"v_mov_b32 v249, s80")
        st.flush(SWS, extra=249)
if __name__=="__main__":
    out=sys.argv[1]
    opts={}
    for x in sys.argv[2:]:
        if '=' in x:
            k,v=x.split('='); opts[k]=int(v)
    a=build(opts)
    k=NAME+"_kernel"
    s=HEAD+"; @launch grid=(512,1,1) block=(256,1,1) lds=81920\n"
    s+='.amdgcn_target "amdgcn-amd-amdhsa--gfx950"\n.text\n'
    s+=f".globl {k}\n.p2align 8\n.type {k},@function\n{k}:\n"+a.text()
    s+=KD.format(name=k,vgpr=256,sgpr=102,acc=256)
    open(out,"w").write(s)
    n=sum(1 for x in a.ins if x.kind not in('label','directive'))
    print("written",out,len(s),"bytes;",n,"instructions")
```

```python
from f_common import *
from f_ln16 import *
def pack_issue(a, sUnit, sLds, SW2, sb, ga, t0, t1):
    lane=1
    sS=sb; sLg=sb+1; sT=sb+2; sO=sb+3
    a(f"s_mul_i32 s{sS}, s{sUnit}, 6554\ns_lshr_b32 s{sS}, s{sS}, 16")
    a(f"s_mul_i32 s{sT}, s{sS}, 10\ns_sub_u32 s{sLg}, s{sUnit}, s{sT}")
    a(f"v_lshrrev_b32 v{t0}, 3, v{lane}\nv_mul_u32_u24 v{ga}, 1280, v{t0}\nv_and_b32 v{t1}, 7, v{lane}\nv_lshl_add_u32 v{ga}, v{t1}, 4, v{ga}")
    a(f"s_mul_i32 s{sT}, s{sS}, {32*1280}\ns_lshl_b32 s{sO}, s{sLg}, 7\ns_add_u32 s{sT}, s{sT}, s{sO}")
    for i in range(4):
        a(f"s_add_u32 m0, s{sLds}, {i*1024}\ns_nop 0")
        a(f"buffer_load_dwordx4 v{ga}, s[{SW2}:{SW2+3}], s{sT} offen lds")
        if i<3: a(f"s_add_u32 s{sT}, s{sT}, {8*1280}")
def pack_finish(a, sLds, sb, t0, t1, ra, so, d):
    lane=1
    sS=sb; sLg=sb+1; sT=sb+2; sO=sb+3
    a(f"v_lshrrev_b32 v{t0}, 4, v{lane}\nv_lshlrev_b32 v{ra}, 3, v{t0}\nv_bfe_u32 v{t1}, v{lane}, 2, 2\nv_add_u32 v{ra}, v{ra}, v{t1}\nv_lshlrev_b32 v{ra}, 7, v{ra}")
    a(f"v_and_b32 v{t1}, 3, v{lane}\nv_lshl_add_u32 v{ra}, v{t1}, 3, v{ra}\nv_add_u32 v{ra}, s{sLds}, v{ra}\nv_lshlrev_b32 v{so}, 4, v{lane}")
    a(f"s_mul_i32 s{sT}, s{sLg}, {4*49152}\ns_lshl_b32 s{sO}, s{sS}, 10\ns_add_u32 s{sT}, s{sT}, s{sO}\ns_add_u32 s{sT}, s{sT}, {WS_W2P}")
    for mt in range(4):
        for q in range(2):
            a(f"ds_read_b64_tr_b16 v[{d+4*mt+2*q}:{d+4*mt+2*q+1}], v{ra} offset:{q*512+mt*32}")
    for mt in range(4):
        a(f"s_waitcnt lgkmcnt({6-2*mt})")
        a(f"buffer_store_dwordx4 v[{d+4*mt}:{d+4*mt+3}], v{so}, s[{SWS}:{SWS+3}], s{sT} offen sc1")
        if mt<3: a(f"s_add_u32 s{sT}, s{sT}, 49152")

def emit_aux(a, S, opts):
    sU=46; sWv=47; sT=48; sT2=49; sB1=50; sB2=51; SW2=56; sUa=60; sUb=61; sLa=62; sLb=63; sPa=64; sPb=68
    lane=1; w=2
    RAW1=16; RAW2=36
    doln=not opts.get('ln8')
    if opts.get('prio'): a("s_setprio 3")
    a(f"s_sub_u32 s{sU}, s2, 416")
    a(f"v_and_b32 v{lane}, 63, v0\nv_lshrrev_b32 v{w}, 6, v0")
    if doln:
        a(f"s_and_b32 s{sB1}, s{sU}, 7\ns_lshl_b32 s{sB1}, s{sB1}, 4\ns_lshr_b32 s{sT}, s{sU}, 3\ns_add_u32 s{sB1}, s{sB1}, s{sT}\ns_add_u32 s{sB2}, s{sB1}, 12")
        ln_loads(a, sB1, RAW1, sT)
        l2=a.newlabel('Lax')
        a(f"s_cmp_ge_u32 s{sU}, 32\ns_cbranch_scc1 {l2}")
        ln_loads(a, sB2, RAW2, sT)
        a.label(l2)
    a(f"v_readfirstlane_b32 s{sWv}, v{w}")
    srd(a,SW2,P["w2"],F*D*2)
    a(f"s_lshl_b32 s{sUa}, s{sU}, 2\ns_add_u32 s{sUa}, s{sUa}, s{sWv}\ns_add_u32 s{sUb}, s{sUa}, 384")
    a(f"s_lshl_b32 s{sLa}, s{sWv}, 12\ns_add_u32 s{sLb}, s{sLa}, 40960")
    SWP=72; vPw=90; vPt=93; vDm=96; sI=76; sI24=77
    def prefetch_setup():
        a(f"s_lshr_b32 s{sI}, s{sU}, 3\ns_lshl_b32 s{sI}, s{sI}, 2\ns_add_u32 s{sI}, s{sI}, s{sWv}")
        a(f"s_cmp_ge_u32 s{sI}, 24\ns_cselect_b32 s{SWP}, s{P['w3']}, s{P['w1']}\ns_cselect_b32 s{SWP+1}, s{P['w3']+1}, s{P['w1']+1}\ns_cselect_b32 s{sT}, 24, 0")
        a(f"s_sub_u32 s{sI24}, s{sI}, s{sT}\ns_and_b32 s{SWP+1}, s{SWP+1}, 0xffff\ns_mov_b32 s{SWP+2}, {D*F*2}\ns_mov_b32 s{SWP+3}, 0x20000")
        for t in range(3):
            a(f"s_lshl_b32 s{sT}, s{sI24}, 6\ns_add_u32 s{sT}, s{sT}, {t*1536}\nv_add_u32 v4, s{sT}, v{lane}")
            a(f"v_mul_u32_u24 v5, 10923, v4\nv_lshrrev_b32 v5, 16, v5\nv_mul_u32_u24 v6, 6, v5\nv_sub_u32 v6, v4, v6")
            a(f"v_add_u32 v5, 96, v5\nv_mul_u32_u24 v5, 3072, v5\nv_lshl_add_u32 v{vPw+t}, v6, 7, v5")
            a(f"s_lshl_b32 s{sT}, s{sI}, 6\ns_add_u32 s{sT}, s{sT}, {t*3072}\nv_add_u32 v4, s{sT}, v{lane}")
            a(f"v_lshrrev_b32 v5, 10, v4\nv_add_u32 v5, 2, v5\nv_min_u32 v5, 9, v5\nv_and_b32 v4, 1023, v4\nv_mul_u32_u24 v4, 1280, v4\nv_lshl_add_u32 v{vPt+t}, v5, 7, v4")
        a(f"s_and_b32 s{sT}, s{sU}, 3\ns_mul_i32 s78, s{sT}, 768")
        a(f"s_bfe_u32 s{sT}, s{sU}, 0x10002\ns_mul_i32 s79, s{sT}, {1024*1280}")
    def prefetch(t):
        if not opts.get('atouch',1): return
        a(f"buffer_load_dword v{vDm}, v{vPw+t}, s[{SWP}:{SWP+3}], s78 offen")
        a(f"buffer_load_dword v{vDm}, v{vPt+t}, s[{SX}:{SX+3}], s79 offen")
    def pack_loads():
        pack_issue(a, sUa, sLa, SW2, sPa, 60, 4, 5)
        l3=a.newlabel('Lax')
        a(f"s_cmp_ge_u32 s{sUa}, 96\ns_cbranch_scc1 {l3}")
        pack_issue(a, sUb, sLb, SW2, sPb, 60, 4, 5)
        a.label(l3)
    if doln:
        nonce_load(a)
        nt=1+(k_touch(a, sWv, lane, 72, 90) if opts.get('ktouch',1) else 0)
        if opts.get('prio'): a(f"s_setprio {opts.get('aprio',1)}")
        ln_addr(a, sWv, sT, sT2, 16384)
        S(1)
        a(f"s_waitcnt vmcnt({nt}) lgkmcnt(0)")
        S(2)
        pack_loads()
        ln_compute(a, sB1, RAW1, sT)
        l4=a.newlabel('Lax')
        a(f"s_cmp_ge_u32 s{sU}, 32\ns_cbranch_scc1 {l4}")
        a("s_barrier")
        ln_compute(a, sB2, RAW2, sT)
        a.label(l4)
        S(3)
        a("s_waitcnt vmcnt(0)\ns_barrier")
        nonce_ready(a)
        a(f"s_lshl_b32 s{sT}, s{sB1}, 6\ns_add_u32 s{sT}, s{sT}, {FL_LN}")
        flag_store(a, sT, 4)
        l5=a.newlabel('Lax')
        a(f"s_cmp_ge_u32 s{sU}, 32\ns_cbranch_scc1 {l5}")
        a(f"s_lshl_b32 s{sT}, s{sB2}, 6\ns_add_u32 s{sT}, s{sT}, {FL_LN}")
        flag_store(a, sT, 4)
        a.label(l5)
        S(4)
        if opts.get('prio'): a("s_setprio 0")
    else:
        nonce_load(a)
        nt=k_touch(a, sWv, lane, 72, 90) if opts.get('ktouch',1) else 0
        if opts.get('prio'): a(f"s_setprio {opts.get('aprio',1)}")
        if nt: a("s_waitcnt vmcnt(4)")
        pack_loads()
        S(1)
        a("s_waitcnt vmcnt(0) lgkmcnt(0)")
        nonce_ready(a)
        S(2)
    pack_finish(a, sLa, sPa, 4, 5, 60, 61, 64)
    l6=a.newlabel('Lax')
    a(f"s_cmp_ge_u32 s{sUa}, 96\ns_cbranch_scc1 {l6}")
    pack_finish(a, sLb, sPb, 4, 5, 60, 61, 80)
    a.label(l6)
    a("s_waitcnt vmcnt(0)\ns_barrier")
    a(f"s_lshl_b32 s{sT}, s{sU}, 6\ns_add_u32 s{sT}, s{sT}, {FL_PK}")
    flag_store(a, sT, 4)
    S(7)
```

```python
from common import *
import common
WS_STATS=0xD80000
WS_CS   =0xD90000
WS_NONCE=0xDA0000
FL_LN=0xE14000
FL_CS=0xE04000
FL_PK=0xE08000
FL_H =0xE20000
FL_A =0xE10000
FL_UD=0xE18000
S_PTR=4
P=dict(u=4,logA=6,Aim=8,Cre=10,Cim=12,logdt=14,Dskip=16,x=18,w1=20,w3=22,w2=24,out=26,dbg=28,ws=30)
SWS=32
SX =36
S_NONCE=40

def prologue(a, opts={}):
    a("s_load_dwordx16 s[4:19], s[0:1], 0")
    a("s_load_dwordx8 s[20:27], s[0:1], 64")
    a("s_load_dwordx4 s[28:31], s[0:1], 96")
    if opts.get('codetouch',1):
        lab=a.newlabel('Lct')
        a("s_getpc_b64 s[100:101]")
        a.label("Lpcbase")
        a("s_lshr_b32 s41, s2, 3")
        a.raw("  s_mul_i32 s41, s41, ((Lcode_end-Lpcbase+8191)/8192)")
        a("v_add_u32 v1, s41, v0")
        a("v_lshlrev_b32 v1, 7, v1")
        a.raw("  v_cmp_gt_u32 vcc, ((Lcode_end-Lpcbase+8191)/8192), v0")
        a("s_and_saveexec_b64 s[42:43], vcc")
        a(f"s_cbranch_execz {lab}")
        a.raw("  v_min_u32 v1, (Lcode_end-Lpcbase-4), v1")
        a("v_and_b32 v1, 0xfffffffc, v1")
        a("global_load_dword v255, v1, s[100:101]")
        a.label(lab)
        a("s_mov_b64 exec, s[42:43]")
    a("s_waitcnt lgkmcnt(0)")
    srd(a,SWS,P["ws"],WS_SIZE); srd(a,SX,P["u"],X_BYTES)

V_NONCE=254
def nonce_load(a):
    a(f"v_mov_b32 v{V_NONCE}, {WS_NONCE}")
    a(f"buffer_load_dword v{V_NONCE}, v{V_NONCE}, s[{SWS}:{SWS+3}], 0 offen sc1")
def nonce_ready(a):
    a(f"v_readfirstlane_b32 s{S_NONCE}, v{V_NONCE}")
    a(f"s_add_u32 s{S_NONCE}, s{S_NONCE}, 0x9e3779b1")

def flag_store(a, sIdxOff, vt, keepvcc=False):
    lab=a.newlabel('Lfs')
    m="s[44:45]" if keepvcc else "vcc"
    a(f"v_cmp_eq_u32 {m}, 0, v0")
    a(f"s_and_saveexec_b64 s[42:43], {m}")
    a(f"s_cbranch_execz {lab}")
    a(f"v_mov_b32 v{vt}, 0\nv_mov_b32 v{vt+1}, s{S_NONCE}")
    a(f"buffer_store_dword v{vt+1}, v{vt}, s[{SWS}:{SWS+3}], s{sIdxOff} offen sc1")
    a.label(lab)
    a("s_mov_b64 exec, s[42:43]")

NOPOLL=[False]
SLEEP=[4]
def poll(a, vaddrs, vtmp, force=False, mask=None, sleep=None):
    if NOPOLL[0] and not force:
        a("s_waitcnt vmcnt(0)"); return
    lab=a.newlabel('Lpoll'); out=a.newlabel('Lpout'); first=a.newlabel('Lpf')
    sl=SLEEP[0] if sleep is None else sleep
    if mask: a(f"s_mov_b32 exec_lo, {hex(mask[0])}\ns_mov_b32 exec_hi, {hex(mask[1])}")
    a("s_mov_b32 s41, 0x40000")
    a(f"s_branch {first}")
    a.label(lab)
    if sl: a(f"s_sleep {sl}")
    a.label(first)
    for i,va in enumerate(vaddrs):
        a(f"buffer_load_dword v{vtmp+i}, v{va}, s[{SWS}:{SWS+3}], 0 offen sc1")
    a("s_sub_u32 s41, s41, 1")
    a(f"s_cbranch_scc1 {out}")
    a("s_waitcnt vmcnt(0)")
    poll_check(a, len(vaddrs), vtmp)
    a(f"s_cbranch_scc1 {lab}")
    a.label(out)
    a("s_waitcnt vmcnt(0)")
    if mask: a("s_mov_b64 exec, -1")

def poll_check(a, n, vtmp):
    for i in range(n):
        a(f"v_cmp_ne_u32 vcc, s{S_NONCE}, v{vtmp+i}")
        if i==0: a("s_mov_b64 s[44:45], vcc")
        else: a("s_or_b64 s[44:45], s[44:45], vcc")
    a("s_cmp_lg_u64 s[44:45], 0")

def k_touch(a, sWv, lane, sb, vb):
    SR=sb; sO=sb+4; sT=sb+5; sS=sb+6; sJ=sb+7
    assert sb%4==0
    a(f"s_sub_u32 s{sJ}, s2, 256\ns_lshr_b32 s{sJ}, s{sJ}, 3")
    a(f"s_cmp_eq_u32 s{sWv}, 0\ns_cselect_b32 s{SR}, s{P['w1']}, s{P['w3']}\ns_cselect_b32 s{SR+1}, s{P['w1']+1}, s{P['w3']+1}")
    a(f"s_cmp_ge_u32 s{sWv}, 2\ns_cselect_b32 s{SR}, s{P['u']}, s{SR}\ns_cselect_b32 s{SR+1}, s{P['u']+1}, s{SR+1}")
    a(f"s_cselect_b32 s{SR+2}, {X_BYTES}, {D*F*2}" if False else f"s_mov_b32 s{SR+2}, {D*F*2}\ns_cselect_b32 s{SR+2}, {X_BYTES}, s{SR+2}")
    a(f"s_and_b32 s{SR+1}, s{SR+1}, 0xffff\ns_mov_b32 s{SR+3}, 0x20000")
    lw=a.newlabel('Lkt'); le=a.newlabel('Lkt')
    a(f"s_cmp_ge_u32 s{sWv}, 2\ns_cbranch_scc1 {lw}")
    a(f"v_mul_u32_u24 v{vb}, 10923, v{lane}\nv_lshrrev_b32 v{vb}, 16, v{vb}\nv_mul_u32_u24 v{vb+1}, 6, v{vb}\nv_sub_u32 v{vb+1}, v{lane}, v{vb+1}")
    a(f"v_mul_u32_u24 v{vb}, 3072, v{vb}\nv_lshl_add_u32 v{vb}, v{vb+1}, 7, v{vb}")
    a(f"s_mul_i32 s{sO}, s{sJ}, {2*3072}\ns_and_b32 s{sT}, s2, 3\ns_mul_i32 s{sT}, s{sT}, 768\ns_add_u32 s{sO}, s{sO}, s{sT}\ns_add_u32 s{sO}, s{sO}, {64*3072}")
    a(f"s_mov_b32 s{sS}, {64*3072}\ns_mov_b64 exec, 0xfff")
    a(f"s_branch {le}")
    a.label(lw)
    a(f"v_mul_u32_u24 v{vb}, 1280, v{lane}")
    a(f"s_bfe_u32 s{sT}, s2, 0x10002\ns_lshl_b32 s{sO}, s{sT}, 10\ns_lshl_b32 s{sT}, s{sJ}, 5\ns_add_u32 s{sO}, s{sO}, s{sT}\ns_and_b32 s{sT}, s{sWv}, 1\ns_lshl_b32 s{sT}, s{sT}, 4\ns_add_u32 s{sO}, s{sO}, s{sT}")
    a(f"s_mul_i32 s{sO}, s{sO}, 1280\ns_add_u32 s{sO}, s{sO}, 128")
    a(f"s_mov_b32 s{sS}, 128\ns_mov_b64 exec, 0xffff")
    a.label(le)
    for g in range(1,10):
        a(f"buffer_load_dword v{vb+2}, v{vb}, s[{SR}:{SR+3}], s{sO} offen")
        if g<9: a(f"s_add_u32 s{sO}, s{sO}, s{sS}")
    a("s_mov_b64 exec, -1")
    return 9
```

```python
from f_common import *
from f_ln8 import *
WST=12288
TST=16384
TOK0=4*WST

def emit_gemm(a, S0_, opts):
    dst=opts.get('dstamp')
    def S(i):
        if not dst: S0_(i)
    def SD(i):
        if dst: S0_(i)
    started=[False]
    sT=46; sFT=47; sJT=48; sJF=49
    SW=52
    sWv=56; sWoff=57; sToff=58; sMW=59; sMT=60; sTmp=61; sCnt=62; sTmp2=63; sX=64
    lane=1; t0=2; t1=3; vWa=[4,5,6]; vTok=[7,8,9,10]; vA=11; vA5=12; vB=[13,14,15,16]; vSt=17; vFl=[18]; vPk=[19,20]; vDum=22; vTch=[23,24]
    vStat=24
    ACC=64; Pq=160; Qq=176
    Qq=180
    a("s_setprio 2") if opts.get('prio') else None
    a(f"s_and_b32 s{sX}, s2, 7\ns_lshr_b32 s{sTmp}, s2, 3\ns_and_b32 s{sJT}, s{sTmp}, 7\ns_lshr_b32 s{sJF}, s{sTmp}, 3")
    a(f"s_lshr_b32 s{sT}, s{sX}, 2\ns_lshl_b32 s{sT}, s{sT}, 3\ns_add_u32 s{sT}, s{sT}, s{sJT}")
    a(f"s_and_b32 s{sFT}, s{sX}, 3\ns_lshl_b32 s{sFT}, s{sFT}, 2\ns_add_u32 s{sFT}, s{sFT}, s{sJF}")
    a(f"v_and_b32 v{lane}, 63, v0\nv_lshrrev_b32 v{t0}, 6, v0\nv_readfirstlane_b32 s{sWv}, v{t0}")
    sLam=50
    a(f"s_lshl_b32 s{sLam}, s{sX}, 5\ns_lshr_b32 s{sTmp}, s2, 3\ns_add_u32 s{sLam}, s{sLam}, s{sTmp}")
    if opts.get('ln8'): ln8_loads(a, sLam, 64, 76)
    a(f"s_cmp_lt_u32 s{sWv}, 2")
    a(f"s_cselect_b32 s{SW}, s{P['w1']}, s{P['w3']}\ns_cselect_b32 s{SW+1}, s{P['w1']+1}, s{P['w3']+1}")
    a(f"s_cselect_b32 s{sTmp2}, 0, 10")
    a(f"s_and_b32 s{SW+1}, s{SW+1}, 0xffff\ns_mov_b32 s{SW+2}, {640*1536*2}\ns_mov_b32 s{SW+3}, 0x20000")
    a(f"s_and_b32 s{sTmp}, s{sWv}, 1\ns_mul_i32 s{sTmp}, s{sTmp}, 192")
    for t in range(3):
        a(f"v_add_u32 v{t0}, s{sTmp}, v{lane}")
        if t: a(f"v_add_u32 v{t0}, {64*t}, v{t0}")
        a(f"v_mul_u32_u24 v{t1}, 5462, v{t0}\nv_lshrrev_b32 v{t1}, 16, v{t1}")
        a(f"v_mul_u32_u24 v{vWa[t]}, 12, v{t1}\nv_sub_u32 v{t0}, v{t0}, v{vWa[t]}")
        a(f"v_add_u32 v{t0}, s{sTmp2}, v{t0}\nv_subrev_u32 v{vWa[t]}, 12, v{t0}")
        a(f"v_cmp_le_u32 vcc, 12, v{t0}\nv_cndmask_b32 v{t0}, v{t0}, v{vWa[t]}, vcc")
        a(f"v_mul_u32_u24 v{t1}, 3072, v{t1}\nv_lshl_add_u32 v{vWa[t]}, v{t0}, 4, v{t1}")
        if t: a(f"v_subrev_u32 v{vWa[t]}, {1024*t}, v{vWa[t]}")
    a(f"s_mul_i32 s{sWoff}, s{sFT}, 192\ns_mul_i32 s{sMW}, s{sWv}, 3072")
    sWlim=41; sC0=51
    ROT=opts.get('rot',1)
    sWlim=75; sTlim=74
    if ROT:
        a(f"s_lshr_b32 s{sTmp}, s{sJT}, 2\ns_add_u32 s{sC0}, s{sJT}, s{sTmp}")
        a(f"s_mul_i32 s{sTmp}, s{sJF}, 5\ns_lshr_b32 s{sTmp}, s{sTmp}, 1\ns_add_u32 s{sC0}, s{sC0}, s{sTmp}")
        a(f"s_cmp_ge_u32 s{sC0}, 10\ns_cselect_b32 s{sTmp}, 10, 0\ns_sub_u32 s{sC0}, s{sC0}, s{sTmp}")
        a(f"s_add_u32 s{sWlim}, s{sWoff}, {640*3072}")
        a(f"s_mul_i32 s{sTmp}, s{sC0}, {64*3072}\ns_add_u32 s{sWoff}, s{sWoff}, s{sTmp}")
    def adv_w():
        t=f"s_add_u32 s{sWoff}, s{sWoff}, {32*3072}"
        if ROT: t+=f"\ns_cmp_ge_u32 s{sWoff}, s{sWlim}\ns_cselect_b32 s{sTmp2}, {640*3072}, 0\ns_sub_u32 s{sWoff}, s{sWoff}, s{sTmp2}"
        return t
    def adv_t():
        t=f"s_add_u32 s{sToff}, s{sToff}, 128"
        if ROT: t+=f"\ns_cmp_ge_u32 s{sToff}, s{sTlim}\ns_cselect_b32 s{sTmp2}, 1280, 0\ns_sub_u32 s{sToff}, s{sToff}, s{sTmp2}"
        return t
    def dma_w(slot):
        if opts.get('nodmaw') and started[0]: return
        a(f"s_add_u32 m0, s{sMW}, {slot*WST}")
        for t in range(3):
            a(f"buffer_load_dwordx4 v{vWa[t]}, s[{SW}:{SW+3}], s{sWoff} offen offset:{1024*t} lds")
        a(adv_w())
    if opts.get('bench'):
        a(f"s_mov_b32 s78, {opts['bench']}")
        a(f"s_mov_b32 s79, s{sWoff}")
    dma_w(0)
    for ii in range(4):
        a(f"v_lshrrev_b32 v{t0}, 3, v{lane}")
        if ii: a(f"v_add_u32 v{t0}, {8*ii}, v{t0}")
        a(f"v_mul_u32_u24 v{vTok[ii]}, 1280, v{t0}")
        a(f"v_bfe_u32 v{t0}, v{t0}, 1, 3\nv_and_b32 v{t1}, 7, v{lane}\nv_xor_b32 v{t0}, v{t0}, v{t1}")
        a(f"v_lshl_add_u32 v{vTok[ii]}, v{t0}, 4, v{vTok[ii]}")
        if ii: a(f"v_subrev_u32 v{vTok[ii]}, {1024*ii}, v{vTok[ii]}")
    a(f"s_lshl_b32 s{sToff}, s{sT}, 7\ns_lshl_b32 s{sTmp}, s{sWv}, 5\ns_add_u32 s{sToff}, s{sToff}, s{sTmp}\ns_mul_i32 s{sToff}, s{sToff}, 1280")
    if ROT:
        a(f"s_add_u32 s{sTlim}, s{sToff}, 1280\ns_lshl_b32 s{sTmp}, s{sC0}, 7\ns_add_u32 s{sToff}, s{sToff}, s{sTmp}")
    a(f"s_lshl_b32 s{sMT}, s{sWv}, 12\ns_add_u32 s{sMT}, s{sMT}, {TOK0}")
    if opts.get('bench'): a(f"s_mov_b32 s77, s{sToff}")
    def dma_t(buf):
        if opts.get('nodmat') and started[0]: return
        a(f"s_add_u32 m0, s{sMT}, {buf*TST}")
        for ii in range(4):
            a(f"buffer_load_dwordx4 v{vTok[ii]}, s[{SX}:{SX+3}], s{sToff} offen offset:{1024*ii} lds")
        a(adv_t())
    dma_t(0); dma_w(1); dma_w(2); dma_t(1)
    nonce_load(a)
    started[0]=True
    vTw=23; vTt=25
    sTwo=80; sTto=81
    a(f"s_lshr_b32 s{sTmp}, s2, 3\ns_lshl_b32 s{sTwo}, s{sTmp}, 1\ns_and_b32 s{sTmp2}, s{sWv}, 1\ns_add_u32 s{sTwo}, s{sTwo}, s{sTmp2}\ns_mul_i32 s{sTwo}, s{sTwo}, {2*3072}")
    a(f"s_and_b32 s{sTmp2}, s{sX}, 3\ns_mul_i32 s{sTmp2}, s{sTmp2}, 768\ns_add_u32 s{sTwo}, s{sTwo}, s{sTmp2}\ns_add_u32 s{sTwo}, s{sTwo}, {3*32*3072}")
    a(f"v_mul_u32_u24 v{t0}, 10923, v{lane}\nv_lshrrev_b32 v{t0}, 16, v{t0}\nv_mul_u32_u24 v{t1}, 6, v{t0}\nv_sub_u32 v{t1}, v{lane}, v{t1}")
    a(f"v_mul_u32_u24 v{vTw}, 3072, v{t0}\nv_lshl_add_u32 v{vTw}, v{t1}, 7, v{vTw}")
    a(f"s_lshr_b32 s{sTmp}, s2, 3\ns_lshl_b32 s{sTmp}, s{sTmp}, 2\ns_add_u32 s{sTmp}, s{sTmp}, s{sWv}\ns_lshl_b32 s{sTmp}, s{sTmp}, 3\ns_lshr_b32 s{sTmp2}, s{sX}, 2\ns_lshl_b32 s{sTmp2}, s{sTmp2}, 10\ns_add_u32 s{sTmp}, s{sTmp}, s{sTmp2}")
    a(f"s_mul_i32 s{sTto}, s{sTmp}, 1280\ns_add_u32 s{sTto}, s{sTto}, {2*128}")
    a(f"v_lshrrev_b32 v{t0}, 1, v{lane}\nv_mul_u32_u24 v{vTt}, 1280, v{t0}\nv_and_b32 v{t0}, 1, v{lane}\nv_lshl_add_u32 v{vTt}, v{t0}, 7, v{vTt}")
    def touch_batch(tok=True):
        if not opts.get('touch',0): return []
        a(f"s_mov_b64 exec, 0xfff")
        a(f"buffer_load_dword v{vDum}, v{vTw}, s[{SW}:{SW+3}], s{sTwo} offen")
        a(f"s_add_u32 s{sTwo}, s{sTwo}, {128*3072}")
        if tok:
            a(f"s_mov_b64 exec, 0xffff")
            a(f"buffer_load_dword v{vDum}, v{vTt}, s[{SX}:{SX+3}], s{sTto} offen")
            a(f"s_add_u32 s{sTto}, s{sTto}, 256")
        a("s_mov_b64 exec, -1")
        return ['x']*(2 if tok else 1)
    pre_touch=touch_batch()
    ntouch=len(pre_touch)
    if opts.get('ln8'):
        npre=3+4+3+3+4+1+len(pre_touch)
        a(f"s_waitcnt vmcnt({npre})")
        S(1)
        nln=ln8_compute(a, sLam, sWv, 64, 76, 3*WST)
        ntouch+=nln
    a(f"v_lshrrev_b32 v{t0}, 5, v{lane}\nv_lshlrev_b32 v{t0}, 3, v{t0}\nv_bfe_u32 v{t1}, v{lane}, 2, 2\nv_add_u32 v{t0}, v{t0}, v{t1}")
    a(f"v_mul_u32_u24 v{vA}, 192, v{t0}\nv_and_b32 v{t1}, 3, v{lane}\nv_lshl_add_u32 v{vA}, v{t1}, 3, v{vA}")
    a(f"v_bfe_u32 v{t1}, v{lane}, 4, 1\nv_mul_u32_u24 v{t0}, {6144+32}, v{t1}\nv_add_u32 v{vA}, v{vA}, v{t0}")
    a(f"s_lshr_b32 s{sTmp}, s{sWv}, 1\ns_mul_i32 s{sTmp2}, s{sTmp}, 96\nv_add_u32 v{vA}, s{sTmp2}, v{vA}")
    a(f"s_mul_i32 s{sTmp2}, s{sTmp}, 192\nv_mul_u32_u24 v{t0}, s{sTmp2}, v{t1}\nv_sub_u32 v{vA5}, v{vA}, v{t0}")
    a(f"v_and_b32 v{t0}, 31, v{lane}\ns_and_b32 s{sTmp}, s{sWv}, 1\ns_lshl_b32 s{sTmp}, s{sTmp}, 6\nv_add_u32 v{t0}, s{sTmp}, v{t0}")
    a(f"v_bfe_u32 v{t1}, v{t0}, 1, 3\nv_lshrrev_b32 v{vB[3]}, 5, v{lane}\nv_xor_b32 v{t1}, v{t1}, v{vB[3]}")
    a(f"v_lshlrev_b32 v{t0}, 7, v{t0}\nv_add_u32 v{t0}, {TOK0}, v{t0}")
    for sp in range(4):
        a(f"v_xor_b32 v{vB[sp]}, {2*sp}, v{t1}\nv_lshl_add_u32 v{vB[sp]}, v{vB[sp]}, 4, v{t0}")
    a(f"v_bfe_u32 v{t0}, v{lane}, 4, 1\nv_mul_u32_u24 v{vSt}, 49152, v{t0}\nv_lshrrev_b32 v{t0}, 5, v{lane}\nv_lshl_add_u32 v{vSt}, v{t0}, 8, v{vSt}")
    a(f"v_and_b32 v{t0}, 15, v{lane}\nv_lshl_add_u32 v{vSt}, v{t0}, 4, v{vSt}")
    a(f"s_lshl_b32 s{sTmp}, s{sT}, 3\ns_and_b32 s{sTmp2}, s{sWv}, 1\ns_lshl_b32 s{sTmp2}, s{sTmp2}, 2\ns_add_u32 s{sTmp}, s{sTmp}, s{sTmp2}\ns_mul_i32 s{sTmp}, s{sTmp}, 49152")
    a(f"s_mul_i32 s{sTmp2}, s{sFT}, {12*256}\ns_add_u32 s{sTmp}, s{sTmp}, s{sTmp2}\ns_lshr_b32 s{sTmp2}, s{sWv}, 1\ns_mul_i32 s{sTmp2}, s{sTmp2}, {6*256}\ns_add_u32 s{sTmp}, s{sTmp}, s{sTmp2}")
    a(f"s_add_u32 s{sTmp}, s{sTmp}, {WS_H}\nv_add_u32 v{vSt}, s{sTmp}, v{vSt}")
    if opts.get('ln8'):
        a(f"v_and_b32 v{t0}, 15, v{lane}\ns_lshl_b32 s{sTmp}, s{sT}, 4\nv_add_u32 v{t0}, s{sTmp}, v{t0}")
    else:
        a(f"v_and_b32 v{t0}, 7, v{lane}\ns_lshl_b32 s{sTmp}, s{sT}, 3\nv_add_u32 v{t0}, s{sTmp}, v{t0}")
    a(f"v_lshlrev_b32 v{t0}, 6, v{t0}\nv_add_u32 v{vFl[0]}, {FL_LN}, v{t0}")
    a(f"v_lshlrev_b32 v{vPk[0]}, 6, v{lane}\nv_add_u32 v{vPk[0]}, {FL_PK}, v{vPk[0]}")
    a(f"v_min_u32 v{t0}, 31, v{lane}\nv_lshlrev_b32 v{t0}, 6, v{t0}\nv_add_u32 v{vPk[1]}, {FL_PK+4096}, v{t0}")
    for r in range(96): a(f"v_mov_b32 v{ACC+r}, 0")
    CACC=216; SEL=228
    for r in range(12): a(f"v_mov_b32 v{CACC+r}, 0")
    a(f"v_and_b32 v{t0}, 15, v{lane}\nv_bfe_u32 v{t1}, v{lane}, 4, 1\nv_cmp_eq_u32 vcc, v{t0}, v{t1}")
    a(f"v_mov_b32 v{t0}, 0x3f803f80")
    for r in range(4): a(f"v_cndmask_b32 v{SEL+r}, 0, v{t0}, vcc")
    a(f"s_and_b32 s{sTmp}, s{sWv}, 1\ns_cmp_eq_u32 s{sTmp}, 1\ns_cselect_b64 vcc, -1, 0")
    if opts.get('bench'):
        a("s_branch Lbench_go")
        a.label("Lbench_top")
        a(f"s_mov_b32 s{sWoff}, s79\ns_mov_b32 s{sToff}, s77")
        a("s_barrier")
        started[0]=False
        dma_w(0); dma_t(0); dma_w(1); dma_w(2); dma_t(1)
        if ntouch:
            for _ in range(ntouch): a(f"buffer_load_dword v{vDum}, v{vTch[0]}, s[{SX}:{SX+3}], 0 offen")
        started[0]=True
        a.label("Lbench_go")
        a("s_memtime s[74:75]\ns_memrealtime s[70:71]\ns_waitcnt lgkmcnt(0)")
    if not opts.get('ln8'): S(1)
    def reads(setb, st, s):
        slot=st%4; buf=(st//2)%2; sp=2*(st%2)+s
        R=[]
        def rb(nt): R.append((f"ds_read_b128 v[{setb+12+4*nt}:{setb+12+4*nt+3}], v{vB[sp]} offset:{buf*TST+nt*4096}", f"B{nt}"))
        def ra(j):
            for q in range(2):
                reg=vA5 if j==2 else vA
                R.append((f"ds_read_b64_tr_b16 v[{setb+4*j+2*q}:{setb+4*j+2*q+1}], v{reg} offset:{slot*WST+(16*s+4*q)*192+32*j}", f"A{j}"))
        rb(0); ra(0); ra(1); ra(2); rb(1)
        if opts.get('nods'): R=[]
        if opts.get('nodsB'): R=[x for x in R if x[1][0]!='B']
        if opts.get('nodsA'): R=[x for x in R if x[1][0]!='A']
        return R
    def mfma(setb, j, nt):
        if opts.get('nomfma'): return
        d=ACC+16*(2*j+nt)
        a(f"v_mfma_f32_32x32x16_bf16 v[{d}:{d+15}], v[{setb+4*j}:{setb+4*j+3}], v[{setb+12+4*nt}:{setb+12+4*nt+3}], v[{d}:{d+15}]")
    ORDER=[(0,0),(1,0),(2,0),(0,1),(1,1),(2,1)]
    NEED={(0,0):"A0",(1,0):"A1",(2,0):"A2",(0,1):"B1",(1,1):None,(2,1):None}
    vq=['W0']*3+['T0']*4+['W1']*3+['W2']*3+['T1']*4+['x']+['x']*ntouch
    def vwait(tags):
        nonlocal vq
        idx=max(i for i,t in enumerate(vq) if t in tags)
        n=len(vq)-1-idx
        vq=vq[idx+1:]
        return n
    TOUCH_AT={0:True,3:True,7:True,11:True}
    def dma_list(st):
        L=[]
        if st+3<20 and not opts.get('nodmaw'):
            slot=(st+3)%4
            for t in range(3):
                pre=f"s_add_u32 m0, s{sMW}, {slot*WST}\ns_nop 0\n" if t==0 else ""
                post="\n"+adv_w() if t==2 else ""
                L.append((pre+f"buffer_load_dwordx4 v{vWa[t]}, s[{SW}:{SW+3}], s{sWoff} offen offset:{1024*t} lds"+post, f"W{st+3}"))
        if st%2==0 and st>=2 and st//2+1<10 and not opts.get('nodmat'):
            buf=(st//2+1)%2
            for ii in range(4):
                pre=f"s_add_u32 m0, s{sMT}, {buf*TST}\ns_nop 0\n" if ii==0 else ""
                post="\n"+adv_t() if ii==3 else ""
                L.append((pre+f"buffer_load_dwordx4 v{vTok[ii]}, s[{SX}:{SX+3}], s{sToff} offen offset:{1024*ii} lds"+post, f"T{st//2+1}"))
        return L
    def stage(st, first=False, extra1=None, extra2=None, fixed=None):
        need=[f"W{st}", f"T{st//2}"]
        n=vwait([t for t in need if t in vq]) if any(t in vq for t in need) else len(vq)
        if fixed is not None: assert n==fixed,(st,n,fixed)
        a(f"s_waitcnt vmcnt({n}) lgkmcnt(0)")
        if opts.get('ststamp') and st>0: a(f"v_writelane_b32 v250, s82, {st-1}")
        a("s_barrier")
        if opts.get('ststamp'): a("s_memrealtime s[82:83]")
        if st==3: nonce_ready(a)
        if st==3 and opts.get('ln8'):
            a(f"s_lshl_b32 s{sTmp}, s{sLam}, 6\ns_add_u32 s{sTmp}, s{sTmp}, {FL_LN}")
            flag_store(a, sTmp, t0, keepvcc=True)
        if st in TOUCH_AT: vq.extend(touch_batch(tok=(st<=3 or TOUCH_AT[st])))
        lt=LdsTrack(a)
        DL=dma_list(st); di=0
        spread=opts.get('spread',1)
        if spread==1: order=[4,5,10,11,3,9,2,8]
        elif spread==2: order=[0,1,2,3,4,5,6,7,8,9,10,11]
        elif spread==3: order=[5,5,5,10,10,10,10]
        elif spread==4: order=[0,2,4,6,8,10,11]
        gaps={}
        srt=sorted(order[:len(DL)])
        for i,g in enumerate(srt): gaps.setdefault(g,[]).append(DL[i])
        def do_dma(g):
            for (t,tag) in gaps.get(g,[]):
                a(t); vq.append(tag)
        rdn=opts.get('rdn',2)
        def csum(setb, branch):
            if opts.get('nocs'): return
            lb=a.newlabel('Lcs')
            a(f"{branch} {lb}")
            for j in range(3):
                a(f"v_mfma_f32_16x16x32_bf16 v[{CACC+4*j}:{CACC+4*j+3}], v[{setb+4*j}:{setb+4*j+3}], v[{SEL}:{SEL+3}], v[{CACC+4*j}:{CACC+4*j+3}]")
            a.label(lb)
        cspos=opts.get('cspos',3)
        R=reads(Pq, st, 0); ri=0
        for k,(j,nt) in enumerate(ORDER):
            if not first: mfma(Qq,j,nt)
            if k==cspos and not first: csum(Qq, "s_cbranch_vccz")
            for _ in range(rdn):
                if ri<len(R): lt.issue(R[ri][0], 'P'+R[ri][1]); ri+=1
            do_dma(k)
        if extra1: extra1()
        R=reads(Qq, st, 1); ri=0
        for k,(j,nt) in enumerate(ORDER):
            if NEED[(j,nt)]: lt.wait('P'+NEED[(j,nt)])
            mfma(Pq,j,nt)
            if k==cspos: csum(Pq, "s_cbranch_vccnz")
            for _ in range(rdn):
                if ri<len(R): lt.issue(R[ri][0], 'Q'+R[ri][1]); ri+=1
            do_dma(6+k)
        if extra2: extra2()
        return n
    for st in range(0,4): stage(st, first=(st==0))
    S(2) if not opts.get("bench") else None
    if opts.get('clk'): a("s_memtime s[68:69]\ns_waitcnt lgkmcnt(0)\ns_mov_b32 s51, s68")
    if opts.get('ststamp') or opts.get('unroll'):
        for st in range(4,12): stage(st)
    else:
        a(f"s_mov_b32 s{sCnt}, 2")
        lab=a.newlabel('Lup'); a.label(lab)
        pat=[stage(st) for st in range(4,8)]
        a(f"s_sub_u32 s{sCnt}, s{sCnt}, 1\ns_cmp_lg_u32 s{sCnt}, 0\ns_cbranch_scc1 {lab}")
        sav=a.ins; a.ins=[]
        pat2=[stage(st) for st in range(8,12)]
        a.ins=sav
        assert pat==pat2,(pat,pat2)
    FLG=200
    def issue_flags():
        a(f"buffer_load_dword v{FLG}, v{vFl[0]}, s[{SWS}:{SWS+3}], 0 offen sc1"); vq.append('F')
    stage(12, extra2=issue_flags)
    stage(13)
    STAT=204
    CSR=208
    PKF=202
    def check_and_load():
        nonlocal vq
        n=vwait(['F'])
        a(f"s_waitcnt vmcnt({n})")
        poll_check(a, 1, FLG)
        lab2=a.newlabel('Lok')
        a(f"s_cbranch_scc0 {lab2}")
        if not opts.get('nolnwait'): poll(a, vFl, FLG)
        a.label(lab2)
        a(f"v_and_b32 v{t0}, 31, v{lane}\ns_lshl_b32 s{sTmp}, s{sT}, 7\ns_and_b32 s{sTmp2}, s{sWv}, 1\ns_lshl_b32 s{sTmp2}, s{sTmp2}, 6\ns_add_u32 s{sTmp}, s{sTmp}, s{sTmp2}")
        a(f"v_add_u32 v{t0}, s{sTmp}, v{t0}\nv_lshlrev_b32 v{t0}, 3, v{t0}\ns_mov_b32 s{sTmp}, {WS_STATS}")
        for nt in range(2):
            a(f"buffer_load_dwordx2 v[{STAT+2*nt}:{STAT+2*nt+1}], v{t0}, s[{SWS}:{SWS+3}], s{sTmp} offen offset:{256*nt} sc1"); vq.append('S')
        a(f"s_and_b32 s{sTmp}, s{sWv}, 1\ns_cmp_eq_u32 s{sTmp}, 1\ns_cselect_b64 vcc, -1, 0")
        for i in range(2):
            a(f"buffer_load_dword v{PKF+i}, v{vPk[i]}, s[{SWS}:{SWS+3}], 0 offen sc1"); vq.append('S')
    stage(14, extra2=check_and_load)
    for st in range(15,20): stage(st)
    a("s_waitcnt lgkmcnt(0)")
    for (j,nt) in ORDER: mfma(Qq,j,nt)
    if not opts.get('nocs'):
        lbq=a.newlabel('Lcs'); a(f"s_cbranch_vccz {lbq}")
        for j in range(3):
            a(f"v_mfma_f32_16x16x32_bf16 v[{CACC+4*j}:{CACC+4*j+3}], v[{Qq+4*j}:{Qq+4*j+3}], v[{SEL}:{SEL+3}], v[{CACC+4*j}:{CACC+4*j+3}]")
        a.label(lbq)
    if opts.get('bench'):
        a("s_waitcnt vmcnt(0)")
        a("s_memtime s[72:73]\ns_memrealtime s[68:69]\ns_waitcnt lgkmcnt(0)\ns_sub_u32 s72, s72, s74\ns_sub_u32 s68, s68, s70")
        a(f"s_cmp_eq_u32 s78, 1\ns_cselect_b32 s{84+2*7}, s68, s{84+2*7}")
        for r in range(opts['bench']):
            a(f"s_cmp_eq_u32 s78, {opts['bench']-r}\ns_cselect_b32 s{84+2*(4+r)}, s72, s{84+2*(4+r)}")
        a("s_sub_u32 s78, s78, 1\ns_cmp_lg_u32 s78, 0\ns_cbranch_scc1 Lbench_top")
        return
    if opts.get('ststamp'):
        a("s_waitcnt lgkmcnt(0)\nv_writelane_b32 v250, s82, 19\ns_memrealtime s[82:83]\ns_waitcnt lgkmcnt(0)\nv_writelane_b32 v250, s82, 20")
        lq=a.newlabel('Lq')
        a(f"s_cmp_lg_u32 s{sWv}, 0\ns_cbranch_scc1 {lq}")
        a(f"s_lshl_b32 s{sTmp}, s2, 7\ns_add_u32 s{sTmp}, s{sTmp}, 0xF40000\nv_lshlrev_b32 v251, 2, v{lane}\ns_mov_b32 exec_hi, 0")
        a(f"buffer_store_dword v250, v251, s[{SWS}:{SWS+3}], s{sTmp} offen\ns_mov_b64 exec, -1")
        a.label(lq)
    S(3)
    if opts.get('clk'): a("s_memtime s[68:69]\ns_waitcnt lgkmcnt(0)\ns_sub_u32 s51, s68, s51")
    if opts.get('gate',1)==1:
        a(f"s_lshl_b32 s{sTmp}, s2, 6\ns_add_u32 s{sTmp}, s{sTmp}, {FL_UD}")
        flag_store(a, sTmp, t0)
    a("s_waitcnt vmcnt(0)")
    poll_check(a, 2, PKF)
    labp=a.newlabel('Lok'); a(f"s_cbranch_scc0 {labp}")
    if not opts.get('nolnwait'): poll(a, vPk, PKF)
    a.label(labp)
    EA=Pq; EB=Pq+12
    a(f"v_and_b32 v{t0}, 15, v{lane}\nv_lshrrev_b32 v{t1}, 4, v{lane}\nv_lshlrev_b32 v{t1}, 4, v{t1}\nv_lshl_add_u32 v{t1}, v{t0}, 6, v{t1}")
    a(f"s_lshr_b32 s{sTmp}, s{sWv}, 1\ns_lshl_b32 s{sTmp}, s{sTmp}, 1\ns_and_b32 s{sTmp2}, s{sWv}, 1\ns_add_u32 s{sTmp}, s{sTmp}, s{sTmp2}\ns_mul_i32 s{sTmp}, s{sTmp}, 384")
    a(f"v_add_u32 v{t1}, s{sTmp}, v{t1}")
    a(f"s_mov_b32 exec_lo, 0x00030003\ns_mov_b32 exec_hi, 0x00030003")
    for j in range(3): a(f"ds_write_b128 v{t1}, v[{CACC+4*j}:{CACC+4*j+3}] offset:{128*j}")
    a("s_mov_b64 exec, -1")
    a("s_waitcnt lgkmcnt(0)\ns_barrier")
    a(f"v_bfe_u32 v{t1}, v{lane}, 4, 1\nv_lshlrev_b32 v{t1}, 6, v{t1}\nv_lshl_add_u32 v{t1}, v{t0}, 2, v{t1}")
    a(f"s_lshr_b32 s{sTmp}, s{sWv}, 1\ns_mul_i32 s{sTmp}, s{sTmp}, 768\nv_add_u32 v{t1}, s{sTmp}, v{t1}")
    for j in range(3):
        a(f"ds_read_b32 v{CSR+2*j}, v{t1} offset:{128*j}\nds_read_b32 v{CSR+2*j+1}, v{t1} offset:{128*j+384}")
    a(f"v_cmp_gt_u32 vcc, 32, v{lane}")
    a("s_waitcnt lgkmcnt(0)\ns_barrier")
    sT64=65; sCT=66; sA=67; sB=72; sStg=76; sA8=77
    a(f"s_lshr_b32 s{sT64}, s{sX}, 1\ns_lshl_b32 s{sT64}, s{sT64}, 3\ns_add_u32 s{sT64}, s{sT64}, s{sJT}")
    a(f"s_and_b32 s{sCT}, s{sX}, 1\ns_lshl_b32 s{sCT}, s{sCT}, 2\ns_add_u32 s{sCT}, s{sCT}, s{sJF}")
    a(f"s_mul_i32 s{sTmp}, s{sWv}, {12*1024}\ns_mul_i32 s{sTmp2}, s{sCT}, {5*49152}\ns_add_u32 s{sTmp2}, s{sTmp2}, s{sTmp}")
    for m in range(5): a(f"s_add_u32 s{sA+m}, s{sTmp2}, {WS_W2P+m*49152}")
    vL16=4
    a(f"v_lshlrev_b32 v{vL16}, 4, v{lane}")
    a(f"s_mul_i32 s{sStg}, s{sWv}, 20480")
    vt=VmTrack(a)
    stg=[(m,k) for m in range(5) for k in range(4)]
    def stage_one():
        if not stg: return
        m,k=stg.pop(0)
        if k==0: a(f"s_add_u32 m0, s{sStg}, {m*4096}\ns_add_u32 s{sA8}, s{sA+m}, 8192")
        vt.issue(f"buffer_load_dwordx4 v{vL16}, s[{SWS}:{SWS+3}], s{sA8} offen offset:{k*1024} sc1 lds", 'stg')
    for j in range(3):
        a(f"v_add_f32 v{t0}, v{CSR+2*j}, v{CSR+2*j+1}")
        a(f"v_cvt_pk_bf16_f32 v{t1}, v{t0}, v{t0}\nv_and_b32 v{t1}, 0xffff0000, v{t1}")
        a(f"v_sub_f32 v{t0}, v{t0}, v{t1}")
        a(f"v_cvt_pk_bf16_f32 v{t0}, v{t1}, v{t0}")
        a(f"v_cndmask_b32 v{EA+4*j}, 0, v{t0}, vcc")
        for r in range(1,4): a(f"v_mov_b32 v{EA+4*j+r}, 0")
    for nt in range(2):
        a(f"v_cvt_pk_bf16_f32 v{t0}, v{STAT+2*nt}, v{STAT+2*nt}")
        a(f"v_cndmask_b32 v{EB+4*nt}, 0, v{t0}, vcc")
        for r in range(1,4): a(f"v_mov_b32 v{EB+4*nt+r}, 0")
    for (j,nt) in ORDER: mfma(Pq,j,nt)
    C1=[214,215]; IR2=[208,209]
    for nt in range(2):
        r=STAT+2*nt+1
        a(f"v_mul_f32 v{C1[nt]}, 0xbfb8aa3b, v{r}")
        a(f"v_mul_f32 v{IR2[nt]}, v{r}, v{r}\nv_rcp_f32 v{IR2[nt]}, v{IR2[nt]}")
    T=216; O=232
    k=0
    for (j,nt) in ORDER:
        d=ACC+16*(2*j+nt); o=O+4*(k%2)
        k+=1
        sg=(lambda: stage_one()) if opts.get('stgepi',1) else (lambda: None)
        for i in range(8): a(f"v_mul_f32 v{T+i}, v{d+i}, v{C1[nt]}")
        sg()
        for i in range(8): a(f"v_exp_f32 v{T+i}, v{T+i}")
        sg()
        for i in range(8): a(f"v_mul_f32 v{d+i}, v{d+i}, v{d+8+i}")
        for i in range(8): a(f"v_fma_f32 v{T+i}, v{T+i}, v{IR2[nt]}, v{IR2[nt]}")
        sg()
        for i in range(8): a(f"v_rcp_f32 v{T+i}, v{T+i}")
        sg()
        for i in range(8): a(f"v_mul_f32 v{T+i}, v{T+i}, v{d+i}")
        for p in range(4): a(f"v_cvt_pk_bf16_f32 v{o+p}, v{T+2*p}, v{T+2*p+1}")
        a(f"v_permlane32_swap_b32 v{o}, v{o+2}\nv_permlane32_swap_b32 v{o+1}, v{o+3}")
        a(f"s_mov_b32 s{sTmp}, {nt*2*49152+j*512}")
        vt.issue(f"buffer_store_dwordx4 v[{o}:{o+3}], v{vSt}, s[{SWS}:{SWS+3}], s{sTmp} offen sc1", 'h')
    S(4)
    if opts.get('gate',1)==2:
        a(f"s_lshl_b32 s{sTmp}, s2, 6\ns_add_u32 s{sTmp}, s{sTmp}, {FL_UD}")
        flag_store(a, sTmp, t0)
    vRed=5; vXo=6; vAt=7; vHf=8; vAf=9; vTm=10
    DACC=12
    AF=92
    BF=192
    NB=4
    vDum=vRed
    a(f"s_mul_i32 s{sTmp2}, s{sT64}, {4*49152}\ns_mul_i32 s{sTmp}, s{sWv}, {12*1024}\ns_add_u32 s{sTmp2}, s{sTmp2}, s{sTmp}\ns_add_u32 s{sTmp2}, s{sTmp2}, {WS_H}")
    for n in range(4):
        a(f"s_add_u32 s{sB+n}, s{sWv}, {n}\ns_and_b32 s{sB+n}, s{sB+n}, 3\ns_mul_i32 s{sB+n}, s{sB+n}, 49152\ns_add_u32 s{sB+n}, s{sB+n}, s{sTmp2}")
    def ldA(k,m):
        fb=AF+20*(k%5)
        vt.issue(f"buffer_load_dwordx4 v[{fb+4*m}:{fb+4*m+3}], v{vL16}, s[{SWS}:{SWS+3}], s{sA+m} offen offset:{(k%4)*1024} sc1", f"a{k}")
        if k%4==3: a(f"s_add_u32 s{sA+m}, s{sA+m}, 4096")
    def ldB(k,n):
        fb=BF+16*(k%NB)
        vt.issue(f"buffer_load_dwordx4 v[{fb+4*n}:{fb+4*n+3}], v{vL16}, s[{SWS}:{SWS+3}], s{sB+n} offen offset:{(k%4)*1024} sc1", f"b{k}")
        if k%4==3: a(f"s_add_u32 s{sB+n}, s{sB+n}, 4096")
    while stg: stage_one()
    for k in range(5):
        for m in range(5): ldA(k,m)
    vt.wait('h')
    a(f"s_lshl_b32 s{sTmp}, s{sT}, 4\ns_add_u32 s{sTmp}, s{sTmp}, s{sFT}\ns_lshl_b32 s{sTmp}, s{sTmp}, 2\ns_add_u32 s{sTmp}, s{sTmp}, s{sWv}\ns_lshl_b32 s{sTmp}, s{sTmp}, 6\ns_add_u32 s{sTmp}, s{sTmp}, {FL_H}")
    a(f"v_mov_b32 v{t0}, 0\nv_mov_b32 v{t1}, s{S_NONCE}\ns_mov_b64 exec, 1")
    vt.issue(f"buffer_store_dword v{t1}, v{t0}, s[{SWS}:{SWS+3}], s{sTmp} offen sc1", 'f')
    a("s_mov_b64 exec, -1")
    S(5)
    for r in range(80): a(f"v_mov_b32 v{DACC+r}, 0")
    a(f"v_and_b32 v{t0}, 15, v{lane}\ns_lshl_b32 s{sTmp}, s{sT64}, 6\ns_lshl_b32 s{sTmp2}, s{sWv}, 4\ns_add_u32 s{sTmp}, s{sTmp}, s{sTmp2}\nv_add_u32 v{t0}, s{sTmp}, v{t0}")
    a(f"v_lshrrev_b32 v{t1}, 4, v{lane}\nv_mul_u32_u24 v{vXo}, 1280, v{t0}\nv_lshl_add_u32 v{vXo}, v{t1}, 3, v{vXo}")
    a(f"s_mul_i32 s{sTmp}, s{sCT}, 160\nv_add_u32 v{vXo}, s{sTmp}, v{vXo}")
    a(f"v_lshlrev_b32 v{vAt}, 14, v{t1}\nv_lshl_add_u32 v{vAt}, v{t0}, 1, v{vAt}")
    a(f"s_mul_i32 s{sTmp}, s{sCT}, {80*4096}\ns_add_u32 s{sTmp}, s{sTmp}, {WS_AT}\nv_add_u32 v{vAt}, s{sTmp}, v{vAt}")
    a(f"s_lshr_b32 s{sTmp}, s{sT64}, 1\ns_lshl_b32 s{sTmp}, s{sTmp}, 6\ns_and_b32 s{sTmp2}, s{sT64}, 1\ns_add_u32 s{sTmp}, s{sTmp}, s{sTmp2}")
    a(f"v_bfe_u32 v{t0}, v{lane}, 1, 4\nv_lshlrev_b32 v{t0}, 2, v{t0}\nv_and_b32 v{t1}, 1, v{lane}\nv_lshl_add_u32 v{t0}, v{t1}, 1, v{t0}\nv_add_u32 v{t0}, s{sTmp}, v{t0}")
    a(f"v_lshlrev_b32 v{t0}, 6, v{t0}\nv_add_u32 v{vHf}, {FL_H}, v{t0}")
    a(f"s_mul_i32 s{sTmp}, s{sCT}, {20*64}\ns_add_u32 s{sTmp}, s{sTmp}, {FL_A}")
    a(f"v_min_u32 v{t0}, 19, v{lane}\nv_lshlrev_b32 v{t0}, 6, v{t0}\nv_add_u32 v{vAf}, s{sTmp}, v{t0}")
    vSg=11
    a(f"v_add_u32 v{vSg}, s{sStg}, v{vL16}")
    SD(1)
    poll(a, [vHf], vTm, force=True, mask=(0xffffffff,0), sleep=opts.get('slph',2)); vt.q=[]
    S(6); SD(2)
    for k in range(NB):
        for n in range(4): ldB(k,n)
    if opts.get('touch_h',0):
        a(f"s_lshl_b32 s{sTmp}, s{sT64}, 2\ns_add_u32 s{sTmp}, s{sTmp}, s{sJF}\ns_mul_i32 s{sTmp}, s{sTmp}, 49152\ns_mul_i32 s{sTmp2}, s{sWv}, {12*1024}\ns_add_u32 s{sTmp}, s{sTmp}, s{sTmp2}\ns_add_u32 s{sTmp}, s{sTmp}, {WS_H+3*1024}")
        a(f"v_lshlrev_b32 v{t0}, 7, v{lane}")
        vt.issue(f"buffer_load_dword v{vDum}, v{t0}, s[{SWS}:{SWS+3}], s{sTmp} offen", 'x')
        a(f"s_add_u32 s{sTmp}, s{sTmp}, 8192\ns_mov_b64 exec, 0xff")
        vt.issue(f"buffer_load_dword v{vDum}, v{t0}, s[{SWS}:{SWS+3}], s{sTmp} offen", 'x')
        a("s_mov_b64 exec, -1")
    XR=AF+40; AR=AF+50
    lt=LdsTrack(a)
    for k in range(12):
        vt.wait(f"b{k}")
        if k<8: assert f"a{k}" not in vt.q
        if k>=8: lt.wait(f"a{k}")
        if k in (0,3,6,9): SD({0:3,3:4,6:5,9:6}[k])
        fa=AF+20*(k%5); fb=BF+16*(k%NB)
        side=[]
        if k>=1 and k-1+NB<12: side+= [('B',k-1+NB,n) for n in range(4)]
        norder=(1,2,3,0) if k==11 else (0,1,2,3)
        si=0
        for m in range(5):
            for n in norder:
                d=DACC+4*(m*4+n)
                a(f"v_mfma_f32_16x16x32_bf16 v[{d}:{d+3}], v[{fa+4*m}:{fa+4*m+3}], v[{fb+4*n}:{fb+4*n+3}], v[{d}:{d+3}]")
                if n==norder[1] and si<len(side):
                    ldB(side[si][1],side[si][2]); si+=1
            kn=k+5
            if kn<8: ldA(kn,m)
            elif kn<12:
                lt.issue(f"ds_read_b128 v[{fa+4*m}:{fa+4*m+3}], v{vSg} offset:{m*4096+(kn-8)*1024}", f"a{kn}")
        while si<len(side):
            ldB(side[si][1],side[si][2]); si+=1
        if k==2:
            pass
        ka=opts.get('ka',8)
        if k==min(ka,11)-3: vt.issue(f"buffer_load_dword v{vTm}, v{vAf}, s[{SWS}:{SWS+3}], 0 offen sc1", 'af')
        if k==8:
            for m in range(5):
                vt.issue(f"buffer_load_dwordx2 v[{XR+2*m}:{XR+2*m+1}], v{vXo}, s[{SX}:{SX+3}], 0 offen offset:{32*m}", 'e')
        if k==min(ka,11):
            vt.wait('af')
            poll_check(a, 1, vTm)
            lab3=a.newlabel('Lok'); a(f"s_cbranch_scc0 {lab3}")
            if opts.get('only')!=4: poll(a, [vAf], vTm, mask=(0xfffff,0), sleep=2)
            a.label(lab3)
            for m in range(5):
                for r in range(4):
                    a(f"s_mov_b32 s{sTmp}, {(16*m+r)*4096}")
                    vt.issue(f"buffer_load_ushort v{AR+4*m+r}, v{vAt}, s[{SWS}:{SWS+3}], s{sTmp} offen sc1", 'e')
    S(7); SD(7)
    if opts.get('clk'): a("s_mov_b32 s96, s51")
    a("s_barrier")
    for n in range(1,4):
        a(f"s_add_u32 s{sTmp}, s{sWv}, {n}\ns_and_b32 s{sTmp}, s{sTmp}, 3\ns_mul_i32 s{sTmp}, s{sTmp}, {15*1024}\ns_add_u32 s{sTmp}, s{sTmp}, {(n-1)*5*1024}")
        a(f"v_add_u32 v{vRed}, s{sTmp}, v{vL16}")
        for m in range(5):
            d=DACC+4*(m*4+n)
            a(f"ds_write_b128 v{vRed}, v[{d}:{d+3}] offset:{m*1024}")
    a("s_waitcnt lgkmcnt(0)\ns_barrier")
    a(f"s_mul_i32 s{sTmp}, s{sWv}, {15*1024}\nv_add_u32 v{vRed}, s{sTmp}, v{vL16}")
    RB=192
    for si in range(3):
        for m in range(5):
            a(f"ds_read_b128 v[{RB+(si*5+m)*4}:{RB+(si*5+m)*4+3}], v{vRed} offset:{(si*5+m)*1024}")
    SRO=52
    srd(a,SRO,P["out"],X_BYTES)
    for si in range(3):
        a(f"s_waitcnt lgkmcnt({10-5*si})")
        for m in range(5):
            for r in range(4):
                x=DACC+4*(m*4)+r; y=RB+(si*5+m)*4+r
                a(f"v_add_f32 v{x}, v{x}, v{y}")
    a("s_waitcnt vmcnt(0)")
    T=92
    for m in range(5):
        x0=XR+2*m; f0=DACC+16*m
        a(f"v_lshlrev_b32 v{T}, 16, v{x0}\nv_and_b32 v{T+1}, 0xffff0000, v{x0}\nv_lshlrev_b32 v{T+2}, 16, v{x0+1}\nv_and_b32 v{T+3}, 0xffff0000, v{x0+1}")
        for r in range(4): a(f"v_lshlrev_b32 v{AR+4*m+r}, 16, v{AR+4*m+r}")
        for r in range(4): a(f"v_add_f32 v{T+r}, v{T+r}, v{AR+4*m+r}")
        for p in range(2): a(f"v_cvt_pk_bf16_f32 v{T+4+p}, v{T+2*p}, v{T+2*p+1}")
        for p in range(2): a(f"v_cvt_pk_bf16_f32 v{T+6+p}, v{f0+2*p}, v{f0+2*p+1}")
        o=T+8+2*(m%2)
        for p in range(2):
            a(f"v_lshlrev_b32 v{T}, 16, v{T+4+p}\nv_and_b32 v{T+1}, 0xffff0000, v{T+4+p}\nv_lshlrev_b32 v{T+2}, 16, v{T+6+p}\nv_and_b32 v{T+3}, 0xffff0000, v{T+6+p}")
            a(f"v_add_f32 v{T}, v{T}, v{T+2}\nv_add_f32 v{T+1}, v{T+1}, v{T+3}\nv_cvt_pk_bf16_f32 v{o+p}, v{T}, v{T+1}")
        a(f"buffer_store_dwordx2 v[{o}:{o+1}], v{vXo}, s[{SRO}:{SRO+3}], 0 offen offset:{32*m}")
    lab4=a.newlabel('Lnn')
    a(f"s_cmp_lg_u32 s2, 0\ns_cbranch_scc1 {lab4}\ns_cmp_lg_u32 s{sWv}, 0\ns_cbranch_scc1 {lab4}")
    for i in range(4): a(f"v_add_u32 v{100+i}, {64*i}, v{lane}\nv_lshlrev_b32 v{100+i}, 8, v{100+i}\nv_add_u32 v{100+i}, {FL_H}, v{100+i}")
    for i in range(3): a(f"v_add_u32 v{104+i}, {64*i}, v{lane}\nv_min_u32 v{104+i}, 159, v{104+i}\nv_lshlrev_b32 v{104+i}, 6, v{104+i}\nv_add_u32 v{104+i}, {FL_A}, v{104+i}")
    if opts.get('only')!=4: poll(a, [100,101,102,103,104,105,106], 108)
    a(f"s_mov_b32 s{sTmp}, {WS_NONCE}")
    flag_store(a, sTmp, t0)
    a.label(lab4)
```

```python
from f_common import *
def ln_loads(a, sB, raw, sT, off=3, t0=4, t1=5):
    lane=1; w=2
    a(f"v_lshrrev_b32 v{t0}, 4, v{lane}")
    a(f"v_lshl_add_u32 v{t0}, v{w}, 2, v{t0}")
    a(f"s_lshl_b32 s{sT}, s{sB}, 4")
    a(f"v_add_u32 v{t0}, s{sT}, v{t0}")
    a(f"v_mul_u32_u24 v{off}, 1280, v{t0}")
    a(f"v_and_b32 v{t1}, 15, v{lane}")
    a(f"v_lshl_add_u32 v{off}, v{t1}, 4, v{off}")
    for i in range(5):
        a(f"buffer_load_dwordx4 v[{raw+4*i}:{raw+4*i+3}], v{off}, s[{SX}:{SX+3}], 0 offen offset:{256*i}")

def ln_addr(a, sW, sT, sT2, ldsb):
    lane=1; w=2; t0=4; t1=5; ldsa=10; tra=11; sto=12
    a(f"v_lshrrev_b32 v{t0}, 4, v{lane}\nv_lshl_add_u32 v{t0}, v{w}, 2, v{t0}\nv_mul_u32_u24 v{ldsa}, 1344, v{t0}")
    a(f"v_and_b32 v{t1}, 15, v{lane}\nv_lshl_add_u32 v{ldsa}, v{t1}, 4, v{ldsa}\nv_add_u32 v{ldsa}, {ldsb}, v{ldsa}")
    a(f"v_bfe_u32 v{t0}, v{lane}, 2, 2\nv_mul_u32_u24 v{tra}, 1344, v{t0}")
    a(f"v_lshrrev_b32 v{t0}, 4, v{lane}")
    a(f"v_lshl_add_u32 v{tra}, v{t0}, 5, v{tra}")
    a(f"v_and_b32 v{t1}, 3, v{lane}\nv_lshl_add_u32 v{tra}, v{t1}, 3, v{tra}")
    a(f"s_lshr_b32 s{sT}, s{sW}, 1\ns_mul_i32 s{sT}, s{sT}, {8*1344}\ns_and_b32 s{sT2}, s{sW}, 1\ns_mul_i32 s{sT2}, s{sT2}, 640\ns_add_u32 s{sT}, s{sT}, s{sT2}\ns_add_u32 s{sT}, s{sT}, {ldsb}")
    a(f"v_add_u32 v{tra}, s{sT}, v{tra}")
    a(f"v_bfe_u32 v{t1}, v{lane}, 3, 1\nv_lshl_add_u32 v{t1}, v{t0}, 1, v{t1}\nv_lshlrev_b32 v{sto}, 15, v{t1}")
    a(f"v_and_b32 v{t1}, 7, v{lane}\nv_lshl_add_u32 v{sto}, v{t1}, 4, v{sto}")
    a(f"s_lshr_b32 s{sT}, s{sW}, 1\ns_lshl_b32 s{sT}, s{sT}, 7\ns_and_b32 s{sT2}, s{sW}, 1\ns_mul_i32 s{sT2}, s{sT2}, {5*262144}\ns_add_u32 s{sT}, s{sT}, s{sT2}")
    a(f"v_add_u32 v{sto}, s{sT}, v{sto}")

def ln_compute(a, sB, raw, sT):
    lane=1; w=2; t0=4; t1=5; mu=6; rr=7; acc=8; acc2=9; ldsa=10; tra=11; sto=12; sta=13; st2=14
    X=100; outb=140
    for i in range(5):
        for r in range(4):
            a(f"v_lshlrev_b32 v{X+8*i+2*r}, 16, v{raw+4*i+r}\nv_and_b32 v{X+8*i+2*r+1}, 0xffff0000, v{raw+4*i+r}")
    a(f"v_add_f32 v{acc}, v{X}, v{X+2}\nv_add_f32 v{acc2}, v{X+1}, v{X+3}")
    for p in range(2,20): a(f"v_add_f32 v{acc}, v{acc}, v{X+2*p}\nv_add_f32 v{acc2}, v{acc2}, v{X+2*p+1}")
    def red16(r):
        for sh in (8,4,2,1): a(f"v_add_f32_dpp v{r}, v{r}, v{r} row_ror:{sh} row_mask:0xf bank_mask:0xf")
    a(f"v_add_f32 v{mu}, v{acc}, v{acc2}")
    red16(mu)
    a(f"v_mul_f32 v{mu}, {hex(0x3acccccd)}, v{mu}")
    for p in range(40): a(f"v_sub_f32 v{X+p}, v{X+p}, v{mu}")
    a(f"v_mul_f32 v{acc}, v{X}, v{X}\nv_mul_f32 v{acc2}, v{X+1}, v{X+1}")
    for p in range(1,20): a(f"v_fmac_f32 v{acc}, v{X+2*p}, v{X+2*p}\nv_fmac_f32 v{acc2}, v{X+2*p+1}, v{X+2*p+1}")
    a(f"v_add_f32 v{rr}, v{acc}, v{acc2}")
    red16(rr)
    a(f"v_mul_f32 v{rr}, {hex(0x3acccccd)}, v{rr}")
    def rbf(r): a(f"v_cvt_pk_bf16_f32 v{r}, v{r}, v{r}\nv_and_b32 v{r}, 0xffff0000, v{r}")
    rbf(rr); a(f"v_add_f32 v{rr}, {hex(0x3727c5ac)}, v{rr}"); rbf(rr)
    a(f"v_sqrt_f32 v{rr}, v{rr}"); rbf(rr); a(f"v_rcp_f32 v{rr}, v{rr}")
    a(f"v_cvt_pk_bf16_f32 v{acc}, v{mu}, v{mu}\nv_and_b32 v{acc}, 0xffff0000, v{acc}\nv_xor_b32 v{acc}, 0x80000000, v{acc}")
    a(f"v_mov_b32 v{acc2}, v{rr}")
    a(f"v_lshrrev_b32 v{t0}, 4, v{lane}\nv_lshl_add_u32 v{t0}, v{w}, 2, v{t0}\nv_lshlrev_b32 v{sta}, 3, v{t0}")
    a(f"s_lshl_b32 s{sT}, s{sB}, 7\ns_add_u32 s{sT}, s{sT}, {WS_STATS}")
    a(f"s_mov_b32 exec_lo, 0x00010001\ns_mov_b32 exec_hi, 0x00010001")
    a(f"buffer_store_dwordx2 v[{acc}:{acc+1}], v{sta}, s[{SWS}:{SWS+3}], s{sT} offen sc1")
    a("s_mov_b64 exec, -1")
    for p in range(40): a(f"v_mul_f32 v{X+p}, v{X+p}, v{rr}")
    for i in range(5):
        for r in range(4): a(f"v_cvt_pk_bf16_f32 v{raw+4*i+r}, v{X+8*i+2*r}, v{X+8*i+2*r+1}")
        a(f"ds_write_b128 v{ldsa}, v[{raw+4*i}:{raw+4*i+3}] offset:{256*i}")
    a("s_waitcnt lgkmcnt(0)\ns_barrier")
    for i in range(5):
        for q in range(2):
            a(f"ds_read_b64_tr_b16 v[{outb+4*i+2*q}:{outb+4*i+2*q+1}], v{tra} offset:{q*4*1344+i*128}")
    a(f"s_lshl_b32 s{sT}, s{sB}, 8\nv_add_u32 v{st2}, s{sT}, v{sto}")
    for i in range(5):
        a(f"s_waitcnt lgkmcnt({8-2*i})")
        a(f"s_mov_b32 s{sT}, {WS_XNT+i*262144}")
        a(f"buffer_store_dwordx4 v[{outb+4*i}:{outb+4*i+3}], v{st2}, s[{SWS}:{SWS+3}], s{sT} offen sc1")
```

```python
from f_common import *
def ln8_loads(a, sLam, vb, sb):
    lane=1; t0=2; t1=3
    off=vb; raw=[vb+2,vb+6,vb+10]
    sM=sb
    a(f"v_lshrrev_b32 v{t0}, 5, v0")
    a(f"s_lshl_b32 s{sb+2}, s{sLam}, 3")
    a(f"v_add_u32 v{t1}, s{sb+2}, v{t0}")
    a(f"v_mul_u32_u24 v{off}, 1280, v{t1}")
    a(f"v_and_b32 v{t1}, 31, v0")
    a(f"v_lshl_add_u32 v{off}, v{t1}, 4, v{off}")
    a(f"s_mov_b32 s{sM}, 0x0000ffff\ns_mov_b32 s{sM+1}, 0x0000ffff")
    for r in range(4): a(f"v_mov_b32 v{raw[2]+r}, 0")
    a(f"buffer_load_dwordx4 v[{raw[0]}:{raw[0]+3}], v{off}, s[{SX}:{SX+3}], 0 offen")
    a(f"buffer_load_dwordx4 v[{raw[1]}:{raw[1]+3}], v{off}, s[{SX}:{SX+3}], 0 offen offset:512")
    a(f"s_mov_b64 exec, s[{sM}:{sM+1}]")
    a(f"buffer_load_dwordx4 v[{raw[2]}:{raw[2]+3}], v{off}, s[{SX}:{SX+3}], 0 offen offset:1024")
    a(f"s_mov_b64 exec, -1")

def ln8_compute(a, sLam, sWv, vb, sb, ldsbase):
    lane=1; t0=2; t1=3
    raw=[vb+2,vb+6,vb+10]
    mu=vb+14; acc=vb+16; rr=vb+18; ldsa=vb+20; tra=vb+21; sto=vb+22; sta=vb+23
    Xr=vb+24; outb=vb+48
    sM=sb
    assert vb%2==0
    a(f"v_lshrrev_b32 v{t0}, 5, v0\nv_mul_u32_u24 v{ldsa}, 1344, v{t0}\nv_lshlrev_b32 v{sta}, 3, v{t0}")
    a(f"v_and_b32 v{t1}, 31, v0\nv_lshl_add_u32 v{ldsa}, v{t1}, 4, v{ldsa}\nv_add_u32 v{ldsa}, {ldsbase}, v{ldsa}")
    for i in range(3):
        for r in range(4):
            a(f"v_lshlrev_b32 v{Xr+8*i+2*r}, 16, v{raw[i]+r}\nv_and_b32 v{Xr+8*i+2*r+1}, 0xffff0000, v{raw[i]+r}")
    a(f"v_pk_add_f32 v[{acc}:{acc+1}], v[{Xr}:{Xr+1}], v[{Xr+2}:{Xr+3}]")
    for p in range(2,12): a(f"v_pk_add_f32 v[{acc}:{acc+1}], v[{acc}:{acc+1}], v[{Xr+2*p}:{Xr+2*p+1}]")
    def reduce32(r, tmp):
        for sh in (8,4,2,1): a(f"v_add_f32_dpp v{r}, v{r}, v{r} row_ror:{sh} row_mask:0xf bank_mask:0xf")
        a(f"v_mov_b32 v{tmp}, v{r}\nv_permlane16_swap_b32 v{r}, v{tmp}\nv_add_f32 v{r}, v{r}, v{tmp}")
    a(f"v_add_f32 v{mu}, v{acc}, v{acc+1}")
    reduce32(mu, t0)
    a(f"v_mul_f32 v{mu}, {hex(0x3acccccd)}, v{mu}")
    for p in range(8):
        a(f"v_pk_add_f32 v[{Xr+2*p}:{Xr+2*p+1}], v[{Xr+2*p}:{Xr+2*p+1}], v[{mu}:{mu+1}] op_sel_hi:[1,0] neg_lo:[0,1] neg_hi:[0,1]")
    a(f"s_mov_b64 exec, s[{sM}:{sM+1}]")
    for p in range(8,12):
        a(f"v_pk_add_f32 v[{Xr+2*p}:{Xr+2*p+1}], v[{Xr+2*p}:{Xr+2*p+1}], v[{mu}:{mu+1}] op_sel_hi:[1,0] neg_lo:[0,1] neg_hi:[0,1]")
    a(f"s_mov_b64 exec, -1")
    a(f"v_pk_mul_f32 v[{acc}:{acc+1}], v[{Xr}:{Xr+1}], v[{Xr}:{Xr+1}]")
    for p in range(1,12): a(f"v_pk_fma_f32 v[{acc}:{acc+1}], v[{Xr+2*p}:{Xr+2*p+1}], v[{Xr+2*p}:{Xr+2*p+1}], v[{acc}:{acc+1}]")
    a(f"v_add_f32 v{rr}, v{acc}, v{acc+1}")
    reduce32(rr, t0)
    a(f"v_mul_f32 v{rr}, {hex(0x3acccccd)}, v{rr}")
    def rbf(r): a(f"v_cvt_pk_bf16_f32 v{r}, v{r}, v{r}\nv_and_b32 v{r}, 0xffff0000, v{r}")
    rbf(rr); a(f"v_add_f32 v{rr}, {hex(0x3727c5ac)}, v{rr}"); rbf(rr)
    a(f"v_sqrt_f32 v{rr}, v{rr}"); rbf(rr); a(f"v_rcp_f32 v{rr}, v{rr}")
    for p in range(12):
        a(f"v_pk_mul_f32 v[{Xr+2*p}:{Xr+2*p+1}], v[{Xr+2*p}:{Xr+2*p+1}], v[{rr}:{rr+1}] op_sel_hi:[1,0]")
    for i in range(3):
        for r in range(4): a(f"v_cvt_pk_bf16_f32 v{raw[i]+r}, v{Xr+8*i+2*r}, v{Xr+8*i+2*r+1}")
    a(f"ds_write_b128 v{ldsa}, v[{raw[0]}:{raw[0]+3}]\nds_write_b128 v{ldsa}, v[{raw[1]}:{raw[1]+3}] offset:512")
    a(f"s_mov_b64 exec, s[{sM}:{sM+1}]")
    a(f"ds_write_b128 v{ldsa}, v[{raw[2]}:{raw[2]+3}] offset:1024")
    a(f"s_mov_b64 exec, -1")
    a(f"v_cvt_pk_bf16_f32 v{acc}, v{mu}, v{mu}\nv_and_b32 v{acc}, 0xffff0000, v{acc}\nv_xor_b32 v{acc}, 0x80000000, v{acc}\nv_mov_b32 v{acc+1}, v{rr}")
    a(f"s_lshl_b32 s{sb+2}, s{sLam}, 6\ns_add_u32 s{sb+2}, s{sb+2}, {WS_STATS}")
    a(f"s_mov_b32 exec_lo, 1\ns_mov_b32 exec_hi, 1")
    a(f"buffer_store_dwordx2 v[{acc}:{acc+1}], v{sta}, s[{SWS}:{SWS+3}], s{sb+2} offen sc1")
    a("s_mov_b64 exec, -1")
    a(f"v_bfe_u32 v{t0}, v{lane}, 2, 2\nv_mul_u32_u24 v{tra}, 1344, v{t0}\nv_lshrrev_b32 v{t0}, 4, v{lane}\nv_lshl_add_u32 v{tra}, v{t0}, 5, v{tra}")
    a(f"v_and_b32 v{t1}, 3, v{lane}\nv_lshl_add_u32 v{tra}, v{t1}, 3, v{tra}\ns_lshl_b32 s{sb+2}, s{sWv}, 7\ns_add_u32 s{sb+2}, s{sb+2}, {ldsbase}\nv_add_u32 v{tra}, s{sb+2}, v{tra}")
    a(f"v_bfe_u32 v{t1}, v{lane}, 3, 1\nv_lshl_add_u32 v{t1}, v{t0}, 1, v{t1}\nv_lshlrev_b32 v{sto}, 15, v{t1}\nv_and_b32 v{t1}, 7, v{lane}\nv_lshl_add_u32 v{sto}, v{t1}, 4, v{sto}")
    a(f"s_lshl_b32 s{sb+2}, s{sLam}, 7\ns_lshl_b32 s{sb+3}, s{sWv}, 18\ns_add_u32 s{sb+2}, s{sb+2}, s{sb+3}\nv_add_u32 v{sto}, s{sb+2}, v{sto}")
    a("s_waitcnt lgkmcnt(0)\ns_barrier")
    for j in range(3):
        for q in range(2):
            a(f"ds_read_b64_tr_b16 v[{outb+4*j+2*q}:{outb+4*j+2*q+1}], v{tra} offset:{q*5376+j*512}")
    for j in range(3):
        a(f"s_waitcnt lgkmcnt({4-2*j})")
        a(f"s_mov_b32 s{sb+2}, {WS_XNT+j*4*262144}")
        a(f"buffer_store_dwordx4 v[{outb+4*j}:{outb+4*j+3}], v{sto}, s[{SWS}:{SWS+3}], s{sb+2} offen sc1")
    return 4
```

```python
from f_common import *
TBL=18432
ROW=288
KN_OFF=[0, 32448, 36864, 69312]
U_OFF=4416
R_OFF=[U_OFF+18432, 41280, 41280+8448, 41280+2*8448]
RC=2112
LOG2E=0x3fb8aa3b
INV2PI=0x3e22f983

USEPK=0
def cmul(a, d, x, w):
    if USEPK:
        a(f"v_pk_mul_f32 v[{d}:{d+1}], v[{x}:{x+1}], v[{w}:{w+1}] op_sel:[0,0] op_sel_hi:[0,1]")
        a(f"v_pk_fma_f32 v[{d}:{d+1}], v[{x}:{x+1}], v[{w}:{w+1}], v[{d}:{d+1}] op_sel:[1,1,0] op_sel_hi:[1,0,1] neg_lo:[0,1,0]")
    else:
        a(f"v_mul_f32 v{d}, v{x}, v{w}")
        a(f"v_mul_f32 v{d+1}, v{x}, v{w+1}")
        a(f"v_fma_f32 v{d}, -v{x+1}, v{w+1}, v{d}")
        a(f"v_fma_f32 v{d+1}, v{x+1}, v{w}, v{d+1}")

def emit_ssm(a, S_, opts, st=' sc1', ld=' sc1', sb=64):
    global USEPK
    USEPK=opts.get('kpk',0)
    if opts.get('prio'): a("s_setprio 3")
    st_=S_; sQ=46; sPtrDt=P['logdt']; sPtrD=P['Dskip']
    SP=dict(logA=48,Aim=52,Cre=56,Cim=60)
    a(f's_sub_u32 s{sQ}, s2, 256')
    for n_ in SP: srd(a,SP[n_],P[n_],D*N*2)
    S=st_ if st_ else (lambda i: None)
    sWv=sb; sCh=sb+1; sTmp=sb+2; sTmp2=sb+3; sDt=sb+4; sD=sb+5; sTb=sb+6; sCnt=sb+7; sPo=sb+8; sKn=sb+9; sR=sb+10; sMask=sb+12; sBf=sb+14
    lane=1; t0=2; t1=3; vP=238; vTw=5; vTrA=6; vTrB=7
    a(f"v_and_b32 v{lane}, 63, v0")
    a(f"v_lshrrev_b32 v{t0}, 6, v0")
    a(f"v_readfirstlane_b32 s{sWv}, v{t0}")
    a(f"s_lshl_b32 s{sCh}, s{sQ}, 2")
    a(f"s_add_u32 s{sCh}, s{sCh}, s{sWv}")
    a(f"s_lshr_b32 s{sTmp}, s{sCh}, 1\ns_lshl_b32 s{sTmp}, s{sTmp}, 2")
    a(f"s_load_dword s{sDt}, s[{sPtrDt}:{sPtrDt+1}], s{sTmp}")
    a(f"s_load_dword s{sD}, s[{sPtrD}:{sPtrD+1}], s{sTmp}")
    PR=240
    a(f"s_mul_i32 s{sPo}, s{sCh}, 384")
    a(f"v_lshlrev_b32 v{vP}, 1, v{lane}")
    for p in range(3):
        for i,nm in enumerate(("logA","Aim","Cre","Cim")):
            a(f"buffer_load_ushort v{PR+4*p+i}, v{vP}, s[{SP[nm]}:{SP[nm]+3}], s{sPo} offen offset:{128*p}")
    nonce_load(a)
    NT=1+(k_touch(a, sWv, lane, 24, 235) if opts.get('ktouch',1) else 0)
    if opts.get('prio'): a(f"s_setprio {opts.get('sprio',1)}")
    a(f"s_mul_i32 s{sTb}, s{sWv}, {TBL}")
    a(f"v_mul_u32_u24 v{vTw}, {ROW}, v{lane}")
    a(f"v_add_u32 v{vTw}, s{sTb}, v{vTw}")
    a(f"v_bfe_u32 v{t0}, v{lane}, 4, 1")
    a(f"v_lshlrev_b32 v{t0}, 2, v{t0}")
    a(f"v_bfe_u32 v{t1}, v{lane}, 2, 2")
    a(f"v_add_u32 v{t0}, v{t0}, v{t1}")
    a(f"v_mul_u32_u24 v{vTrA}, {ROW}, v{t0}")
    a(f"v_and_b32 v{t1}, 3, v{lane}")
    a(f"v_lshl_add_u32 v{vTrA}, v{t1}, 3, v{vTrA}")
    a(f"v_add_u32 v{vTrA}, s{sTb}, v{vTrA}")
    a(f"v_lshrrev_b32 v{t0}, 5, v{lane}")
    a(f"v_mul_u32_u24 v{t1}, 32, v{t0}")
    a(f"v_add_u32 v{vTrB}, v{vTrA}, v{t1}")
    a(f"v_add_u32 v{vTrB}, 192, v{vTrB}")
    a(f"v_mul_u32_u24 v{t1}, 96, v{t0}")
    a(f"v_add_u32 v{vTrA}, v{vTrA}, v{t1}")
    vDt=20; vDs=21
    a("s_waitcnt lgkmcnt(0)")
    a(f"s_and_b32 s{sTmp}, s{sCh}, 1\ns_lshl_b32 s{sTmp}, s{sTmp}, 4")
    a(f"s_lshr_b32 s{sDt}, s{sDt}, s{sTmp}\ns_lshl_b32 s{sDt}, s{sDt}, 16")
    a(f"s_lshr_b32 s{sD}, s{sD}, s{sTmp}\ns_lshl_b32 s{sD}, s{sD}, 16")
    a(f"v_mov_b32 v{vDt}, s{sDt}")
    a(f"v_mul_f32 v{vDt}, {hex(LOG2E)}, v{vDt}")
    a(f"v_exp_f32 v{vDt}, v{vDt}")
    a(f"v_cvt_pk_bf16_f32 v{vDt}, v{vDt}, v{vDt}")
    a(f"v_and_b32 v{vDt}, 0xffff0000, v{vDt}")
    KACC=24
    for r in range(12): a(f"v_mov_b32 v{KACC+r}, 0")
    CUR=36
    AR=40; TH=41; Z1=42; Z8=44; Z128=46; M=48; TT=49
    H=52
    S1=84
    S2=100
    S3=116
    Lr=136
    PK=172
    FR=204
    a(f"s_waitcnt vmcnt({NT})")
    S(1)
    a(f"s_mov_b32 s{sCnt}, 3")
    lab=a.newlabel('Lkg'); a.label(lab)
    for i in range(4): a(f"v_lshlrev_b32 v{CUR+i}, 16, v{PR+i}")
    for i in range(8): a(f"v_mov_b32 v{PR+i}, v{PR+4+i}")
    a(f"v_mul_f32 v{AR}, {hex(LOG2E)}, v{CUR}")
    a(f"v_exp_f32 v{AR}, v{AR}")
    a(f"v_cvt_pk_bf16_f32 v{AR}, v{AR}, v{AR}")
    a(f"v_and_b32 v{AR}, 0xffff0000, v{AR}")
    a(f"v_mul_f32 v{AR}, v{AR}, v{vDt}")
    a(f"v_mul_f32 v{AR}, {hex(LOG2E|0x80000000)}, v{AR}")
    a(f"v_mul_f32 v{TH}, v{CUR+1}, v{vDt}")
    a(f"v_mul_f32 v{TH}, {hex(INV2PI)}, v{TH}")
    def zpow(dst, mult):
        if mult==1:
            a(f"v_exp_f32 v{M}, v{AR}")
            a(f"v_fract_f32 v{TT}, v{TH}")
        else:
            a(f"v_mul_f32 v{M}, {float(mult)}, v{AR}" if mult in (2,4) else f"v_mul_f32 v{M}, {hex(0x41000000)}, v{AR}")
            a(f"v_exp_f32 v{M}, v{M}")
            a(f"v_mul_f32 v{TT}, {hex(0x41000000)}, v{TH}")
            a(f"v_fract_f32 v{TT}, v{TT}")
        a(f"v_cos_f32 v{dst}, v{TT}")
        a(f"v_sin_f32 v{dst+1}, v{TT}")
        a(f"v_mul_f32 v{dst}, v{M}, v{dst}")
        a(f"v_mul_f32 v{dst+1}, v{M}, v{dst+1}")
    zpow(Z1,1); zpow(Z8,8)
    a(f"v_add_f32 v{M}, v{vDt}, v{vDt}")
    a(f"v_mul_f32 v{H}, v{CUR+2}, v{M}")
    a(f"v_mul_f32 v{H+1}, v{CUR+3}, v{M}")
    a(f"v_mov_b32 v{Lr}, 1.0\nv_mov_b32 v{Lr+1}, 0")
    a(f"v_mov_b32 v{Lr+2}, v{Z8}\nv_mov_b32 v{Lr+3}, v{Z8+1}")
    for j in range(2,17):
        cmul(a, Lr+2*j, Lr+2*(j-1), Z8)
        if j<=8:
            r=j-1
            cmul(a, H+2*r, H+2*(r-1), Z1)
    z128=Lr+32
    for r in range(8): cmul(a, H+2*(8+r), H+2*r, z128)
    for r in range(4): cmul(a, S1+2*r, H+2*(8+2*r), z128)
    for r in range(4): cmul(a, S1+2*(4+r), S1+2*r, z128)
    cmul(a, S2, S1+8, z128); cmul(a, S2+2, S1+8+4, z128)
    for i in range(1,4):
        for r in range(2): cmul(a, S2+4*i+2*r, S2+4*(i-1)+2*r, z128)
    cmul(a, S3, S2+12, z128)
    for i in range(1,9): cmul(a, S3+2*i, S3+2*(i-1), z128)
    a(f"v_mov_b32 v{S3+18}, 0\nv_mov_b32 v{S3+19}, 0")
    rows=[H+2*i for i in range(16)]+[S1+2*i for i in range(8)]+[S2+2*i for i in range(8)]+[S3+2*i for i in range(10)]
    pk=0
    def flush(regs, off):
        pass
    nchunk=0
    def write_plane(vals, im, neg, off0):
        nonlocal nchunk
        n=len(vals)
        for c0 in range(0,n,8):
            part=vals[c0:c0+8]
            base=PK+4*(nchunk%8); nchunk+=1
            cnt=(len(part)+1)//2
            for p in range(cnt):
                x=part[2*p]+im; y=part[2*p+1]+im
                if neg: a(f"v_cvt_pk_bf16_f32 v{base+p}, -v{x}, -v{y}")
                else: a(f"v_cvt_pk_bf16_f32 v{base+p}, v{x}, v{y}")
            if cnt==4: a(f"ds_write_b128 v{vTw}, v[{base}:{base+3}] offset:{off0+c0*2}")
            elif cnt==1: a(f"ds_write_b32 v{vTw}, v{base} offset:{off0+c0*2}")
            else: raise ValueError(cnt)
    write_plane(rows,0,False,0)
    write_plane(rows,1,True,96)
    Lrows=[Lr+2*j for j in range(16)]
    write_plane(Lrows,0,False,192)
    write_plane(Lrows,1,False,224)
    a("s_waitcnt lgkmcnt(0)")
    FB=52
    for s_ in range(4):
        fb=FB+16*s_
        for q in range(2):
            a(f"ds_read_b64_tr_b16 v[{fb+12+2*q}:{fb+12+2*q+1}], v{vTrB} offset:{(16*s_+8*q)*ROW}")
        for t in range(3):
            for q in range(2):
                a(f"ds_read_b64_tr_b16 v[{fb+4*t+2*q}:{fb+4*t+2*q+1}], v{vTrA} offset:{(16*s_+8*q)*ROW+32*t}")
    for s_ in range(4):
        fb=FB+16*s_
        a(f"s_waitcnt lgkmcnt({min(15,8*(3-s_))})")
        for t in range(3):
            a(f"v_mfma_f32_16x16x32_bf16 v[{KACC+4*t}:{KACC+4*t+3}], v[{fb+4*t}:{fb+4*t+3}], v[{fb+12}:{fb+15}], v[{KACC+4*t}:{KACC+4*t+3}]")
    a(f"s_sub_u32 s{sCnt}, s{sCnt}, 1")
    a(f"s_cmp_lg_u32 s{sCnt}, 0")
    a("s_nop 4")
    a(f"s_cbranch_scc1 {lab}")
    S(2)
    for w in range(4):
        pass
    a(f"s_mov_b32 s{sKn}, {KN_OFF[0]}\ns_mov_b32 s{sR}, {R_OFF[0]}")
    for w in range(1,4):
        a(f"s_cmp_eq_u32 s{sWv}, {w}\ns_cselect_b32 s{sKn}, {KN_OFF[w]}, s{sKn}\ns_cselect_b32 s{sR}, {R_OFF[w]}, s{sR}")
    vJ=36; vG=37; vK=38; vK2=39; B=40
    a(f"v_and_b32 v{vJ}, 15, v{lane}")
    a(f"v_lshrrev_b32 v{vG}, 4, v{lane}")
    a(f"v_lshlrev_b32 v{vK}, 2, v{lane}")
    a(f"v_add_u32 v{vK}, s{sKn}, v{vK}")
    a(f"v_mov_b32 v{B}, 0")
    a(f"s_mov_b64 s[{sMask}:{sMask+1}], 0xfff")
    a(f"s_mov_b64 exec, s[{sMask}:{sMask+1}]")
    a(f"ds_write_b32 v{vK}, v{B}")
    a(f"s_mov_b64 exec, -1")
    a(f"v_lshlrev_b32 v{vK}, 4, v{vJ}")
    a(f"v_add_u32 v{vK}, s{sKn}, v{vK}")
    a(f"v_add_u32 v{vK}, 48, v{vK}")
    T2=KACC+8
    a(f"v_lshlrev_b32 v{vK2}, 10, v{vG}")
    a(f"v_add_u32 v{vK2}, v{vK}, v{vK2}")
    a(f"v_add_u32 v{vK2}, 2048, v{vK2}")
    a(f"v_and_b32 v{t0}, 1, v{vJ}")
    a(f"v_lshlrev_b32 v{t0}, 3, v{t0}")
    a(f"v_sub_u32 v{t1}, v{vK2}, v{t0}")
    for r in range(4):
        a(f"v_cvt_pk_bf16_f32 v{B+2*r}, v{T2+r}, v{T2+r}")
        a(f"v_mov_b32 v{B+2*r+1}, v{B+2*r}")
    def seg3(r):
        a(f"ds_write_b64 v{vK2}, v[{B+2*r}:{B+2*r+1}] offset:{r*256}")
    a(f"v_subrev_u32 v{vK2}, 8, v{vK2}")
    for r in range(4):
        a(f"s_mov_b64 exec, {hex(0x1ffffffff) if r==0 else hex(0xffffffff)}" if False else f"s_mov_b32 exec_lo, -1\ns_mov_b32 exec_hi, {1 if r==0 else 0}")
        a(f"ds_write_b64 v{vK2}, v[{B+2*r}:{B+2*r+1}] offset:{r*256}")
        a(f"ds_write_b64 v{vK2}, v[{B+2*r}:{B+2*r+1}] offset:{r*256+8}")
    for r in range(4):
        a(f"s_mov_b32 exec_lo, -1\ns_mov_b32 exec_hi, {1 if r==0 else 0}")
        a(f"ds_write_b16 v{t1}, v{B+2*r} offset:{r*256+8}")
    a("s_mov_b64 exec, -1")
    T1=KACC+4
    a(f"v_subrev_u32 v{t0}, 2, v{vG}")
    a(f"v_lshlrev_b32 v{t0}, 9, v{t0}")
    a(f"v_add_u32 v{vK2}, v{vK}, v{t0}")
    a(f"v_add_u32 v{vK2}, {1024-4}, v{vK2}")
    a(f"s_mov_b32 exec_lo, 0\ns_mov_b32 exec_hi, -1")
    for b in range(2):
        v0_=T1+2*b; v1_=T1+2*b+1
        a(f"v_cvt_pk_bf16_f32 v{B}, v{v0_}, v{v0_}")
        a(f"v_cvt_pk_bf16_f32 v{B+1}, v{v0_}, v{v1_}")
        a(f"v_cvt_pk_bf16_f32 v{B+2}, v{v1_}, v{v1_}")
        a(f"ds_write_b32 v{vK2}, v{B} offset:{b*256}")
        a(f"ds_write_b64 v{vK2}, v[{B}:{B+1}] offset:{b*256+4}")
        a(f"ds_write_b32 v{vK2}, v{B+2} offset:{b*256+12}")
        a("s_nop 1")
    a(f"s_mov_b32 exec_lo, -1\ns_mov_b32 exec_hi, 0")
    a(f"v_lshlrev_b32 v{t0}, 8, v{vG}")
    a(f"v_add_u32 v{vK2}, v{vK}, v{t0}")
    a(f"v_add_u32 v{vK2}, {512-2}, v{vK2}")
    a(f"v_cvt_pk_bf16_f32 v{B}, v{T1}, v{T1}")
    a(f"v_cvt_pk_bf16_f32 v{B+1}, v{T1+1}, v{T1+2}")
    a(f"v_cvt_pk_bf16_f32 v{B+2}, v{T1+2}, v{T1+2}")
    a(f"v_cvt_pk_bf16_f32 v{B+3}, v{T1+3}, v{T1+3}")
    a(f"ds_write_b16 v{vK2}, v{B}")
    a(f"v_add_u32 v{vK2}, 2, v{vK2}")
    a(f"ds_write_b64 v{vK2}, v[{B}:{B+1}]")
    a(f"ds_write_b32 v{vK2}, v{B+2} offset:8")
    a(f"ds_write_b16 v{vK2}, v{B+3} offset:12")
    a("s_mov_b64 exec, -1")
    a(f"v_lshrrev_b32 v{t0}, 1, v{vG}")
    a(f"v_lshlrev_b32 v{t0}, 8, v{t0}")
    a(f"v_add_u32 v{vK2}, v{vK}, v{t0}")
    a(f"v_and_b32 v{t0}, 1, v{vG}")
    a(f"v_lshl_add_u32 v{vK2}, v{t0}, 3, v{vK2}")
    a(f"v_cvt_pk_bf16_f32 v{B+4}, v{KACC}, v{KACC+1}")
    a(f"v_cvt_pk_bf16_f32 v{B+5}, v{KACC+2}, v{KACC+3}")
    a(f"ds_write_b64 v{vK2}, v[{B+4}:{B+5}]")
    a("s_waitcnt lgkmcnt(0)")
    a("s_barrier")
    S(3)
    vU=36
    a(f"v_lshlrev_b32 v{t0}, 3, v0")
    a(f"v_mov_b32 v{B}, 0\nv_mov_b32 v{B+1}, 0")
    a(f"ds_write_b64 v{t0}, v[{B}:{B+1}] offset:{U_OFF}")
    a("s_waitcnt vmcnt(0)")
    nonce_ready(a)
    if opts.get('prio'): a("s_setprio 0")
    if opts.get('ln8'):
        a(f"v_lshlrev_b32 v{B+4}, 6, v0\nv_add_u32 v{B+4}, {FL_LN}, v{B+4}")
    else:
        a(f"v_and_b32 v{B+4}, 31, v0\ns_lshl_b32 s{sTmp}, s{sWv}, 5\nv_add_u32 v{B+4}, s{sTmp}, v{B+4}\nv_lshlrev_b32 v{B+4}, 6, v{B+4}\nv_add_u32 v{B+4}, {FL_LN}, v{B+4}")
    poll(a, [B+4], B+6, mask=(0xffffffff,0) if not opts.get('ln8') else None, sleep=opts.get('slp',8))
    a("s_barrier")
    a(f"v_lshrrev_b32 v{t0}, 2, v{lane}")
    a(f"v_lshlrev_b32 v{vU}, 7, v{t0}")
    a(f"v_bfe_u32 v{t0}, v{lane}, 4, 2")
    a(f"v_and_b32 v{t1}, 3, v{lane}")
    a(f"v_xor_b32 v{t0}, v{t0}, v{t1}")
    a(f"v_lshl_add_u32 v{vU}, v{t0}, 4, v{vU}")
    a(f"s_lshr_b32 s{sTmp}, s{sQ}, 1\ns_lshl_b32 s{sTmp}, s{sTmp}, 15")
    a(f"s_and_b32 s{sTmp2}, s{sQ}, 1\ns_lshl_b32 s{sTmp2}, s{sTmp2}, 6\ns_add_u32 s{sTmp}, s{sTmp}, s{sTmp2}")
    a(f"s_lshl_b32 s{sTmp2}, s{sWv}, 13\ns_add_u32 s{sTmp}, s{sTmp}, s{sTmp2}")
    if WS_XNT: a(f"s_add_u32 s{sTmp}, s{sTmp}, {WS_XNT}")
    a(f"s_lshl_b32 s{sTmp2}, s{sWv}, 12\ns_add_u32 s{sTmp2}, s{sTmp2}, {U_OFF+2048}")
    for i in range(4):
        a(f"s_add_u32 m0, s{sTmp2}, {i*1024}")
        a(f"buffer_load_dwordx4 v{vU}, s[{SWS}:{SWS+3}], s{sTmp} offen{ld} lds")
        if i<3: a(f"s_add_u32 s{sTmp}, s{sTmp}, 2048")
    CACC=24
    for r in range(32): a(f"v_mov_b32 v{CACC+r}, 0")
    vAa=56; vBa=[57,58,59,60]; vRw=61; vKr=62
    AF=64
    BF=96
    vb_=184; vg_=185
    a(f"v_and_b32 v{vb_}, 15, v{lane}")
    a(f"v_lshrrev_b32 v{vg_}, 4, v{lane}")
    a(f"v_and_b32 v{t0}, 3, v{vb_}")
    a(f"v_mul_u32_u24 v{vAa}, {RC}, v{t0}")
    a(f"v_lshrrev_b32 v{t0}, 2, v{vb_}")
    a(f"v_lshlrev_b32 v{t0}, 3, v{t0}")
    a(f"v_sub_u32 v{vAa}, v{vAa}, v{t0}")
    a(f"v_lshrrev_b32 v{t0}, 1, v{vg_}")
    a(f"v_lshlrev_b32 v{t0}, 5, v{t0}")
    a(f"v_sub_u32 v{vAa}, v{vAa}, v{t0}")
    a(f"v_and_b32 v{t0}, 1, v{vg_}")
    a(f"v_lshl_add_u32 v{vAa}, v{t0}, 4, v{vAa}")
    a(f"v_add_u32 v{vAa}, s{sR}, v{vAa}")
    a(f"v_lshlrev_b32 v{t0}, 1, v{vb_}")
    a(f"v_add_u32 v{t0}, 32, v{t0}")
    a(f"v_and_b32 v{t1}, 1, v{vg_}")
    a(f"v_add_u32 v{t0}, v{t0}, v{t1}")
    a(f"v_and_b32 v{t1}, 2, v{vg_}")
    a(f"v_sub_u32 v{t0}, v{t0}, v{t1}")
    for rm in range(4):
        a(f"v_lshrrev_b32 v{t1}, 2, v{t0}")
        a(f"v_subrev_u32 v{t1}, {rm}, v{t1}")
        a(f"v_and_b32 v{t1}, 3, v{t1}")
        a(f"v_xor_b32 v{t1}, s{sWv}, v{t1}")
        a(f"v_lshlrev_b32 v{t1}, 4, v{t1}")
        a(f"v_lshl_add_u32 v{vBa[rm]}, v{t0}, 6, v{t1}")
        a(f"v_add_u32 v{vBa[rm]}, {U_OFF-256*7}, v{vBa[rm]}")
    a(f"v_lshlrev_b32 v{vRw}, 4, v{lane}")
    a(f"v_add_u32 v{vRw}, s{sR}, v{vRw}")
    vL16=63
    a(f"v_lshlrev_b32 v{vL16}, 4, v{lane}")
    a(f"s_mov_b32 s{sBf}, 0xffff")
    RB=160
    def build_R(ps):
        M0=127 if ps==0 else 255
        for rd in range(3):
            if rd==2:
                a(f"s_mov_b32 exec_lo, 3\ns_mov_b32 exec_hi, 0")
            off=40+16*(M0-64*rd)
            a(f"s_add_u32 s{sTmp}, s{sKn}, {off}")
            a(f"v_sub_u32 v{vKr}, s{sTmp}, v{vL16}")
            p=RB
            a(f"ds_read_b64 v[{p}:{p+1}], v{vKr}")
            a(f"ds_read_b128 v[{p+2}:{p+5}], v{vKr} offset:8")
            a("s_waitcnt lgkmcnt(0)")
            o=RB+8
            for mu_ in range(4):
                a(f"v_bfi_b32 v{o+mu_}, s{sBf}, v{p+4-mu_}, v{p+3-mu_}")
                a(f"v_alignbit_b32 v{o+4+mu_}, v{p+4-mu_}, v{p+4-mu_}, 16")
                a(f"v_bfi_b32 v{o+8+mu_}, s{sBf}, v{p+5-mu_}, v{p+4-mu_}")
                a(f"v_alignbit_b32 v{o+12+mu_}, v{p+5-mu_}, v{p+5-mu_}, 16")
            for sg in range(4):
                a(f"ds_write_b128 v{vRw}, v[{o+4*sg}:{o+4*sg+3}] offset:{sg*RC+1024*rd}")
            if rd==2: a("s_mov_b64 exec, -1")
        a("s_waitcnt lgkmcnt(0)")
    def conv_pass(ps):
        nB=8-4*ps
        def rdA(rho,setp):
            out=[]
            for il in range(4):
                kl=rho+8*il
                for hf in range(2):
                    r=AF+16*setp+4*il+2*hf
                    out.append(f"ds_read_b64 v[{r}:{r+1}], v{vAa} offset:{2040-64*kl+8*hf}")
            return out
        def rdB(rho,setp):
            out=[]
            for tau in range(nB):
                r=BF+32*setp+4*tau
                out.append(f"ds_read_b128 v[{r}:{r+3}], v{vBa[rho%4]} offset:{2048*tau+256*(7-rho)}")
            return out
        for x in rdA(0,0)+rdB(0,0): a(x)
        for rho in range(8):
            sp=rho%2
            a("s_waitcnt lgkmcnt(0)")
            nxt=(rdA(rho+1,1-sp)+rdB(rho+1,1-sp)) if rho<7 else []
            ms=[]
            for il in range(4):
                i=il+4*ps
                for tau in range(nB):
                    t=i+tau
                    if t>7: continue
                    ms.append((t,il,tau))
            ni=0
            for n,(t,il,tau) in enumerate(ms):
                d=CACC+4*t; A_=AF+16*sp+4*il; B_=BF+32*sp+4*tau
                a(f"v_mfma_f32_16x16x32_bf16 v[{d}:{d+3}], v[{A_}:{A_+3}], v[{B_}:{B_+3}], v[{d}:{d+3}]")
                k=-(-len(nxt)//len(ms)) if n<len(ms) else 0
                for _ in range(k):
                    if ni<len(nxt): a(nxt[ni]); ni+=1
    build_R(0)
    a("s_waitcnt vmcnt(0) lgkmcnt(0)")
    a("s_barrier")
    if opts.get('gate',1):
        a(f"s_lshl_b32 s{sTmp}, s{sQ}, 6\ns_add_u32 s{sTmp}, s{sTmp}, {FL_UD}\nv_mov_b32 v{RB}, s{sTmp}")
        poll(a, [RB], RB+1, mask=(1,0), sleep=opts.get('slp',8))
    S(4)
    conv_pass(0)
    S(5)
    build_R(1)
    conv_pass(1)
    S(6)
    vE=186; vS=187; vDp=188
    a(f"v_and_b32 v{t0}, 15, v{lane}")
    a(f"v_lshlrev_b32 v{t0}, 1, v{t0}")
    a(f"v_lshrrev_b32 v{t1}, 5, v{lane}")
    a(f"v_add_u32 v{t0}, v{t0}, v{t1}")
    a(f"v_bfe_u32 v{t1}, v{t0}, 2, 2")
    a(f"v_xor_b32 v{t1}, s{sWv}, v{t1}")
    a(f"v_lshlrev_b32 v{t1}, 4, v{t1}")
    a(f"v_lshl_add_u32 v{vE}, v{t0}, 6, v{t1}")
    a(f"v_bfe_u32 v{t1}, v{lane}, 4, 1")
    a(f"v_lshl_add_u32 v{vE}, v{t1}, 3, v{vE}")
    a(f"v_add_u32 v{vE}, {U_OFF+2048}, v{vE}")
    a(f"v_and_b32 v{t0}, 15, v{lane}")
    a(f"v_lshlrev_b32 v{vS}, 5, v{t0}")
    a(f"v_lshrrev_b32 v{t1}, 4, v{lane}")
    a(f"v_lshl_add_u32 v{vS}, v{t1}, 3, v{vS}")
    a(f"s_lshl_b32 s{sTmp}, s{sCh}, 12\ns_add_u32 s{sTmp}, s{sTmp}, {WS_AT}")
    a(f"v_add_u32 v{vS}, s{sTmp}, v{vS}")
    a(f"v_mov_b32 v{vDp}, s{sD}\nv_mov_b32 v{vDp+1}, s{sD}")
    UB=64
    for t in range(8):
        a(f"ds_read_b64 v[{UB+2*t}:{UB+2*t+1}], v{vE} offset:{2048*t}")
    T=96
    for t in range(8):
        a(f"s_waitcnt lgkmcnt({7-t})")
        d=CACC+4*t; u=UB+2*t; o=T+16+2*(t%2)
        a(f"v_lshlrev_b32 v{T}, 16, v{u}\nv_and_b32 v{T+1}, 0xffff0000, v{u}")
        a(f"v_lshlrev_b32 v{T+2}, 16, v{u+1}\nv_and_b32 v{T+3}, 0xffff0000, v{u+1}")
        for p in range(4): a(f"v_mul_f32 v{T+p}, v{T+p}, v{vDp}")
        for p in range(2): a(f"v_cvt_pk_bf16_f32 v{T+4+p}, v{T+2*p}, v{T+2*p+1}")
        for p in range(2): a(f"v_cvt_pk_bf16_f32 v{T+6+p}, v{d+2*p}, v{d+2*p+1}")
        for p in range(2):
            a(f"v_lshlrev_b32 v{T}, 16, v{T+4+p}\nv_and_b32 v{T+1}, 0xffff0000, v{T+4+p}")
            a(f"v_lshlrev_b32 v{T+2}, 16, v{T+6+p}\nv_and_b32 v{T+3}, 0xffff0000, v{T+6+p}")
            a(f"v_add_f32 v{T}, v{T}, v{T+2}\nv_add_f32 v{T+1}, v{T+1}, v{T+3}")
            a(f"v_cvt_pk_bf16_f32 v{o+p}, v{T}, v{T+1}")
        a(f"buffer_store_dwordx2 v[{o}:{o+1}], v{vS}, s[{SWS}:{SWS+3}], 0 offen offset:{512*t}{st}")
    a("s_waitcnt vmcnt(0)\ns_barrier")
    a(f"s_lshl_b32 s{sTmp}, s{sQ}, 6\ns_add_u32 s{sTmp}, s{sTmp}, {FL_A}")
    flag_store(a, sTmp, 2)
    S(7)
```

```python
from f_common import *
from f_ln16 import *
from f_ln8 import *
def pack_issue(a, sUnit, sLds, SW2, sb, ga, t0, t1):
    lane=1
    sS=sb; sLg=sb+1; sT=sb+2; sO=sb+3
    a(f"s_mul_i32 s{sS}, s{sUnit}, 6554\ns_lshr_b32 s{sS}, s{sS}, 16")
    a(f"s_mul_i32 s{sT}, s{sS}, 10\ns_sub_u32 s{sLg}, s{sUnit}, s{sT}")
    a(f"v_lshrrev_b32 v{t0}, 3, v{lane}\nv_mul_u32_u24 v{ga}, 1280, v{t0}\nv_and_b32 v{t1}, 7, v{lane}\nv_lshl_add_u32 v{ga}, v{t1}, 4, v{ga}")
    a(f"s_mul_i32 s{sT}, s{sS}, {32*1280}\ns_lshl_b32 s{sO}, s{sLg}, 7\ns_add_u32 s{sT}, s{sT}, s{sO}")
    for i in range(4):
        a(f"s_add_u32 m0, s{sLds}, {i*1024}\ns_nop 0")
        a(f"buffer_load_dwordx4 v{ga}, s[{SW2}:{SW2+3}], s{sT} offen lds")
        if i<3: a(f"s_add_u32 s{sT}, s{sT}, {8*1280}")
def pack_finish(a, sLds, sb, t0, t1, ra, so, d):
    lane=1
    sS=sb; sLg=sb+1; sT=sb+2; sO=sb+3
    a(f"v_lshrrev_b32 v{t0}, 4, v{lane}\nv_lshlrev_b32 v{ra}, 3, v{t0}\nv_bfe_u32 v{t1}, v{lane}, 2, 2\nv_add_u32 v{ra}, v{ra}, v{t1}\nv_lshlrev_b32 v{ra}, 7, v{ra}")
    a(f"v_and_b32 v{t1}, 3, v{lane}\nv_lshl_add_u32 v{ra}, v{t1}, 3, v{ra}\nv_add_u32 v{ra}, s{sLds}, v{ra}\nv_lshlrev_b32 v{so}, 4, v{lane}")
    a(f"s_mul_i32 s{sT}, s{sLg}, {4*49152}\ns_lshl_b32 s{sO}, s{sS}, 10\ns_add_u32 s{sT}, s{sT}, s{sO}\ns_add_u32 s{sT}, s{sT}, {WS_W2P}")
    for mt in range(4):
        for q in range(2):
            a(f"ds_read_b64_tr_b16 v[{d+4*mt+2*q}:{d+4*mt+2*q+1}], v{ra} offset:{q*512+mt*32}")
    for mt in range(4):
        a(f"s_waitcnt lgkmcnt({6-2*mt})")
        a(f"buffer_store_dwordx4 v[{d+4*mt}:{d+4*mt+3}], v{so}, s[{SWS}:{SWS+3}], s{sT} offen sc1")
        if mt<3: a(f"s_add_u32 s{sT}, s{sT}, 49152")

def emit_aux(a, S, opts):
    sU=46; sWv=47; sT=48; sT2=49; sB1=50; sB2=51; SW2=56; sUa=60; sUb=61; sLa=62; sLb=63; sPa=64; sPb=68
    lane=1; w=2
    RAW1=16; RAW2=36
    doln=not opts.get('ln8') and not opts.get('ln2')
    LN2=opts.get('ln2',0); sLam=52
    if opts.get('prio'): a(f"s_setprio {opts.get('p0',3)}")
    a(f"s_sub_u32 s{sU}, s2, 416")
    a(f"v_and_b32 v{lane}, 63, v0\nv_lshrrev_b32 v{w}, 6, v0")
    if doln:
        a(f"s_and_b32 s{sB1}, s{sU}, 7\ns_lshl_b32 s{sB1}, s{sB1}, 4\ns_lshr_b32 s{sT}, s{sU}, 3\ns_add_u32 s{sB1}, s{sB1}, s{sT}\ns_add_u32 s{sB2}, s{sB1}, 12")
        ln_loads(a, sB1, RAW1, sT)
        l2=a.newlabel('Lax')
        a(f"s_cmp_ge_u32 s{sU}, 32\ns_cbranch_scc1 {l2}")
        ln_loads(a, sB2, RAW2, sT)
        a.label(l2)
    a(f"v_readfirstlane_b32 s{sWv}, v{w}")
    srd(a,SW2,P["w2"],F*D*2)
    a(f"s_lshl_b32 s{sUa}, s{sU}, 2\ns_add_u32 s{sUa}, s{sUa}, s{sWv}\ns_add_u32 s{sUb}, s{sUa}, 96")
    a(f"s_lshl_b32 s{sLa}, s{sWv}, 12\ns_add_u32 s{sLb}, s{sLa}, 40960")
    SWP=72; vPw=90; vPt=93; vDm=96; sI=76; sI24=77
    def prefetch_setup():
        a(f"s_lshr_b32 s{sI}, s{sU}, 3\ns_lshl_b32 s{sI}, s{sI}, 2\ns_add_u32 s{sI}, s{sI}, s{sWv}")
        a(f"s_cmp_ge_u32 s{sI}, 24\ns_cselect_b32 s{SWP}, s{P['w3']}, s{P['w1']}\ns_cselect_b32 s{SWP+1}, s{P['w3']+1}, s{P['w1']+1}\ns_cselect_b32 s{sT}, 24, 0")
        a(f"s_sub_u32 s{sI24}, s{sI}, s{sT}\ns_and_b32 s{SWP+1}, s{SWP+1}, 0xffff\ns_mov_b32 s{SWP+2}, {D*F*2}\ns_mov_b32 s{SWP+3}, 0x20000")
        for t in range(3):
            a(f"s_lshl_b32 s{sT}, s{sI24}, 6\ns_add_u32 s{sT}, s{sT}, {t*1536}\nv_add_u32 v4, s{sT}, v{lane}")
            a(f"v_mul_u32_u24 v5, 10923, v4\nv_lshrrev_b32 v5, 16, v5\nv_mul_u32_u24 v6, 6, v5\nv_sub_u32 v6, v4, v6")
            a(f"v_add_u32 v5, 96, v5\nv_mul_u32_u24 v5, 3072, v5\nv_lshl_add_u32 v{vPw+t}, v6, 7, v5")
            a(f"s_lshl_b32 s{sT}, s{sI}, 6\ns_add_u32 s{sT}, s{sT}, {t*3072}\nv_add_u32 v4, s{sT}, v{lane}")
            a(f"v_lshrrev_b32 v5, 10, v4\nv_add_u32 v5, 2, v5\nv_min_u32 v5, 9, v5\nv_and_b32 v4, 1023, v4\nv_mul_u32_u24 v4, 1280, v4\nv_lshl_add_u32 v{vPt+t}, v5, 7, v4")
        a(f"s_and_b32 s{sT}, s{sU}, 3\ns_mul_i32 s78, s{sT}, 768")
        a(f"s_bfe_u32 s{sT}, s{sU}, 0x10002\ns_mul_i32 s79, s{sT}, {1024*1280}")
    def prefetch(t):
        if not opts.get('atouch',1): return
        a(f"buffer_load_dword v{vDm}, v{vPw+t}, s[{SWP}:{SWP+3}], s78 offen")
        a(f"buffer_load_dword v{vDm}, v{vPt+t}, s[{SX}:{SX+3}], s79 offen")
    def pack_loads():
        pack_issue(a, sUa, sLa, SW2, sPa, 60, 4, 5)
        l3=a.newlabel('Lax')
        a(f"s_cmp_lt_u32 s{sUa}, 288\ns_cbranch_scc1 {l3}")
        pack_issue(a, sUb, sLb, SW2, sPb, 60, 4, 5)
        a.label(l3)
    if doln:
        nonce_load(a)
        nt=1+(k_touch(a, sWv, lane, 72, 90) if opts.get('ktouch',1)==1 else 0)
        if opts.get('prio'): a(f"s_setprio {opts.get('aprio',1)}")
        ln_addr(a, sWv, sT, sT2, 16384)
        S(1)
        a(f"s_waitcnt vmcnt({nt}) lgkmcnt(0)")
        S(2)
        if opts.get('ktouch',1)==2: k_touch(a, sWv, lane, 72, 90, g0=2)
        pack_loads()
        ln_compute(a, sB1, RAW1, sT)
        l4=a.newlabel('Lax')
        a(f"s_cmp_ge_u32 s{sU}, 32\ns_cbranch_scc1 {l4}")
        a("s_barrier")
        ln_compute(a, sB2, RAW2, sT)
        a.label(l4)
        S(3)
        a("s_waitcnt vmcnt(0)\ns_barrier")
        nonce_ready(a)
        a(f"s_lshl_b32 s{sT}, s{sB1}, 6\ns_add_u32 s{sT}, s{sT}, {FL_LN}")
        flag_store(a, sT, 4)
        l5=a.newlabel('Lax')
        a(f"s_cmp_ge_u32 s{sU}, 32\ns_cbranch_scc1 {l5}")
        a(f"s_lshl_b32 s{sT}, s{sB2}, 6\ns_add_u32 s{sT}, s{sT}, {FL_LN}")
        flag_store(a, sT, 4)
        a.label(l5)
        S(4)
        if opts.get('prio'): a("s_setprio 0")
    elif LN2:
        a(f"s_and_b32 s{sLam}, s2, 7\ns_lshl_b32 s{sLam}, s{sLam}, 5\ns_sub_u32 s{sT}, s2, 256\ns_lshr_b32 s{sT}, s{sT}, 3\ns_add_u32 s{sLam}, s{sLam}, s{sT}")
        ln8_loads(a, sLam, 100, 72)
        nonce_load(a)
        if opts.get('prio'): a(f"s_setprio {opts.get('aprio',1)}")
        S(1)
        a("s_waitcnt vmcnt(1) lgkmcnt(0)")
        S(2)
        if opts.get('ktouch',1)==2: k_touch(a, sWv, lane, 76, 90, g0=2)
        pack_loads()
        ln8_compute(a, sLam, sWv, 100, 72, 16384)
        S(3)
        a("s_waitcnt vmcnt(0)\ns_barrier")
        nonce_ready(a)
        a(f"s_lshl_b32 s{sT}, s{sLam}, 6\ns_add_u32 s{sT}, s{sT}, {FL_LN}")
        flag_store(a, sT, 4)
        S(4)
    else:
        nonce_load(a)
        nt=k_touch(a, sWv, lane, 72, 90) if opts.get('ktouch',1) else 0
        if opts.get('prio'): a(f"s_setprio {opts.get('aprio',1)}")
        if nt: a("s_waitcnt vmcnt(4)")
        pack_loads()
        S(1)
        a("s_waitcnt vmcnt(0) lgkmcnt(0)")
        nonce_ready(a)
        S(2)
    pack_finish(a, sLa, sPa, 4, 5, 60, 61, 64)
    l6=a.newlabel('Lax')
    a(f"s_cmp_lt_u32 s{sUa}, 288\ns_cbranch_scc1 {l6}")
    pack_finish(a, sLb, sPb, 4, 5, 60, 61, 80)
    a.label(l6)
    a("s_waitcnt vmcnt(0)\ns_barrier")
    a(f"s_lshl_b32 s{sT}, s{sU}, 6\ns_add_u32 s{sT}, s{sT}, {FL_PK}")
    flag_store(a, sT, 4)
    S(7)
```

```python
from common import *
import common
WS_STATS=0xD80000
WS_CS   =0xD90000
WS_NONCE=0xDA0000
FL_LN=0xE14000
FL_CS=0xE04000
FL_PK=0xE08000
FL_H =0xE20000
FL_A =0xE10000
FL_UD=0xE18000
S_PTR=4
P=dict(u=4,logA=6,Aim=8,Cre=10,Cim=12,logdt=14,Dskip=16,x=18,w1=20,w3=22,w2=24,out=26,dbg=28,ws=30)
SWS=32
SX =36
S_NONCE=40

def prologue(a, opts={}):
    a("s_load_dwordx16 s[4:19], s[0:1], 0")
    a("s_load_dwordx8 s[20:27], s[0:1], 64")
    a("s_load_dwordx4 s[28:31], s[0:1], 96")
    if opts.get('codetouch',1):
        lab=a.newlabel('Lct')
        a("s_getpc_b64 s[100:101]")
        a.label("Lpcbase")
        a("s_lshr_b32 s41, s2, 3")
        a.raw("  s_mul_i32 s41, s41, ((Lcode_end-Lpcbase+8191)/8192)")
        a("v_add_u32 v1, s41, v0")
        a("v_lshlrev_b32 v1, 7, v1")
        a.raw("  v_cmp_gt_u32 vcc, ((Lcode_end-Lpcbase+8191)/8192), v0")
        a("s_and_saveexec_b64 s[42:43], vcc")
        a(f"s_cbranch_execz {lab}")
        a.raw("  v_min_u32 v1, (Lcode_end-Lpcbase-4), v1")
        a("v_and_b32 v1, 0xfffffffc, v1")
        a("global_load_dword v255, v1, s[100:101]")
        a.label(lab)
        a("s_mov_b64 exec, s[42:43]")
    a("s_waitcnt lgkmcnt(0)")
    srd(a,SWS,P["ws"],WS_SIZE); srd(a,SX,P["u"],X_BYTES)

V_NONCE=254
def nonce_load(a):
    a(f"v_mov_b32 v{V_NONCE}, {WS_NONCE}")
    a(f"buffer_load_dword v{V_NONCE}, v{V_NONCE}, s[{SWS}:{SWS+3}], 0 offen sc1")
def nonce_ready(a):
    a(f"v_readfirstlane_b32 s{S_NONCE}, v{V_NONCE}")
    a(f"s_add_u32 s{S_NONCE}, s{S_NONCE}, 0x9e3779b1")

def flag_store(a, sIdxOff, vt, keepvcc=False):
    lab=a.newlabel('Lfs')
    m="s[44:45]" if keepvcc else "vcc"
    a(f"v_cmp_eq_u32 {m}, 0, v0")
    a(f"s_and_saveexec_b64 s[42:43], {m}")
    a(f"s_cbranch_execz {lab}")
    a(f"v_mov_b32 v{vt}, 0\nv_mov_b32 v{vt+1}, s{S_NONCE}")
    a(f"buffer_store_dword v{vt+1}, v{vt}, s[{SWS}:{SWS+3}], s{sIdxOff} offen sc1")
    a.label(lab)
    a("s_mov_b64 exec, s[42:43]")

NOPOLL=[False]
SLEEP=[4]
def poll(a, vaddrs, vtmp, force=False, mask=None, sleep=None):
    if NOPOLL[0] and not force:
        a("s_waitcnt vmcnt(0)"); return
    lab=a.newlabel('Lpoll'); out=a.newlabel('Lpout'); first=a.newlabel('Lpf')
    sl=SLEEP[0] if sleep is None else sleep
    if mask: a(f"s_mov_b32 exec_lo, {hex(mask[0])}\ns_mov_b32 exec_hi, {hex(mask[1])}")
    a("s_mov_b32 s41, 0x40000")
    a(f"s_branch {first}")
    a.label(lab)
    if sl: a(f"s_sleep {sl}")
    a.label(first)
    for i,va in enumerate(vaddrs):
        a(f"buffer_load_dword v{vtmp+i}, v{va}, s[{SWS}:{SWS+3}], 0 offen sc1")
    a("s_sub_u32 s41, s41, 1")
    a(f"s_cbranch_scc1 {out}")
    a("s_waitcnt vmcnt(0)")
    poll_check(a, len(vaddrs), vtmp)
    a(f"s_cbranch_scc1 {lab}")
    a.label(out)
    a("s_waitcnt vmcnt(0)")
    if mask: a("s_mov_b64 exec, -1")

def poll_check(a, n, vtmp):
    for i in range(n):
        a(f"v_cmp_ne_u32 vcc, s{S_NONCE}, v{vtmp+i}")
        if i==0: a("s_mov_b64 s[44:45], vcc")
        else: a("s_or_b64 s[44:45], s[44:45], vcc")
    a("s_cmp_lg_u64 s[44:45], 0")

def k_touch(a, sWv, lane, sb, vb, g0=1):
    SR=sb; sO=sb+4; sT=sb+5; sS=sb+6; sJ=sb+7
    assert sb%4==0
    a(f"s_sub_u32 s{sJ}, s2, 256\ns_lshr_b32 s{sJ}, s{sJ}, 3")
    a(f"s_cmp_eq_u32 s{sWv}, 0\ns_cselect_b32 s{SR}, s{P['w1']}, s{P['w3']}\ns_cselect_b32 s{SR+1}, s{P['w1']+1}, s{P['w3']+1}")
    a(f"s_cmp_ge_u32 s{sWv}, 2\ns_cselect_b32 s{SR}, s{P['u']}, s{SR}\ns_cselect_b32 s{SR+1}, s{P['u']+1}, s{SR+1}")
    a(f"s_cselect_b32 s{SR+2}, {X_BYTES}, {D*F*2}" if False else f"s_mov_b32 s{SR+2}, {D*F*2}\ns_cselect_b32 s{SR+2}, {X_BYTES}, s{SR+2}")
    a(f"s_and_b32 s{SR+1}, s{SR+1}, 0xffff\ns_mov_b32 s{SR+3}, 0x20000")
    lw=a.newlabel('Lkt'); le=a.newlabel('Lkt')
    a(f"s_cmp_ge_u32 s{sWv}, 2\ns_cbranch_scc1 {lw}")
    a(f"v_mul_u32_u24 v{vb}, 10923, v{lane}\nv_lshrrev_b32 v{vb}, 16, v{vb}\nv_mul_u32_u24 v{vb+1}, 6, v{vb}\nv_sub_u32 v{vb+1}, v{lane}, v{vb+1}")
    a(f"v_mul_u32_u24 v{vb}, 3072, v{vb}\nv_lshl_add_u32 v{vb}, v{vb+1}, 7, v{vb}")
    a(f"s_mul_i32 s{sO}, s{sJ}, {2*3072}\ns_and_b32 s{sT}, s2, 3\ns_mul_i32 s{sT}, s{sT}, 768\ns_add_u32 s{sO}, s{sO}, s{sT}\ns_add_u32 s{sO}, s{sO}, {g0*64*3072}")
    a(f"s_mov_b32 s{sS}, {64*3072}\ns_mov_b64 exec, 0xfff")
    a(f"s_branch {le}")
    a.label(lw)
    a(f"v_mul_u32_u24 v{vb}, 1280, v{lane}")
    a(f"s_bfe_u32 s{sT}, s2, 0x10002\ns_lshl_b32 s{sO}, s{sT}, 10\ns_lshl_b32 s{sT}, s{sJ}, 5\ns_add_u32 s{sO}, s{sO}, s{sT}\ns_and_b32 s{sT}, s{sWv}, 1\ns_lshl_b32 s{sT}, s{sT}, 4\ns_add_u32 s{sO}, s{sO}, s{sT}")
    a(f"s_mul_i32 s{sO}, s{sO}, 1280\ns_add_u32 s{sO}, s{sO}, 128")
    a(f"s_mov_b32 s{sS}, 128\ns_mov_b64 exec, 0xffff")
    a.label(le)
    for g in range(g0,10):
        a(f"buffer_load_dword v{vb+2}, v{vb}, s[{SR}:{SR+3}], s{sO} offen")
        if g<9: a(f"s_add_u32 s{sO}, s{sO}, s{sS}")
    a("s_mov_b64 exec, -1")
    return 10-g0
```

```python
from f_common import *
from f_ln8 import *
WST=12288
TST=16384
TOK0=4*WST

def emit_gemm(a, S0_, opts):
    dst=opts.get('dstamp')
    def S(i):
        if not dst: S0_(i)
    def SD(i):
        if dst: S0_(i)
    started=[False]
    sT=46; sFT=47; sJT=48; sJF=49
    SW=52
    sWv=56; sWoff=57; sToff=58; sMW=59; sMT=60; sTmp=61; sCnt=62; sTmp2=63; sX=64
    lane=1; t0=2; t1=3; vWa=[4,5,6]; vTok=[7,8,9,10]; vA=11; vA5=12; vB=[13,14,15,16]; vSt=17; vFl=[18]; vPk=[19,20]; vDum=22; vTch=[23,24]
    vStat=24
    ACC=64; Pq=160; Qq=176
    Qq=180
    a(f"s_setprio {opts.get('g0',2)}") if opts.get('prio') else None
    a(f"s_and_b32 s{sX}, s2, 7\ns_lshr_b32 s{sTmp}, s2, 3\ns_and_b32 s{sJT}, s{sTmp}, 7\ns_lshr_b32 s{sJF}, s{sTmp}, 3")
    a(f"s_lshr_b32 s{sT}, s{sX}, 2\ns_lshl_b32 s{sT}, s{sT}, 3\ns_add_u32 s{sT}, s{sT}, s{sJT}")
    a(f"s_and_b32 s{sFT}, s{sX}, 3\ns_lshl_b32 s{sFT}, s{sFT}, 2\ns_add_u32 s{sFT}, s{sFT}, s{sJF}")
    a(f"v_and_b32 v{lane}, 63, v0\nv_lshrrev_b32 v{t0}, 6, v0\nv_readfirstlane_b32 s{sWv}, v{t0}")
    sLam=50
    a(f"s_lshl_b32 s{sLam}, s{sX}, 5\ns_lshr_b32 s{sTmp}, s2, 3\ns_add_u32 s{sLam}, s{sLam}, s{sTmp}")
    if opts.get('ln8'): ln8_loads(a, sLam, 64, 76)
    a(f"s_cmp_lt_u32 s{sWv}, 2")
    a(f"s_cselect_b32 s{SW}, s{P['w1']}, s{P['w3']}\ns_cselect_b32 s{SW+1}, s{P['w1']+1}, s{P['w3']+1}")
    a(f"s_cselect_b32 s{sTmp2}, 0, 10")
    a(f"s_and_b32 s{SW+1}, s{SW+1}, 0xffff\ns_mov_b32 s{SW+2}, {640*1536*2}\ns_mov_b32 s{SW+3}, 0x20000")
    a(f"s_and_b32 s{sTmp}, s{sWv}, 1\ns_mul_i32 s{sTmp}, s{sTmp}, 192")
    for t in range(3):
        a(f"v_add_u32 v{t0}, s{sTmp}, v{lane}")
        if t: a(f"v_add_u32 v{t0}, {64*t}, v{t0}")
        a(f"v_mul_u32_u24 v{t1}, 5462, v{t0}\nv_lshrrev_b32 v{t1}, 16, v{t1}")
        a(f"v_mul_u32_u24 v{vWa[t]}, 12, v{t1}\nv_sub_u32 v{t0}, v{t0}, v{vWa[t]}")
        a(f"v_add_u32 v{t0}, s{sTmp2}, v{t0}\nv_subrev_u32 v{vWa[t]}, 12, v{t0}")
        a(f"v_cmp_le_u32 vcc, 12, v{t0}\nv_cndmask_b32 v{t0}, v{t0}, v{vWa[t]}, vcc")
        a(f"v_mul_u32_u24 v{t1}, 3072, v{t1}\nv_lshl_add_u32 v{vWa[t]}, v{t0}, 4, v{t1}")
        if t: a(f"v_subrev_u32 v{vWa[t]}, {1024*t}, v{vWa[t]}")
    a(f"s_mul_i32 s{sWoff}, s{sFT}, 192\ns_mul_i32 s{sMW}, s{sWv}, 3072")
    sWlim=41; sC0=51
    ROT=opts.get('rot',1)
    sWlim=75; sTlim=74
    if ROT:
        a(f"s_lshr_b32 s{sTmp}, s{sJT}, 2\ns_add_u32 s{sC0}, s{sJT}, s{sTmp}")
        a(f"s_mul_i32 s{sTmp}, s{sJF}, 5\ns_lshr_b32 s{sTmp}, s{sTmp}, 1\ns_add_u32 s{sC0}, s{sC0}, s{sTmp}")
        a(f"s_cmp_ge_u32 s{sC0}, 10\ns_cselect_b32 s{sTmp}, 10, 0\ns_sub_u32 s{sC0}, s{sC0}, s{sTmp}")
        a(f"s_add_u32 s{sWlim}, s{sWoff}, {640*3072}")
        a(f"s_mul_i32 s{sTmp}, s{sC0}, {64*3072}\ns_add_u32 s{sWoff}, s{sWoff}, s{sTmp}")
    def adv_w():
        t=f"s_add_u32 s{sWoff}, s{sWoff}, {32*3072}"
        if ROT: t+=f"\ns_cmp_ge_u32 s{sWoff}, s{sWlim}\ns_cselect_b32 s{sTmp2}, {640*3072}, 0\ns_sub_u32 s{sWoff}, s{sWoff}, s{sTmp2}"
        return t
    def adv_t():
        t=f"s_add_u32 s{sToff}, s{sToff}, 128"
        if ROT: t+=f"\ns_cmp_ge_u32 s{sToff}, s{sTlim}\ns_cselect_b32 s{sTmp2}, 1280, 0\ns_sub_u32 s{sToff}, s{sToff}, s{sTmp2}"
        return t
    def dma_w(slot):
        if opts.get('nodmaw') and started[0]: return
        a(f"s_add_u32 m0, s{sMW}, {slot*WST}")
        for t in range(3):
            a(f"buffer_load_dwordx4 v{vWa[t]}, s[{SW}:{SW+3}], s{sWoff} offen offset:{1024*t} lds")
        a(adv_w())
    if opts.get('bench'):
        a(f"s_mov_b32 s78, {opts['bench']}")
        a(f"s_mov_b32 s79, s{sWoff}")
    dma_w(0)
    for ii in range(4):
        a(f"v_lshrrev_b32 v{t0}, 3, v{lane}")
        if ii: a(f"v_add_u32 v{t0}, {8*ii}, v{t0}")
        a(f"v_mul_u32_u24 v{vTok[ii]}, 1280, v{t0}")
        a(f"v_bfe_u32 v{t0}, v{t0}, 1, 3\nv_and_b32 v{t1}, 7, v{lane}\nv_xor_b32 v{t0}, v{t0}, v{t1}")
        a(f"v_lshl_add_u32 v{vTok[ii]}, v{t0}, 4, v{vTok[ii]}")
        if ii: a(f"v_subrev_u32 v{vTok[ii]}, {1024*ii}, v{vTok[ii]}")
    a(f"s_lshl_b32 s{sToff}, s{sT}, 7\ns_lshl_b32 s{sTmp}, s{sWv}, 5\ns_add_u32 s{sToff}, s{sToff}, s{sTmp}\ns_mul_i32 s{sToff}, s{sToff}, 1280")
    if ROT:
        a(f"s_add_u32 s{sTlim}, s{sToff}, 1280\ns_lshl_b32 s{sTmp}, s{sC0}, 7\ns_add_u32 s{sToff}, s{sToff}, s{sTmp}")
    a(f"s_lshl_b32 s{sMT}, s{sWv}, 12\ns_add_u32 s{sMT}, s{sMT}, {TOK0}")
    if opts.get('bench'): a(f"s_mov_b32 s77, s{sToff}")
    def dma_t(buf):
        if opts.get('nodmat') and started[0]: return
        a(f"s_add_u32 m0, s{sMT}, {buf*TST}")
        for ii in range(4):
            a(f"buffer_load_dwordx4 v{vTok[ii]}, s[{SX}:{SX+3}], s{sToff} offen offset:{1024*ii} lds")
        a(adv_t())
    LATE=opts.get('late12',0)
    dma_t(0)
    if not LATE: dma_w(1); dma_w(2); dma_t(1)
    nonce_load(a)
    started[0]=True
    vTw=23; vTt=25
    sTwo=80; sTto=81
    a(f"s_lshr_b32 s{sTmp}, s2, 3\ns_lshl_b32 s{sTwo}, s{sTmp}, 1\ns_and_b32 s{sTmp2}, s{sWv}, 1\ns_add_u32 s{sTwo}, s{sTwo}, s{sTmp2}\ns_mul_i32 s{sTwo}, s{sTwo}, {2*3072}")
    a(f"s_and_b32 s{sTmp2}, s{sX}, 3\ns_mul_i32 s{sTmp2}, s{sTmp2}, 768\ns_add_u32 s{sTwo}, s{sTwo}, s{sTmp2}\ns_add_u32 s{sTwo}, s{sTwo}, {3*32*3072}")
    a(f"v_mul_u32_u24 v{t0}, 10923, v{lane}\nv_lshrrev_b32 v{t0}, 16, v{t0}\nv_mul_u32_u24 v{t1}, 6, v{t0}\nv_sub_u32 v{t1}, v{lane}, v{t1}")
    a(f"v_mul_u32_u24 v{vTw}, 3072, v{t0}\nv_lshl_add_u32 v{vTw}, v{t1}, 7, v{vTw}")
    a(f"s_lshr_b32 s{sTmp}, s2, 3\ns_lshl_b32 s{sTmp}, s{sTmp}, 2\ns_add_u32 s{sTmp}, s{sTmp}, s{sWv}\ns_lshl_b32 s{sTmp}, s{sTmp}, 3\ns_lshr_b32 s{sTmp2}, s{sX}, 2\ns_lshl_b32 s{sTmp2}, s{sTmp2}, 10\ns_add_u32 s{sTmp}, s{sTmp}, s{sTmp2}")
    a(f"s_mul_i32 s{sTto}, s{sTmp}, 1280\ns_add_u32 s{sTto}, s{sTto}, {2*128}")
    a(f"v_lshrrev_b32 v{t0}, 1, v{lane}\nv_mul_u32_u24 v{vTt}, 1280, v{t0}\nv_and_b32 v{t0}, 1, v{lane}\nv_lshl_add_u32 v{vTt}, v{t0}, 7, v{vTt}")
    def touch_batch(tok=True):
        if not opts.get('touch',0): return []
        a(f"s_mov_b64 exec, 0xfff")
        a(f"buffer_load_dword v{vDum}, v{vTw}, s[{SW}:{SW+3}], s{sTwo} offen")
        a(f"s_add_u32 s{sTwo}, s{sTwo}, {128*3072}")
        if tok:
            a(f"s_mov_b64 exec, 0xffff")
            a(f"buffer_load_dword v{vDum}, v{vTt}, s[{SX}:{SX+3}], s{sTto} offen")
            a(f"s_add_u32 s{sTto}, s{sTto}, 256")
        a("s_mov_b64 exec, -1")
        return ['x']*(2 if tok else 1)
    pre_touch=touch_batch()
    ntouch=len(pre_touch)
    if opts.get('ln8'):
        npre=3+4+(0 if LATE else 10)+1+len(pre_touch)
        a(f"s_waitcnt vmcnt({npre})")
        S(1)
        nln=ln8_compute(a, sLam, sWv, 64, 76, 3*WST)
        ntouch+=nln
    a(f"v_lshrrev_b32 v{t0}, 5, v{lane}\nv_lshlrev_b32 v{t0}, 3, v{t0}\nv_bfe_u32 v{t1}, v{lane}, 2, 2\nv_add_u32 v{t0}, v{t0}, v{t1}")
    a(f"v_mul_u32_u24 v{vA}, 192, v{t0}\nv_and_b32 v{t1}, 3, v{lane}\nv_lshl_add_u32 v{vA}, v{t1}, 3, v{vA}")
    a(f"v_bfe_u32 v{t1}, v{lane}, 4, 1\nv_mul_u32_u24 v{t0}, {6144+32}, v{t1}\nv_add_u32 v{vA}, v{vA}, v{t0}")
    a(f"s_lshr_b32 s{sTmp}, s{sWv}, 1\ns_mul_i32 s{sTmp2}, s{sTmp}, 96\nv_add_u32 v{vA}, s{sTmp2}, v{vA}")
    a(f"s_mul_i32 s{sTmp2}, s{sTmp}, 192\nv_mul_u32_u24 v{t0}, s{sTmp2}, v{t1}\nv_sub_u32 v{vA5}, v{vA}, v{t0}")
    a(f"v_and_b32 v{t0}, 31, v{lane}\ns_and_b32 s{sTmp}, s{sWv}, 1\ns_lshl_b32 s{sTmp}, s{sTmp}, 6\nv_add_u32 v{t0}, s{sTmp}, v{t0}")
    a(f"v_bfe_u32 v{t1}, v{t0}, 1, 3\nv_lshrrev_b32 v{vB[3]}, 5, v{lane}\nv_xor_b32 v{t1}, v{t1}, v{vB[3]}")
    a(f"v_lshlrev_b32 v{t0}, 7, v{t0}\nv_add_u32 v{t0}, {TOK0}, v{t0}")
    for sp in range(4):
        a(f"v_xor_b32 v{vB[sp]}, {2*sp}, v{t1}\nv_lshl_add_u32 v{vB[sp]}, v{vB[sp]}, 4, v{t0}")
    a(f"v_bfe_u32 v{t0}, v{lane}, 4, 1\nv_mul_u32_u24 v{vSt}, 49152, v{t0}\nv_lshrrev_b32 v{t0}, 5, v{lane}\nv_lshl_add_u32 v{vSt}, v{t0}, 8, v{vSt}")
    a(f"v_and_b32 v{t0}, 15, v{lane}\nv_lshl_add_u32 v{vSt}, v{t0}, 4, v{vSt}")
    a(f"s_lshl_b32 s{sTmp}, s{sT}, 3\ns_and_b32 s{sTmp2}, s{sWv}, 1\ns_lshl_b32 s{sTmp2}, s{sTmp2}, 2\ns_add_u32 s{sTmp}, s{sTmp}, s{sTmp2}\ns_mul_i32 s{sTmp}, s{sTmp}, 49152")
    a(f"s_mul_i32 s{sTmp2}, s{sFT}, {12*256}\ns_add_u32 s{sTmp}, s{sTmp}, s{sTmp2}\ns_lshr_b32 s{sTmp2}, s{sWv}, 1\ns_mul_i32 s{sTmp2}, s{sTmp2}, {6*256}\ns_add_u32 s{sTmp}, s{sTmp}, s{sTmp2}")
    a(f"s_add_u32 s{sTmp}, s{sTmp}, {WS_H}\nv_add_u32 v{vSt}, s{sTmp}, v{vSt}")
    if opts.get('ln8') or opts.get('ln2'):
        a(f"v_and_b32 v{t0}, 15, v{lane}\ns_lshl_b32 s{sTmp}, s{sT}, 4\nv_add_u32 v{t0}, s{sTmp}, v{t0}")
    else:
        a(f"v_and_b32 v{t0}, 7, v{lane}\ns_lshl_b32 s{sTmp}, s{sT}, 3\nv_add_u32 v{t0}, s{sTmp}, v{t0}")
    a(f"v_lshlrev_b32 v{t0}, 6, v{t0}\nv_add_u32 v{vFl[0]}, {FL_LN}, v{t0}")
    a(f"v_min_u32 v{t0}, 23, v{lane}\ns_mul_i32 s{sTmp}, s{sWv}, 24\nv_add_u32 v{t0}, s{sTmp}, v{t0}\nv_lshlrev_b32 v{t0}, 6, v{t0}\nv_add_u32 v{vPk[0]}, {FL_PK}, v{t0}")
    for r in range(96): a(f"v_mov_b32 v{ACC+r}, 0")
    CACC=216; SEL=228
    for r in range(12): a(f"v_mov_b32 v{CACC+r}, 0")
    a(f"v_and_b32 v{t0}, 15, v{lane}\nv_bfe_u32 v{t1}, v{lane}, 4, 1\nv_cmp_eq_u32 vcc, v{t0}, v{t1}")
    a(f"v_mov_b32 v{t0}, 0x3f803f80")
    for r in range(4): a(f"v_cndmask_b32 v{SEL+r}, 0, v{t0}, vcc")
    a(f"s_and_b32 s{sTmp}, s{sWv}, 1\ns_cmp_eq_u32 s{sTmp}, 1\ns_cselect_b64 vcc, -1, 0")
    if opts.get('bench'):
        a("s_branch Lbench_go")
        a.label("Lbench_top")
        a(f"s_mov_b32 s{sWoff}, s79\ns_mov_b32 s{sToff}, s77")
        a("s_barrier")
        started[0]=False
        dma_w(0); dma_t(0); dma_w(1); dma_w(2); dma_t(1)
        if ntouch:
            for _ in range(ntouch): a(f"buffer_load_dword v{vDum}, v{vTch[0]}, s[{SX}:{SX+3}], 0 offen")
        started[0]=True
        a.label("Lbench_go")
        a("s_memtime s[74:75]\ns_memrealtime s[70:71]\ns_waitcnt lgkmcnt(0)")
    if not opts.get('ln8'): S(1)
    def reads(setb, st, s):
        slot=st%4; buf=(st//2)%2; sp=2*(st%2)+s
        R=[]
        def rb(nt): R.append((f"ds_read_b128 v[{setb+12+4*nt}:{setb+12+4*nt+3}], v{vB[sp]} offset:{buf*TST+nt*4096}", f"B{nt}"))
        def ra(j):
            for q in range(2):
                reg=vA5 if j==2 else vA
                R.append((f"ds_read_b64_tr_b16 v[{setb+4*j+2*q}:{setb+4*j+2*q+1}], v{reg} offset:{slot*WST+(16*s+4*q)*192+32*j}", f"A{j}"))
        rb(0); ra(0); ra(1); ra(2); rb(1)
        if opts.get('nods'): R=[]
        if opts.get('nodsB'): R=[x for x in R if x[1][0]!='B']
        if opts.get('nodsA'): R=[x for x in R if x[1][0]!='A']
        return R
    def mfma(setb, j, nt):
        if opts.get('nomfma'): return
        d=ACC+16*(2*j+nt)
        a(f"v_mfma_f32_32x32x16_bf16 v[{d}:{d+15}], v[{setb+4*j}:{setb+4*j+3}], v[{setb+12+4*nt}:{setb+12+4*nt+3}], v[{d}:{d+15}]")
    ORDER=[(0,0),(1,0),(2,0),(0,1),(1,1),(2,1)]
    NEED={(0,0):"A0",(1,0):"A1",(2,0):"A2",(0,1):"B1",(1,1):None,(2,1):None}
    vq=['W0']*3+['T0']*4+([] if LATE else ['W1']*3+['W2']*3+['T1']*4)+['x']+['x']*ntouch
    def vwait(tags):
        nonlocal vq
        idx=max(i for i,t in enumerate(vq) if t in tags)
        n=len(vq)-1-idx
        vq=vq[idx+1:]
        return n
    TOUCH_AT={0:True,3:True,7:True,11:True}
    def dma_list(st):
        L=[]
        if st+3<20 and not opts.get('nodmaw'):
            slot=(st+3)%4
            for t in range(3):
                pre=f"s_add_u32 m0, s{sMW}, {slot*WST}\ns_nop 0\n" if t==0 else ""
                post="\n"+adv_w() if t==2 else ""
                L.append((pre+f"buffer_load_dwordx4 v{vWa[t]}, s[{SW}:{SW+3}], s{sWoff} offen offset:{1024*t} lds"+post, f"W{st+3}"))
        if st%2==0 and st>=2 and st//2+1<10 and not opts.get('nodmat'):
            buf=(st//2+1)%2
            for ii in range(4):
                pre=f"s_add_u32 m0, s{sMT}, {buf*TST}\ns_nop 0\n" if ii==0 else ""
                post="\n"+adv_t() if ii==3 else ""
                L.append((pre+f"buffer_load_dwordx4 v{vTok[ii]}, s[{SX}:{SX+3}], s{sToff} offen offset:{1024*ii} lds"+post, f"T{st//2+1}"))
        return L
    def stage(st, first=False, extra1=None, extra2=None, fixed=None):
        need=[f"W{st}", f"T{st//2}"]
        n=vwait([t for t in need if t in vq]) if any(t in vq for t in need) else len(vq)
        if fixed is not None: assert n==fixed,(st,n,fixed)
        a(f"s_waitcnt vmcnt({n}) lgkmcnt(0)")
        if opts.get('ststamp') and st>0: a(f"v_writelane_b32 v250, s82, {st-1}")
        a("s_barrier")
        if opts.get('ststamp'): a("s_memrealtime s[82:83]")
        if st==0 and LATE:
            started[0]=False
            dma_w(1); dma_w(2); dma_t(1); vq.extend(['W1']*3+['W2']*3+['T1']*4)
            started[0]=True
        if st==3: nonce_ready(a)
        if st==3 and opts.get('ln8'):
            a(f"s_lshl_b32 s{sTmp}, s{sLam}, 6\ns_add_u32 s{sTmp}, s{sTmp}, {FL_LN}")
            flag_store(a, sTmp, t0, keepvcc=True)
        if st in TOUCH_AT: vq.extend(touch_batch(tok=(st<=3 or TOUCH_AT[st])))
        lt=LdsTrack(a)
        DL=dma_list(st); di=0
        spread=opts.get('spread',1)
        if spread==1: order=[4,5,10,11,3,9,2,8]
        elif spread==2: order=[0,1,2,3,4,5,6,7,8,9,10,11]
        elif spread==3: order=[5,5,5,10,10,10,10]
        elif spread==4: order=[0,2,4,6,8,10,11]
        gaps={}
        srt=sorted(order[:len(DL)])
        for i,g in enumerate(srt): gaps.setdefault(g,[]).append(DL[i])
        def do_dma(g):
            for (t,tag) in gaps.get(g,[]):
                a(t); vq.append(tag)
        rdn=opts.get('rdn',2)
        def csum(setb, branch):
            if opts.get('nocs'): return
            lb=a.newlabel('Lcs')
            a(f"{branch} {lb}")
            for j in range(3):
                a(f"v_mfma_f32_16x16x32_bf16 v[{CACC+4*j}:{CACC+4*j+3}], v[{setb+4*j}:{setb+4*j+3}], v[{SEL}:{SEL+3}], v[{CACC+4*j}:{CACC+4*j+3}]")
            a.label(lb)
        cspos=opts.get('cspos',3)
        R=reads(Pq, st, 0); ri=0
        for k,(j,nt) in enumerate(ORDER):
            if not first: mfma(Qq,j,nt)
            if k==cspos and not first: csum(Qq, "s_cbranch_vccz")
            for _ in range(rdn):
                if ri<len(R): lt.issue(R[ri][0], 'P'+R[ri][1]); ri+=1
            do_dma(k)
        if extra1: extra1()
        R=reads(Qq, st, 1); ri=0
        for k,(j,nt) in enumerate(ORDER):
            if NEED[(j,nt)]: lt.wait('P'+NEED[(j,nt)])
            mfma(Pq,j,nt)
            if k==cspos: csum(Pq, "s_cbranch_vccnz")
            for _ in range(rdn):
                if ri<len(R): lt.issue(R[ri][0], 'Q'+R[ri][1]); ri+=1
            do_dma(6+k)
        if extra2: extra2()
        return n
    if opts.get('prio') and 'g1' in opts: a(f"s_setprio {opts['g1']}")
    for st in range(0,4): stage(st, first=(st==0))
    S(2) if not opts.get("bench") else None
    if opts.get('clk'): a("s_memtime s[68:69]\ns_waitcnt lgkmcnt(0)\ns_mov_b32 s51, s68")
    if opts.get('ststamp') or opts.get('unroll'):
        for st in range(4,12): stage(st)
    else:
        a(f"s_mov_b32 s{sCnt}, 2")
        lab=a.newlabel('Lup'); a.label(lab)
        pat=[stage(st) for st in range(4,8)]
        a(f"s_sub_u32 s{sCnt}, s{sCnt}, 1\ns_cmp_lg_u32 s{sCnt}, 0\ns_cbranch_scc1 {lab}")
        sav=a.ins; a.ins=[]
        pat2=[stage(st) for st in range(8,12)]
        a.ins=sav
        assert pat==pat2,(pat,pat2)
    FLG=200
    def issue_flags():
        a("s_mov_b64 exec, 0xffff")
        a(f"buffer_load_dword v{FLG}, v{vFl[0]}, s[{SWS}:{SWS+3}], 0 offen sc1"); vq.append('F')
        a("s_mov_b64 exec, -1")
    CK=opts.get('ck',14)
    for st_ in range(12,CK):
        stage(st_, extra2=issue_flags if st_==CK-2 else None)
    STAT=204
    CSR=208
    PKF=202
    def check_and_load():
        nonlocal vq
        n=vwait(['F'])
        a(f"s_waitcnt vmcnt({n})")
        a("s_mov_b64 exec, 0xffff")
        poll_check(a, 1, FLG)
        a("s_mov_b64 exec, -1")
        lab2=a.newlabel('Lok')
        a(f"s_cbranch_scc0 {lab2}")
        if not opts.get('nolnwait'): poll(a, vFl, FLG, mask=(0xffff,0), sleep=4)
        a.label(lab2)
        a(f"v_and_b32 v{t0}, 31, v{lane}\ns_lshl_b32 s{sTmp}, s{sT}, 7\ns_and_b32 s{sTmp2}, s{sWv}, 1\ns_lshl_b32 s{sTmp2}, s{sTmp2}, 6\ns_add_u32 s{sTmp}, s{sTmp}, s{sTmp2}")
        a(f"v_add_u32 v{t0}, s{sTmp}, v{t0}\nv_lshlrev_b32 v{t0}, 3, v{t0}\ns_mov_b32 s{sTmp}, {WS_STATS}")
        for nt in range(2):
            a(f"buffer_load_dwordx2 v[{STAT+2*nt}:{STAT+2*nt+1}], v{t0}, s[{SWS}:{SWS+3}], s{sTmp} offen offset:{256*nt} sc1"); vq.append('S')
        a(f"s_and_b32 s{sTmp}, s{sWv}, 1\ns_cmp_eq_u32 s{sTmp}, 1\ns_cselect_b64 vcc, -1, 0")
        a("s_mov_b32 exec_lo, 0xffffff\ns_mov_b32 exec_hi, 0")
        a(f"buffer_load_dword v{PKF}, v{vPk[0]}, s[{SWS}:{SWS+3}], 0 offen sc1"); vq.append('S')
        a("s_mov_b64 exec, -1")
    stage(CK, extra2=check_and_load)
    for st in range(CK+1,20): stage(st)
    a("s_waitcnt lgkmcnt(0)")
    for (j,nt) in ORDER: mfma(Qq,j,nt)
    if not opts.get('nocs'):
        lbq=a.newlabel('Lcs'); a(f"s_cbranch_vccz {lbq}")
        for j in range(3):
            a(f"v_mfma_f32_16x16x32_bf16 v[{CACC+4*j}:{CACC+4*j+3}], v[{Qq+4*j}:{Qq+4*j+3}], v[{SEL}:{SEL+3}], v[{CACC+4*j}:{CACC+4*j+3}]")
        a.label(lbq)
    if opts.get('bench'):
        a("s_waitcnt vmcnt(0)")
        a("s_memtime s[72:73]\ns_memrealtime s[68:69]\ns_waitcnt lgkmcnt(0)\ns_sub_u32 s72, s72, s74\ns_sub_u32 s68, s68, s70")
        a(f"s_cmp_eq_u32 s78, 1\ns_cselect_b32 s{84+2*7}, s68, s{84+2*7}")
        for r in range(opts['bench']):
            a(f"s_cmp_eq_u32 s78, {opts['bench']-r}\ns_cselect_b32 s{84+2*(4+r)}, s72, s{84+2*(4+r)}")
        a("s_sub_u32 s78, s78, 1\ns_cmp_lg_u32 s78, 0\ns_cbranch_scc1 Lbench_top")
        return
    if opts.get('ststamp'):
        a("s_waitcnt lgkmcnt(0)\nv_writelane_b32 v250, s82, 19\ns_memrealtime s[82:83]\ns_waitcnt lgkmcnt(0)\nv_writelane_b32 v250, s82, 20")
        lq=a.newlabel('Lq')
        a(f"s_cmp_lg_u32 s{sWv}, 0\ns_cbranch_scc1 {lq}")
        a(f"s_lshl_b32 s{sTmp}, s2, 7\ns_add_u32 s{sTmp}, s{sTmp}, 0xF40000\nv_lshlrev_b32 v251, 2, v{lane}\ns_mov_b32 exec_hi, 0")
        a(f"buffer_store_dword v250, v251, s[{SWS}:{SWS+3}], s{sTmp} offen\ns_mov_b64 exec, -1")
        a.label(lq)
    if opts.get('prio') and 'g2' in opts: a(f"s_setprio {opts['g2']}")
    S(3)
    if opts.get('clk'): a("s_memtime s[68:69]\ns_waitcnt lgkmcnt(0)\ns_sub_u32 s51, s68, s51")
    if opts.get('gate',1)==1:
        a(f"s_lshl_b32 s{sTmp}, s2, 6\ns_add_u32 s{sTmp}, s{sTmp}, {FL_UD}")
        flag_store(a, sTmp, t0)
    a("s_waitcnt vmcnt(0)")
    def pk_check():
        a("s_mov_b32 exec_lo, 0xffffff\ns_mov_b32 exec_hi, 0")
        poll_check(a, 1, PKF)
        a("s_mov_b64 exec, -1")
        labp=a.newlabel('Lok'); a(f"s_cbranch_scc0 {labp}")
        if not opts.get('nolnwait'): poll(a, [vPk[0]], PKF, mask=(0xffffff,0), sleep=4)
        a.label(labp)
    PKLATE=not opts.get('stgepi',0)
    if not PKLATE: pk_check()
    EA=Pq; EB=Pq+12
    a(f"v_and_b32 v{t0}, 15, v{lane}\nv_lshrrev_b32 v{t1}, 4, v{lane}\nv_lshlrev_b32 v{t1}, 4, v{t1}\nv_lshl_add_u32 v{t1}, v{t0}, 6, v{t1}")
    a(f"s_lshr_b32 s{sTmp}, s{sWv}, 1\ns_lshl_b32 s{sTmp}, s{sTmp}, 1\ns_and_b32 s{sTmp2}, s{sWv}, 1\ns_add_u32 s{sTmp}, s{sTmp}, s{sTmp2}\ns_mul_i32 s{sTmp}, s{sTmp}, 384")
    a(f"v_add_u32 v{t1}, s{sTmp}, v{t1}")
    a(f"s_mov_b32 exec_lo, 0x00030003\ns_mov_b32 exec_hi, 0x00030003")
    for j in range(3): a(f"ds_write_b128 v{t1}, v[{CACC+4*j}:{CACC+4*j+3}] offset:{128*j}")
    a("s_mov_b64 exec, -1")
    a("s_waitcnt lgkmcnt(0)\ns_barrier")
    a(f"v_bfe_u32 v{t1}, v{lane}, 4, 1\nv_lshlrev_b32 v{t1}, 6, v{t1}\nv_lshl_add_u32 v{t1}, v{t0}, 2, v{t1}")
    a(f"s_lshr_b32 s{sTmp}, s{sWv}, 1\ns_mul_i32 s{sTmp}, s{sTmp}, 768\nv_add_u32 v{t1}, s{sTmp}, v{t1}")
    for j in range(3):
        a(f"ds_read_b32 v{CSR+2*j}, v{t1} offset:{128*j}\nds_read_b32 v{CSR+2*j+1}, v{t1} offset:{128*j+384}")
    a(f"v_cmp_gt_u32 vcc, 32, v{lane}")
    a("s_waitcnt lgkmcnt(0)\ns_barrier")
    sT64=65; sCT=66; sA=67; sB=72; sStg=76; sA8=77
    a(f"s_lshr_b32 s{sT64}, s{sX}, 1\ns_lshl_b32 s{sT64}, s{sT64}, 3\ns_add_u32 s{sT64}, s{sT64}, s{sJT}")
    a(f"s_and_b32 s{sCT}, s{sX}, 1\ns_lshl_b32 s{sCT}, s{sCT}, 2\ns_add_u32 s{sCT}, s{sCT}, s{sJF}")
    a(f"s_mul_i32 s{sTmp}, s{sWv}, {12*1024}\ns_mul_i32 s{sTmp2}, s{sCT}, {5*49152}\ns_add_u32 s{sTmp2}, s{sTmp2}, s{sTmp}")
    for m in range(5): a(f"s_add_u32 s{sA+m}, s{sTmp2}, {WS_W2P+m*49152}")
    vL16=4
    a(f"v_lshlrev_b32 v{vL16}, 4, v{lane}")
    a(f"s_mul_i32 s{sStg}, s{sWv}, 20480")
    vt=VmTrack(a)
    stg=[(m,k) for m in range(5) for k in range(4)]
    STG8=[8192]
    def stage_one():
        if not stg: return
        m,k=stg.pop(0)
        if k==0: a(f"s_add_u32 m0, s{sStg}, {m*4096}\ns_add_u32 s{sA8}, s{sA+m}, {STG8[0]}")
        vt.issue(f"buffer_load_dwordx4 v{vL16}, s[{SWS}:{SWS+3}], s{sA8} offen offset:{k*1024} sc1 lds", 'stg')
    for j in range(3):
        a(f"v_add_f32 v{t0}, v{CSR+2*j}, v{CSR+2*j+1}")
        a(f"v_cvt_pk_bf16_f32 v{t1}, v{t0}, v{t0}\nv_and_b32 v{t1}, 0xffff0000, v{t1}")
        a(f"v_sub_f32 v{t0}, v{t0}, v{t1}")
        a(f"v_cvt_pk_bf16_f32 v{t0}, v{t1}, v{t0}")
        a(f"v_cndmask_b32 v{EA+4*j}, 0, v{t0}, vcc")
        for r in range(1,4): a(f"v_mov_b32 v{EA+4*j+r}, 0")
    for nt in range(2):
        a(f"v_cvt_pk_bf16_f32 v{t0}, v{STAT+2*nt}, v{STAT+2*nt}")
        a(f"v_cndmask_b32 v{EB+4*nt}, 0, v{t0}, vcc")
        for r in range(1,4): a(f"v_mov_b32 v{EB+4*nt+r}, 0")
    for (j,nt) in ORDER: mfma(Pq,j,nt)
    C1=[214,215]; IR2=[208,209]
    for nt in range(2):
        r=STAT+2*nt+1
        a(f"v_mul_f32 v{C1[nt]}, 0xbfb8aa3b, v{r}")
        a(f"v_mul_f32 v{IR2[nt]}, v{r}, v{r}\nv_rcp_f32 v{IR2[nt]}, v{IR2[nt]}")
    T=216; O=232
    k=0
    for (j,nt) in ORDER:
        d=ACC+16*(2*j+nt); o=O+4*(k%2)
        k+=1
        sg=(lambda: stage_one()) if opts.get('stgepi',0) else (lambda: None)
        for i in range(8): a(f"v_mul_f32 v{T+i}, v{d+i}, v{C1[nt]}")
        sg()
        for i in range(8): a(f"v_exp_f32 v{T+i}, v{T+i}")
        sg()
        for i in range(8): a(f"v_mul_f32 v{d+i}, v{d+i}, v{d+8+i}")
        for i in range(8): a(f"v_fma_f32 v{T+i}, v{T+i}, v{IR2[nt]}, v{IR2[nt]}")
        sg()
        for i in range(8): a(f"v_rcp_f32 v{T+i}, v{T+i}")
        sg()
        for i in range(8): a(f"v_mul_f32 v{T+i}, v{T+i}, v{d+i}")
        for p in range(4): a(f"v_cvt_pk_bf16_f32 v{o+p}, v{T+2*p}, v{T+2*p+1}")
        a(f"v_permlane32_swap_b32 v{o}, v{o+2}\nv_permlane32_swap_b32 v{o+1}, v{o+3}")
        a(f"s_mov_b32 s{sTmp}, {nt*2*49152+j*512}")
        vt.issue(f"buffer_store_dwordx4 v[{o}:{o+3}], v{vSt}, s[{SWS}:{SWS+3}], s{sTmp} offen sc1", 'h')
    S(4)
    if opts.get('gate',1)==2:
        a(f"s_lshl_b32 s{sTmp}, s2, 6\ns_add_u32 s{sTmp}, s{sTmp}, {FL_UD}")
        flag_store(a, sTmp, t0)
    vRed=5; vXo=6; vAt=7; vHf=8; vAf=9; vTm=10
    DACC=12
    AF=92
    BF=192
    NB=4
    vDum=vRed
    a(f"s_mul_i32 s{sTmp2}, s{sT64}, {4*49152}\ns_mul_i32 s{sTmp}, s{sWv}, {12*1024}\ns_add_u32 s{sTmp2}, s{sTmp2}, s{sTmp}\ns_add_u32 s{sTmp2}, s{sTmp2}, {WS_H}")
    for n in range(4):
        a(f"s_add_u32 s{sB+n}, s{sWv}, {n}\ns_and_b32 s{sB+n}, s{sB+n}, 3\ns_mul_i32 s{sB+n}, s{sB+n}, 49152\ns_add_u32 s{sB+n}, s{sB+n}, s{sTmp2}")
    def ldA(k,m):
        fb=AF+20*(k%5)
        vt.issue(f"buffer_load_dwordx4 v[{fb+4*m}:{fb+4*m+3}], v{vL16}, s[{SWS}:{SWS+3}], s{sA+m} offen offset:{(k%4)*1024} sc1", f"a{k}")
        if k%4==3: a(f"s_add_u32 s{sA+m}, s{sA+m}, 4096")
    def ldB(k,n):
        fb=BF+16*(k%NB)
        vt.issue(f"buffer_load_dwordx4 v[{fb+4*n}:{fb+4*n+3}], v{vL16}, s[{SWS}:{SWS+3}], s{sB+n} offen offset:{(k%4)*1024} sc1", f"b{k}")
        if k%4==3: a(f"s_add_u32 s{sB+n}, s{sB+n}, 4096")
    if PKLATE:
        pk_check()
        a("s_barrier")
    NPRE=opts.get('npre',3)
    for k in range(NPRE):
        for m in range(5): ldA(k,m)
    vt.wait('h')
    a(f"s_lshl_b32 s{sTmp}, s{sT}, 4\ns_add_u32 s{sTmp}, s{sTmp}, s{sFT}\ns_lshl_b32 s{sTmp}, s{sTmp}, 2\ns_add_u32 s{sTmp}, s{sTmp}, s{sWv}\ns_lshl_b32 s{sTmp}, s{sTmp}, 6\ns_add_u32 s{sTmp}, s{sTmp}, {FL_H}")
    a(f"v_mov_b32 v{t0}, 0\nv_mov_b32 v{t1}, s{S_NONCE}\ns_mov_b64 exec, 1")
    vt.issue(f"buffer_store_dword v{t1}, v{t0}, s[{SWS}:{SWS+3}], s{sTmp} offen sc1", 'f')
    a("s_mov_b64 exec, -1")
    S(5)
    for k in range(NPRE,5):
        for m in range(5): ldA(k,m)
    STG8[0]=4096 if PKLATE else 8192
    while stg: stage_one()
    for r in range(80): a(f"v_mov_b32 v{DACC+r}, 0")
    a(f"v_and_b32 v{t0}, 15, v{lane}\ns_lshl_b32 s{sTmp}, s{sT64}, 6\ns_lshl_b32 s{sTmp2}, s{sWv}, 4\ns_add_u32 s{sTmp}, s{sTmp}, s{sTmp2}\nv_add_u32 v{t0}, s{sTmp}, v{t0}")
    a(f"v_lshrrev_b32 v{t1}, 4, v{lane}\nv_mul_u32_u24 v{vXo}, 1280, v{t0}\nv_lshl_add_u32 v{vXo}, v{t1}, 3, v{vXo}")
    a(f"s_mul_i32 s{sTmp}, s{sCT}, 160\nv_add_u32 v{vXo}, s{sTmp}, v{vXo}")
    a(f"v_lshlrev_b32 v{vAt}, 14, v{t1}\nv_lshl_add_u32 v{vAt}, v{t0}, 1, v{vAt}")
    a(f"s_mul_i32 s{sTmp}, s{sCT}, {80*4096}\ns_add_u32 s{sTmp}, s{sTmp}, {WS_AT}\nv_add_u32 v{vAt}, s{sTmp}, v{vAt}")
    a(f"s_lshr_b32 s{sTmp}, s{sT64}, 1\ns_lshl_b32 s{sTmp}, s{sTmp}, 6\ns_and_b32 s{sTmp2}, s{sT64}, 1\ns_add_u32 s{sTmp}, s{sTmp}, s{sTmp2}")
    a(f"v_bfe_u32 v{t0}, v{lane}, 1, 4\nv_lshlrev_b32 v{t0}, 2, v{t0}\nv_and_b32 v{t1}, 1, v{lane}\nv_lshl_add_u32 v{t0}, v{t1}, 1, v{t0}\nv_add_u32 v{t0}, s{sTmp}, v{t0}")
    a(f"v_lshlrev_b32 v{t0}, 6, v{t0}\nv_add_u32 v{vHf}, {FL_H}, v{t0}")
    a(f"s_mul_i32 s{sTmp}, s{sCT}, {20*64}\ns_add_u32 s{sTmp}, s{sTmp}, {FL_A}")
    a(f"s_mul_i32 s{sTmp2}, s{sWv}, {5*64}\ns_add_u32 s{sTmp}, s{sTmp}, s{sTmp2}")
    a(f"v_min_u32 v{t0}, 4, v{lane}\nv_lshlrev_b32 v{t0}, 6, v{t0}\nv_add_u32 v{vAf}, s{sTmp}, v{t0}")
    vSg=11
    a(f"v_add_u32 v{vSg}, s{sStg}, v{vL16}")
    SD(1)
    lh=a.newlabel('Lhp')
    a(f"s_cmp_lg_u32 s{sWv}, 0\ns_cbranch_scc1 {lh}")
    poll(a, [vHf], vTm, force=True, mask=(0xffffffff,0), sleep=opts.get('slph',2))
    a.label(lh)
    a("s_waitcnt vmcnt(0)\ns_barrier"); vt.q=[]
    S(6); SD(2)
    for k in range(NB):
        for n in range(4): ldB(k,n)
    if opts.get('touch_h',0):
        a(f"s_lshl_b32 s{sTmp}, s{sT64}, 2\ns_add_u32 s{sTmp}, s{sTmp}, s{sJF}\ns_mul_i32 s{sTmp}, s{sTmp}, 49152\ns_mul_i32 s{sTmp2}, s{sWv}, {12*1024}\ns_add_u32 s{sTmp}, s{sTmp}, s{sTmp2}\ns_add_u32 s{sTmp}, s{sTmp}, {WS_H+3*1024}")
        a(f"v_lshlrev_b32 v{t0}, 7, v{lane}")
        vt.issue(f"buffer_load_dword v{vDum}, v{t0}, s[{SWS}:{SWS+3}], s{sTmp} offen", 'x')
        a(f"s_add_u32 s{sTmp}, s{sTmp}, 8192\ns_mov_b64 exec, 0xff")
        vt.issue(f"buffer_load_dword v{vDum}, v{t0}, s[{SWS}:{SWS+3}], s{sTmp} offen", 'x')
        a("s_mov_b64 exec, -1")
    XR=AF+40; AR=AF+50
    lt=LdsTrack(a)
    for k in range(12):
        vt.wait(f"b{k}")
        if k<8: assert f"a{k}" not in vt.q
        if k>=8: lt.wait(f"a{k}")
        if k in (0,3,6,9): SD({0:3,3:4,6:5,9:6}[k])
        fa=AF+20*(k%5); fb=BF+16*(k%NB)
        side=[]
        if k>=1 and k-1+NB<12: side+= [('B',k-1+NB,n) for n in range(4)]
        norder=(1,2,3,0) if k==11 else (0,1,2,3)
        si=0
        for m in range(5):
            for n in norder:
                d=DACC+4*(m*4+n)
                a(f"v_mfma_f32_16x16x32_bf16 v[{d}:{d+3}], v[{fa+4*m}:{fa+4*m+3}], v[{fb+4*n}:{fb+4*n+3}], v[{d}:{d+3}]")
                if n==norder[1] and si<len(side):
                    ldB(side[si][1],side[si][2]); si+=1
            kn=k+5
            if kn<8: ldA(kn,m)
            elif kn<12:
                lt.issue(f"ds_read_b128 v[{fa+4*m}:{fa+4*m+3}], v{vSg} offset:{m*4096+(kn-8)*1024}", f"a{kn}")
        while si<len(side):
            ldB(side[si][1],side[si][2]); si+=1
        if k==2:
            pass
        if k==8:
            a("s_mov_b64 exec, 31")
            vt.issue(f"buffer_load_dword v{vTm}, v{vAf}, s[{SWS}:{SWS+3}], 0 offen sc1", 'af')
            a("s_mov_b64 exec, -1")
            for m in range(5):
                vt.issue(f"buffer_load_dwordx2 v[{XR+2*m}:{XR+2*m+1}], v{vXo}, s[{SX}:{SX+3}], 0 offen offset:{32*m}", 'e')
    S(7); SD(7)
    if opts.get('clk'): a("s_mov_b32 s96, s51")
    vt.wait('af')
    a("s_mov_b64 exec, 31")
    poll_check(a, 1, vTm)
    a("s_mov_b64 exec, -1")
    lab3=a.newlabel('Lok'); a(f"s_cbranch_scc0 {lab3}")
    if opts.get('only')!=4: poll(a, [vAf], vTm, mask=(31,0), sleep=2)
    a.label(lab3)
    a("s_barrier")
    for m in range(5):
        for r in range(4):
            a(f"s_mov_b32 s{sTmp}, {(16*m+r)*4096}")
            vt.issue(f"buffer_load_ushort v{AR+4*m+r}, v{vAt}, s[{SWS}:{SWS+3}], s{sTmp} offen sc1", 'e')
    for n in range(1,4):
        a(f"s_add_u32 s{sTmp}, s{sWv}, {n}\ns_and_b32 s{sTmp}, s{sTmp}, 3\ns_mul_i32 s{sTmp}, s{sTmp}, {15*1024}\ns_add_u32 s{sTmp}, s{sTmp}, {(n-1)*5*1024}")
        a(f"v_add_u32 v{vRed}, s{sTmp}, v{vL16}")
        for m in range(5):
            d=DACC+4*(m*4+n)
            a(f"ds_write_b128 v{vRed}, v[{d}:{d+3}] offset:{m*1024}")
    a("s_waitcnt lgkmcnt(0)\ns_barrier")
    a(f"s_mul_i32 s{sTmp}, s{sWv}, {15*1024}\nv_add_u32 v{vRed}, s{sTmp}, v{vL16}")
    RB=192
    for si in range(3):
        for m in range(5):
            a(f"ds_read_b128 v[{RB+(si*5+m)*4}:{RB+(si*5+m)*4+3}], v{vRed} offset:{(si*5+m)*1024}")
    SRO=52
    srd(a,SRO,P["out"],X_BYTES)
    for si in range(3):
        a(f"s_waitcnt lgkmcnt({10-5*si})")
        for m in range(5):
            for r in range(4):
                x=DACC+4*(m*4)+r; y=RB+(si*5+m)*4+r
                a(f"v_add_f32 v{x}, v{x}, v{y}")
    a("s_waitcnt vmcnt(0)")
    T=92
    for m in range(5):
        x0=XR+2*m; f0=DACC+16*m
        a(f"v_lshlrev_b32 v{T}, 16, v{x0}\nv_and_b32 v{T+1}, 0xffff0000, v{x0}\nv_lshlrev_b32 v{T+2}, 16, v{x0+1}\nv_and_b32 v{T+3}, 0xffff0000, v{x0+1}")
        for r in range(4): a(f"v_lshlrev_b32 v{AR+4*m+r}, 16, v{AR+4*m+r}")
        for r in range(4): a(f"v_add_f32 v{T+r}, v{T+r}, v{AR+4*m+r}")
        for p in range(2): a(f"v_cvt_pk_bf16_f32 v{T+4+p}, v{T+2*p}, v{T+2*p+1}")
        for p in range(2): a(f"v_cvt_pk_bf16_f32 v{T+6+p}, v{f0+2*p}, v{f0+2*p+1}")
        o=T+8+2*(m%2)
        for p in range(2):
            a(f"v_lshlrev_b32 v{T}, 16, v{T+4+p}\nv_and_b32 v{T+1}, 0xffff0000, v{T+4+p}\nv_lshlrev_b32 v{T+2}, 16, v{T+6+p}\nv_and_b32 v{T+3}, 0xffff0000, v{T+6+p}")
            a(f"v_add_f32 v{T}, v{T}, v{T+2}\nv_add_f32 v{T+1}, v{T+1}, v{T+3}\nv_cvt_pk_bf16_f32 v{o+p}, v{T}, v{T+1}")
        a(f"buffer_store_dwordx2 v[{o}:{o+1}], v{vXo}, s[{SRO}:{SRO+3}], 0 offen offset:{32*m}")
    lab4=a.newlabel('Lnn')
    a(f"s_cmp_lg_u32 s2, 0\ns_cbranch_scc1 {lab4}\ns_cmp_lg_u32 s{sWv}, 0\ns_cbranch_scc1 {lab4}")
    for i in range(4): a(f"v_add_u32 v{100+i}, {64*i}, v{lane}\nv_lshlrev_b32 v{100+i}, 8, v{100+i}\nv_add_u32 v{100+i}, {FL_H}, v{100+i}")
    for i in range(3): a(f"v_add_u32 v{104+i}, {64*i}, v{lane}\nv_min_u32 v{104+i}, 159, v{104+i}\nv_lshlrev_b32 v{104+i}, 6, v{104+i}\nv_add_u32 v{104+i}, {FL_A}, v{104+i}")
    if opts.get('only')!=4: poll(a, [100,101,102,103,104,105,106], 108)
    a(f"s_mov_b32 s{sTmp}, {WS_NONCE}")
    flag_store(a, sTmp, t0)
    a.label(lab4)
```

```python
from f_common import *
from f_ln8 import *
TBL=18432
ROW=288
KN_OFF=[0, 32448, 36864, 69312]
U_OFF=4416
R_OFF=[U_OFF+18432, 41280, 41280+8448, 41280+2*8448]
RC=2112
LOG2E=0x3fb8aa3b
INV2PI=0x3e22f983

USEPK=0
def cmul(a, d, x, w):
    if USEPK:
        a(f"v_pk_mul_f32 v[{d}:{d+1}], v[{x}:{x+1}], v[{w}:{w+1}] op_sel:[0,0] op_sel_hi:[0,1]")
        a(f"v_pk_fma_f32 v[{d}:{d+1}], v[{x}:{x+1}], v[{w}:{w+1}], v[{d}:{d+1}] op_sel:[1,1,0] op_sel_hi:[1,0,1] neg_lo:[0,1,0]")
    else:
        a(f"v_mul_f32 v{d}, v{x}, v{w}")
        a(f"v_mul_f32 v{d+1}, v{x}, v{w+1}")
        a(f"v_fma_f32 v{d}, -v{x+1}, v{w+1}, v{d}")
        a(f"v_fma_f32 v{d+1}, v{x+1}, v{w}, v{d+1}")

def emit_ssm(a, S_, opts, st=' sc1', ld=' sc1', sb=64):
    global USEPK
    USEPK=opts.get('kpk',0)
    if opts.get('prio'): a(f"s_setprio {opts.get('p0',3)}")
    st_=S_; sQ=46; sPtrDt=P['logdt']; sPtrD=P['Dskip']
    SP=dict(logA=48,Aim=52,Cre=56,Cim=60)
    a(f's_sub_u32 s{sQ}, s2, 256')
    for n_ in SP: srd(a,SP[n_],P[n_],D*N*2)
    S=st_ if st_ else (lambda i: None)
    sWv=sb; sCh=sb+1; sTmp=sb+2; sTmp2=sb+3; sDt=sb+4; sD=sb+5; sTb=sb+6; sCnt=sb+7; sPo=sb+8; sKn=sb+9; sR=sb+10; sMask=sb+12; sBf=sb+14
    lane=1; t0=2; t1=3; vP=238; vTw=5; vTrA=6; vTrB=7
    a(f"v_and_b32 v{lane}, 63, v0")
    a(f"v_lshrrev_b32 v{t0}, 6, v0")
    a(f"v_readfirstlane_b32 s{sWv}, v{t0}")
    a(f"s_lshl_b32 s{sCh}, s{sQ}, 2")
    a(f"s_add_u32 s{sCh}, s{sCh}, s{sWv}")
    if opts.get('fakessm'):
        nonce_load(a)
        a("s_waitcnt vmcnt(0)")
        nonce_ready(a)
        a(f"s_lshl_b32 s{sTmp}, s{sQ}, 6\ns_add_u32 s{sTmp}, s{sTmp}, {FL_A}")
        flag_store(a, sTmp, 2)
        S(7)
        return
    LN2=opts.get('ln2',0)
    sLam=47
    if LN2:
        a(f"s_and_b32 s{sLam}, s2, 7\ns_lshl_b32 s{sLam}, s{sLam}, 5\ns_lshr_b32 s{sTmp}, s{sQ}, 3\ns_add_u32 s{sLam}, s{sLam}, s{sTmp}")
        ln8_loads(a, sLam, 64, 80)
    a(f"s_lshr_b32 s{sTmp}, s{sCh}, 1\ns_lshl_b32 s{sTmp}, s{sTmp}, 2")
    a(f"s_load_dword s{sDt}, s[{sPtrDt}:{sPtrDt+1}], s{sTmp}")
    a(f"s_load_dword s{sD}, s[{sPtrD}:{sPtrD+1}], s{sTmp}")
    PR=240
    a(f"s_mul_i32 s{sPo}, s{sCh}, 384")
    a(f"v_lshlrev_b32 v{vP}, 1, v{lane}")
    for p in range(3):
        for i,nm in enumerate(("logA","Aim","Cre","Cim")):
            a(f"buffer_load_ushort v{PR+4*p+i}, v{vP}, s[{SP[nm]}:{SP[nm]+3}], s{sPo} offen offset:{128*p}")
    nonce_load(a)
    NT=1+(k_touch(a, sWv, lane, 24, 235) if opts.get('ktouch',1)==1 else 0)
    if opts.get('prio'): a(f"s_setprio {opts.get('sprio',1)}")
    if LN2:
        a(f"s_waitcnt vmcnt({12+NT})")
        ln8_compute(a, sLam, sWv, 64, 80, 0)
        a("s_waitcnt lgkmcnt(0)\ns_barrier")
        NT+=4
    a(f"s_mul_i32 s{sTb}, s{sWv}, {TBL}")
    vTw1=8
    a(f"v_mul_u32_u24 v{vTw}, {ROW}, v{lane}")
    a(f"v_add_u32 v{vTw}, s{sTb}, v{vTw}")
    a(f"v_bfe_u32 v{t0}, v{lane}, 2, 1\nv_lshlrev_b32 v{t0}, 4, v{t0}")
    a(f"v_sub_u32 v{vTw1}, v{vTw}, v{t0}\nv_add_u32 v{vTw}, v{vTw}, v{t0}")
    a(f"v_bfe_u32 v{t0}, v{lane}, 4, 1")
    a(f"v_lshlrev_b32 v{t0}, 2, v{t0}")
    a(f"v_bfe_u32 v{t1}, v{lane}, 2, 2")
    a(f"v_add_u32 v{t0}, v{t0}, v{t1}")
    a(f"v_mul_u32_u24 v{vTrA}, {ROW}, v{t0}")
    a(f"v_and_b32 v{t1}, 1, v{lane}")
    a(f"v_lshl_add_u32 v{vTrA}, v{t1}, 3, v{vTrA}")
    a(f"v_bfe_u32 v{t1}, v{lane}, 1, 1\nv_bfe_u32 v{t0}, v{lane}, 4, 1\nv_xor_b32 v{t1}, v{t1}, v{t0}")
    a(f"v_lshl_add_u32 v{vTrA}, v{t1}, 4, v{vTrA}")
    a(f"v_add_u32 v{vTrA}, s{sTb}, v{vTrA}")
    a(f"v_lshrrev_b32 v{t0}, 5, v{lane}")
    a(f"v_mul_u32_u24 v{t1}, 32, v{t0}")
    a(f"v_add_u32 v{vTrB}, v{vTrA}, v{t1}")
    a(f"v_add_u32 v{vTrB}, 192, v{vTrB}")
    a(f"v_mul_u32_u24 v{t1}, 96, v{t0}")
    a(f"v_add_u32 v{vTrA}, v{vTrA}, v{t1}")
    vDt=20; vDs=21
    a("s_waitcnt lgkmcnt(0)")
    a(f"s_and_b32 s{sTmp}, s{sCh}, 1\ns_lshl_b32 s{sTmp}, s{sTmp}, 4")
    a(f"s_lshr_b32 s{sDt}, s{sDt}, s{sTmp}\ns_lshl_b32 s{sDt}, s{sDt}, 16")
    a(f"s_lshr_b32 s{sD}, s{sD}, s{sTmp}\ns_lshl_b32 s{sD}, s{sD}, 16")
    a(f"v_mov_b32 v{vDt}, s{sDt}")
    a(f"v_mul_f32 v{vDt}, {hex(LOG2E)}, v{vDt}")
    a(f"v_exp_f32 v{vDt}, v{vDt}")
    a(f"v_cvt_pk_bf16_f32 v{vDt}, v{vDt}, v{vDt}")
    a(f"v_and_b32 v{vDt}, 0xffff0000, v{vDt}")
    KACC=24
    for r in range(12): a(f"v_mov_b32 v{KACC+r}, 0")
    CUR=36
    AR=40; TH=41; Z1=42; Z8=44; Z128=46; M=48; TT=49
    H=52
    S1=84
    S2=100
    S3=116
    Lr=136
    PK=172
    FR=204
    a(f"s_waitcnt vmcnt({NT})")
    S(1)
    if opts.get('ktouch',1)==2: k_touch(a, sWv, lane, 24, 235, g0=2)
    a(f"s_mov_b32 s{sCnt}, {opts.get('kgrep',3)}")
    lab=a.newlabel('Lkg'); a.label(lab)
    KG0=len(a.ins)
    for i in range(4): a(f"v_lshlrev_b32 v{CUR+i}, 16, v{PR+i}")
    for i in range(8): a(f"v_mov_b32 v{PR+i}, v{PR+4+i}")
    a(f"v_mul_f32 v{AR}, {hex(LOG2E)}, v{CUR}")
    a(f"v_exp_f32 v{AR}, v{AR}")
    a(f"v_cvt_pk_bf16_f32 v{AR}, v{AR}, v{AR}")
    a(f"v_and_b32 v{AR}, 0xffff0000, v{AR}")
    a(f"v_mul_f32 v{AR}, v{AR}, v{vDt}")
    a(f"v_mul_f32 v{AR}, {hex(LOG2E|0x80000000)}, v{AR}")
    a(f"v_mul_f32 v{TH}, v{CUR+1}, v{vDt}")
    a(f"v_mul_f32 v{TH}, {hex(INV2PI)}, v{TH}")
    def zpow(dst, mult):
        if mult==1:
            a(f"v_exp_f32 v{M}, v{AR}")
            a(f"v_fract_f32 v{TT}, v{TH}")
        else:
            a(f"v_mul_f32 v{M}, {float(mult)}, v{AR}" if mult in (2,4) else f"v_mul_f32 v{M}, {hex(0x41000000)}, v{AR}")
            a(f"v_exp_f32 v{M}, v{M}")
            a(f"v_mul_f32 v{TT}, {hex(0x41000000)}, v{TH}")
            a(f"v_fract_f32 v{TT}, v{TT}")
        a(f"v_cos_f32 v{dst}, v{TT}")
        a(f"v_sin_f32 v{dst+1}, v{TT}")
        a(f"v_mul_f32 v{dst}, v{M}, v{dst}")
        a(f"v_mul_f32 v{dst+1}, v{M}, v{dst+1}")
    zpow(Z1,1); zpow(Z8,8)
    a(f"v_add_f32 v{M}, v{vDt}, v{vDt}")
    a(f"v_mul_f32 v{H}, v{CUR+2}, v{M}")
    a(f"v_mul_f32 v{H+1}, v{CUR+3}, v{M}")
    nchunk=[0]
    def wr(vals, im, neg, c):
        base=PK+4*(nchunk[0]%8); nchunk[0]+=1
        cnt=len(vals)//2
        for p in range(cnt):
            x=vals[2*p]+im; y=vals[2*p+1]+im
            if neg: a(f"v_cvt_pk_bf16_f32 v{base+p}, -v{x}, -v{y}")
            else: a(f"v_cvt_pk_bf16_f32 v{base+p}, v{x}, v{y}")
        reg=vTw if c%2==0 else vTw1
        if cnt==4: a(f"ds_write_b128 v{reg}, v[{base}:{base+3}] offset:{16*c}")
        else: a(f"ds_write_b32 v{reg}, v{base} offset:{16*c}")
    def wrH(vals, i):
        wr(vals,0,False,i); wr(vals,1,True,6+i)
    a(f"v_mov_b32 v{Lr}, 1.0\nv_mov_b32 v{Lr+1}, 0")
    a(f"v_mov_b32 v{Lr+2}, v{Z8}\nv_mov_b32 v{Lr+3}, v{Z8+1}")
    for j in range(2,17):
        cmul(a, Lr+2*j, Lr+2*(j-1), Z8)
        if j<=8:
            r=j-1
            cmul(a, H+2*r, H+2*(r-1), Z1)
        if j==8:
            L0=[Lr+2*i for i in range(8)]
            wr(L0,0,False,12); wr(L0,1,False,14)
        if j==10: wrH([H+2*i for i in range(8)],0)
    L1=[Lr+2*i for i in range(8,16)]
    z128=Lr+32
    for r in range(8):
        cmul(a, H+2*(8+r), H+2*r, z128)
        if r==3: wr(L1,0,False,13)
        if r==7: wr(L1,1,False,15)
    for r in range(4): cmul(a, S1+2*r, H+2*(8+2*r), z128)
    wrH([H+2*i for i in range(8,16)],1)
    for r in range(4): cmul(a, S1+2*(4+r), S1+2*r, z128)
    cmul(a, S2, S1+8, z128); cmul(a, S2+2, S1+8+4, z128)
    wrH([S1+2*i for i in range(8)],2)
    for i in range(1,4):
        for r in range(2): cmul(a, S2+4*i+2*r, S2+4*(i-1)+2*r, z128)
    cmul(a, S3, S2+12, z128)
    for i in range(1,9):
        cmul(a, S3+2*i, S3+2*(i-1), z128)
        if i==2: wrH([S2+2*i_ for i_ in range(8)],3)
    a(f"v_mov_b32 v{S3+18}, 0\nv_mov_b32 v{S3+19}, 0")
    wrH([S3+2*i for i in range(8)],4)
    wrH([S3+16,S3+18],5)
    a("s_waitcnt lgkmcnt(0)")
    FB=52
    for s_ in range(4):
        fb=FB+16*s_
        for q in range(2):
            a(f"ds_read_b64_tr_b16 v[{fb+12+2*q}:{fb+12+2*q+1}], v{vTrB} offset:{(16*s_+8*q)*ROW}")
        for t in range(3):
            for q in range(2):
                a(f"ds_read_b64_tr_b16 v[{fb+4*t+2*q}:{fb+4*t+2*q+1}], v{vTrA} offset:{(16*s_+8*q)*ROW+32*t}")
    for s_ in range(4):
        fb=FB+16*s_
        a(f"s_waitcnt lgkmcnt({min(15,8*(3-s_))})")
        for t in range(3):
            a(f"v_mfma_f32_16x16x32_bf16 v[{KACC+4*t}:{KACC+4*t+3}], v[{fb+4*t}:{fb+4*t+3}], v[{fb+12}:{fb+15}], v[{KACC+4*t}:{KACC+4*t+3}]")
    if LN2:
        labf=a.newlabel('Lnf')
        a(f"s_cmp_lg_u32 s{sCnt}, 3\ns_cbranch_scc1 {labf}")
        a("s_waitcnt vmcnt(0)\ns_barrier")
        nonce_ready(a)
        a(f"s_lshl_b32 s{sTmp}, s{sLam}, 6\ns_add_u32 s{sTmp}, s{sTmp}, {FL_LN}")
        flag_store(a, sTmp, 170)
        a.label(labf)
    if any(opts.get(k_) for k_ in ('kg_nods','kg_nomfma','kg_novalu','kg_nocvt','kg_nowr','kg_nord','kg_notrans','kg_nowait')):
        body=a.ins[KG0:]; keep=[]
        for x in body:
            if opts.get('kg_nods') and x.kind=='ds': continue
            if opts.get('kg_nomfma') and x.kind=='mfma': continue
            if opts.get('kg_novalu') and x.kind in ('valu','trans'): continue
            if opts.get('kg_nocvt') and x.op.startswith('v_cvt_pk'): continue
            if opts.get('kg_nowr') and x.op.startswith('ds_write'): continue
            if opts.get('kg_nord') and x.op.startswith('ds_read'): continue
            if opts.get('kg_notrans') and x.kind=='trans': continue
            if opts.get('kg_nowait') and x.op=='s_waitcnt': continue
            keep.append(x)
        a.ins=a.ins[:KG0]+keep
    a(f"s_sub_u32 s{sCnt}, s{sCnt}, 1")
    a(f"s_cmp_lg_u32 s{sCnt}, 0")
    a("s_nop 4")
    a(f"s_cbranch_scc1 {lab}")
    S(2)
    if opts.get('kgexit'): return
    for w in range(4):
        pass
    a(f"s_mov_b32 s{sKn}, {KN_OFF[0]}\ns_mov_b32 s{sR}, {R_OFF[0]}")
    for w in range(1,4):
        a(f"s_cmp_eq_u32 s{sWv}, {w}\ns_cselect_b32 s{sKn}, {KN_OFF[w]}, s{sKn}\ns_cselect_b32 s{sR}, {R_OFF[w]}, s{sR}")
    vJ=36; vG=37; vK=38; vK2=39; B=40
    a(f"v_and_b32 v{vJ}, 15, v{lane}")
    a(f"v_lshrrev_b32 v{vG}, 4, v{lane}")
    a(f"v_lshlrev_b32 v{vK}, 2, v{lane}")
    a(f"v_add_u32 v{vK}, s{sKn}, v{vK}")
    a(f"v_mov_b32 v{B}, 0")
    a(f"s_mov_b64 s[{sMask}:{sMask+1}], 0xfff")
    a(f"s_mov_b64 exec, s[{sMask}:{sMask+1}]")
    a(f"ds_write_b32 v{vK}, v{B}")
    a(f"s_mov_b64 exec, -1")
    a(f"v_lshlrev_b32 v{vK}, 4, v{vJ}")
    a(f"v_add_u32 v{vK}, s{sKn}, v{vK}")
    a(f"v_add_u32 v{vK}, 48, v{vK}")
    T2=KACC+8
    a(f"v_lshlrev_b32 v{vK2}, 10, v{vG}")
    a(f"v_add_u32 v{vK2}, v{vK}, v{vK2}")
    a(f"v_add_u32 v{vK2}, 2048, v{vK2}")
    a(f"v_and_b32 v{t0}, 1, v{vJ}")
    a(f"v_lshlrev_b32 v{t0}, 3, v{t0}")
    a(f"v_sub_u32 v{t1}, v{vK2}, v{t0}")
    for r in range(4):
        a(f"v_cvt_pk_bf16_f32 v{B+2*r}, v{T2+r}, v{T2+r}")
        a(f"v_mov_b32 v{B+2*r+1}, v{B+2*r}")
    def seg3(r):
        a(f"ds_write_b64 v{vK2}, v[{B+2*r}:{B+2*r+1}] offset:{r*256}")
    a(f"v_subrev_u32 v{vK2}, 8, v{vK2}")
    for r in range(4):
        a(f"s_mov_b64 exec, {hex(0x1ffffffff) if r==0 else hex(0xffffffff)}" if False else f"s_mov_b32 exec_lo, -1\ns_mov_b32 exec_hi, {1 if r==0 else 0}")
        a(f"ds_write_b64 v{vK2}, v[{B+2*r}:{B+2*r+1}] offset:{r*256}")
        a(f"ds_write_b64 v{vK2}, v[{B+2*r}:{B+2*r+1}] offset:{r*256+8}")
    for r in range(4):
        a(f"s_mov_b32 exec_lo, -1\ns_mov_b32 exec_hi, {1 if r==0 else 0}")
        a(f"ds_write_b16 v{t1}, v{B+2*r} offset:{r*256+8}")
    a("s_mov_b64 exec, -1")
    T1=KACC+4
    a(f"v_subrev_u32 v{t0}, 2, v{vG}")
    a(f"v_lshlrev_b32 v{t0}, 9, v{t0}")
    a(f"v_add_u32 v{vK2}, v{vK}, v{t0}")
    a(f"v_add_u32 v{vK2}, {1024-4}, v{vK2}")
    a(f"s_mov_b32 exec_lo, 0\ns_mov_b32 exec_hi, -1")
    for b in range(2):
        v0_=T1+2*b; v1_=T1+2*b+1
        a(f"v_cvt_pk_bf16_f32 v{B}, v{v0_}, v{v0_}")
        a(f"v_cvt_pk_bf16_f32 v{B+1}, v{v0_}, v{v1_}")
        a(f"v_cvt_pk_bf16_f32 v{B+2}, v{v1_}, v{v1_}")
        a(f"ds_write_b32 v{vK2}, v{B} offset:{b*256}")
        a(f"ds_write_b64 v{vK2}, v[{B}:{B+1}] offset:{b*256+4}")
        a(f"ds_write_b32 v{vK2}, v{B+2} offset:{b*256+12}")
        a("s_nop 1")
    a(f"s_mov_b32 exec_lo, -1\ns_mov_b32 exec_hi, 0")
    a(f"v_lshlrev_b32 v{t0}, 8, v{vG}")
    a(f"v_add_u32 v{vK2}, v{vK}, v{t0}")
    a(f"v_add_u32 v{vK2}, {512-2}, v{vK2}")
    a(f"v_cvt_pk_bf16_f32 v{B}, v{T1}, v{T1}")
    a(f"v_cvt_pk_bf16_f32 v{B+1}, v{T1+1}, v{T1+2}")
    a(f"v_cvt_pk_bf16_f32 v{B+2}, v{T1+2}, v{T1+2}")
    a(f"v_cvt_pk_bf16_f32 v{B+3}, v{T1+3}, v{T1+3}")
    a(f"ds_write_b16 v{vK2}, v{B}")
    a(f"v_add_u32 v{vK2}, 2, v{vK2}")
    a(f"ds_write_b64 v{vK2}, v[{B}:{B+1}]")
    a(f"ds_write_b32 v{vK2}, v{B+2} offset:8")
    a(f"ds_write_b16 v{vK2}, v{B+3} offset:12")
    a("s_mov_b64 exec, -1")
    a(f"v_lshrrev_b32 v{t0}, 1, v{vG}")
    a(f"v_lshlrev_b32 v{t0}, 8, v{t0}")
    a(f"v_add_u32 v{vK2}, v{vK}, v{t0}")
    a(f"v_and_b32 v{t0}, 1, v{vG}")
    a(f"v_lshl_add_u32 v{vK2}, v{t0}, 3, v{vK2}")
    a(f"v_cvt_pk_bf16_f32 v{B+4}, v{KACC}, v{KACC+1}")
    a(f"v_cvt_pk_bf16_f32 v{B+5}, v{KACC+2}, v{KACC+3}")
    a(f"ds_write_b64 v{vK2}, v[{B+4}:{B+5}]")
    a("s_waitcnt lgkmcnt(0)")
    a("s_barrier")
    S(3)
    vU=36
    a(f"v_lshlrev_b32 v{t0}, 3, v0")
    a(f"v_mov_b32 v{B}, 0\nv_mov_b32 v{B+1}, 0")
    a(f"ds_write_b64 v{t0}, v[{B}:{B+1}] offset:{U_OFF}")
    a("s_waitcnt vmcnt(0)")
    if not LN2: nonce_ready(a)
    if opts.get('prio'): a(f"s_setprio {opts.get('cprio',0)}")
    if opts.get('ln8') or LN2:
        a(f"v_lshlrev_b32 v{B+4}, 6, v0\nv_add_u32 v{B+4}, {FL_LN}, v{B+4}")
    else:
        a(f"v_and_b32 v{B+4}, 31, v0\ns_lshl_b32 s{sTmp}, s{sWv}, 5\nv_add_u32 v{B+4}, s{sTmp}, v{B+4}\nv_lshlrev_b32 v{B+4}, 6, v{B+4}\nv_add_u32 v{B+4}, {FL_LN}, v{B+4}")
    poll(a, [B+4], B+6, mask=(0xffffffff,0) if not (opts.get('ln8') or LN2) else None, sleep=opts.get('slpl',32))
    a("s_barrier")
    a(f"v_lshrrev_b32 v{t0}, 2, v{lane}")
    a(f"v_lshlrev_b32 v{vU}, 7, v{t0}")
    a(f"v_bfe_u32 v{t0}, v{lane}, 4, 2")
    a(f"v_and_b32 v{t1}, 3, v{lane}")
    a(f"v_xor_b32 v{t0}, v{t0}, v{t1}")
    a(f"v_lshl_add_u32 v{vU}, v{t0}, 4, v{vU}")
    a(f"s_lshr_b32 s{sTmp}, s{sQ}, 1\ns_lshl_b32 s{sTmp}, s{sTmp}, 15")
    a(f"s_and_b32 s{sTmp2}, s{sQ}, 1\ns_lshl_b32 s{sTmp2}, s{sTmp2}, 6\ns_add_u32 s{sTmp}, s{sTmp}, s{sTmp2}")
    a(f"s_lshl_b32 s{sTmp2}, s{sWv}, 13\ns_add_u32 s{sTmp}, s{sTmp}, s{sTmp2}")
    if WS_XNT: a(f"s_add_u32 s{sTmp}, s{sTmp}, {WS_XNT}")
    a(f"s_lshl_b32 s{sTmp2}, s{sWv}, 12\ns_add_u32 s{sTmp2}, s{sTmp2}, {U_OFF+2048}")
    for i in range(4):
        a(f"s_add_u32 m0, s{sTmp2}, {i*1024}")
        a(f"buffer_load_dwordx4 v{vU}, s[{SWS}:{SWS+3}], s{sTmp} offen{ld} lds")
        if i<3: a(f"s_add_u32 s{sTmp}, s{sTmp}, 2048")
    CACC=24
    for r in range(32): a(f"v_mov_b32 v{CACC+r}, 0")
    vAa=56; vBa=[57,58,59,60]; vRw=61; vKr=62
    AF=64
    BF=96
    vb_=184; vg_=185
    a(f"v_and_b32 v{vb_}, 15, v{lane}")
    a(f"v_lshrrev_b32 v{vg_}, 4, v{lane}")
    a(f"v_and_b32 v{t0}, 3, v{vb_}")
    a(f"v_mul_u32_u24 v{vAa}, {RC}, v{t0}")
    a(f"v_lshrrev_b32 v{t0}, 2, v{vb_}")
    a(f"v_lshlrev_b32 v{t0}, 3, v{t0}")
    a(f"v_sub_u32 v{vAa}, v{vAa}, v{t0}")
    a(f"v_lshrrev_b32 v{t0}, 1, v{vg_}")
    a(f"v_lshlrev_b32 v{t0}, 5, v{t0}")
    a(f"v_sub_u32 v{vAa}, v{vAa}, v{t0}")
    a(f"v_and_b32 v{t0}, 1, v{vg_}")
    a(f"v_lshl_add_u32 v{vAa}, v{t0}, 4, v{vAa}")
    a(f"v_add_u32 v{vAa}, s{sR}, v{vAa}")
    a(f"v_lshlrev_b32 v{t0}, 1, v{vb_}")
    a(f"v_add_u32 v{t0}, 32, v{t0}")
    a(f"v_and_b32 v{t1}, 1, v{vg_}")
    a(f"v_add_u32 v{t0}, v{t0}, v{t1}")
    a(f"v_and_b32 v{t1}, 2, v{vg_}")
    a(f"v_sub_u32 v{t0}, v{t0}, v{t1}")
    for rm in range(4):
        a(f"v_lshrrev_b32 v{t1}, 2, v{t0}")
        a(f"v_subrev_u32 v{t1}, {rm}, v{t1}")
        a(f"v_and_b32 v{t1}, 3, v{t1}")
        a(f"v_xor_b32 v{t1}, s{sWv}, v{t1}")
        a(f"v_lshlrev_b32 v{t1}, 4, v{t1}")
        a(f"v_lshl_add_u32 v{vBa[rm]}, v{t0}, 6, v{t1}")
        a(f"v_add_u32 v{vBa[rm]}, {U_OFF-256*7}, v{vBa[rm]}")
    a(f"v_lshlrev_b32 v{vRw}, 4, v{lane}")
    a(f"v_add_u32 v{vRw}, s{sR}, v{vRw}")
    vL16=63
    a(f"v_lshlrev_b32 v{vL16}, 4, v{lane}")
    a(f"s_mov_b32 s{sBf}, 0xffff")
    RB=160
    def build_R(ps):
        M0=127 if ps==0 else 255
        for rd in range(3):
            if rd==2:
                a(f"s_mov_b32 exec_lo, 3\ns_mov_b32 exec_hi, 0")
            off=40+16*(M0-64*rd)
            a(f"s_add_u32 s{sTmp}, s{sKn}, {off}")
            a(f"v_sub_u32 v{vKr}, s{sTmp}, v{vL16}")
            p=RB
            a(f"ds_read_b64 v[{p}:{p+1}], v{vKr}")
            a(f"ds_read_b128 v[{p+2}:{p+5}], v{vKr} offset:8")
            a("s_waitcnt lgkmcnt(0)")
            o=RB+8
            for mu_ in range(4):
                a(f"v_bfi_b32 v{o+mu_}, s{sBf}, v{p+4-mu_}, v{p+3-mu_}")
                a(f"v_alignbit_b32 v{o+4+mu_}, v{p+4-mu_}, v{p+4-mu_}, 16")
                a(f"v_bfi_b32 v{o+8+mu_}, s{sBf}, v{p+5-mu_}, v{p+4-mu_}")
                a(f"v_alignbit_b32 v{o+12+mu_}, v{p+5-mu_}, v{p+5-mu_}, 16")
            for sg in range(4):
                a(f"ds_write_b128 v{vRw}, v[{o+4*sg}:{o+4*sg+3}] offset:{sg*RC+1024*rd}")
            if rd==2: a("s_mov_b64 exec, -1")
        a("s_waitcnt lgkmcnt(0)")
    def conv_pass(ps):
        nB=8-4*ps
        def rdA(rho,setp):
            out=[]
            for il in range(4):
                kl=rho+8*il
                for hf in range(2):
                    r=AF+16*setp+4*il+2*hf
                    out.append(f"ds_read_b64 v[{r}:{r+1}], v{vAa} offset:{2040-64*kl+8*hf}")
            return out
        def rdB(rho,setp):
            out=[]
            for tau in range(nB):
                r=BF+32*setp+4*tau
                out.append(f"ds_read_b128 v[{r}:{r+3}], v{vBa[rho%4]} offset:{2048*tau+256*(7-rho)}")
            return out
        for x in rdA(0,0)+rdB(0,0): a(x)
        for rho in range(8):
            sp=rho%2
            a("s_waitcnt lgkmcnt(0)")
            nxt=(rdA(rho+1,1-sp)+rdB(rho+1,1-sp)) if rho<7 else []
            ms=[]
            for il in range(4):
                i=il+4*ps
                for tau in range(nB):
                    t=i+tau
                    if t>7: continue
                    ms.append((t,il,tau))
            ni=0
            for n,(t,il,tau) in enumerate(ms):
                d=CACC+4*t; A_=AF+16*sp+4*il; B_=BF+32*sp+4*tau
                a(f"v_mfma_f32_16x16x32_bf16 v[{d}:{d+3}], v[{A_}:{A_+3}], v[{B_}:{B_+3}], v[{d}:{d+3}]")
                k=-(-len(nxt)//len(ms)) if n<len(ms) else 0
                for _ in range(k):
                    if ni<len(nxt): a(nxt[ni]); ni+=1
    build_R(0)
    a("s_waitcnt vmcnt(0) lgkmcnt(0)")
    a("s_barrier")
    if opts.get('gate',1):
        a(f"s_lshl_b32 s{sTmp}, s{sQ}, 6\ns_add_u32 s{sTmp}, s{sTmp}, {FL_UD}\nv_mov_b32 v{RB}, s{sTmp}")
        poll(a, [RB], RB+1, mask=(1,0), sleep=opts.get('slp',8))
    S(4)
    conv_pass(0)
    S(5)
    build_R(1)
    conv_pass(1)
    S(6)
    vE=186; vS=187; vDp=188
    a(f"v_and_b32 v{t0}, 15, v{lane}")
    a(f"v_lshlrev_b32 v{t0}, 1, v{t0}")
    a(f"v_lshrrev_b32 v{t1}, 5, v{lane}")
    a(f"v_add_u32 v{t0}, v{t0}, v{t1}")
    a(f"v_bfe_u32 v{t1}, v{t0}, 2, 2")
    a(f"v_xor_b32 v{t1}, s{sWv}, v{t1}")
    a(f"v_lshlrev_b32 v{t1}, 4, v{t1}")
    a(f"v_lshl_add_u32 v{vE}, v{t0}, 6, v{t1}")
    a(f"v_bfe_u32 v{t1}, v{lane}, 4, 1")
    a(f"v_lshl_add_u32 v{vE}, v{t1}, 3, v{vE}")
    a(f"v_add_u32 v{vE}, {U_OFF+2048}, v{vE}")
    a(f"v_and_b32 v{t0}, 15, v{lane}")
    a(f"v_lshlrev_b32 v{vS}, 5, v{t0}")
    a(f"v_lshrrev_b32 v{t1}, 4, v{lane}")
    a(f"v_lshl_add_u32 v{vS}, v{t1}, 3, v{vS}")
    a(f"s_lshl_b32 s{sTmp}, s{sCh}, 12\ns_add_u32 s{sTmp}, s{sTmp}, {WS_AT}")
    a(f"v_add_u32 v{vS}, s{sTmp}, v{vS}")
    a(f"v_mov_b32 v{vDp}, s{sD}\nv_mov_b32 v{vDp+1}, s{sD}")
    UB=64
    for t in range(8):
        a(f"ds_read_b64 v[{UB+2*t}:{UB+2*t+1}], v{vE} offset:{2048*t}")
    T=96
    for t in range(8):
        a(f"s_waitcnt lgkmcnt({7-t})")
        d=CACC+4*t; u=UB+2*t; o=T+16+2*(t%2)
        a(f"v_lshlrev_b32 v{T}, 16, v{u}\nv_and_b32 v{T+1}, 0xffff0000, v{u}")
        a(f"v_lshlrev_b32 v{T+2}, 16, v{u+1}\nv_and_b32 v{T+3}, 0xffff0000, v{u+1}")
        for p in range(4): a(f"v_mul_f32 v{T+p}, v{T+p}, v{vDp}")
        for p in range(2): a(f"v_cvt_pk_bf16_f32 v{T+4+p}, v{T+2*p}, v{T+2*p+1}")
        for p in range(2): a(f"v_cvt_pk_bf16_f32 v{T+6+p}, v{d+2*p}, v{d+2*p+1}")
        for p in range(2):
            a(f"v_lshlrev_b32 v{T}, 16, v{T+4+p}\nv_and_b32 v{T+1}, 0xffff0000, v{T+4+p}")
            a(f"v_lshlrev_b32 v{T+2}, 16, v{T+6+p}\nv_and_b32 v{T+3}, 0xffff0000, v{T+6+p}")
            a(f"v_add_f32 v{T}, v{T}, v{T+2}\nv_add_f32 v{T+1}, v{T+1}, v{T+3}")
            a(f"v_cvt_pk_bf16_f32 v{o+p}, v{T}, v{T+1}")
        a(f"buffer_store_dwordx2 v[{o}:{o+1}], v{vS}, s[{SWS}:{SWS+3}], 0 offen offset:{512*t}{st}")
    a("s_waitcnt vmcnt(0)\ns_barrier")
    a(f"s_lshl_b32 s{sTmp}, s{sQ}, 6\ns_add_u32 s{sTmp}, s{sTmp}, {FL_A}")
    flag_store(a, sTmp, 2)
    S(7)
```

```python
import sys
import common
if 'stamp' in sys.argv: common.STAMP_ON=True
from f_common import *
from f_gemm import emit_gemm
from f_ssm import emit_ssm
from f_aux import emit_aux
NAME="parallel_sum__ssm_conv_s4d__glu_gated_swiglu__prompt"
HEAD=open(f"cdna_kernels/{NAME}.s.ref").read().split("; Override launch")[0]
def build(opts):
    a=Asm()
    a("s_cmp_ge_u32 s2, 512\ns_cbranch_scc1 Lend")
    prologue(a, opts)
    st=Stamps(a,0)
    if common.STAMP_ON:
        for i in range(84,100): a(f"s_mov_b32 s{i}, 0")
    if not opts.get('lateptr',1): st(0)
    only=opts.get('only',0)
    if only==1:
        a("s_cmp_ge_u32 s2, 256\ns_cbranch_scc1 Lend")
        import f_common; f_common.NOPOLL[0]=True
    if only==5:
        a("s_cmp_ge_u32 s2, 416\ns_cbranch_scc1 Lend")
        import f_common; f_common.NOPOLL[0]=True
    if only==2:
        a("s_cmp_lt_u32 s2, 256\ns_cbranch_scc1 Lend")
    if only==3:
        pass
    a("s_cmp_ge_u32 s2, 416\ns_cbranch_scc1 Laux")
    a("s_cmp_ge_u32 s2, 256\ns_cbranch_scc1 Lnotgemm")
    emit_gemm(a, st, opts)
    fin(a,st,'gemm')
    a("s_endpgm")
    a.label("Lnotgemm")
    if only==4: a("s_branch Lend")
    emit_ssm(a, st, opts)
    fin(a,st,'ssm')
    a("s_endpgm")
    a.label("Laux")
    emit_aux(a, st, opts)
    fin(a,st,'aux')
    a.label("Lend")
    a("s_endpgm")
    a.label("Lcode_end")
    a.pad()
    return a
DBG=[None]
def fin(a,st,role=None):
    if common.STAMP_ON and DBG[0]:
        a("s_waitcnt vmcnt(0) lgkmcnt(0)")
        a("s_memrealtime s[82:83]\ns_waitcnt lgkmcnt(0)\ns_mov_b32 s80, s82")
        a("s_mov_b32 s76, s28\ns_and_b32 s77, s29, 0xffff\ns_mov_b32 s78, 256\ns_mov_b32 s79, 0x20000")
        sel={'gemm':[(0,[(84,0),(86,1),(88,2),(90,3),(92,4),(94,5),(96,6),(98,7),(80,8)]),(255,[(80,15)])],
             'ssm':[(259,[(86,9),(88,10),(92,11),(98,12)])],
             'aux':[(420,[(92,13),(98,14)])]}[role]
        for wg,lst in sel:
            lab=a.newlabel('Ldbg')
            a(f"s_cmp_lg_u32 s2, {wg}\ns_cbranch_scc1 {lab}")
            a("v_cmp_eq_u32 vcc, 0, v0\ns_and_saveexec_b64 s[42:43], vcc")
            l2=a.newlabel('Ldbg'); a(f"s_cbranch_execz {l2}")
            a("v_mov_b32 v250, 0")
            for sr_,idx in lst:
                a(f"v_mov_b32 v251, s{sr_}\nbuffer_store_dword v251, v250, s[76:79], 0 offen offset:{4*idx}\ns_waitcnt vmcnt(0)")
            a.label(l2)
            a("s_mov_b64 exec, s[42:43]")
            a.label(lab)
        return
    if common.STAMP_ON:
        a("s_waitcnt vmcnt(0) lgkmcnt(0)")
        a("s_memrealtime s[82:83]\ns_waitcnt lgkmcnt(0)\ns_mov_b32 s80, s82")
        a(f"v_mov_b32 v249, s80")
        st.flush(SWS, extra=249)
if __name__=="__main__":
    out=sys.argv[1]
    opts={}
    for x in sys.argv[2:]:
        if '=' in x:
            k,v=x.split('='); opts[k]=int(v)
    if opts.get('dbg'): DBG[0]=True
    a=build(opts)
    k=NAME+"_kernel"
    s=HEAD+"; @launch grid=(512,1,1) block=(256,1,1) lds=81920\n"
    s+='.amdgcn_target "amdgcn-amd-amdhsa--gfx950"\n.text\n'
    s+=f".globl {k}\n.p2align 8\n.type {k},@function\n{k}:\n"+a.text()
    s+=KD.format(name=k,vgpr=256,sgpr=102,acc=256)
    open(out,"w").write(s)
    n=sum(1 for x in a.ins if x.kind not in('label','directive'))
    print("written",out,len(s),"bytes;",n,"instructions")
```

```python
from f_common import *
from f_ln8 import *
WST=12288
TST=16384
TOK0=4*WST

def emit_gemm(a, S0_, opts):
    dst=opts.get('dstamp')
    def S(i):
        if not dst: S0_(i)
    def SD(i):
        if dst: S0_(i)
    started=[False]
    sT=46; sFT=47; sJT=48; sJF=49
    SW=52
    sWv=56; sWoff=57; sToff=58; sMW=59; sMT=60; sTmp=61; sCnt=62; sTmp2=63; sX=64
    lane=1; t0=2; t1=3; vWa=[4,5,6]; vTok=[7,8,9,10]; vA=11; vA5=12; vB=[13,14,15,16]; vSt=17; vFl=[18]; vPk=[19,20]; vDum=22; vTch=[23,24]
    vStat=24
    ACC=64; Pq=160; Qq=176
    Qq=180
    a(f"s_setprio {opts.get('g0',2)}") if opts.get('prio') else None
    a(f"s_and_b32 s{sX}, s2, 7\ns_lshr_b32 s{sTmp}, s2, 3\ns_and_b32 s{sJT}, s{sTmp}, 7\ns_lshr_b32 s{sJF}, s{sTmp}, 3")
    a(f"s_lshr_b32 s{sT}, s{sX}, 2\ns_lshl_b32 s{sT}, s{sT}, 3\ns_add_u32 s{sT}, s{sT}, s{sJT}")
    a(f"s_and_b32 s{sFT}, s{sX}, 3\ns_lshl_b32 s{sFT}, s{sFT}, 2\ns_add_u32 s{sFT}, s{sFT}, s{sJF}")
    a(f"v_and_b32 v{lane}, 63, v0\nv_lshrrev_b32 v{t0}, 6, v0\nv_readfirstlane_b32 s{sWv}, v{t0}")
    sLam=50
    a(f"s_lshl_b32 s{sLam}, s{sX}, 5\ns_lshr_b32 s{sTmp}, s2, 3\ns_add_u32 s{sLam}, s{sLam}, s{sTmp}")
    if opts.get('ln8'): ln8_loads(a, sLam, 64, 76)
    a(f"s_cmp_lt_u32 s{sWv}, 2")
    a(f"s_cselect_b32 s{SW}, s{P['w1']}, s{P['w3']}\ns_cselect_b32 s{SW+1}, s{P['w1']+1}, s{P['w3']+1}")
    a(f"s_cselect_b32 s{sTmp2}, 0, 10")
    a(f"s_and_b32 s{SW+1}, s{SW+1}, 0xffff\ns_mov_b32 s{SW+2}, {640*1536*2}\ns_mov_b32 s{SW+3}, 0x20000")
    a(f"s_and_b32 s{sTmp}, s{sWv}, 1\ns_mul_i32 s{sTmp}, s{sTmp}, 192")
    for t in range(3):
        a(f"v_add_u32 v{t0}, s{sTmp}, v{lane}")
        if t: a(f"v_add_u32 v{t0}, {64*t}, v{t0}")
        a(f"v_mul_u32_u24 v{t1}, 5462, v{t0}\nv_lshrrev_b32 v{t1}, 16, v{t1}")
        a(f"v_mul_u32_u24 v{vWa[t]}, 12, v{t1}\nv_sub_u32 v{t0}, v{t0}, v{vWa[t]}")
        a(f"v_add_u32 v{t0}, s{sTmp2}, v{t0}\nv_subrev_u32 v{vWa[t]}, 12, v{t0}")
        a(f"v_cmp_le_u32 vcc, 12, v{t0}\nv_cndmask_b32 v{t0}, v{t0}, v{vWa[t]}, vcc")
        a(f"v_mul_u32_u24 v{t1}, 3072, v{t1}\nv_lshl_add_u32 v{vWa[t]}, v{t0}, 4, v{t1}")
        if t: a(f"v_subrev_u32 v{vWa[t]}, {1024*t}, v{vWa[t]}")
    a(f"s_mul_i32 s{sWoff}, s{sFT}, 192\ns_mul_i32 s{sMW}, s{sWv}, 3072")
    sWlim=41; sC0=51
    ROT=opts.get('rot',1)
    sWlim=75; sTlim=74
    if ROT:
        a(f"s_lshr_b32 s{sTmp}, s{sJT}, 2\ns_add_u32 s{sC0}, s{sJT}, s{sTmp}")
        a(f"s_mul_i32 s{sTmp}, s{sJF}, 5\ns_lshr_b32 s{sTmp}, s{sTmp}, 1\ns_add_u32 s{sC0}, s{sC0}, s{sTmp}")
        a(f"s_cmp_ge_u32 s{sC0}, 10\ns_cselect_b32 s{sTmp}, 10, 0\ns_sub_u32 s{sC0}, s{sC0}, s{sTmp}")
        a(f"s_add_u32 s{sWlim}, s{sWoff}, {640*3072}")
        a(f"s_mul_i32 s{sTmp}, s{sC0}, {64*3072}\ns_add_u32 s{sWoff}, s{sWoff}, s{sTmp}")
    def adv_w():
        t=f"s_add_u32 s{sWoff}, s{sWoff}, {32*3072}"
        if ROT: t+=f"\ns_cmp_ge_u32 s{sWoff}, s{sWlim}\ns_cselect_b32 s{sTmp2}, {640*3072}, 0\ns_sub_u32 s{sWoff}, s{sWoff}, s{sTmp2}"
        return t
    def adv_t():
        t=f"s_add_u32 s{sToff}, s{sToff}, 128"
        if ROT: t+=f"\ns_cmp_ge_u32 s{sToff}, s{sTlim}\ns_cselect_b32 s{sTmp2}, 1280, 0\ns_sub_u32 s{sToff}, s{sToff}, s{sTmp2}"
        return t
    def dma_w(slot):
        if opts.get('nodmaw') and started[0]: return
        a(f"s_add_u32 m0, s{sMW}, {slot*WST}")
        for t in range(3):
            a(f"buffer_load_dwordx4 v{vWa[t]}, s[{SW}:{SW+3}], s{sWoff} offen offset:{1024*t} lds")
        a(adv_w())
    if opts.get('bench'):
        a(f"s_mov_b32 s78, {opts['bench']}")
        a(f"s_mov_b32 s79, s{sWoff}")
    dma_w(0)
    for ii in range(4):
        a(f"v_lshrrev_b32 v{t0}, 3, v{lane}")
        if ii: a(f"v_add_u32 v{t0}, {8*ii}, v{t0}")
        a(f"v_mul_u32_u24 v{vTok[ii]}, 1280, v{t0}")
        a(f"v_bfe_u32 v{t0}, v{t0}, 1, 3\nv_and_b32 v{t1}, 7, v{lane}\nv_xor_b32 v{t0}, v{t0}, v{t1}")
        a(f"v_lshl_add_u32 v{vTok[ii]}, v{t0}, 4, v{vTok[ii]}")
        if ii: a(f"v_subrev_u32 v{vTok[ii]}, {1024*ii}, v{vTok[ii]}")
    a(f"s_lshl_b32 s{sToff}, s{sT}, 7\ns_lshl_b32 s{sTmp}, s{sWv}, 5\ns_add_u32 s{sToff}, s{sToff}, s{sTmp}\ns_mul_i32 s{sToff}, s{sToff}, 1280")
    if ROT:
        a(f"s_add_u32 s{sTlim}, s{sToff}, 1280\ns_lshl_b32 s{sTmp}, s{sC0}, 7\ns_add_u32 s{sToff}, s{sToff}, s{sTmp}")
    a(f"s_lshl_b32 s{sMT}, s{sWv}, 12\ns_add_u32 s{sMT}, s{sMT}, {TOK0}")
    if opts.get('bench'): a(f"s_mov_b32 s77, s{sToff}")
    def dma_t(buf):
        if opts.get('nodmat') and started[0]: return
        a(f"s_add_u32 m0, s{sMT}, {buf*TST}")
        for ii in range(4):
            a(f"buffer_load_dwordx4 v{vTok[ii]}, s[{SX}:{SX+3}], s{sToff} offen offset:{1024*ii} lds")
        a(adv_t())
    LATE=opts.get('late12',0)
    dma_t(0)
    if not LATE: dma_w(1); dma_w(2); dma_t(1)
    if LATE==2: dma_w(1)
    nonce_load(a)
    started[0]=True
    vTw=23; vTt=25
    sTwo=80; sTto=81
    a(f"s_lshr_b32 s{sTmp}, s2, 3\ns_lshl_b32 s{sTwo}, s{sTmp}, 1\ns_and_b32 s{sTmp2}, s{sWv}, 1\ns_add_u32 s{sTwo}, s{sTwo}, s{sTmp2}\ns_mul_i32 s{sTwo}, s{sTwo}, {2*3072}")
    a(f"s_and_b32 s{sTmp2}, s{sX}, 3\ns_mul_i32 s{sTmp2}, s{sTmp2}, 768\ns_add_u32 s{sTwo}, s{sTwo}, s{sTmp2}\ns_add_u32 s{sTwo}, s{sTwo}, {3*32*3072}")
    a(f"v_mul_u32_u24 v{t0}, 10923, v{lane}\nv_lshrrev_b32 v{t0}, 16, v{t0}\nv_mul_u32_u24 v{t1}, 6, v{t0}\nv_sub_u32 v{t1}, v{lane}, v{t1}")
    a(f"v_mul_u32_u24 v{vTw}, 3072, v{t0}\nv_lshl_add_u32 v{vTw}, v{t1}, 7, v{vTw}")
    a(f"s_lshr_b32 s{sTmp}, s2, 3\ns_lshl_b32 s{sTmp}, s{sTmp}, 2\ns_add_u32 s{sTmp}, s{sTmp}, s{sWv}\ns_lshl_b32 s{sTmp}, s{sTmp}, 3\ns_lshr_b32 s{sTmp2}, s{sX}, 2\ns_lshl_b32 s{sTmp2}, s{sTmp2}, 10\ns_add_u32 s{sTmp}, s{sTmp}, s{sTmp2}")
    a(f"s_mul_i32 s{sTto}, s{sTmp}, 1280\ns_add_u32 s{sTto}, s{sTto}, {2*128}")
    a(f"v_lshrrev_b32 v{t0}, 1, v{lane}\nv_mul_u32_u24 v{vTt}, 1280, v{t0}\nv_and_b32 v{t0}, 1, v{lane}\nv_lshl_add_u32 v{vTt}, v{t0}, 7, v{vTt}")
    def touch_batch(tok=True):
        if not opts.get('touch',0): return []
        a(f"s_mov_b64 exec, 0xfff")
        a(f"buffer_load_dword v{vDum}, v{vTw}, s[{SW}:{SW+3}], s{sTwo} offen")
        a(f"s_add_u32 s{sTwo}, s{sTwo}, {128*3072}")
        if tok:
            a(f"s_mov_b64 exec, 0xffff")
            a(f"buffer_load_dword v{vDum}, v{vTt}, s[{SX}:{SX+3}], s{sTto} offen")
            a(f"s_add_u32 s{sTto}, s{sTto}, 256")
        a("s_mov_b64 exec, -1")
        return ['x']*(2 if tok else 1)
    pre_touch=touch_batch()
    ntouch=len(pre_touch)
    if opts.get('ln8'):
        npre=3+4+({0:10,1:0,2:3}[LATE])+1+len(pre_touch)
        a(f"s_waitcnt vmcnt({npre})")
        S(1)
        nln=ln8_compute(a, sLam, sWv, 64, 76, 3*WST)
        ntouch+=nln
    a(f"v_lshrrev_b32 v{t0}, 5, v{lane}\nv_lshlrev_b32 v{t0}, 3, v{t0}\nv_bfe_u32 v{t1}, v{lane}, 2, 2\nv_add_u32 v{t0}, v{t0}, v{t1}")
    a(f"v_mul_u32_u24 v{vA}, 192, v{t0}\nv_and_b32 v{t1}, 3, v{lane}\nv_lshl_add_u32 v{vA}, v{t1}, 3, v{vA}")
    a(f"v_bfe_u32 v{t1}, v{lane}, 4, 1\nv_mul_u32_u24 v{t0}, {6144+32}, v{t1}\nv_add_u32 v{vA}, v{vA}, v{t0}")
    a(f"s_lshr_b32 s{sTmp}, s{sWv}, 1\ns_mul_i32 s{sTmp2}, s{sTmp}, 96\nv_add_u32 v{vA}, s{sTmp2}, v{vA}")
    a(f"s_mul_i32 s{sTmp2}, s{sTmp}, 192\nv_mul_u32_u24 v{t0}, s{sTmp2}, v{t1}\nv_sub_u32 v{vA5}, v{vA}, v{t0}")
    a(f"v_and_b32 v{t0}, 31, v{lane}\ns_and_b32 s{sTmp}, s{sWv}, 1\ns_lshl_b32 s{sTmp}, s{sTmp}, 6\nv_add_u32 v{t0}, s{sTmp}, v{t0}")
    a(f"v_bfe_u32 v{t1}, v{t0}, 1, 3\nv_lshrrev_b32 v{vB[3]}, 5, v{lane}\nv_xor_b32 v{t1}, v{t1}, v{vB[3]}")
    a(f"v_lshlrev_b32 v{t0}, 7, v{t0}\nv_add_u32 v{t0}, {TOK0}, v{t0}")
    for sp in range(4):
        a(f"v_xor_b32 v{vB[sp]}, {2*sp}, v{t1}\nv_lshl_add_u32 v{vB[sp]}, v{vB[sp]}, 4, v{t0}")
    a(f"v_bfe_u32 v{t0}, v{lane}, 4, 1\nv_mul_u32_u24 v{vSt}, 49152, v{t0}\nv_lshrrev_b32 v{t0}, 5, v{lane}\nv_lshl_add_u32 v{vSt}, v{t0}, 8, v{vSt}")
    a(f"v_and_b32 v{t0}, 15, v{lane}\nv_lshl_add_u32 v{vSt}, v{t0}, 4, v{vSt}")
    a(f"s_lshl_b32 s{sTmp}, s{sT}, 3\ns_and_b32 s{sTmp2}, s{sWv}, 1\ns_lshl_b32 s{sTmp2}, s{sTmp2}, 2\ns_add_u32 s{sTmp}, s{sTmp}, s{sTmp2}\ns_mul_i32 s{sTmp}, s{sTmp}, 49152")
    a(f"s_mul_i32 s{sTmp2}, s{sFT}, {12*256}\ns_add_u32 s{sTmp}, s{sTmp}, s{sTmp2}\ns_lshr_b32 s{sTmp2}, s{sWv}, 1\ns_mul_i32 s{sTmp2}, s{sTmp2}, {6*256}\ns_add_u32 s{sTmp}, s{sTmp}, s{sTmp2}")
    a(f"s_add_u32 s{sTmp}, s{sTmp}, {WS_H}\nv_add_u32 v{vSt}, s{sTmp}, v{vSt}")
    if opts.get('ln8') or opts.get('ln2'):
        a(f"v_and_b32 v{t0}, 15, v{lane}\ns_lshl_b32 s{sTmp}, s{sT}, 4\nv_add_u32 v{t0}, s{sTmp}, v{t0}")
    else:
        a(f"v_and_b32 v{t0}, 7, v{lane}\ns_lshl_b32 s{sTmp}, s{sT}, 3\nv_add_u32 v{t0}, s{sTmp}, v{t0}")
    a(f"v_lshlrev_b32 v{t0}, 6, v{t0}\nv_add_u32 v{vFl[0]}, {FL_LN}, v{t0}")
    a(f"v_min_u32 v{t0}, 23, v{lane}\ns_mul_i32 s{sTmp}, s{sWv}, 24\nv_add_u32 v{t0}, s{sTmp}, v{t0}\nv_lshlrev_b32 v{t0}, 6, v{t0}\nv_add_u32 v{vPk[0]}, {FL_PK}, v{t0}")
    CACC=216; SEL=228
    for r in range(12): a(f"v_mov_b32 v{CACC+r}, 0")
    a(f"v_and_b32 v{t0}, 15, v{lane}\nv_bfe_u32 v{t1}, v{lane}, 4, 1\nv_cmp_eq_u32 vcc, v{t0}, v{t1}")
    a(f"v_mov_b32 v{t0}, 0x3f803f80")
    for r in range(4): a(f"v_cndmask_b32 v{SEL+r}, 0, v{t0}, vcc")
    a(f"s_and_b32 s{sTmp}, s{sWv}, 1\ns_cmp_eq_u32 s{sTmp}, 1\ns_cselect_b64 vcc, -1, 0")
    if opts.get('bench'):
        a("s_branch Lbench_go")
        a.label("Lbench_top")
        a(f"s_mov_b32 s{sWoff}, s79\ns_mov_b32 s{sToff}, s77")
        a("s_barrier")
        started[0]=False
        dma_w(0); dma_t(0); dma_w(1); dma_w(2); dma_t(1)
        if ntouch:
            for _ in range(ntouch): a(f"buffer_load_dword v{vDum}, v{vTch[0]}, s[{SX}:{SX+3}], 0 offen")
        started[0]=True
        a.label("Lbench_go")
        a("s_memtime s[74:75]\ns_memrealtime s[70:71]\ns_waitcnt lgkmcnt(0)")
    if not opts.get('ln8'): S(1)
    def reads(setb, st, s):
        slot=st%4; buf=(st//2)%2; sp=2*(st%2)+s
        R=[]
        def rb(nt): R.append((f"ds_read_b128 v[{setb+12+4*nt}:{setb+12+4*nt+3}], v{vB[sp]} offset:{buf*TST+nt*4096}", f"B{nt}"))
        def ra(j):
            for q in range(2):
                reg=vA5 if j==2 else vA
                R.append((f"ds_read_b64_tr_b16 v[{setb+4*j+2*q}:{setb+4*j+2*q+1}], v{reg} offset:{slot*WST+(16*s+4*q)*192+32*j}", f"A{j}"))
        rb(0); ra(0); ra(1); ra(2); rb(1)
        if opts.get('nods'): R=[]
        if opts.get('nodsB'): R=[x for x in R if x[1][0]!='B']
        if opts.get('nodsA'): R=[x for x in R if x[1][0]!='A']
        return R
    def mfma(setb, j, nt, zero=False):
        if opts.get('nomfma'): return
        d=ACC+16*(2*j+nt)
        c="0" if zero else f"v[{d}:{d+15}]"
        a(f"v_mfma_f32_32x32x16_bf16 v[{d}:{d+15}], v[{setb+4*j}:{setb+4*j+3}], v[{setb+12+4*nt}:{setb+12+4*nt+3}], {c}")
    ORDER=[(0,0),(1,0),(2,0),(0,1),(1,1),(2,1)]
    NEED={(0,0):"A0",(1,0):"A1",(2,0):"A2",(0,1):"B1",(1,1):None,(2,1):None}
    vq=['W0']*3+['T0']*4+({0:['W1']*3+['W2']*3+['T1']*4,1:[],2:['W1']*3}[LATE])+['x']+['x']*ntouch
    def vwait(tags):
        nonlocal vq
        idx=max(i for i,t in enumerate(vq) if t in tags)
        n=len(vq)-1-idx
        vq=vq[idx+1:]
        return n
    TOUCH_AT={0:True,3:True,7:True,11:True}
    def dma_list(st):
        L=[]
        if st+3<20 and not opts.get('nodmaw'):
            slot=(st+3)%4
            for t in range(3):
                pre=f"s_add_u32 m0, s{sMW}, {slot*WST}\ns_nop 0\n" if t==0 else ""
                post="\n"+adv_w() if t==2 else ""
                L.append((pre+f"buffer_load_dwordx4 v{vWa[t]}, s[{SW}:{SW+3}], s{sWoff} offen offset:{1024*t} lds"+post, f"W{st+3}"))
        if st%2==0 and st>=2 and st//2+1<10 and not opts.get('nodmat'):
            buf=(st//2+1)%2
            for ii in range(4):
                pre=f"s_add_u32 m0, s{sMT}, {buf*TST}\ns_nop 0\n" if ii==0 else ""
                post="\n"+adv_t() if ii==3 else ""
                L.append((pre+f"buffer_load_dwordx4 v{vTok[ii]}, s[{SX}:{SX+3}], s{sToff} offen offset:{1024*ii} lds"+post, f"T{st//2+1}"))
        return L
    def stage(st, first=False, extra1=None, extra2=None, fixed=None):
        need=[f"W{st}", f"T{st//2}"]
        n=vwait([t for t in need if t in vq]) if any(t in vq for t in need) else len(vq)
        if fixed is not None: assert n==fixed,(st,n,fixed)
        a(f"s_waitcnt vmcnt({n}) lgkmcnt(0)")
        if opts.get('ststamp') and st>0: a(f"v_writelane_b32 v250, s82, {st-1}")
        a("s_barrier")
        if opts.get('ststamp'): a("s_memrealtime s[82:83]")
        if st==0 and LATE:
            started[0]=False
            if LATE==1: dma_w(1); vq.extend(['W1']*3)
            dma_w(2); dma_t(1); vq.extend(['W2']*3+['T1']*4)
            started[0]=True
        if st==3: nonce_ready(a)
        if st==3 and opts.get('ln8'):
            a(f"s_lshl_b32 s{sTmp}, s{sLam}, 6\ns_add_u32 s{sTmp}, s{sTmp}, {FL_LN}")
            flag_store(a, sTmp, t0, keepvcc=True)
        if st in TOUCH_AT: vq.extend(touch_batch(tok=(st<=3 or TOUCH_AT[st])))
        lt=LdsTrack(a)
        DL=dma_list(st); di=0
        spread=opts.get('spread',1)
        if spread==1: order=[4,5,10,11,3,9,2,8]
        elif spread==2: order=[0,1,2,3,4,5,6,7,8,9,10,11]
        elif spread==3: order=[5,5,5,10,10,10,10]
        elif spread==4: order=[0,2,4,6,8,10,11]
        gaps={}
        srt=sorted(order[:len(DL)])
        for i,g in enumerate(srt): gaps.setdefault(g,[]).append(DL[i])
        def do_dma(g):
            for (t,tag) in gaps.get(g,[]):
                a(t); vq.append(tag)
        rdn=opts.get('rdn',2)
        def csum(setb, branch):
            if opts.get('nocs'): return
            lb=a.newlabel('Lcs')
            a(f"{branch} {lb}")
            for j in range(3):
                a(f"v_mfma_f32_16x16x32_bf16 v[{CACC+4*j}:{CACC+4*j+3}], v[{setb+4*j}:{setb+4*j+3}], v[{SEL}:{SEL+3}], v[{CACC+4*j}:{CACC+4*j+3}]")
            a.label(lb)
        cspos=opts.get('cspos',3)
        R=reads(Pq, st, 0); ri=0
        for k,(j,nt) in enumerate(ORDER):
            if not first: mfma(Qq,j,nt)
            if k==cspos and not first: csum(Qq, "s_cbranch_vccz")
            for _ in range(rdn):
                if ri<len(R): lt.issue(R[ri][0], 'P'+R[ri][1]); ri+=1
            do_dma(k)
        if extra1: extra1()
        R=reads(Qq, st, 1); ri=0
        for k,(j,nt) in enumerate(ORDER):
            if NEED[(j,nt)]: lt.wait('P'+NEED[(j,nt)])
            mfma(Pq,j,nt,zero=first)
            if k==cspos: csum(Pq, "s_cbranch_vccnz")
            for _ in range(rdn):
                if ri<len(R): lt.issue(R[ri][0], 'Q'+R[ri][1]); ri+=1
            do_dma(6+k)
        if extra2: extra2()
        return n
    if opts.get('prio') and 'g1' in opts: a(f"s_setprio {opts['g1']}")
    for st in range(0,4): stage(st, first=(st==0))
    S(2) if not opts.get("bench") else None
    if opts.get('clk'): a("s_memtime s[68:69]\ns_waitcnt lgkmcnt(0)\ns_mov_b32 s51, s68")
    if opts.get('ststamp') or opts.get('unroll'):
        for st in range(4,12): stage(st)
    else:
        a(f"s_mov_b32 s{sCnt}, 2")
        lab=a.newlabel('Lup'); a.label(lab)
        pat=[stage(st) for st in range(4,8)]
        a(f"s_sub_u32 s{sCnt}, s{sCnt}, 1\ns_cmp_lg_u32 s{sCnt}, 0\ns_cbranch_scc1 {lab}")
        sav=a.ins; a.ins=[]
        pat2=[stage(st) for st in range(8,12)]
        a.ins=sav
        assert pat==pat2,(pat,pat2)
    FLG=200
    def issue_flags():
        a("s_mov_b64 exec, 0xffff")
        a(f"buffer_load_dword v{FLG}, v{vFl[0]}, s[{SWS}:{SWS+3}], 0 offen sc1"); vq.append('F')
        a("s_mov_b64 exec, -1")
    CK=opts.get('ck',14)
    for st_ in range(12,CK):
        stage(st_, extra2=issue_flags if st_==CK-2 else None)
    STAT=204
    CSR=208
    PKF=202
    def check_and_load():
        nonlocal vq
        n=vwait(['F'])
        a(f"s_waitcnt vmcnt({n})")
        a("s_mov_b64 exec, 0xffff")
        poll_check(a, 1, FLG)
        a("s_mov_b64 exec, -1")
        lab2=a.newlabel('Lok')
        a(f"s_cbranch_scc0 {lab2}")
        if not opts.get('nolnwait'): poll(a, vFl, FLG, mask=(0xffff,0), sleep=4)
        a.label(lab2)
        a(f"v_and_b32 v{t0}, 31, v{lane}\ns_lshl_b32 s{sTmp}, s{sT}, 7\ns_and_b32 s{sTmp2}, s{sWv}, 1\ns_lshl_b32 s{sTmp2}, s{sTmp2}, 6\ns_add_u32 s{sTmp}, s{sTmp}, s{sTmp2}")
        a(f"v_add_u32 v{t0}, s{sTmp}, v{t0}\nv_lshlrev_b32 v{t0}, 3, v{t0}\ns_mov_b32 s{sTmp}, {WS_STATS}")
        for nt in range(2):
            a(f"buffer_load_dwordx2 v[{STAT+2*nt}:{STAT+2*nt+1}], v{t0}, s[{SWS}:{SWS+3}], s{sTmp} offen offset:{256*nt} sc1"); vq.append('S')
        a(f"s_and_b32 s{sTmp}, s{sWv}, 1\ns_cmp_eq_u32 s{sTmp}, 1\ns_cselect_b64 vcc, -1, 0")
        a("s_mov_b32 exec_lo, 0xffffff\ns_mov_b32 exec_hi, 0")
        a(f"buffer_load_dword v{PKF}, v{vPk[0]}, s[{SWS}:{SWS+3}], 0 offen sc1"); vq.append('S')
        a("s_mov_b64 exec, -1")
    stage(CK, extra2=check_and_load)
    for st in range(CK+1,20): stage(st)
    a("s_waitcnt lgkmcnt(0)")
    for (j,nt) in ORDER: mfma(Qq,j,nt)
    if not opts.get('nocs'):
        lbq=a.newlabel('Lcs'); a(f"s_cbranch_vccz {lbq}")
        for j in range(3):
            a(f"v_mfma_f32_16x16x32_bf16 v[{CACC+4*j}:{CACC+4*j+3}], v[{Qq+4*j}:{Qq+4*j+3}], v[{SEL}:{SEL+3}], v[{CACC+4*j}:{CACC+4*j+3}]")
        a.label(lbq)
    if opts.get('bench'):
        a("s_waitcnt vmcnt(0)")
        a("s_memtime s[72:73]\ns_memrealtime s[68:69]\ns_waitcnt lgkmcnt(0)\ns_sub_u32 s72, s72, s74\ns_sub_u32 s68, s68, s70")
        a(f"s_cmp_eq_u32 s78, 1\ns_cselect_b32 s{84+2*7}, s68, s{84+2*7}")
        for r in range(opts['bench']):
            a(f"s_cmp_eq_u32 s78, {opts['bench']-r}\ns_cselect_b32 s{84+2*(4+r)}, s72, s{84+2*(4+r)}")
        a("s_sub_u32 s78, s78, 1\ns_cmp_lg_u32 s78, 0\ns_cbranch_scc1 Lbench_top")
        return
    if opts.get('ststamp'):
        a("s_waitcnt lgkmcnt(0)\nv_writelane_b32 v250, s82, 19\ns_memrealtime s[82:83]\ns_waitcnt lgkmcnt(0)\nv_writelane_b32 v250, s82, 20")
        lq=a.newlabel('Lq')
        a(f"s_cmp_lg_u32 s{sWv}, 0\ns_cbranch_scc1 {lq}")
        a(f"s_lshl_b32 s{sTmp}, s2, 7\ns_add_u32 s{sTmp}, s{sTmp}, 0xF40000\nv_lshlrev_b32 v251, 2, v{lane}\ns_mov_b32 exec_hi, 0")
        a(f"buffer_store_dword v250, v251, s[{SWS}:{SWS+3}], s{sTmp} offen\ns_mov_b64 exec, -1")
        a.label(lq)
    if opts.get('prio') and 'g2' in opts: a(f"s_setprio {opts['g2']}")
    S(3)
    if opts.get('clk'): a("s_memtime s[68:69]\ns_waitcnt lgkmcnt(0)\ns_sub_u32 s51, s68, s51")
    if opts.get('gate',1)==1:
        a(f"s_lshl_b32 s{sTmp}, s2, 6\ns_add_u32 s{sTmp}, s{sTmp}, {FL_UD}")
        flag_store(a, sTmp, t0)
    a("s_waitcnt vmcnt(0)")
    def pk_check():
        a("s_mov_b32 exec_lo, 0xffffff\ns_mov_b32 exec_hi, 0")
        poll_check(a, 1, PKF)
        a("s_mov_b64 exec, -1")
        labp=a.newlabel('Lok'); a(f"s_cbranch_scc0 {labp}")
        if not opts.get('nolnwait'): poll(a, [vPk[0]], PKF, mask=(0xffffff,0), sleep=4)
        a.label(labp)
    PKLATE=not opts.get('stgepi',0)
    if not PKLATE: pk_check()
    EA=Pq; EB=Pq+12
    a(f"v_and_b32 v{t0}, 15, v{lane}\nv_lshrrev_b32 v{t1}, 4, v{lane}\nv_lshlrev_b32 v{t1}, 4, v{t1}\nv_lshl_add_u32 v{t1}, v{t0}, 6, v{t1}")
    a(f"s_lshr_b32 s{sTmp}, s{sWv}, 1\ns_lshl_b32 s{sTmp}, s{sTmp}, 1\ns_and_b32 s{sTmp2}, s{sWv}, 1\ns_add_u32 s{sTmp}, s{sTmp}, s{sTmp2}\ns_mul_i32 s{sTmp}, s{sTmp}, 384")
    a(f"v_add_u32 v{t1}, s{sTmp}, v{t1}")
    a(f"s_mov_b32 exec_lo, 0x00030003\ns_mov_b32 exec_hi, 0x00030003")
    for j in range(3): a(f"ds_write_b128 v{t1}, v[{CACC+4*j}:{CACC+4*j+3}] offset:{128*j}")
    a("s_mov_b64 exec, -1")
    a("s_waitcnt lgkmcnt(0)\ns_barrier")
    a(f"v_bfe_u32 v{t1}, v{lane}, 4, 1\nv_lshlrev_b32 v{t1}, 6, v{t1}\nv_lshl_add_u32 v{t1}, v{t0}, 2, v{t1}")
    a(f"s_lshr_b32 s{sTmp}, s{sWv}, 1\ns_mul_i32 s{sTmp}, s{sTmp}, 768\nv_add_u32 v{t1}, s{sTmp}, v{t1}")
    for j in range(3):
        a(f"ds_read_b32 v{CSR+2*j}, v{t1} offset:{128*j}\nds_read_b32 v{CSR+2*j+1}, v{t1} offset:{128*j+384}")
    a(f"v_cmp_gt_u32 vcc, 32, v{lane}")
    a("s_waitcnt lgkmcnt(0)\ns_barrier")
    sT64=65; sCT=66; sA=67; sB=72; sStg=76; sA8=77
    a(f"s_lshr_b32 s{sT64}, s{sX}, 1\ns_lshl_b32 s{sT64}, s{sT64}, 3\ns_add_u32 s{sT64}, s{sT64}, s{sJT}")
    a(f"s_and_b32 s{sCT}, s{sX}, 1\ns_lshl_b32 s{sCT}, s{sCT}, 2\ns_add_u32 s{sCT}, s{sCT}, s{sJF}")
    a(f"s_mul_i32 s{sTmp}, s{sWv}, {12*1024}\ns_mul_i32 s{sTmp2}, s{sCT}, {5*49152}\ns_add_u32 s{sTmp2}, s{sTmp2}, s{sTmp}")
    for m in range(5): a(f"s_add_u32 s{sA+m}, s{sTmp2}, {WS_W2P+m*49152}")
    vL16=4
    a(f"v_lshlrev_b32 v{vL16}, 4, v{lane}")
    a(f"s_mul_i32 s{sStg}, s{sWv}, 20480")
    vt=VmTrack(a)
    sKO=[48,50,51,57,58,59,60,62,78,79,80,81]
    DROT=opts.get('drot',0)
    a(f"s_mul_i32 s{sTmp}, s{sJF}, {3*1024 if DROT else 0}")
    for k in range(12):
        if k==0: a(f"s_mov_b32 s{sKO[0]}, s{sTmp}")
        else:
            a(f"s_add_u32 s{sKO[k]}, s{sKO[k-1]}, 1024\ns_cmp_ge_u32 s{sKO[k]}, {12*1024}\ns_cselect_b32 s{sTmp2}, {12*1024}, 0\ns_sub_u32 s{sKO[k]}, s{sKO[k]}, s{sTmp2}")
    stg=[(m,k) for m in range(5) for k in range(4)]
    STG8=[8192]
    def stage_one():
        if not stg: return
        m,k=stg.pop(0)
        a(f"s_add_u32 m0, s{sStg}, {m*4096+k*1024}\ns_add_u32 s{sA8}, s{sA+m}, s{sKO[8+k]}")
        vt.issue(f"buffer_load_dwordx4 v{vL16}, s[{SWS}:{SWS+3}], s{sA8} offen sc1 lds", 'stg')
    for j in range(3):
        a(f"v_add_f32 v{t0}, v{CSR+2*j}, v{CSR+2*j+1}")
        a(f"v_cvt_pk_bf16_f32 v{t1}, v{t0}, v{t0}\nv_and_b32 v{t1}, 0xffff0000, v{t1}")
        a(f"v_sub_f32 v{t0}, v{t0}, v{t1}")
        a(f"v_cvt_pk_bf16_f32 v{t0}, v{t1}, v{t0}")
        a(f"v_cndmask_b32 v{EA+4*j}, 0, v{t0}, vcc")
        for r in range(1,4): a(f"v_mov_b32 v{EA+4*j+r}, 0")
    for nt in range(2):
        a(f"v_cvt_pk_bf16_f32 v{t0}, v{STAT+2*nt}, v{STAT+2*nt}")
        a(f"v_cndmask_b32 v{EB+4*nt}, 0, v{t0}, vcc")
        for r in range(1,4): a(f"v_mov_b32 v{EB+4*nt+r}, 0")
    for (j,nt) in ORDER: mfma(Pq,j,nt)
    C1=[214,215]; IR2=[208,209]
    for nt in range(2):
        r=STAT+2*nt+1
        a(f"v_mul_f32 v{C1[nt]}, 0xbfb8aa3b, v{r}")
        a(f"v_mul_f32 v{IR2[nt]}, v{r}, v{r}\nv_rcp_f32 v{IR2[nt]}, v{IR2[nt]}")
    T=216; O=232
    k=0
    for (j,nt) in ORDER:
        d=ACC+16*(2*j+nt); o=O+4*(k%2)
        k+=1
        sg=(lambda: stage_one()) if opts.get('stgepi',0) else (lambda: None)
        for i in range(8): a(f"v_mul_f32 v{T+i}, v{d+i}, v{C1[nt]}")
        sg()
        for i in range(8): a(f"v_exp_f32 v{T+i}, v{T+i}")
        sg()
        for i in range(8): a(f"v_mul_f32 v{d+i}, v{d+i}, v{d+8+i}")
        for i in range(8): a(f"v_fma_f32 v{T+i}, v{T+i}, v{IR2[nt]}, v{IR2[nt]}")
        sg()
        for i in range(8): a(f"v_rcp_f32 v{T+i}, v{T+i}")
        sg()
        for i in range(8): a(f"v_mul_f32 v{T+i}, v{T+i}, v{d+i}")
        for p in range(4): a(f"v_cvt_pk_bf16_f32 v{o+p}, v{T+2*p}, v{T+2*p+1}")
        a(f"v_permlane32_swap_b32 v{o}, v{o+2}\nv_permlane32_swap_b32 v{o+1}, v{o+3}")
        a(f"s_mov_b32 s{sTmp}, {nt*2*49152+j*512}")
        vt.issue(f"buffer_store_dwordx4 v[{o}:{o+3}], v{vSt}, s[{SWS}:{SWS+3}], s{sTmp} offen sc1", 'h')
    S(4)
    if opts.get('gate',1)==2:
        a(f"s_lshl_b32 s{sTmp}, s2, 6\ns_add_u32 s{sTmp}, s{sTmp}, {FL_UD}")
        flag_store(a, sTmp, t0)
    vRed=5; vXo=6; vAt=7; vHf=8; vAf=9; vTm=10
    DACC=12
    AF=92
    BF=192
    NB=4
    vDum=vRed
    a(f"s_mul_i32 s{sTmp2}, s{sT64}, {4*49152}\ns_mul_i32 s{sTmp}, s{sWv}, {12*1024}\ns_add_u32 s{sTmp2}, s{sTmp2}, s{sTmp}\ns_add_u32 s{sTmp2}, s{sTmp2}, {WS_H}")
    for n in range(4):
        a(f"s_add_u32 s{sB+n}, s{sWv}, {n}\ns_and_b32 s{sB+n}, s{sB+n}, 3\ns_mul_i32 s{sB+n}, s{sB+n}, 49152\ns_add_u32 s{sB+n}, s{sB+n}, s{sTmp2}")
    def ldA(k,m):
        fb=AF+20*(k%5)
        a(f"s_add_u32 s{sA8}, s{sA+m}, s{sKO[k]}")
        vt.issue(f"buffer_load_dwordx4 v[{fb+4*m}:{fb+4*m+3}], v{vL16}, s[{SWS}:{SWS+3}], s{sA8} offen sc1", f"a{k}")
    def ldB(k,n):
        fb=BF+16*(k%NB)
        a(f"s_add_u32 s{sA8}, s{sB+n}, s{sKO[k]}")
        vt.issue(f"buffer_load_dwordx4 v[{fb+4*n}:{fb+4*n+3}], v{vL16}, s[{SWS}:{SWS+3}], s{sA8} offen sc1", f"b{k}")
    if PKLATE:
        pk_check()
        a("s_barrier")
    NPRE=opts.get('npre',3)
    for k in range(NPRE):
        for m in range(5): ldA(k,m)
    vt.wait('h')
    a(f"s_lshl_b32 s{sTmp}, s{sT}, 4\ns_add_u32 s{sTmp}, s{sTmp}, s{sFT}\ns_lshl_b32 s{sTmp}, s{sTmp}, 2\ns_add_u32 s{sTmp}, s{sTmp}, s{sWv}\ns_lshl_b32 s{sTmp}, s{sTmp}, 6\ns_add_u32 s{sTmp}, s{sTmp}, {FL_H}")
    a(f"v_mov_b32 v{t0}, 0\nv_mov_b32 v{t1}, s{S_NONCE}\ns_mov_b64 exec, 1")
    vt.issue(f"buffer_store_dword v{t1}, v{t0}, s[{SWS}:{SWS+3}], s{sTmp} offen sc1", 'f')
    a("s_mov_b64 exec, -1")
    S(5)
    for k in range(NPRE,5):
        for m in range(5): ldA(k,m)
    while stg: stage_one()
    a(f"v_and_b32 v{t0}, 15, v{lane}\ns_lshl_b32 s{sTmp}, s{sT64}, 6\ns_lshl_b32 s{sTmp2}, s{sWv}, 4\ns_add_u32 s{sTmp}, s{sTmp}, s{sTmp2}\nv_add_u32 v{t0}, s{sTmp}, v{t0}")
    a(f"v_lshrrev_b32 v{t1}, 4, v{lane}\nv_mul_u32_u24 v{vXo}, 1280, v{t0}\nv_lshl_add_u32 v{vXo}, v{t1}, 3, v{vXo}")
    a(f"s_mul_i32 s{sTmp}, s{sCT}, 160\nv_add_u32 v{vXo}, s{sTmp}, v{vXo}")
    a(f"v_lshlrev_b32 v{vAt}, 14, v{t1}\nv_lshl_add_u32 v{vAt}, v{t0}, 1, v{vAt}")
    a(f"s_mul_i32 s{sTmp}, s{sCT}, {80*4096}\ns_add_u32 s{sTmp}, s{sTmp}, {WS_AT}\nv_add_u32 v{vAt}, s{sTmp}, v{vAt}")
    a(f"s_lshr_b32 s{sTmp}, s{sT64}, 1\ns_lshl_b32 s{sTmp}, s{sTmp}, 6\ns_and_b32 s{sTmp2}, s{sT64}, 1\ns_add_u32 s{sTmp}, s{sTmp}, s{sTmp2}")
    a(f"v_bfe_u32 v{t0}, v{lane}, 1, 4\nv_lshlrev_b32 v{t0}, 2, v{t0}\nv_and_b32 v{t1}, 1, v{lane}\nv_lshl_add_u32 v{t0}, v{t1}, 1, v{t0}\nv_add_u32 v{t0}, s{sTmp}, v{t0}")
    a(f"v_lshlrev_b32 v{t0}, 6, v{t0}\nv_add_u32 v{vHf}, {FL_H}, v{t0}")
    a(f"s_mul_i32 s{sTmp}, s{sCT}, {20*64}\ns_add_u32 s{sTmp}, s{sTmp}, {FL_A}")
    a(f"v_min_u32 v{t0}, 19, v{lane}\nv_lshlrev_b32 v{t0}, 6, v{t0}\nv_add_u32 v{vAf}, s{sTmp}, v{t0}")
    vSg=11
    a(f"v_add_u32 v{vSg}, s{sStg}, v{vL16}")
    SD(1)
    lh=a.newlabel('Lhp')
    a(f"s_cmp_lg_u32 s{sWv}, 0\ns_cbranch_scc1 {lh}")
    poll(a, [vHf], vTm, force=True, mask=(0xffffffff,0), sleep=opts.get('slph',2))
    a.label(lh)
    a("s_waitcnt vmcnt(0)\ns_barrier"); vt.q=[]
    S(6); SD(2)
    for k in range(NB):
        for n in range(4): ldB(k,n)
    if opts.get('touch_h',0):
        a(f"s_lshl_b32 s{sTmp}, s{sT64}, 2\ns_add_u32 s{sTmp}, s{sTmp}, s{sJF}\ns_mul_i32 s{sTmp}, s{sTmp}, 49152\ns_mul_i32 s{sTmp2}, s{sWv}, {12*1024}\ns_add_u32 s{sTmp}, s{sTmp}, s{sTmp2}\ns_add_u32 s{sTmp}, s{sTmp}, {WS_H+3*1024}")
        a(f"v_lshlrev_b32 v{t0}, 7, v{lane}")
        vt.issue(f"buffer_load_dword v{vDum}, v{t0}, s[{SWS}:{SWS+3}], s{sTmp} offen", 'x')
        a(f"s_add_u32 s{sTmp}, s{sTmp}, 8192\ns_mov_b64 exec, 0xff")
        vt.issue(f"buffer_load_dword v{vDum}, v{t0}, s[{SWS}:{SWS+3}], s{sTmp} offen", 'x')
        a("s_mov_b64 exec, -1")
    XR=AF+40; AR=AF+50
    lt=LdsTrack(a)
    for k in range(12):
        vt.wait(f"b{k}")
        if k<8: assert f"a{k}" not in vt.q
        if k>=8: lt.wait(f"a{k}")
        if k in (0,3,6,9): SD({0:3,3:4,6:5,9:6}[k])
        fa=AF+20*(k%5); fb=BF+16*(k%NB)
        side=[]
        if k>=1 and k-1+NB<12: side+= [('B',k-1+NB,n) for n in range(4)]
        norder=(1,2,3,0) if k==11 else (0,1,2,3)
        si=0
        for m in range(5):
            for n in norder:
                d=DACC+4*(m*4+n)
                cc="0" if k==0 else f"v[{d}:{d+3}]"
                a(f"v_mfma_f32_16x16x32_bf16 v[{d}:{d+3}], v[{fa+4*m}:{fa+4*m+3}], v[{fb+4*n}:{fb+4*n+3}], {cc}")
                if n==norder[1] and si<len(side):
                    ldB(side[si][1],side[si][2]); si+=1
            kn=k+5
            if kn<8: ldA(kn,m)
            elif kn<12:
                lt.issue(f"ds_read_b128 v[{fa+4*m}:{fa+4*m+3}], v{vSg} offset:{m*4096+(kn-8)*1024}", f"a{kn}")
        while si<len(side):
            ldB(side[si][1],side[si][2]); si+=1
        if k==2:
            pass
        KA=opts.get('ka',9)
        if k==KA-2:
            a("s_mov_b32 exec_lo, 0xfffff\ns_mov_b32 exec_hi, 0")
            vt.issue(f"buffer_load_dword v{vTm}, v{vAf}, s[{SWS}:{SWS+3}], 0 offen sc1", 'af')
            a("s_mov_b64 exec, -1")
        if k==8:
            for m in range(5):
                vt.issue(f"buffer_load_dwordx2 v[{XR+2*m}:{XR+2*m+1}], v{vXo}, s[{SX}:{SX+3}], 0 offen offset:{32*m}", 'e')
        if k==KA:
            vt.wait('af')
            a("s_mov_b32 exec_lo, 0xfffff\ns_mov_b32 exec_hi, 0")
            poll_check(a, 1, vTm)
            a("s_mov_b64 exec, -1")
            lab3=a.newlabel('Lok'); a(f"s_cbranch_scc0 {lab3}")
            if opts.get('only')!=4: poll(a, [vAf], vTm, mask=(0xfffff,0), sleep=4)
            a.label(lab3)
            for m in range(5):
                for r in range(4):
                    a(f"s_mov_b32 s{sTmp}, {(16*m+r)*4096}")
                    vt.issue(f"buffer_load_ushort v{AR+4*m+r}, v{vAt}, s[{SWS}:{SWS+3}], s{sTmp} offen sc1", 'e')
    S(7); SD(7)
    if opts.get('clk'): a("s_mov_b32 s96, s51")
    a("s_barrier")
    for n in range(1,4):
        a(f"s_add_u32 s{sTmp}, s{sWv}, {n}\ns_and_b32 s{sTmp}, s{sTmp}, 3\ns_mul_i32 s{sTmp}, s{sTmp}, {15*1024}\ns_add_u32 s{sTmp}, s{sTmp}, {(n-1)*5*1024}")
        a(f"v_add_u32 v{vRed}, s{sTmp}, v{vL16}")
        for m in range(5):
            d=DACC+4*(m*4+n)
            a(f"ds_write_b128 v{vRed}, v[{d}:{d+3}] offset:{m*1024}")
    a("s_waitcnt lgkmcnt(0)\ns_barrier")
    a(f"s_mul_i32 s{sTmp}, s{sWv}, {15*1024}\nv_add_u32 v{vRed}, s{sTmp}, v{vL16}")
    RB=192
    for si in range(3):
        for m in range(5):
            a(f"ds_read_b128 v[{RB+(si*5+m)*4}:{RB+(si*5+m)*4+3}], v{vRed} offset:{(si*5+m)*1024}")
    SRO=52
    srd(a,SRO,P["out"],X_BYTES)
    for si in range(3):
        a(f"s_waitcnt lgkmcnt({10-5*si})")
        for m in range(5):
            for r in range(4):
                x=DACC+4*(m*4)+r; y=RB+(si*5+m)*4+r
                a(f"v_add_f32 v{x}, v{x}, v{y}")
    a("s_waitcnt vmcnt(0)")
    T=92
    for m in range(5):
        x0=XR+2*m; f0=DACC+16*m
        a(f"v_lshlrev_b32 v{T}, 16, v{x0}\nv_and_b32 v{T+1}, 0xffff0000, v{x0}\nv_lshlrev_b32 v{T+2}, 16, v{x0+1}\nv_and_b32 v{T+3}, 0xffff0000, v{x0+1}")
        for r in range(4): a(f"v_lshlrev_b32 v{AR+4*m+r}, 16, v{AR+4*m+r}")
        for r in range(4): a(f"v_add_f32 v{T+r}, v{T+r}, v{AR+4*m+r}")
        for p in range(2): a(f"v_cvt_pk_bf16_f32 v{T+4+p}, v{T+2*p}, v{T+2*p+1}")
        for p in range(2): a(f"v_cvt_pk_bf16_f32 v{T+6+p}, v{f0+2*p}, v{f0+2*p+1}")
        o=T+8+2*(m%2)
        for p in range(2):
            a(f"v_lshlrev_b32 v{T}, 16, v{T+4+p}\nv_and_b32 v{T+1}, 0xffff0000, v{T+4+p}\nv_lshlrev_b32 v{T+2}, 16, v{T+6+p}\nv_and_b32 v{T+3}, 0xffff0000, v{T+6+p}")
            a(f"v_add_f32 v{T}, v{T}, v{T+2}\nv_add_f32 v{T+1}, v{T+1}, v{T+3}\nv_cvt_pk_bf16_f32 v{o+p}, v{T}, v{T+1}")
        a(f"buffer_store_dwordx2 v[{o}:{o+1}], v{vXo}, s[{SRO}:{SRO+3}], 0 offen offset:{32*m}")
    lab4=a.newlabel('Lnn')
    a(f"s_cmp_lg_u32 s2, 0\ns_cbranch_scc1 {lab4}\ns_cmp_lg_u32 s{sWv}, 0\ns_cbranch_scc1 {lab4}")
    for i in range(4): a(f"v_add_u32 v{100+i}, {64*i}, v{lane}\nv_lshlrev_b32 v{100+i}, 8, v{100+i}\nv_add_u32 v{100+i}, {FL_H}, v{100+i}")
    for i in range(3): a(f"v_add_u32 v{104+i}, {64*i}, v{lane}\nv_min_u32 v{104+i}, 159, v{104+i}\nv_lshlrev_b32 v{104+i}, 6, v{104+i}\nv_add_u32 v{104+i}, {FL_A}, v{104+i}")
    if opts.get('only')!=4: poll(a, [100,101,102,103,104,105,106], 108)
    a(f"s_mov_b32 s{sTmp}, {WS_NONCE}")
    flag_store(a, sTmp, t0)
    a.label(lab4)
```

```python
from f_common import *
from f_ln8 import *
TBL=18432
ROW=288
KN_OFF=[0, 32448, 36864, 69312]
U_OFF=4416
R_OFF=[U_OFF+18432, 41280, 41280+8448, 41280+2*8448]
RC=2112
LOG2E=0x3fb8aa3b
INV2PI=0x3e22f983

USEPK=0
def cmul(a, d, x, w):
    if USEPK:
        a(f"v_pk_mul_f32 v[{d}:{d+1}], v[{x}:{x+1}], v[{w}:{w+1}] op_sel:[0,0] op_sel_hi:[0,1]")
        a(f"v_pk_fma_f32 v[{d}:{d+1}], v[{x}:{x+1}], v[{w}:{w+1}], v[{d}:{d+1}] op_sel:[1,1,0] op_sel_hi:[1,0,1] neg_lo:[0,1,0]")
    else:
        a(f"v_mul_f32 v{d}, v{x}, v{w}")
        a(f"v_mul_f32 v{d+1}, v{x}, v{w+1}")
        a(f"v_fma_f32 v{d}, -v{x+1}, v{w+1}, v{d}")
        a(f"v_fma_f32 v{d+1}, v{x+1}, v{w}, v{d+1}")

def emit_ssm(a, S_, opts, st=' sc1', ld=' sc1', sb=64):
    global USEPK
    USEPK=opts.get('kpk',0)
    if opts.get('prio'): a(f"s_setprio {opts.get('p0',3)}")
    st_=S_; sQ=46; sPtrDt=P['logdt']; sPtrD=P['Dskip']
    SP=dict(logA=48,Aim=52,Cre=56,Cim=60)
    a(f's_sub_u32 s{sQ}, s2, 256')
    for n_ in SP: srd(a,SP[n_],P[n_],D*N*2)
    S=st_ if st_ else (lambda i: None)
    sWv=sb; sCh=sb+1; sTmp=sb+2; sTmp2=sb+3; sDt=sb+4; sD=sb+5; sTb=sb+6; sCnt=sb+7; sPo=sb+8; sKn=sb+9; sR=sb+10; sMask=sb+12; sBf=sb+14
    lane=1; t0=2; t1=3; vP=238; vTw=5; vTrA=6; vTrB=7
    a(f"v_and_b32 v{lane}, 63, v0")
    a(f"v_lshrrev_b32 v{t0}, 6, v0")
    a(f"v_readfirstlane_b32 s{sWv}, v{t0}")
    a(f"s_lshl_b32 s{sCh}, s{sQ}, 2")
    a(f"s_add_u32 s{sCh}, s{sCh}, s{sWv}")
    if opts.get('fakessm'):
        nonce_load(a)
        a("s_waitcnt vmcnt(0)")
        nonce_ready(a)
        a(f"s_lshl_b32 s{sTmp}, s{sQ}, 6\ns_add_u32 s{sTmp}, s{sTmp}, {FL_A}")
        flag_store(a, sTmp, 2)
        S(7)
        return
    LN2=opts.get('ln2',0)
    sLam=47
    if LN2:
        a(f"s_and_b32 s{sLam}, s2, 7\ns_lshl_b32 s{sLam}, s{sLam}, 5\ns_lshr_b32 s{sTmp}, s{sQ}, 3\ns_add_u32 s{sLam}, s{sLam}, s{sTmp}")
        ln8_loads(a, sLam, 64, 80)
    a(f"s_lshr_b32 s{sTmp}, s{sCh}, 1\ns_lshl_b32 s{sTmp}, s{sTmp}, 2")
    a(f"s_load_dword s{sDt}, s[{sPtrDt}:{sPtrDt+1}], s{sTmp}")
    a(f"s_load_dword s{sD}, s[{sPtrD}:{sPtrD+1}], s{sTmp}")
    PR=240
    a(f"s_mul_i32 s{sPo}, s{sCh}, 384")
    a(f"v_lshlrev_b32 v{vP}, 1, v{lane}")
    for p in range(3):
        for i,nm in enumerate(("logA","Aim","Cre","Cim")):
            a(f"buffer_load_ushort v{PR+4*p+i}, v{vP}, s[{SP[nm]}:{SP[nm]+3}], s{sPo} offen offset:{128*p}")
    nonce_load(a)
    NT=1+(k_touch(a, sWv, lane, 24, 235) if opts.get('ktouch',1)==1 else 0)
    if opts.get('prio'): a(f"s_setprio {opts.get('sprio',1)}")
    if LN2:
        a(f"s_waitcnt vmcnt({12+NT})")
        ln8_compute(a, sLam, sWv, 64, 80, 0)
        a("s_waitcnt lgkmcnt(0)\ns_barrier")
        NT+=4
    a(f"s_mul_i32 s{sTb}, s{sWv}, {TBL}")
    vTw1=8
    a(f"v_mul_u32_u24 v{vTw}, {ROW}, v{lane}")
    a(f"v_add_u32 v{vTw}, s{sTb}, v{vTw}")
    a(f"v_bfe_u32 v{t0}, v{lane}, 2, 1\nv_lshlrev_b32 v{t0}, 4, v{t0}")
    a(f"v_sub_u32 v{vTw1}, v{vTw}, v{t0}\nv_add_u32 v{vTw}, v{vTw}, v{t0}")
    a(f"v_bfe_u32 v{t0}, v{lane}, 4, 1")
    a(f"v_lshlrev_b32 v{t0}, 2, v{t0}")
    a(f"v_bfe_u32 v{t1}, v{lane}, 2, 2")
    a(f"v_add_u32 v{t0}, v{t0}, v{t1}")
    a(f"v_mul_u32_u24 v{vTrA}, {ROW}, v{t0}")
    a(f"v_and_b32 v{t1}, 1, v{lane}")
    a(f"v_lshl_add_u32 v{vTrA}, v{t1}, 3, v{vTrA}")
    a(f"v_bfe_u32 v{t1}, v{lane}, 1, 1\nv_bfe_u32 v{t0}, v{lane}, 4, 1\nv_xor_b32 v{t1}, v{t1}, v{t0}")
    a(f"v_lshl_add_u32 v{vTrA}, v{t1}, 4, v{vTrA}")
    a(f"v_add_u32 v{vTrA}, s{sTb}, v{vTrA}")
    a(f"v_lshrrev_b32 v{t0}, 5, v{lane}")
    a(f"v_mul_u32_u24 v{t1}, 32, v{t0}")
    a(f"v_add_u32 v{vTrB}, v{vTrA}, v{t1}")
    a(f"v_add_u32 v{vTrB}, 192, v{vTrB}")
    a(f"v_mul_u32_u24 v{t1}, 96, v{t0}")
    a(f"v_add_u32 v{vTrA}, v{vTrA}, v{t1}")
    vDt=20; vDs=21
    a("s_waitcnt lgkmcnt(0)")
    a(f"s_and_b32 s{sTmp}, s{sCh}, 1\ns_lshl_b32 s{sTmp}, s{sTmp}, 4")
    a(f"s_lshr_b32 s{sDt}, s{sDt}, s{sTmp}\ns_lshl_b32 s{sDt}, s{sDt}, 16")
    a(f"s_lshr_b32 s{sD}, s{sD}, s{sTmp}\ns_lshl_b32 s{sD}, s{sD}, 16")
    a(f"v_mov_b32 v{vDt}, s{sDt}")
    a(f"v_mul_f32 v{vDt}, {hex(LOG2E)}, v{vDt}")
    a(f"v_exp_f32 v{vDt}, v{vDt}")
    a(f"v_cvt_pk_bf16_f32 v{vDt}, v{vDt}, v{vDt}")
    a(f"v_and_b32 v{vDt}, 0xffff0000, v{vDt}")
    KACC=24
    for r in range(12): a(f"v_mov_b32 v{KACC+r}, 0")
    CUR=36
    AR=40; TH=41; Z1=42; Z8=44; Z128=46; M=48; TT=49
    H=52
    S1=84
    S2=100
    S3=116
    Lr=136
    PK=172
    FR=204
    a(f"s_waitcnt vmcnt({NT})")
    S(1)
    if opts.get('ktouch',1)==2: k_touch(a, sWv, lane, 24, 235, g0=2)
    a(f"s_mov_b32 s{sCnt}, {opts.get('kgrep',3)}")
    if opts.get('nw'):
        labskip=a.newlabel('Lskip')
        a(f"s_cmp_ge_u32 s{sWv}, {opts['nw']}\ns_cbranch_scc1 {labskip}")
    lab=a.newlabel('Lkg'); a.label(lab)
    KG0=len(a.ins)
    for i in range(4): a(f"v_lshlrev_b32 v{CUR+i}, 16, v{PR+i}")
    for i in range(8): a(f"v_mov_b32 v{PR+i}, v{PR+4+i}")
    a(f"v_mul_f32 v{AR}, {hex(LOG2E)}, v{CUR}")
    a(f"v_exp_f32 v{AR}, v{AR}")
    a(f"v_cvt_pk_bf16_f32 v{AR}, v{AR}, v{AR}")
    a(f"v_and_b32 v{AR}, 0xffff0000, v{AR}")
    a(f"v_mul_f32 v{AR}, v{AR}, v{vDt}")
    a(f"v_mul_f32 v{AR}, {hex(LOG2E|0x80000000)}, v{AR}")
    a(f"v_mul_f32 v{TH}, v{CUR+1}, v{vDt}")
    a(f"v_mul_f32 v{TH}, {hex(INV2PI)}, v{TH}")
    def zpow(dst, mult):
        if mult==1:
            a(f"v_exp_f32 v{M}, v{AR}")
            a(f"v_fract_f32 v{TT}, v{TH}")
        else:
            a(f"v_mul_f32 v{M}, {float(mult)}, v{AR}" if mult in (2,4) else f"v_mul_f32 v{M}, {hex(0x41000000)}, v{AR}")
            a(f"v_exp_f32 v{M}, v{M}")
            a(f"v_mul_f32 v{TT}, {hex(0x41000000)}, v{TH}")
            a(f"v_fract_f32 v{TT}, v{TT}")
        a(f"v_cos_f32 v{dst}, v{TT}")
        a(f"v_sin_f32 v{dst+1}, v{TT}")
        a(f"v_mul_f32 v{dst}, v{M}, v{dst}")
        a(f"v_mul_f32 v{dst+1}, v{M}, v{dst+1}")
    zpow(Z1,1); zpow(Z8,8)
    a(f"v_add_f32 v{M}, v{vDt}, v{vDt}")
    a(f"v_mul_f32 v{H}, v{CUR+2}, v{M}")
    a(f"v_mul_f32 v{H+1}, v{CUR+3}, v{M}")
    nchunk=[0]
    def wr(vals, im, neg, c):
        base=PK+4*(nchunk[0]%8); nchunk[0]+=1
        cnt=len(vals)//2
        for p in range(cnt):
            x=vals[2*p]+im; y=vals[2*p+1]+im
            if neg: a(f"v_cvt_pk_bf16_f32 v{base+p}, -v{x}, -v{y}")
            else: a(f"v_cvt_pk_bf16_f32 v{base+p}, v{x}, v{y}")
        reg=vTw if c%2==0 else vTw1
        if cnt==4: a(f"ds_write_b128 v{reg}, v[{base}:{base+3}] offset:{16*c}")
        else: a(f"ds_write_b32 v{reg}, v{base} offset:{16*c}")
    def wrH(vals, i):
        wr(vals,0,False,i); wr(vals,1,True,6+i)
    a(f"v_mov_b32 v{Lr}, 1.0\nv_mov_b32 v{Lr+1}, 0")
    a(f"v_mov_b32 v{Lr+2}, v{Z8}\nv_mov_b32 v{Lr+3}, v{Z8+1}")
    for j in range(2,17):
        cmul(a, Lr+2*j, Lr+2*(j-1), Z8)
        if j<=8:
            r=j-1
            cmul(a, H+2*r, H+2*(r-1), Z1)
        if j==8:
            L0=[Lr+2*i for i in range(8)]
            wr(L0,0,False,12); wr(L0,1,False,14)
        if j==10: wrH([H+2*i for i in range(8)],0)
    L1=[Lr+2*i for i in range(8,16)]
    z128=Lr+32
    for r in range(8):
        cmul(a, H+2*(8+r), H+2*r, z128)
        if r==3: wr(L1,0,False,13)
        if r==7: wr(L1,1,False,15)
    for r in range(4): cmul(a, S1+2*r, H+2*(8+2*r), z128)
    wrH([H+2*i for i in range(8,16)],1)
    for r in range(4): cmul(a, S1+2*(4+r), S1+2*r, z128)
    cmul(a, S2, S1+8, z128); cmul(a, S2+2, S1+8+4, z128)
    wrH([S1+2*i for i in range(8)],2)
    for i in range(1,4):
        for r in range(2): cmul(a, S2+4*i+2*r, S2+4*(i-1)+2*r, z128)
    cmul(a, S3, S2+12, z128)
    for i in range(1,9):
        cmul(a, S3+2*i, S3+2*(i-1), z128)
        if i==2: wrH([S2+2*i_ for i_ in range(8)],3)
    a(f"v_mov_b32 v{S3+18}, 0\nv_mov_b32 v{S3+19}, 0")
    wrH([S3+2*i for i in range(8)],4)
    wrH([S3+16,S3+18],5)
    a("s_waitcnt lgkmcnt(0)")
    FB=52
    for s_ in range(4):
        fb=FB+16*s_
        for q in range(2):
            a(f"ds_read_b64_tr_b16 v[{fb+12+2*q}:{fb+12+2*q+1}], v{vTrB} offset:{(16*s_+8*q)*ROW}")
        for t in range(3):
            for q in range(2):
                a(f"ds_read_b64_tr_b16 v[{fb+4*t+2*q}:{fb+4*t+2*q+1}], v{vTrA} offset:{(16*s_+8*q)*ROW+32*t}")
    for s_ in range(4):
        fb=FB+16*s_
        a(f"s_waitcnt lgkmcnt({min(15,8*(3-s_))})")
        for t in range(3):
            a(f"v_mfma_f32_16x16x32_bf16 v[{KACC+4*t}:{KACC+4*t+3}], v[{fb+4*t}:{fb+4*t+3}], v[{fb+12}:{fb+15}], v[{KACC+4*t}:{KACC+4*t+3}]")
    if LN2:
        labf=a.newlabel('Lnf')
        a(f"s_cmp_lg_u32 s{sCnt}, 3\ns_cbranch_scc1 {labf}")
        a("s_waitcnt vmcnt(0)\ns_barrier")
        nonce_ready(a)
        a(f"s_lshl_b32 s{sTmp}, s{sLam}, 6\ns_add_u32 s{sTmp}, s{sTmp}, {FL_LN}")
        flag_store(a, sTmp, 170)
        a.label(labf)
    if any(opts.get(k_) for k_ in ('kg_nods','kg_nomfma','kg_novalu','kg_nocvt','kg_nowr','kg_nord','kg_notrans','kg_nowait')):
        body=a.ins[KG0:]; keep=[]
        for x in body:
            if opts.get('kg_nods') and x.kind=='ds': continue
            if opts.get('kg_nomfma') and x.kind=='mfma': continue
            if opts.get('kg_novalu') and x.kind in ('valu','trans'): continue
            if opts.get('kg_nocvt') and x.op.startswith('v_cvt_pk'): continue
            if opts.get('kg_nowr') and x.op.startswith('ds_write'): continue
            if opts.get('kg_nord') and x.op.startswith('ds_read'): continue
            if opts.get('kg_notrans') and x.kind=='trans': continue
            if opts.get('kg_nowait') and x.op=='s_waitcnt': continue
            keep.append(x)
        a.ins=a.ins[:KG0]+keep
    a(f"s_sub_u32 s{sCnt}, s{sCnt}, 1")
    a(f"s_cmp_lg_u32 s{sCnt}, 0")
    a("s_nop 4")
    a(f"s_cbranch_scc1 {lab}")
    if opts.get('nw'): a.label(labskip)
    S(2)
    if opts.get('kgexit'): return
    for w in range(4):
        pass
    a(f"s_mov_b32 s{sKn}, {KN_OFF[0]}\ns_mov_b32 s{sR}, {R_OFF[0]}")
    for w in range(1,4):
        a(f"s_cmp_eq_u32 s{sWv}, {w}\ns_cselect_b32 s{sKn}, {KN_OFF[w]}, s{sKn}\ns_cselect_b32 s{sR}, {R_OFF[w]}, s{sR}")
    vJ=36; vG=37; vK=38; vK2=39; B=40
    a(f"v_and_b32 v{vJ}, 15, v{lane}")
    a(f"v_lshrrev_b32 v{vG}, 4, v{lane}")
    a(f"v_lshlrev_b32 v{vK}, 2, v{lane}")
    a(f"v_add_u32 v{vK}, s{sKn}, v{vK}")
    a(f"v_mov_b32 v{B}, 0")
    a(f"s_mov_b64 s[{sMask}:{sMask+1}], 0xfff")
    a(f"s_mov_b64 exec, s[{sMask}:{sMask+1}]")
    a(f"ds_write_b32 v{vK}, v{B}")
    a(f"s_mov_b64 exec, -1")
    a(f"v_lshlrev_b32 v{vK}, 4, v{vJ}")
    a(f"v_add_u32 v{vK}, s{sKn}, v{vK}")
    a(f"v_add_u32 v{vK}, 48, v{vK}")
    T2=KACC+8
    a(f"v_lshlrev_b32 v{vK2}, 10, v{vG}")
    a(f"v_add_u32 v{vK2}, v{vK}, v{vK2}")
    a(f"v_add_u32 v{vK2}, 2048, v{vK2}")
    a(f"v_and_b32 v{t0}, 1, v{vJ}")
    a(f"v_lshlrev_b32 v{t0}, 3, v{t0}")
    a(f"v_sub_u32 v{t1}, v{vK2}, v{t0}")
    for r in range(4):
        a(f"v_cvt_pk_bf16_f32 v{B+2*r}, v{T2+r}, v{T2+r}")
        a(f"v_mov_b32 v{B+2*r+1}, v{B+2*r}")
    def seg3(r):
        a(f"ds_write_b64 v{vK2}, v[{B+2*r}:{B+2*r+1}] offset:{r*256}")
    a(f"v_subrev_u32 v{vK2}, 8, v{vK2}")
    for r in range(4):
        a(f"s_mov_b64 exec, {hex(0x1ffffffff) if r==0 else hex(0xffffffff)}" if False else f"s_mov_b32 exec_lo, -1\ns_mov_b32 exec_hi, {1 if r==0 else 0}")
        a(f"ds_write_b64 v{vK2}, v[{B+2*r}:{B+2*r+1}] offset:{r*256}")
        a(f"ds_write_b64 v{vK2}, v[{B+2*r}:{B+2*r+1}] offset:{r*256+8}")
    for r in range(4):
        a(f"s_mov_b32 exec_lo, -1\ns_mov_b32 exec_hi, {1 if r==0 else 0}")
        a(f"ds_write_b16 v{t1}, v{B+2*r} offset:{r*256+8}")
    a("s_mov_b64 exec, -1")
    T1=KACC+4
    a(f"v_subrev_u32 v{t0}, 2, v{vG}")
    a(f"v_lshlrev_b32 v{t0}, 9, v{t0}")
    a(f"v_add_u32 v{vK2}, v{vK}, v{t0}")
    a(f"v_add_u32 v{vK2}, {1024-4}, v{vK2}")
    a(f"s_mov_b32 exec_lo, 0\ns_mov_b32 exec_hi, -1")
    for b in range(2):
        v0_=T1+2*b; v1_=T1+2*b+1
        a(f"v_cvt_pk_bf16_f32 v{B}, v{v0_}, v{v0_}")
        a(f"v_cvt_pk_bf16_f32 v{B+1}, v{v0_}, v{v1_}")
        a(f"v_cvt_pk_bf16_f32 v{B+2}, v{v1_}, v{v1_}")
        a(f"ds_write_b32 v{vK2}, v{B} offset:{b*256}")
        a(f"ds_write_b64 v{vK2}, v[{B}:{B+1}] offset:{b*256+4}")
        a(f"ds_write_b32 v{vK2}, v{B+2} offset:{b*256+12}")
        a("s_nop 1")
    a(f"s_mov_b32 exec_lo, -1\ns_mov_b32 exec_hi, 0")
    a(f"v_lshlrev_b32 v{t0}, 8, v{vG}")
    a(f"v_add_u32 v{vK2}, v{vK}, v{t0}")
    a(f"v_add_u32 v{vK2}, {512-2}, v{vK2}")
    a(f"v_cvt_pk_bf16_f32 v{B}, v{T1}, v{T1}")
    a(f"v_cvt_pk_bf16_f32 v{B+1}, v{T1+1}, v{T1+2}")
    a(f"v_cvt_pk_bf16_f32 v{B+2}, v{T1+2}, v{T1+2}")
    a(f"v_cvt_pk_bf16_f32 v{B+3}, v{T1+3}, v{T1+3}")
    a(f"ds_write_b16 v{vK2}, v{B}")
    a(f"v_add_u32 v{vK2}, 2, v{vK2}")
    a(f"ds_write_b64 v{vK2}, v[{B}:{B+1}]")
    a(f"ds_write_b32 v{vK2}, v{B+2} offset:8")
    a(f"ds_write_b16 v{vK2}, v{B+3} offset:12")
    a("s_mov_b64 exec, -1")
    a(f"v_lshrrev_b32 v{t0}, 1, v{vG}")
    a(f"v_lshlrev_b32 v{t0}, 8, v{t0}")
    a(f"v_add_u32 v{vK2}, v{vK}, v{t0}")
    a(f"v_and_b32 v{t0}, 1, v{vG}")
    a(f"v_lshl_add_u32 v{vK2}, v{t0}, 3, v{vK2}")
    a(f"v_cvt_pk_bf16_f32 v{B+4}, v{KACC}, v{KACC+1}")
    a(f"v_cvt_pk_bf16_f32 v{B+5}, v{KACC+2}, v{KACC+3}")
    a(f"ds_write_b64 v{vK2}, v[{B+4}:{B+5}]")
    a("s_waitcnt lgkmcnt(0)")
    a("s_barrier")
    S(3)
    vU=36
    a(f"v_lshlrev_b32 v{t0}, 3, v0")
    a(f"v_mov_b32 v{B}, 0\nv_mov_b32 v{B+1}, 0")
    a(f"ds_write_b64 v{t0}, v[{B}:{B+1}] offset:{U_OFF}")
    CACC=24
    vAa=56; vBa=[57,58,59,60]; vRw=61; vKr=62
    AF=64
    BF=96
    vb_=184; vg_=185
    a(f"v_and_b32 v{vb_}, 15, v{lane}")
    a(f"v_lshrrev_b32 v{vg_}, 4, v{lane}")
    a(f"v_and_b32 v{t0}, 3, v{vb_}")
    a(f"v_mul_u32_u24 v{vAa}, {RC}, v{t0}")
    a(f"v_lshrrev_b32 v{t0}, 2, v{vb_}")
    a(f"v_lshlrev_b32 v{t0}, 3, v{t0}")
    a(f"v_sub_u32 v{vAa}, v{vAa}, v{t0}")
    a(f"v_lshrrev_b32 v{t0}, 1, v{vg_}")
    a(f"v_lshlrev_b32 v{t0}, 5, v{t0}")
    a(f"v_sub_u32 v{vAa}, v{vAa}, v{t0}")
    a(f"v_and_b32 v{t0}, 1, v{vg_}")
    a(f"v_lshl_add_u32 v{vAa}, v{t0}, 4, v{vAa}")
    a(f"v_add_u32 v{vAa}, s{sR}, v{vAa}")
    a(f"v_lshlrev_b32 v{t0}, 1, v{vb_}")
    a(f"v_add_u32 v{t0}, 32, v{t0}")
    a(f"v_and_b32 v{t1}, 1, v{vg_}")
    a(f"v_add_u32 v{t0}, v{t0}, v{t1}")
    a(f"v_and_b32 v{t1}, 2, v{vg_}")
    a(f"v_sub_u32 v{t0}, v{t0}, v{t1}")
    for rm in range(4):
        a(f"v_lshrrev_b32 v{t1}, 2, v{t0}")
        a(f"v_subrev_u32 v{t1}, {rm}, v{t1}")
        a(f"v_and_b32 v{t1}, 3, v{t1}")
        a(f"v_xor_b32 v{t1}, s{sWv}, v{t1}")
        a(f"v_lshlrev_b32 v{t1}, 4, v{t1}")
        a(f"v_lshl_add_u32 v{vBa[rm]}, v{t0}, 6, v{t1}")
        a(f"v_add_u32 v{vBa[rm]}, {U_OFF-256*7}, v{vBa[rm]}")
    a(f"v_lshlrev_b32 v{vRw}, 4, v{lane}")
    a(f"v_add_u32 v{vRw}, s{sR}, v{vRw}")
    vL16=63
    a(f"v_lshlrev_b32 v{vL16}, 4, v{lane}")
    a(f"s_mov_b32 s{sBf}, 0xffff")
    RB=160
    def build_R(ps):
        M0=127 if ps==0 else 255
        for rd in range(3):
            if rd==2:
                a(f"s_mov_b32 exec_lo, 3\ns_mov_b32 exec_hi, 0")
            off=40+16*(M0-64*rd)
            a(f"s_add_u32 s{sTmp}, s{sKn}, {off}")
            a(f"v_sub_u32 v{vKr}, s{sTmp}, v{vL16}")
            p=RB
            a(f"ds_read_b64 v[{p}:{p+1}], v{vKr}")
            a(f"ds_read_b128 v[{p+2}:{p+5}], v{vKr} offset:8")
            a("s_waitcnt lgkmcnt(0)")
            o=RB+8
            for mu_ in range(4):
                a(f"v_bfi_b32 v{o+mu_}, s{sBf}, v{p+4-mu_}, v{p+3-mu_}")
                a(f"v_alignbit_b32 v{o+4+mu_}, v{p+4-mu_}, v{p+4-mu_}, 16")
                a(f"v_bfi_b32 v{o+8+mu_}, s{sBf}, v{p+5-mu_}, v{p+4-mu_}")
                a(f"v_alignbit_b32 v{o+12+mu_}, v{p+5-mu_}, v{p+5-mu_}, 16")
            for sg in range(4):
                a(f"ds_write_b128 v{vRw}, v[{o+4*sg}:{o+4*sg+3}] offset:{sg*RC+1024*rd}")
            if rd==2: a("s_mov_b64 exec, -1")
        a("s_waitcnt lgkmcnt(0)")
    def conv_pass(ps):
        nB=8-4*ps
        def rdA(rho,setp):
            out=[]
            for il in range(4):
                kl=rho+8*il
                for hf in range(2):
                    r=AF+16*setp+4*il+2*hf
                    out.append(f"ds_read_b64 v[{r}:{r+1}], v{vAa} offset:{2040-64*kl+8*hf}")
            return out
        def rdB(rho,setp):
            out=[]
            for tau in range(nB):
                r=BF+32*setp+4*tau
                out.append(f"ds_read_b128 v[{r}:{r+3}], v{vBa[rho%4]} offset:{2048*tau+256*(7-rho)}")
            return out
        for x in rdA(0,0)+rdB(0,0): a(x)
        for rho in range(8):
            sp=rho%2
            a("s_waitcnt lgkmcnt(0)")
            nxt=(rdA(rho+1,1-sp)+rdB(rho+1,1-sp)) if rho<7 else []
            ms=[]
            for il in range(4):
                i=il+4*ps
                for tau in range(nB):
                    t=i+tau
                    if t>7: continue
                    ms.append((t,il,tau))
            ni=0
            for n,(t,il,tau) in enumerate(ms):
                d=CACC+4*t; A_=AF+16*sp+4*il; B_=BF+32*sp+4*tau
                cc="0" if (ps==0 and rho==0 and il==0) else f"v[{d}:{d+3}]"
                a(f"v_mfma_f32_16x16x32_bf16 v[{d}:{d+3}], v[{A_}:{A_+3}], v[{B_}:{B_+3}], {cc}")
                k=-(-len(nxt)//len(ms)) if n<len(ms) else 0
                for _ in range(k):
                    if ni<len(nxt): a(nxt[ni]); ni+=1
    build_R(0)
    a("s_waitcnt vmcnt(0)")
    if not LN2: nonce_ready(a)
    if opts.get('prio'): a(f"s_setprio {opts.get('cprio',0)}")
    if opts.get('ln8') or LN2:
        a(f"v_lshlrev_b32 v{B+4}, 6, v0\nv_add_u32 v{B+4}, {FL_LN}, v{B+4}")
    else:
        a(f"v_and_b32 v{B+4}, 31, v0\ns_lshl_b32 s{sTmp}, s{sWv}, 5\nv_add_u32 v{B+4}, s{sTmp}, v{B+4}\nv_lshlrev_b32 v{B+4}, 6, v{B+4}\nv_add_u32 v{B+4}, {FL_LN}, v{B+4}")
    poll(a, [B+4], B+6, mask=(0xffffffff,0) if not (opts.get('ln8') or LN2) else None, sleep=opts.get('slpl',32))
    a("s_barrier")
    a(f"v_lshrrev_b32 v{t0}, 2, v{lane}")
    a(f"v_lshlrev_b32 v{vU}, 7, v{t0}")
    a(f"v_bfe_u32 v{t0}, v{lane}, 4, 2")
    a(f"v_and_b32 v{t1}, 3, v{lane}")
    a(f"v_xor_b32 v{t0}, v{t0}, v{t1}")
    a(f"v_lshl_add_u32 v{vU}, v{t0}, 4, v{vU}")
    a(f"s_lshr_b32 s{sTmp}, s{sQ}, 1\ns_lshl_b32 s{sTmp}, s{sTmp}, 15")
    a(f"s_and_b32 s{sTmp2}, s{sQ}, 1\ns_lshl_b32 s{sTmp2}, s{sTmp2}, 6\ns_add_u32 s{sTmp}, s{sTmp}, s{sTmp2}")
    a(f"s_lshl_b32 s{sTmp2}, s{sWv}, 13\ns_add_u32 s{sTmp}, s{sTmp}, s{sTmp2}")
    if WS_XNT: a(f"s_add_u32 s{sTmp}, s{sTmp}, {WS_XNT}")
    a(f"s_lshl_b32 s{sTmp2}, s{sWv}, 12\ns_add_u32 s{sTmp2}, s{sTmp2}, {U_OFF+2048}")
    for i in range(4):
        a(f"s_add_u32 m0, s{sTmp2}, {i*1024}")
        a(f"buffer_load_dwordx4 v{vU}, s[{SWS}:{SWS+3}], s{sTmp} offen{ld} lds")
        if i<3: a(f"s_add_u32 s{sTmp}, s{sTmp}, 2048")
    a("s_waitcnt vmcnt(0) lgkmcnt(0)")
    a("s_barrier")
    if opts.get('gate',1):
        a(f"s_lshl_b32 s{sTmp}, s{sQ}, 6\ns_add_u32 s{sTmp}, s{sTmp}, {FL_UD}\nv_mov_b32 v{RB}, s{sTmp}")
        poll(a, [RB], RB+1, mask=(1,0), sleep=opts.get('slp',8))
    S(4)
    if opts.get('nw'):
        labskip2=a.newlabel('Lskip')
        a(f"s_cmp_ge_u32 s{sWv}, {opts['nw']}\ns_cbranch_scc1 {labskip2}")
    conv_pass(0)
    S(5)
    build_R(1)
    conv_pass(1)
    if opts.get('prio'): a(f"s_setprio {opts.get('eprio',3)}")
    if opts.get('nw'): a.label(labskip2)
    S(6)
    vE=186; vS=187; vDp=188
    a(f"v_and_b32 v{t0}, 15, v{lane}")
    a(f"v_lshlrev_b32 v{t0}, 1, v{t0}")
    a(f"v_lshrrev_b32 v{t1}, 5, v{lane}")
    a(f"v_add_u32 v{t0}, v{t0}, v{t1}")
    a(f"v_bfe_u32 v{t1}, v{t0}, 2, 2")
    a(f"v_xor_b32 v{t1}, s{sWv}, v{t1}")
    a(f"v_lshlrev_b32 v{t1}, 4, v{t1}")
    a(f"v_lshl_add_u32 v{vE}, v{t0}, 6, v{t1}")
    a(f"v_bfe_u32 v{t1}, v{lane}, 4, 1")
    a(f"v_lshl_add_u32 v{vE}, v{t1}, 3, v{vE}")
    a(f"v_add_u32 v{vE}, {U_OFF+2048}, v{vE}")
    a(f"v_and_b32 v{t0}, 15, v{lane}")
    a(f"v_lshlrev_b32 v{vS}, 5, v{t0}")
    a(f"v_lshrrev_b32 v{t1}, 4, v{lane}")
    a(f"v_lshl_add_u32 v{vS}, v{t1}, 3, v{vS}")
    a(f"s_lshl_b32 s{sTmp}, s{sCh}, 12\ns_add_u32 s{sTmp}, s{sTmp}, {WS_AT}")
    a(f"v_add_u32 v{vS}, s{sTmp}, v{vS}")
    a(f"v_mov_b32 v{vDp}, s{sD}\nv_mov_b32 v{vDp+1}, s{sD}")
    UB=64
    for t in range(8):
        a(f"ds_read_b64 v[{UB+2*t}:{UB+2*t+1}], v{vE} offset:{2048*t}")
    T=96
    for t in range(8):
        a(f"s_waitcnt lgkmcnt({7-t})")
        d=CACC+4*t; u=UB+2*t; o=T+16+2*(t%2)
        a(f"v_lshlrev_b32 v{T}, 16, v{u}\nv_and_b32 v{T+1}, 0xffff0000, v{u}")
        a(f"v_lshlrev_b32 v{T+2}, 16, v{u+1}\nv_and_b32 v{T+3}, 0xffff0000, v{u+1}")
        for p in range(4): a(f"v_mul_f32 v{T+p}, v{T+p}, v{vDp}")
        for p in range(2): a(f"v_cvt_pk_bf16_f32 v{T+4+p}, v{T+2*p}, v{T+2*p+1}")
        for p in range(2): a(f"v_cvt_pk_bf16_f32 v{T+6+p}, v{d+2*p}, v{d+2*p+1}")
        for p in range(2):
            a(f"v_lshlrev_b32 v{T}, 16, v{T+4+p}\nv_and_b32 v{T+1}, 0xffff0000, v{T+4+p}")
            a(f"v_lshlrev_b32 v{T+2}, 16, v{T+6+p}\nv_and_b32 v{T+3}, 0xffff0000, v{T+6+p}")
            a(f"v_add_f32 v{T}, v{T}, v{T+2}\nv_add_f32 v{T+1}, v{T+1}, v{T+3}")
            a(f"v_cvt_pk_bf16_f32 v{o+p}, v{T}, v{T+1}")
        a(f"buffer_store_dwordx2 v[{o}:{o+1}], v{vS}, s[{SWS}:{SWS+3}], 0 offen offset:{512*t}{st}")
    a("s_waitcnt vmcnt(0)\ns_barrier")
    a(f"s_lshl_b32 s{sTmp}, s{sQ}, 6\ns_add_u32 s{sTmp}, s{sTmp}, {FL_A}")
    flag_store(a, sTmp, 2)
    S(7)
```

```python
from f_common import *
from f_ln16 import *
from f_ln8 import *
def pack_issue(a, sUnit, sLds, SW2, sb, ga, t0, t1):
    lane=1
    sS=sb; sLg=sb+1; sT=sb+2; sO=sb+3
    a(f"s_mul_i32 s{sS}, s{sUnit}, 6554\ns_lshr_b32 s{sS}, s{sS}, 16")
    a(f"s_mul_i32 s{sT}, s{sS}, 10\ns_sub_u32 s{sLg}, s{sUnit}, s{sT}")
    a(f"v_lshrrev_b32 v{t0}, 3, v{lane}\nv_mul_u32_u24 v{ga}, 1280, v{t0}\nv_and_b32 v{t1}, 7, v{lane}\nv_lshl_add_u32 v{ga}, v{t1}, 4, v{ga}")
    a(f"s_mul_i32 s{sT}, s{sS}, {32*1280}\ns_lshl_b32 s{sO}, s{sLg}, 7\ns_add_u32 s{sT}, s{sT}, s{sO}")
    for i in range(4):
        a(f"s_add_u32 m0, s{sLds}, {i*1024}\ns_nop 0")
        a(f"buffer_load_dwordx4 v{ga}, s[{SW2}:{SW2+3}], s{sT} offen lds")
        if i<3: a(f"s_add_u32 s{sT}, s{sT}, {8*1280}")
def pack_finish(a, sLds, sb, t0, t1, ra, so, d):
    lane=1
    sS=sb; sLg=sb+1; sT=sb+2; sO=sb+3
    a(f"v_lshrrev_b32 v{t0}, 4, v{lane}\nv_lshlrev_b32 v{ra}, 3, v{t0}\nv_bfe_u32 v{t1}, v{lane}, 2, 2\nv_add_u32 v{ra}, v{ra}, v{t1}\nv_lshlrev_b32 v{ra}, 7, v{ra}")
    a(f"v_and_b32 v{t1}, 3, v{lane}\nv_lshl_add_u32 v{ra}, v{t1}, 3, v{ra}\nv_add_u32 v{ra}, s{sLds}, v{ra}\nv_lshlrev_b32 v{so}, 4, v{lane}")
    a(f"s_mul_i32 s{sT}, s{sLg}, {4*49152}\ns_lshl_b32 s{sO}, s{sS}, 10\ns_add_u32 s{sT}, s{sT}, s{sO}\ns_add_u32 s{sT}, s{sT}, {WS_W2P}")
    for mt in range(4):
        for q in range(2):
            a(f"ds_read_b64_tr_b16 v[{d+4*mt+2*q}:{d+4*mt+2*q+1}], v{ra} offset:{q*512+mt*32}")
    for mt in range(4):
        a(f"s_waitcnt lgkmcnt({6-2*mt})")
        a(f"buffer_store_dwordx4 v[{d+4*mt}:{d+4*mt+3}], v{so}, s[{SWS}:{SWS+3}], s{sT} offen sc1")
        if mt<3: a(f"s_add_u32 s{sT}, s{sT}, 49152")

def emit_aux(a, S, opts):
    sU=46; sWv=47; sT=48; sT2=49; sB1=50; sB2=51; SW2=56; sUa=60; sUb=61; sLa=62; sLb=63; sPa=64; sPb=68
    lane=1; w=2
    RAW1=16; RAW2=36
    doln=not opts.get('ln8') and not opts.get('ln2')
    LN2=opts.get('ln2',0); sLam=52
    if opts.get('prio'): a(f"s_setprio {opts.get('p0',3)}")
    a(f"s_sub_u32 s{sU}, s2, 416")
    a(f"v_and_b32 v{lane}, 63, v0\nv_lshrrev_b32 v{w}, 6, v0")
    if opts.get('lateptr',1):
        ptr_ready(a)
        S(0)
    if doln:
        a(f"s_and_b32 s{sB1}, s{sU}, 7\ns_lshl_b32 s{sB1}, s{sB1}, 4\ns_lshr_b32 s{sT}, s{sU}, 3\ns_add_u32 s{sB1}, s{sB1}, s{sT}\ns_add_u32 s{sB2}, s{sB1}, 12")
        ln_loads(a, sB1, RAW1, sT)
        l2=a.newlabel('Lax')
        a(f"s_cmp_ge_u32 s{sU}, 32\ns_cbranch_scc1 {l2}")
        ln_loads(a, sB2, RAW2, sT)
        a.label(l2)
    a(f"v_readfirstlane_b32 s{sWv}, v{w}")
    srd(a,SW2,P["w2"],F*D*2)
    a(f"s_lshl_b32 s{sUa}, s{sU}, 2\ns_add_u32 s{sUa}, s{sUa}, s{sWv}\ns_add_u32 s{sUb}, s{sUa}, 96")
    a(f"s_lshl_b32 s{sLa}, s{sWv}, 12\ns_add_u32 s{sLb}, s{sLa}, 40960")
    SWP=72; vPw=90; vPt=93; vDm=96; sI=76; sI24=77
    def prefetch_setup():
        a(f"s_lshr_b32 s{sI}, s{sU}, 3\ns_lshl_b32 s{sI}, s{sI}, 2\ns_add_u32 s{sI}, s{sI}, s{sWv}")
        a(f"s_cmp_ge_u32 s{sI}, 24\ns_cselect_b32 s{SWP}, s{P['w3']}, s{P['w1']}\ns_cselect_b32 s{SWP+1}, s{P['w3']+1}, s{P['w1']+1}\ns_cselect_b32 s{sT}, 24, 0")
        a(f"s_sub_u32 s{sI24}, s{sI}, s{sT}\ns_and_b32 s{SWP+1}, s{SWP+1}, 0xffff\ns_mov_b32 s{SWP+2}, {D*F*2}\ns_mov_b32 s{SWP+3}, 0x20000")
        for t in range(3):
            a(f"s_lshl_b32 s{sT}, s{sI24}, 6\ns_add_u32 s{sT}, s{sT}, {t*1536}\nv_add_u32 v4, s{sT}, v{lane}")
            a(f"v_mul_u32_u24 v5, 10923, v4\nv_lshrrev_b32 v5, 16, v5\nv_mul_u32_u24 v6, 6, v5\nv_sub_u32 v6, v4, v6")
            a(f"v_add_u32 v5, 96, v5\nv_mul_u32_u24 v5, 3072, v5\nv_lshl_add_u32 v{vPw+t}, v6, 7, v5")
            a(f"s_lshl_b32 s{sT}, s{sI}, 6\ns_add_u32 s{sT}, s{sT}, {t*3072}\nv_add_u32 v4, s{sT}, v{lane}")
            a(f"v_lshrrev_b32 v5, 10, v4\nv_add_u32 v5, 2, v5\nv_min_u32 v5, 9, v5\nv_and_b32 v4, 1023, v4\nv_mul_u32_u24 v4, 1280, v4\nv_lshl_add_u32 v{vPt+t}, v5, 7, v4")
        a(f"s_and_b32 s{sT}, s{sU}, 3\ns_mul_i32 s78, s{sT}, 768")
        a(f"s_bfe_u32 s{sT}, s{sU}, 0x10002\ns_mul_i32 s79, s{sT}, {1024*1280}")
    def prefetch(t):
        if not opts.get('atouch',1): return
        a(f"buffer_load_dword v{vDm}, v{vPw+t}, s[{SWP}:{SWP+3}], s78 offen")
        a(f"buffer_load_dword v{vDm}, v{vPt+t}, s[{SX}:{SX+3}], s79 offen")
    def pack_loads():
        pack_issue(a, sUa, sLa, SW2, sPa, 60, 4, 5)
        l3=a.newlabel('Lax')
        a(f"s_cmp_lt_u32 s{sUa}, 288\ns_cbranch_scc1 {l3}")
        pack_issue(a, sUb, sLb, SW2, sPb, 60, 4, 5)
        a.label(l3)
    if doln:
        nonce_load(a)
        nt=1+(k_touch(a, sWv, lane, 72, 90) if opts.get('ktouch',1)==1 else 0)
        if opts.get('prio'): a(f"s_setprio {opts.get('aprio',1)}")
        ln_addr(a, sWv, sT, sT2, 16384)
        S(1)
        a(f"s_waitcnt vmcnt({nt-1}) lgkmcnt(0)")
        nonce_ready(a)
        S(2)
        if opts.get('ktouch',1)==2: k_touch(a, sWv, lane, 72, 90, g0=2)
        pack_loads()
        ln_compute(a, sB1, RAW1, sT)
        l4=a.newlabel('Lax')
        a(f"s_cmp_ge_u32 s{sU}, 32\ns_cbranch_scc1 {l4}")
        a("s_barrier")
        ln_compute(a, sB2, RAW2, sT)
        a.label(l4)
        S(3)
        a("s_waitcnt vmcnt(0)\ns_barrier")
        a(f"s_lshl_b32 s{sT}, s{sB1}, 6\ns_add_u32 s{sT}, s{sT}, {FL_LN}")
        flag_store(a, sT, 4)
        if opts.get('cnt',0):
            dbg_srd(a, 76)
            cnt_add(a, 76, 0, 4)
        l5=a.newlabel('Lax')
        a(f"s_cmp_ge_u32 s{sU}, 32\ns_cbranch_scc1 {l5}")
        a(f"s_lshl_b32 s{sT}, s{sB2}, 6\ns_add_u32 s{sT}, s{sT}, {FL_LN}")
        flag_store(a, sT, 4)
        if opts.get('cnt',0): cnt_add(a, 76, 0, 4)
        a.label(l5)
        S(4)
        if opts.get('prio'): a("s_setprio 0")
    elif LN2:
        a(f"s_and_b32 s{sLam}, s2, 7\ns_lshl_b32 s{sLam}, s{sLam}, 5\ns_sub_u32 s{sT}, s2, 256\ns_lshr_b32 s{sT}, s{sT}, 3\ns_add_u32 s{sLam}, s{sLam}, s{sT}")
        ln8_loads(a, sLam, 100, 72)
        nonce_load(a)
        if opts.get('prio'): a(f"s_setprio {opts.get('aprio',1)}")
        S(1)
        a("s_waitcnt vmcnt(1) lgkmcnt(0)")
        S(2)
        if opts.get('ktouch',1)==2: k_touch(a, sWv, lane, 76, 90, g0=2)
        pack_loads()
        ln8_compute(a, sLam, sWv, 100, 72, 16384)
        S(3)
        a("s_waitcnt vmcnt(0)\ns_barrier")
        nonce_ready(a)
        a(f"s_lshl_b32 s{sT}, s{sLam}, 6\ns_add_u32 s{sT}, s{sT}, {FL_LN}")
        flag_store(a, sT, 4)
        S(4)
    else:
        nonce_load(a)
        nt=k_touch(a, sWv, lane, 72, 90) if opts.get('ktouch',1) else 0
        if opts.get('prio'): a(f"s_setprio {opts.get('aprio',1)}")
        if nt: a("s_waitcnt vmcnt(4)")
        pack_loads()
        S(1)
        a("s_waitcnt vmcnt(0) lgkmcnt(0)")
        nonce_ready(a)
        S(2)
    pack_finish(a, sLa, sPa, 4, 5, 60, 61, 64)
    l6=a.newlabel('Lax')
    a(f"s_cmp_lt_u32 s{sUa}, 288\ns_cbranch_scc1 {l6}")
    pack_finish(a, sLb, sPb, 4, 5, 60, 61, 80)
    a.label(l6)
    a("s_waitcnt vmcnt(0)\ns_barrier")
    if opts.get('cnt',0):
        dbg_srd(a, 76)
        cnt_add(a, 76, 64, 4)
    else:
        a(f"s_lshl_b32 s{sT}, s{sU}, 6\ns_add_u32 s{sT}, s{sT}, {FL_PK}")
        flag_store(a, sT, 4)
    S(7)
```

```python
from common import *
import common
WS_STATS=0xD80000
WS_CS   =0xD98000
WS_NONCE=0xDA0000
FL_LN=0xE14000
FL_CS=0xE04000
FL_PK=0xE08000
FL_H =0xE20000
FL_A =0xE10000
FL_UD=0xE18000
S_PTR=4
P=dict(u=4,logA=6,Aim=8,Cre=10,Cim=12,logdt=14,Dskip=16,x=18,w1=20,w3=22,w2=24,out=26,dbg=28,ws=30)
SWS=32
SX =36
S_NONCE=40

def prologue(a, opts={}):
    a("s_load_dwordx16 s[4:19], s[0:1], 0")
    a("s_load_dwordx8 s[20:27], s[0:1], 64")
    a("s_load_dwordx4 s[28:31], s[0:1], 96")
    if opts.get('codetouch',1):
        lab=a.newlabel('Lct')
        a("s_getpc_b64 s[100:101]")
        a.label("Lpcbase")
        a("s_lshr_b32 s41, s2, 3")
        a.raw("  s_mul_i32 s41, s41, ((Lcode_end-Lpcbase+8191)/8192)")
        a("v_add_u32 v1, s41, v0")
        a("v_lshlrev_b32 v1, 7, v1")
        a.raw("  v_cmp_gt_u32 vcc, ((Lcode_end-Lpcbase+8191)/8192), v0")
        a("s_and_saveexec_b64 s[42:43], vcc")
        a(f"s_cbranch_execz {lab}")
        a.raw("  v_min_u32 v1, (Lcode_end-Lpcbase-4), v1")
        a("v_and_b32 v1, 0xfffffffc, v1")
        a("global_load_dword v255, v1, s[100:101]")
        a.label(lab)
        a("s_mov_b64 exec, s[42:43]")
    if not opts.get('lateptr',1): ptr_ready(a)

def ptr_ready(a):
    a("s_waitcnt lgkmcnt(0)")
    srd(a,SWS,P["ws"],WS_SIZE); srd(a,SX,P["u"],X_BYTES)

V_NONCE=254
def nonce_load(a):
    a(f"v_mov_b32 v{V_NONCE}, {WS_NONCE}")
    a(f"buffer_load_dword v{V_NONCE}, v{V_NONCE}, s[{SWS}:{SWS+3}], 0 offen sc1")
def nonce_ready(a):
    a(f"v_readfirstlane_b32 s{S_NONCE}, v{V_NONCE}")
    a(f"s_add_u32 s{S_NONCE}, s{S_NONCE}, 0x9e3779b1")

def flag_store(a, sIdxOff, vt, keepvcc=False):
    lab=a.newlabel('Lfs')
    m="s[44:45]" if keepvcc else "vcc"
    a(f"v_cmp_eq_u32 {m}, 0, v0")
    a(f"s_and_saveexec_b64 s[42:43], {m}")
    a(f"s_cbranch_execz {lab}")
    a(f"v_mov_b32 v{vt}, 0\nv_mov_b32 v{vt+1}, s{S_NONCE}")
    a(f"buffer_store_dword v{vt+1}, v{vt}, s[{SWS}:{SWS+3}], s{sIdxOff} offen sc1")
    a.label(lab)
    a("s_mov_b64 exec, s[42:43]")

NOPOLL=[False]
SLEEP=[4]
def poll(a, vaddrs, vtmp, force=False, mask=None, sleep=None):
    if NOPOLL[0] and not force:
        a("s_waitcnt vmcnt(0)"); return
    lab=a.newlabel('Lpoll'); out=a.newlabel('Lpout'); first=a.newlabel('Lpf')
    sl=SLEEP[0] if sleep is None else sleep
    if mask: a(f"s_mov_b32 exec_lo, {hex(mask[0])}\ns_mov_b32 exec_hi, {hex(mask[1])}")
    a("s_mov_b32 s41, 0x40000")
    a(f"s_branch {first}")
    a.label(lab)
    if sl: a(f"s_sleep {sl}")
    a.label(first)
    for i,va in enumerate(vaddrs):
        a(f"buffer_load_dword v{vtmp+i}, v{va}, s[{SWS}:{SWS+3}], 0 offen sc1")
    a("s_sub_u32 s41, s41, 1")
    a(f"s_cbranch_scc1 {out}")
    a("s_waitcnt vmcnt(0)")
    poll_check(a, len(vaddrs), vtmp)
    a(f"s_cbranch_scc1 {lab}")
    a.label(out)
    a("s_waitcnt vmcnt(0)")
    if mask: a("s_mov_b64 exec, -1")

def poll_check(a, n, vtmp):
    for i in range(n):
        a(f"v_cmp_ne_u32 vcc, s{S_NONCE}, v{vtmp+i}")
        if i==0: a("s_mov_b64 s[44:45], vcc")
        else: a("s_or_b64 s[44:45], s[44:45], vcc")
    a("s_cmp_lg_u64 s[44:45], 0")

def k_touch(a, sWv, lane, sb, vb, g0=1):
    SR=sb; sO=sb+4; sT=sb+5; sS=sb+6; sJ=sb+7
    assert sb%4==0
    a(f"s_sub_u32 s{sJ}, s2, 256\ns_lshr_b32 s{sJ}, s{sJ}, 3")
    a(f"s_cmp_eq_u32 s{sWv}, 0\ns_cselect_b32 s{SR}, s{P['w1']}, s{P['w3']}\ns_cselect_b32 s{SR+1}, s{P['w1']+1}, s{P['w3']+1}")
    a(f"s_cmp_ge_u32 s{sWv}, 2\ns_cselect_b32 s{SR}, s{P['u']}, s{SR}\ns_cselect_b32 s{SR+1}, s{P['u']+1}, s{SR+1}")
    a(f"s_cselect_b32 s{SR+2}, {X_BYTES}, {D*F*2}" if False else f"s_mov_b32 s{SR+2}, {D*F*2}\ns_cselect_b32 s{SR+2}, {X_BYTES}, s{SR+2}")
    a(f"s_and_b32 s{SR+1}, s{SR+1}, 0xffff\ns_mov_b32 s{SR+3}, 0x20000")
    lw=a.newlabel('Lkt'); le=a.newlabel('Lkt')
    a(f"s_cmp_ge_u32 s{sWv}, 2\ns_cbranch_scc1 {lw}")
    a(f"v_mul_u32_u24 v{vb}, 10923, v{lane}\nv_lshrrev_b32 v{vb}, 16, v{vb}\nv_mul_u32_u24 v{vb+1}, 6, v{vb}\nv_sub_u32 v{vb+1}, v{lane}, v{vb+1}")
    a(f"v_mul_u32_u24 v{vb}, 3072, v{vb}\nv_lshl_add_u32 v{vb}, v{vb+1}, 7, v{vb}")
    a(f"s_mul_i32 s{sO}, s{sJ}, {2*3072}\ns_and_b32 s{sT}, s2, 3\ns_mul_i32 s{sT}, s{sT}, 768\ns_add_u32 s{sO}, s{sO}, s{sT}\ns_add_u32 s{sO}, s{sO}, {g0*64*3072}")
    a(f"s_mov_b32 s{sS}, {64*3072}\ns_mov_b64 exec, 0xfff")
    a(f"s_branch {le}")
    a.label(lw)
    a(f"v_mul_u32_u24 v{vb}, 1280, v{lane}")
    a(f"s_bfe_u32 s{sT}, s2, 0x10002\ns_lshl_b32 s{sO}, s{sT}, 10\ns_lshl_b32 s{sT}, s{sJ}, 5\ns_add_u32 s{sO}, s{sO}, s{sT}\ns_and_b32 s{sT}, s{sWv}, 1\ns_lshl_b32 s{sT}, s{sT}, 4\ns_add_u32 s{sO}, s{sO}, s{sT}")
    a(f"s_mul_i32 s{sO}, s{sO}, 1280\ns_add_u32 s{sO}, s{sO}, 128")
    a(f"s_mov_b32 s{sS}, 128\ns_mov_b64 exec, 0xffff")
    a.label(le)
    for g in range(g0,10):
        a(f"buffer_load_dword v{vb+2}, v{vb}, s[{SR}:{SR+3}], s{sO} offen")
        if g<9: a(f"s_add_u32 s{sO}, s{sO}, s{sS}")
    a("s_mov_b64 exec, -1")
    return 10-g0

SDB=24
def dbg_srd(a, q):
    a(f"s_mov_b32 s{q}, s{P['dbg']}\ns_and_b32 s{q+1}, s{P['dbg']+1}, 0xffff\ns_mov_b32 s{q+2}, 256\ns_mov_b32 s{q+3}, 0x20000")
def cnt_add(a, q, off, vt, sOff=None):
    lab=a.newlabel('Lca')
    a(f"v_cmp_eq_u32 vcc, 0, v0\ns_and_saveexec_b64 s[42:43], vcc\ns_cbranch_execz {lab}")
    a(f"v_mov_b32 v{vt}, {off}\nv_mov_b32 v{vt+1}, 1")
    so = f"s{sOff}" if sOff is not None else "0"
    a(f"buffer_atomic_add v{vt+1}, v{vt}, s[{q}:{q+3}], {so} offen sc1")
    a.label(lab)
    a("s_mov_b64 exec, s[42:43]")
def cnt_poll(a, q, off, target, vt, sleep=8, sOff=None, check_only=False):
    lab=a.newlabel('Lcp'); out=a.newlabel('Lcp'); first=a.newlabel('Lcp')
    so = f"s{sOff}" if sOff is not None else "0"
    a(f"s_mov_b64 exec, 1\nv_mov_b32 v{vt}, {off}\ns_mov_b32 s41, 0x40000\ns_branch {first}")
    a.label(lab)
    if sleep: a(f"s_sleep {sleep}")
    a.label(first)
    a(f"buffer_load_dword v{vt+1}, v{vt}, s[{q}:{q+3}], {so} offen sc1")
    a(f"s_sub_u32 s41, s41, 1\ns_cbranch_scc1 {out}\ns_waitcnt vmcnt(0)")
    a(f"v_readfirstlane_b32 s44, v{vt+1}\ns_cmp_lt_u32 s44, {target}\ns_cbranch_scc1 {lab}")
    a.label(out)
    a("s_waitcnt vmcnt(0)\ns_mov_b64 exec, -1")
```

```python
from f_common import *
from f_ln8 import *
WST=12288
TST=16384
TOK0=4*WST

def emit_gemm(a, S0_, opts):
    dst=opts.get('dstamp')
    def S(i):
        if not dst: S0_(i)
    def SD(i):
        if dst: S0_(i)
    started=[False]
    sT=46; sFT=47; sJT=48; sJF=49
    SW=52
    sWv=56; sWoff=57; sToff=58; sMW=59; sMT=60; sTmp=61; sCnt=62; sTmp2=63; sX=64
    lane=1; t0=2; t1=3; vWa=[4,5,6]; vTok=[7,8,9,10]; vA=11; vA5=12; vB=[13,14,15,16]; vSt=17; vFl=[18]; vPk=[19,20]; vDum=22; vTch=[23,24]
    vStat=24
    ACC=64; Pq=160; Qq=176
    Qq=180
    a(f"s_setprio {opts.get('g0',2)}") if opts.get('prio') else None
    a(f"s_and_b32 s{sX}, s2, 7\ns_lshr_b32 s{sTmp}, s2, 3\ns_and_b32 s{sJT}, s{sTmp}, 7\ns_lshr_b32 s{sJF}, s{sTmp}, 3")
    a(f"s_lshr_b32 s{sT}, s{sX}, 2\ns_lshl_b32 s{sT}, s{sT}, 3\ns_add_u32 s{sT}, s{sT}, s{sJT}")
    a(f"s_and_b32 s{sFT}, s{sX}, 3\ns_lshl_b32 s{sFT}, s{sFT}, 2\ns_add_u32 s{sFT}, s{sFT}, s{sJF}")
    a(f"v_and_b32 v{lane}, 63, v0\nv_lshrrev_b32 v{t0}, 6, v0\nv_readfirstlane_b32 s{sWv}, v{t0}")
    sLam=50
    a(f"s_lshl_b32 s{sLam}, s{sX}, 5\ns_lshr_b32 s{sTmp}, s2, 3\ns_add_u32 s{sLam}, s{sLam}, s{sTmp}")
    if opts.get('ln8'): ln8_loads(a, sLam, 64, 76)
    a(f"s_cmp_lt_u32 s{sWv}, 2")
    a(f"s_cselect_b32 s{SW}, s{P['w1']}, s{P['w3']}\ns_cselect_b32 s{SW+1}, s{P['w1']+1}, s{P['w3']+1}")
    a(f"s_cselect_b32 s{sTmp2}, 0, 10")
    a(f"s_and_b32 s{SW+1}, s{SW+1}, 0xffff\ns_mov_b32 s{SW+2}, {640*1536*2}\ns_mov_b32 s{SW+3}, 0x20000")
    a(f"s_and_b32 s{sTmp}, s{sWv}, 1\ns_mul_i32 s{sTmp}, s{sTmp}, 192")
    for t in range(3):
        a(f"v_add_u32 v{t0}, s{sTmp}, v{lane}")
        if t: a(f"v_add_u32 v{t0}, {64*t}, v{t0}")
        a(f"v_mul_u32_u24 v{t1}, 5462, v{t0}\nv_lshrrev_b32 v{t1}, 16, v{t1}")
        a(f"v_mul_u32_u24 v{vWa[t]}, 12, v{t1}\nv_sub_u32 v{t0}, v{t0}, v{vWa[t]}")
        a(f"v_add_u32 v{t0}, s{sTmp2}, v{t0}\nv_subrev_u32 v{vWa[t]}, 12, v{t0}")
        a(f"v_cmp_le_u32 vcc, 12, v{t0}\nv_cndmask_b32 v{t0}, v{t0}, v{vWa[t]}, vcc")
        a(f"v_mul_u32_u24 v{t1}, 3072, v{t1}\nv_lshl_add_u32 v{vWa[t]}, v{t0}, 4, v{t1}")
        if t: a(f"v_subrev_u32 v{vWa[t]}, {1024*t}, v{vWa[t]}")
    a(f"s_mul_i32 s{sWoff}, s{sFT}, 192\ns_mul_i32 s{sMW}, s{sWv}, 3072")
    sWlim=41; sC0=51
    ROT=opts.get('rot',1)
    sWlim=75; sTlim=74
    if ROT:
        a(f"s_lshr_b32 s{sTmp}, s{sJT}, 2\ns_add_u32 s{sC0}, s{sJT}, s{sTmp}")
        a(f"s_mul_i32 s{sTmp}, s{sJF}, 5\ns_lshr_b32 s{sTmp}, s{sTmp}, 1\ns_add_u32 s{sC0}, s{sC0}, s{sTmp}")
        a(f"s_cmp_ge_u32 s{sC0}, 10\ns_cselect_b32 s{sTmp}, 10, 0\ns_sub_u32 s{sC0}, s{sC0}, s{sTmp}")
        a(f"s_add_u32 s{sWlim}, s{sWoff}, {640*3072}")
        a(f"s_mul_i32 s{sTmp}, s{sC0}, {64*3072}\ns_add_u32 s{sWoff}, s{sWoff}, s{sTmp}")
    def adv_w():
        t=f"s_add_u32 s{sWoff}, s{sWoff}, {32*3072}"
        if ROT: t+=f"\ns_cmp_ge_u32 s{sWoff}, s{sWlim}\ns_cselect_b32 s{sTmp2}, {640*3072}, 0\ns_sub_u32 s{sWoff}, s{sWoff}, s{sTmp2}"
        return t
    def adv_t():
        t=f"s_add_u32 s{sToff}, s{sToff}, 128"
        if ROT: t+=f"\ns_cmp_ge_u32 s{sToff}, s{sTlim}\ns_cselect_b32 s{sTmp2}, 1280, 0\ns_sub_u32 s{sToff}, s{sToff}, s{sTmp2}"
        return t
    def dma_w(slot):
        if opts.get('nodmaw') and started[0]: return
        a(f"s_add_u32 m0, s{sMW}, {slot*WST}")
        for t in range(3):
            a(f"buffer_load_dwordx4 v{vWa[t]}, s[{SW}:{SW+3}], s{sWoff} offen offset:{1024*t} lds")
        a(adv_w())
    if opts.get('bench'):
        a(f"s_mov_b32 s78, {opts['bench']}")
        a(f"s_mov_b32 s79, s{sWoff}")
    dma_w(0)
    for ii in range(4):
        a(f"v_lshrrev_b32 v{t0}, 3, v{lane}")
        if ii: a(f"v_add_u32 v{t0}, {8*ii}, v{t0}")
        a(f"v_mul_u32_u24 v{vTok[ii]}, 1280, v{t0}")
        a(f"v_bfe_u32 v{t0}, v{t0}, 1, 3\nv_and_b32 v{t1}, 7, v{lane}\nv_xor_b32 v{t0}, v{t0}, v{t1}")
        a(f"v_lshl_add_u32 v{vTok[ii]}, v{t0}, 4, v{vTok[ii]}")
        if ii: a(f"v_subrev_u32 v{vTok[ii]}, {1024*ii}, v{vTok[ii]}")
    a(f"s_lshl_b32 s{sToff}, s{sT}, 7\ns_lshl_b32 s{sTmp}, s{sWv}, 5\ns_add_u32 s{sToff}, s{sToff}, s{sTmp}\ns_mul_i32 s{sToff}, s{sToff}, 1280")
    if ROT:
        a(f"s_add_u32 s{sTlim}, s{sToff}, 1280\ns_lshl_b32 s{sTmp}, s{sC0}, 7\ns_add_u32 s{sToff}, s{sToff}, s{sTmp}")
    a(f"s_lshl_b32 s{sMT}, s{sWv}, 12\ns_add_u32 s{sMT}, s{sMT}, {TOK0}")
    if opts.get('bench'): a(f"s_mov_b32 s77, s{sToff}")
    def dma_t(buf):
        if opts.get('nodmat') and started[0]: return
        a(f"s_add_u32 m0, s{sMT}, {buf*TST}")
        for ii in range(4):
            a(f"buffer_load_dwordx4 v{vTok[ii]}, s[{SX}:{SX+3}], s{sToff} offen offset:{1024*ii} lds")
        a(adv_t())
    LATE=opts.get('late12',0)
    dma_t(0)
    if not LATE: dma_w(1); dma_w(2); dma_t(1)
    if LATE==2: dma_w(1)
    nonce_load(a)
    started[0]=True
    vTw=23; vTt=25
    sTwo=80; sTto=81
    a(f"s_lshr_b32 s{sTmp}, s2, 3\ns_lshl_b32 s{sTwo}, s{sTmp}, 1\ns_and_b32 s{sTmp2}, s{sWv}, 1\ns_add_u32 s{sTwo}, s{sTwo}, s{sTmp2}\ns_mul_i32 s{sTwo}, s{sTwo}, {2*3072}")
    a(f"s_and_b32 s{sTmp2}, s{sX}, 3\ns_mul_i32 s{sTmp2}, s{sTmp2}, 768\ns_add_u32 s{sTwo}, s{sTwo}, s{sTmp2}\ns_add_u32 s{sTwo}, s{sTwo}, {3*32*3072}")
    a(f"v_mul_u32_u24 v{t0}, 10923, v{lane}\nv_lshrrev_b32 v{t0}, 16, v{t0}\nv_mul_u32_u24 v{t1}, 6, v{t0}\nv_sub_u32 v{t1}, v{lane}, v{t1}")
    a(f"v_mul_u32_u24 v{vTw}, 3072, v{t0}\nv_lshl_add_u32 v{vTw}, v{t1}, 7, v{vTw}")
    a(f"s_lshr_b32 s{sTmp}, s2, 3\ns_lshl_b32 s{sTmp}, s{sTmp}, 2\ns_add_u32 s{sTmp}, s{sTmp}, s{sWv}\ns_lshl_b32 s{sTmp}, s{sTmp}, 3\ns_lshr_b32 s{sTmp2}, s{sX}, 2\ns_lshl_b32 s{sTmp2}, s{sTmp2}, 10\ns_add_u32 s{sTmp}, s{sTmp}, s{sTmp2}")
    a(f"s_mul_i32 s{sTto}, s{sTmp}, 1280\ns_add_u32 s{sTto}, s{sTto}, {2*128}")
    a(f"v_lshrrev_b32 v{t0}, 1, v{lane}\nv_mul_u32_u24 v{vTt}, 1280, v{t0}\nv_and_b32 v{t0}, 1, v{lane}\nv_lshl_add_u32 v{vTt}, v{t0}, 7, v{vTt}")
    def touch_batch(tok=True):
        if not opts.get('touch',0): return []
        a(f"s_mov_b64 exec, 0xfff")
        a(f"buffer_load_dword v{vDum}, v{vTw}, s[{SW}:{SW+3}], s{sTwo} offen")
        a(f"s_add_u32 s{sTwo}, s{sTwo}, {128*3072}")
        if tok:
            a(f"s_mov_b64 exec, 0xffff")
            a(f"buffer_load_dword v{vDum}, v{vTt}, s[{SX}:{SX+3}], s{sTto} offen")
            a(f"s_add_u32 s{sTto}, s{sTto}, 256")
        a("s_mov_b64 exec, -1")
        return ['x']*(2 if tok else 1)
    pre_touch=touch_batch()
    ntouch=len(pre_touch)
    if opts.get('ln8'):
        npre=3+4+({0:10,1:0,2:3}[LATE])+1+len(pre_touch)
        a(f"s_waitcnt vmcnt({npre})")
        S(1)
        nln=ln8_compute(a, sLam, sWv, 64, 76, 3*WST)
        ntouch+=nln
    a(f"v_lshrrev_b32 v{t0}, 5, v{lane}\nv_lshlrev_b32 v{t0}, 3, v{t0}\nv_bfe_u32 v{t1}, v{lane}, 2, 2\nv_add_u32 v{t0}, v{t0}, v{t1}")
    a(f"v_mul_u32_u24 v{vA}, 192, v{t0}\nv_and_b32 v{t1}, 3, v{lane}\nv_lshl_add_u32 v{vA}, v{t1}, 3, v{vA}")
    a(f"v_bfe_u32 v{t1}, v{lane}, 4, 1\nv_mul_u32_u24 v{t0}, {6144+32}, v{t1}\nv_add_u32 v{vA}, v{vA}, v{t0}")
    a(f"s_lshr_b32 s{sTmp}, s{sWv}, 1\ns_mul_i32 s{sTmp2}, s{sTmp}, 96\nv_add_u32 v{vA}, s{sTmp2}, v{vA}")
    a(f"s_mul_i32 s{sTmp2}, s{sTmp}, 192\nv_mul_u32_u24 v{t0}, s{sTmp2}, v{t1}\nv_sub_u32 v{vA5}, v{vA}, v{t0}")
    a(f"v_and_b32 v{t0}, 31, v{lane}\ns_and_b32 s{sTmp}, s{sWv}, 1\ns_lshl_b32 s{sTmp}, s{sTmp}, 6\nv_add_u32 v{t0}, s{sTmp}, v{t0}")
    a(f"v_bfe_u32 v{t1}, v{t0}, 1, 3\nv_lshrrev_b32 v{vB[3]}, 5, v{lane}\nv_xor_b32 v{t1}, v{t1}, v{vB[3]}")
    a(f"v_lshlrev_b32 v{t0}, 7, v{t0}\nv_add_u32 v{t0}, {TOK0}, v{t0}")
    for sp in range(4):
        a(f"v_xor_b32 v{vB[sp]}, {2*sp}, v{t1}\nv_lshl_add_u32 v{vB[sp]}, v{vB[sp]}, 4, v{t0}")
    a(f"v_bfe_u32 v{t0}, v{lane}, 4, 1\nv_mul_u32_u24 v{vSt}, 49152, v{t0}\nv_lshrrev_b32 v{t0}, 5, v{lane}\nv_lshl_add_u32 v{vSt}, v{t0}, 8, v{vSt}")
    a(f"v_and_b32 v{t0}, 15, v{lane}\nv_lshl_add_u32 v{vSt}, v{t0}, 4, v{vSt}")
    a(f"s_lshl_b32 s{sTmp}, s{sT}, 3\ns_and_b32 s{sTmp2}, s{sWv}, 1\ns_lshl_b32 s{sTmp2}, s{sTmp2}, 2\ns_add_u32 s{sTmp}, s{sTmp}, s{sTmp2}\ns_mul_i32 s{sTmp}, s{sTmp}, 49152")
    a(f"s_mul_i32 s{sTmp2}, s{sFT}, {12*256}\ns_add_u32 s{sTmp}, s{sTmp}, s{sTmp2}\ns_lshr_b32 s{sTmp2}, s{sWv}, 1\ns_mul_i32 s{sTmp2}, s{sTmp2}, {6*256}\ns_add_u32 s{sTmp}, s{sTmp}, s{sTmp2}")
    a(f"s_add_u32 s{sTmp}, s{sTmp}, {WS_H}\nv_add_u32 v{vSt}, s{sTmp}, v{vSt}")
    if opts.get('ln8') or opts.get('ln2'):
        a(f"v_and_b32 v{t0}, 15, v{lane}\ns_lshl_b32 s{sTmp}, s{sT}, 4\nv_add_u32 v{t0}, s{sTmp}, v{t0}")
    else:
        a(f"v_and_b32 v{t0}, 7, v{lane}\ns_lshl_b32 s{sTmp}, s{sT}, 3\nv_add_u32 v{t0}, s{sTmp}, v{t0}")
    a(f"v_lshlrev_b32 v{t0}, 6, v{t0}\nv_add_u32 v{vFl[0]}, {FL_LN}, v{t0}")
    a(f"v_min_u32 v{t0}, 23, v{lane}\ns_mul_i32 s{sTmp}, s{sWv}, 24\nv_add_u32 v{t0}, s{sTmp}, v{t0}\nv_lshlrev_b32 v{t0}, 6, v{t0}\nv_add_u32 v{vPk[0]}, {FL_PK}, v{t0}")
    CACC=216; SEL=228
    for r in range(12): a(f"v_mov_b32 v{CACC+r}, 0")
    a(f"v_and_b32 v{t0}, 15, v{lane}\nv_bfe_u32 v{t1}, v{lane}, 4, 1\nv_cmp_eq_u32 vcc, v{t0}, v{t1}")
    a(f"v_mov_b32 v{t0}, 0x3f803f80")
    for r in range(4): a(f"v_cndmask_b32 v{SEL+r}, 0, v{t0}, vcc")
    a(f"s_and_b32 s{sTmp}, s{sWv}, 1\ns_cmp_eq_u32 s{sTmp}, 1\ns_cselect_b64 vcc, -1, 0")
    if opts.get('bench'):
        a("s_branch Lbench_go")
        a.label("Lbench_top")
        a(f"s_mov_b32 s{sWoff}, s79\ns_mov_b32 s{sToff}, s77")
        a("s_barrier")
        started[0]=False
        dma_w(0); dma_t(0); dma_w(1); dma_w(2); dma_t(1)
        if ntouch:
            for _ in range(ntouch): a(f"buffer_load_dword v{vDum}, v{vTch[0]}, s[{SX}:{SX+3}], 0 offen")
        started[0]=True
        a.label("Lbench_go")
        a("s_memtime s[74:75]\ns_memrealtime s[70:71]\ns_waitcnt lgkmcnt(0)")
    if not opts.get('ln8'): S(1)
    def reads(setb, st, s):
        slot=st%4; buf=(st//2)%2; sp=2*(st%2)+s
        R=[]
        def rb(nt): R.append((f"ds_read_b128 v[{setb+12+4*nt}:{setb+12+4*nt+3}], v{vB[sp]} offset:{buf*TST+nt*4096}", f"B{nt}"))
        def ra(j):
            for q in range(2):
                reg=vA5 if j==2 else vA
                R.append((f"ds_read_b64_tr_b16 v[{setb+4*j+2*q}:{setb+4*j+2*q+1}], v{reg} offset:{slot*WST+(16*s+4*q)*192+32*j}", f"A{j}"))
        rb(0); ra(0); ra(1); ra(2); rb(1)
        if opts.get('nods'): R=[]
        if opts.get('nodsB'): R=[x for x in R if x[1][0]!='B']
        if opts.get('nodsA'): R=[x for x in R if x[1][0]!='A']
        return R
    def mfma(setb, j, nt, zero=False):
        if opts.get('nomfma'): return
        d=ACC+16*(2*j+nt)
        c="0" if zero else f"v[{d}:{d+15}]"
        a(f"v_mfma_f32_32x32x16_bf16 v[{d}:{d+15}], v[{setb+4*j}:{setb+4*j+3}], v[{setb+12+4*nt}:{setb+12+4*nt+3}], {c}")
    ORDER=[(0,0),(1,0),(2,0),(0,1),(1,1),(2,1)]
    NEED={(0,0):"A0",(1,0):"A1",(2,0):"A2",(0,1):"B1",(1,1):None,(2,1):None}
    vq=['W0']*3+['T0']*4+({0:['W1']*3+['W2']*3+['T1']*4,1:[],2:['W1']*3}[LATE])+['x']+['x']*ntouch
    def vwait(tags):
        nonlocal vq
        idx=max(i for i,t in enumerate(vq) if t in tags)
        n=len(vq)-1-idx
        vq=vq[idx+1:]
        return n
    TOUCH_AT={0:True,3:True,7:True,11:True}
    def dma_list(st):
        L=[]
        if st+3<20 and not opts.get('nodmaw'):
            slot=(st+3)%4
            for t in range(3):
                pre=f"s_add_u32 m0, s{sMW}, {slot*WST}\ns_nop 0\n" if t==0 else ""
                post="\n"+adv_w() if t==2 else ""
                L.append((pre+f"buffer_load_dwordx4 v{vWa[t]}, s[{SW}:{SW+3}], s{sWoff} offen offset:{1024*t} lds"+post, f"W{st+3}"))
        if st%2==0 and st>=2 and st//2+1<10 and not opts.get('nodmat'):
            buf=(st//2+1)%2
            for ii in range(4):
                pre=f"s_add_u32 m0, s{sMT}, {buf*TST}\ns_nop 0\n" if ii==0 else ""
                post="\n"+adv_t() if ii==3 else ""
                L.append((pre+f"buffer_load_dwordx4 v{vTok[ii]}, s[{SX}:{SX+3}], s{sToff} offen offset:{1024*ii} lds"+post, f"T{st//2+1}"))
        return L
    def stage(st, first=False, extra1=None, extra2=None, fixed=None):
        need=[f"W{st}", f"T{st//2}"]
        n=vwait([t for t in need if t in vq]) if any(t in vq for t in need) else len(vq)
        if fixed is not None: assert n==fixed,(st,n,fixed)
        a(f"s_waitcnt vmcnt({n}) lgkmcnt(0)")
        if opts.get('ststamp') and st>0: a(f"v_writelane_b32 v250, s82, {st-1}")
        a("s_barrier")
        if opts.get('ststamp'): a("s_memrealtime s[82:83]")
        if st==0 and LATE:
            started[0]=False
            if LATE==1: dma_w(1); vq.extend(['W1']*3)
            dma_w(2); dma_t(1); vq.extend(['W2']*3+['T1']*4)
            started[0]=True
        if st==3: nonce_ready(a)
        if st==3 and opts.get('ln8'):
            a(f"s_lshl_b32 s{sTmp}, s{sLam}, 6\ns_add_u32 s{sTmp}, s{sTmp}, {FL_LN}")
            flag_store(a, sTmp, t0, keepvcc=True)
        if st in TOUCH_AT: vq.extend(touch_batch(tok=(st<=3 or TOUCH_AT[st])))
        lt=LdsTrack(a)
        DL=dma_list(st); di=0
        spread=opts.get('spread',1)
        if spread==1: order=[4,5,10,11,3,9,2,8]
        elif spread==2: order=[0,1,2,3,4,5,6,7,8,9,10,11]
        elif spread==3: order=[5,5,5,10,10,10,10]
        elif spread==4: order=[0,2,4,6,8,10,11]
        gaps={}
        srt=sorted(order[:len(DL)])
        for i,g in enumerate(srt): gaps.setdefault(g,[]).append(DL[i])
        def do_dma(g):
            for (t,tag) in gaps.get(g,[]):
                a(t); vq.append(tag)
        rdn=opts.get('rdn',2)
        def csum(setb, branch):
            if opts.get('nocs'): return
            lb=a.newlabel('Lcs')
            a(f"{branch} {lb}")
            for j in range(3):
                a(f"v_mfma_f32_16x16x32_bf16 v[{CACC+4*j}:{CACC+4*j+3}], v[{setb+4*j}:{setb+4*j+3}], v[{SEL}:{SEL+3}], v[{CACC+4*j}:{CACC+4*j+3}]")
            a.label(lb)
        cspos=opts.get('cspos',3)
        R=reads(Pq, st, 0); ri=0
        for k,(j,nt) in enumerate(ORDER):
            if not first: mfma(Qq,j,nt)
            if k==cspos and not first: csum(Qq, "s_cbranch_vccz")
            for _ in range(rdn):
                if ri<len(R): lt.issue(R[ri][0], 'P'+R[ri][1]); ri+=1
            do_dma(k)
        if extra1: extra1()
        R=reads(Qq, st, 1); ri=0
        for k,(j,nt) in enumerate(ORDER):
            if NEED[(j,nt)]: lt.wait('P'+NEED[(j,nt)])
            mfma(Pq,j,nt,zero=first)
            if k==cspos: csum(Pq, "s_cbranch_vccnz")
            for _ in range(rdn):
                if ri<len(R): lt.issue(R[ri][0], 'Q'+R[ri][1]); ri+=1
            do_dma(6+k)
        if extra2: extra2()
        return n
    if opts.get('prio') and 'g1' in opts: a(f"s_setprio {opts['g1']}")
    for st in range(0,4): stage(st, first=(st==0))
    S(2) if not opts.get("bench") else None
    if opts.get('clk'): a("s_memtime s[68:69]\ns_waitcnt lgkmcnt(0)\ns_mov_b32 s51, s68")
    if opts.get('ststamp') or opts.get('unroll'):
        for st in range(4,12): stage(st)
    else:
        a(f"s_mov_b32 s{sCnt}, 2")
        lab=a.newlabel('Lup'); a.label(lab)
        pat=[stage(st) for st in range(4,8)]
        a(f"s_sub_u32 s{sCnt}, s{sCnt}, 1\ns_cmp_lg_u32 s{sCnt}, 0\ns_cbranch_scc1 {lab}")
        sav=a.ins; a.ins=[]
        pat2=[stage(st) for st in range(8,12)]
        a.ins=sav
        assert pat==pat2,(pat,pat2)
    FLG=200
    def issue_flags():
        a("s_mov_b64 exec, 0xffff")
        a(f"buffer_load_dword v{FLG}, v{vFl[0]}, s[{SWS}:{SWS+3}], 0 offen sc1"); vq.append('F')
        a("s_mov_b64 exec, -1")
    CK=opts.get('ck',17)
    for st_ in range(12,CK): stage(st_)
    STAT=240
    CSR=208
    PKF=202
    vStA=201
    def check_and_load():
        a(f"v_and_b32 v{t0}, 31, v{lane}\ns_lshl_b32 s{sTmp}, s{sT}, 7\ns_and_b32 s{sTmp2}, s{sWv}, 1\ns_lshl_b32 s{sTmp2}, s{sTmp2}, 6\ns_add_u32 s{sTmp}, s{sTmp}, s{sTmp2}")
        a(f"v_add_u32 v{t0}, s{sTmp}, v{t0}\nv_lshlrev_b32 v{vStA}, 4, v{t0}\nv_add_u32 v{vStA}, {WS_STATS}, v{vStA}")
        for nt in range(2):
            a(f"buffer_load_dwordx4 v[{STAT+4*nt}:{STAT+4*nt+3}], v{vStA}, s[{SWS}:{SWS+3}], 0 offen offset:{512*nt} sc1"); vq.append('S')
        a(f"s_and_b32 s{sTmp}, s{sWv}, 1\ns_cmp_eq_u32 s{sTmp}, 1\ns_cselect_b64 vcc, -1, 0")
        if opts.get('cnt',0):
            dbg_srd(a, 76)
            a(f"s_mov_b64 exec, 1\nv_mov_b32 v{PKF+1}, 64")
            a(f"buffer_load_dword v{PKF}, v{PKF+1}, s[76:79], 0 offen sc1"); vq.append('S')
            a("s_mov_b64 exec, -1")
        else:
            a("s_mov_b32 exec_lo, 0xffffff\ns_mov_b32 exec_hi, 0")
            a(f"buffer_load_dword v{PKF}, v{vPk[0]}, s[{SWS}:{SWS+3}], 0 offen sc1"); vq.append('S')
            a("s_mov_b64 exec, -1")
    stage(CK, extra2=check_and_load)
    for st in range(CK+1,20): stage(st)
    a("s_waitcnt lgkmcnt(0)")
    for (j,nt) in ORDER: mfma(Qq,j,nt)
    if not opts.get('nocs'):
        lbq=a.newlabel('Lcs'); a(f"s_cbranch_vccz {lbq}")
        for j in range(3):
            a(f"v_mfma_f32_16x16x32_bf16 v[{CACC+4*j}:{CACC+4*j+3}], v[{Qq+4*j}:{Qq+4*j+3}], v[{SEL}:{SEL+3}], v[{CACC+4*j}:{CACC+4*j+3}]")
        a.label(lbq)
    if opts.get('bench'):
        a("s_waitcnt vmcnt(0)")
        a("s_memtime s[72:73]\ns_memrealtime s[68:69]\ns_waitcnt lgkmcnt(0)\ns_sub_u32 s72, s72, s74\ns_sub_u32 s68, s68, s70")
        a(f"s_cmp_eq_u32 s78, 1\ns_cselect_b32 s{84+2*7}, s68, s{84+2*7}")
        for r in range(opts['bench']):
            a(f"s_cmp_eq_u32 s78, {opts['bench']-r}\ns_cselect_b32 s{84+2*(4+r)}, s72, s{84+2*(4+r)}")
        a("s_sub_u32 s78, s78, 1\ns_cmp_lg_u32 s78, 0\ns_cbranch_scc1 Lbench_top")
        return
    if opts.get('ststamp'):
        a("s_waitcnt lgkmcnt(0)\nv_writelane_b32 v250, s82, 19\ns_memrealtime s[82:83]\ns_waitcnt lgkmcnt(0)\nv_writelane_b32 v250, s82, 20")
        lq=a.newlabel('Lq')
        a(f"s_cmp_lg_u32 s{sWv}, 0\ns_cbranch_scc1 {lq}")
        a(f"s_lshl_b32 s{sTmp}, s2, 7\ns_add_u32 s{sTmp}, s{sTmp}, 0xF40000\nv_lshlrev_b32 v251, 2, v{lane}\ns_mov_b32 exec_hi, 0")
        a(f"buffer_store_dword v250, v251, s[{SWS}:{SWS+3}], s{sTmp} offen\ns_mov_b64 exec, -1")
        a.label(lq)
    if opts.get('prio') and 'g2' in opts: a(f"s_setprio {opts['g2']}")
    S(3)
    if opts.get('clk'): a("s_memtime s[68:69]\ns_waitcnt lgkmcnt(0)\ns_sub_u32 s51, s68, s51")
    if opts.get('gate',1)==1:
        a(f"s_lshl_b32 s{sTmp}, s2, 6\ns_add_u32 s{sTmp}, s{sTmp}, {FL_UD}")
        flag_store(a, sTmp, t0)
    a("s_waitcnt vmcnt(0)")
    ls=a.newlabel('Lst'); lo=a.newlabel('Lst')
    a("s_mov_b32 s41, 0x40000")
    a.label(ls)
    a(f"v_cmp_ne_u32 vcc, s{S_NONCE}, v{STAT+2}\ns_mov_b64 s[44:45], vcc\nv_cmp_ne_u32 vcc, s{S_NONCE}, v{STAT+6}\ns_or_b64 s[44:45], s[44:45], vcc\ns_cmp_lg_u64 s[44:45], 0")
    a(f"s_cbranch_scc0 {lo}")
    if not (opts.get('nolnwait') or opts.get('only') in (1,5)):
        a("s_sub_u32 s41, s41, 1")
        a(f"s_cbranch_scc1 {lo}")
        a("s_sleep 4")
        for nt in range(2):
            a(f"buffer_load_dwordx4 v[{STAT+4*nt}:{STAT+4*nt+3}], v{vStA}, s[{SWS}:{SWS+3}], 0 offen offset:{512*nt} sc1")
        a("s_waitcnt vmcnt(0)")
        a(f"s_branch {ls}")
    a.label(lo)
    def pk_check():
        labp=a.newlabel('Lok')
        if opts.get('cnt',0):
            a(f"v_readfirstlane_b32 s44, v{PKF}\ns_cmp_ge_u32 s44, 96\ns_cbranch_scc1 {labp}")
            dbg_srd(a, 52)
            if not opts.get('nolnwait') and opts.get('only')!=1: cnt_poll(a, 52, 64, 96, PKF, sleep=4)
        else:
            a("s_mov_b32 exec_lo, 0xffffff\ns_mov_b32 exec_hi, 0")
            poll_check(a, 1, PKF)
            a("s_mov_b64 exec, -1")
            a(f"s_cbranch_scc0 {labp}")
            if not opts.get('nolnwait'): poll(a, [vPk[0]], PKF, mask=(0xffffff,0), sleep=4)
        a.label(labp)
    PKLATE=not opts.get('stgepi',0)
    if not PKLATE: pk_check()
    EA=Pq; EB=Pq+12
    a(f"v_and_b32 v{t0}, 15, v{lane}\nv_lshrrev_b32 v{t1}, 4, v{lane}\nv_lshlrev_b32 v{t1}, 4, v{t1}\nv_lshl_add_u32 v{t1}, v{t0}, 6, v{t1}")
    a(f"s_lshr_b32 s{sTmp}, s{sWv}, 1\ns_lshl_b32 s{sTmp}, s{sTmp}, 1\ns_and_b32 s{sTmp2}, s{sWv}, 1\ns_add_u32 s{sTmp}, s{sTmp}, s{sTmp2}\ns_mul_i32 s{sTmp}, s{sTmp}, 384")
    a(f"v_add_u32 v{t1}, s{sTmp}, v{t1}")
    a(f"s_mov_b32 exec_lo, 0x00030003\ns_mov_b32 exec_hi, 0x00030003")
    for j in range(3): a(f"ds_write_b128 v{t1}, v[{CACC+4*j}:{CACC+4*j+3}] offset:{128*j}")
    a("s_mov_b64 exec, -1")
    a("s_waitcnt lgkmcnt(0)\ns_barrier")
    a(f"v_bfe_u32 v{t1}, v{lane}, 4, 1\nv_lshlrev_b32 v{t1}, 6, v{t1}\nv_lshl_add_u32 v{t1}, v{t0}, 2, v{t1}")
    a(f"s_lshr_b32 s{sTmp}, s{sWv}, 1\ns_mul_i32 s{sTmp}, s{sTmp}, 768\nv_add_u32 v{t1}, s{sTmp}, v{t1}")
    for j in range(3):
        a(f"ds_read_b32 v{CSR+2*j}, v{t1} offset:{128*j}\nds_read_b32 v{CSR+2*j+1}, v{t1} offset:{128*j+384}")
    a(f"v_cmp_gt_u32 vcc, 32, v{lane}")
    a("s_waitcnt lgkmcnt(0)\ns_barrier")
    sT64=65; sCT=66; sA=67; sB=72; sStg=76; sA8=77
    a(f"s_lshr_b32 s{sT64}, s{sX}, 1\ns_lshl_b32 s{sT64}, s{sT64}, 3\ns_add_u32 s{sT64}, s{sT64}, s{sJT}")
    a(f"s_and_b32 s{sCT}, s{sX}, 1\ns_lshl_b32 s{sCT}, s{sCT}, 2\ns_add_u32 s{sCT}, s{sCT}, s{sJF}")
    a(f"s_mul_i32 s{sTmp}, s{sWv}, {12*1024}\ns_mul_i32 s{sTmp2}, s{sCT}, {5*49152}\ns_add_u32 s{sTmp2}, s{sTmp2}, s{sTmp}")
    for m in range(5): a(f"s_add_u32 s{sA+m}, s{sTmp2}, {WS_W2P+m*49152}")
    vL16=4
    a(f"v_lshlrev_b32 v{vL16}, 4, v{lane}")
    a(f"s_mul_i32 s{sStg}, s{sWv}, 20480")
    vt=VmTrack(a)
    sKO=[48,50,51,57,58,59,60,62,78,79,80,81]
    DROT=opts.get('drot',0)
    a(f"s_mul_i32 s{sTmp}, s{sJF}, {3*1024 if DROT else 0}")
    for k in range(12):
        if k==0: a(f"s_mov_b32 s{sKO[0]}, s{sTmp}")
        else:
            a(f"s_add_u32 s{sKO[k]}, s{sKO[k-1]}, 1024\ns_cmp_ge_u32 s{sKO[k]}, {12*1024}\ns_cselect_b32 s{sTmp2}, {12*1024}, 0\ns_sub_u32 s{sKO[k]}, s{sKO[k]}, s{sTmp2}")
    stg=[(m,k) for m in range(5) for k in range(4)]
    STG8=[8192]
    def stage_one():
        if not stg: return
        m,k=stg.pop(0)
        a(f"s_add_u32 m0, s{sStg}, {m*4096+k*1024}\ns_add_u32 s{sA8}, s{sA+m}, s{sKO[8+k]}")
        vt.issue(f"buffer_load_dwordx4 v{vL16}, s[{SWS}:{SWS+3}], s{sA8} offen sc1 lds", 'stg')
    for j in range(3):
        a(f"v_add_f32 v{t0}, v{CSR+2*j}, v{CSR+2*j+1}")
        a(f"v_cvt_pk_bf16_f32 v{t1}, v{t0}, v{t0}\nv_and_b32 v{t1}, 0xffff0000, v{t1}")
        a(f"v_sub_f32 v{t0}, v{t0}, v{t1}")
        a(f"v_cvt_pk_bf16_f32 v{t0}, v{t1}, v{t0}")
        a(f"v_cndmask_b32 v{EA+4*j}, 0, v{t0}, vcc")
        for r in range(1,4): a(f"v_mov_b32 v{EA+4*j+r}, 0")
    for nt in range(2):
        a(f"v_cvt_pk_bf16_f32 v{t0}, v{STAT+4*nt}, v{STAT+4*nt}")
        a(f"v_cndmask_b32 v{EB+4*nt}, 0, v{t0}, vcc")
        for r in range(1,4): a(f"v_mov_b32 v{EB+4*nt+r}, 0")
    for (j,nt) in ORDER: mfma(Pq,j,nt)
    C1=[214,215]; IR2=[208,209]
    for nt in range(2):
        r=STAT+4*nt+1
        a(f"v_mul_f32 v{C1[nt]}, 0xbfb8aa3b, v{r}")
        a(f"v_mul_f32 v{IR2[nt]}, v{r}, v{r}\nv_rcp_f32 v{IR2[nt]}, v{IR2[nt]}")
    T=216; O=232
    k=0
    for (j,nt) in ORDER:
        d=ACC+16*(2*j+nt); o=O+4*(k%2)
        k+=1
        sg=(lambda: stage_one()) if opts.get('stgepi',0) else (lambda: None)
        for i in range(8): a(f"v_mul_f32 v{T+i}, v{d+i}, v{C1[nt]}")
        sg()
        for i in range(8): a(f"v_exp_f32 v{T+i}, v{T+i}")
        sg()
        for i in range(8): a(f"v_mul_f32 v{d+i}, v{d+i}, v{d+8+i}")
        for i in range(8): a(f"v_fma_f32 v{T+i}, v{T+i}, v{IR2[nt]}, v{IR2[nt]}")
        sg()
        for i in range(8): a(f"v_rcp_f32 v{T+i}, v{T+i}")
        sg()
        for i in range(8): a(f"v_mul_f32 v{T+i}, v{T+i}, v{d+i}")
        for p in range(4): a(f"v_cvt_pk_bf16_f32 v{o+p}, v{T+2*p}, v{T+2*p+1}")
        a(f"v_permlane32_swap_b32 v{o}, v{o+2}\nv_permlane32_swap_b32 v{o+1}, v{o+3}")
        a(f"s_mov_b32 s{sTmp}, {nt*2*49152+j*512}")
        vt.issue(f"buffer_store_dwordx4 v[{o}:{o+3}], v{vSt}, s[{SWS}:{SWS+3}], s{sTmp} offen sc1", 'h')
    S(4)
    if opts.get('gate',1)==2:
        a(f"s_lshl_b32 s{sTmp}, s2, 6\ns_add_u32 s{sTmp}, s{sTmp}, {FL_UD}")
        flag_store(a, sTmp, t0)
    vRed=5; vXo=6; vAt=7; vHf=8; vAf=9; vTm=10
    DACC=12
    AF=92
    BF=192
    NB=4
    vDum=vRed
    a(f"s_mul_i32 s{sTmp2}, s{sT64}, {4*49152}\ns_mul_i32 s{sTmp}, s{sWv}, {12*1024}\ns_add_u32 s{sTmp2}, s{sTmp2}, s{sTmp}\ns_add_u32 s{sTmp2}, s{sTmp2}, {WS_H}")
    for n in range(4):
        a(f"s_add_u32 s{sB+n}, s{sWv}, {n}\ns_and_b32 s{sB+n}, s{sB+n}, 3\ns_mul_i32 s{sB+n}, s{sB+n}, 49152\ns_add_u32 s{sB+n}, s{sB+n}, s{sTmp2}")
    def ldA(k,m):
        fb=AF+20*(k%5)
        a(f"s_add_u32 s{sA8}, s{sA+m}, s{sKO[k]}")
        vt.issue(f"buffer_load_dwordx4 v[{fb+4*m}:{fb+4*m+3}], v{vL16}, s[{SWS}:{SWS+3}], s{sA8} offen sc1", f"a{k}")
    def ldB(k,n):
        fb=BF+16*(k%NB)
        a(f"s_add_u32 s{sA8}, s{sB+n}, s{sKO[k]}")
        vt.issue(f"buffer_load_dwordx4 v[{fb+4*n}:{fb+4*n+3}], v{vL16}, s[{SWS}:{SWS+3}], s{sA8} offen sc1", f"b{k}")
    if PKLATE:
        pk_check()
        if not opts.get('cnt',0): a("s_barrier")
    NPRE=opts.get('npre',3)
    for k in range(NPRE):
        for m in range(5): ldA(k,m)
    vt.wait('h')
    a(f"s_lshl_b32 s{sTmp}, s{sT}, 4\ns_add_u32 s{sTmp}, s{sTmp}, s{sFT}\ns_lshl_b32 s{sTmp}, s{sTmp}, 2\ns_add_u32 s{sTmp}, s{sTmp}, s{sWv}\ns_lshl_b32 s{sTmp}, s{sTmp}, 6\ns_add_u32 s{sTmp}, s{sTmp}, {FL_H}")
    a(f"v_mov_b32 v{t0}, 0\nv_mov_b32 v{t1}, s{S_NONCE}\ns_mov_b64 exec, 1")
    vt.issue(f"buffer_store_dword v{t1}, v{t0}, s[{SWS}:{SWS+3}], s{sTmp} offen sc1", 'f')
    a("s_mov_b64 exec, -1")
    S(5)
    for k in range(NPRE,5):
        for m in range(5): ldA(k,m)
    while stg: stage_one()
    a(f"v_and_b32 v{t0}, 15, v{lane}\ns_lshl_b32 s{sTmp}, s{sT64}, 6\ns_lshl_b32 s{sTmp2}, s{sWv}, 4\ns_add_u32 s{sTmp}, s{sTmp}, s{sTmp2}\nv_add_u32 v{t0}, s{sTmp}, v{t0}")
    a(f"v_lshrrev_b32 v{t1}, 4, v{lane}\nv_mul_u32_u24 v{vXo}, 1280, v{t0}\nv_lshl_add_u32 v{vXo}, v{t1}, 3, v{vXo}")
    a(f"s_mul_i32 s{sTmp}, s{sCT}, 160\nv_add_u32 v{vXo}, s{sTmp}, v{vXo}")
    a(f"v_lshlrev_b32 v{vAt}, 14, v{t1}\nv_lshl_add_u32 v{vAt}, v{t0}, 1, v{vAt}")
    a(f"s_mul_i32 s{sTmp}, s{sCT}, {80*4096}\ns_add_u32 s{sTmp}, s{sTmp}, {WS_AT}\nv_add_u32 v{vAt}, s{sTmp}, v{vAt}")
    a(f"s_lshr_b32 s{sTmp}, s{sT64}, 1\ns_lshl_b32 s{sTmp}, s{sTmp}, 6\ns_and_b32 s{sTmp2}, s{sT64}, 1\ns_add_u32 s{sTmp}, s{sTmp}, s{sTmp2}")
    a(f"v_bfe_u32 v{t0}, v{lane}, 1, 4\nv_lshlrev_b32 v{t0}, 2, v{t0}\nv_and_b32 v{t1}, 1, v{lane}\nv_lshl_add_u32 v{t0}, v{t1}, 1, v{t0}\nv_add_u32 v{t0}, s{sTmp}, v{t0}")
    a(f"v_lshlrev_b32 v{t0}, 6, v{t0}\nv_add_u32 v{vHf}, {FL_H}, v{t0}")
    a(f"s_mul_i32 s{sTmp}, s{sCT}, {20*64}\ns_add_u32 s{sTmp}, s{sTmp}, {FL_A}")
    a(f"v_min_u32 v{t0}, 19, v{lane}\nv_lshlrev_b32 v{t0}, 6, v{t0}\nv_add_u32 v{vAf}, s{sTmp}, v{t0}")
    vSg=11
    a(f"v_add_u32 v{vSg}, s{sStg}, v{vL16}")
    SD(1)
    lh=a.newlabel('Lhp')
    a(f"s_cmp_lg_u32 s{sWv}, 0\ns_cbranch_scc1 {lh}")
    poll(a, [vHf], vTm, force=True, mask=(0xffffffff,0), sleep=opts.get('slph',2))
    a.label(lh)
    a("s_waitcnt vmcnt(0)\ns_barrier"); vt.q=[]
    S(6); SD(2)
    for k in range(NB):
        for n in range(4): ldB(k,n)
    if opts.get('touch_h',0):
        a(f"s_lshl_b32 s{sTmp}, s{sT64}, 2\ns_add_u32 s{sTmp}, s{sTmp}, s{sJF}\ns_mul_i32 s{sTmp}, s{sTmp}, 49152\ns_mul_i32 s{sTmp2}, s{sWv}, {12*1024}\ns_add_u32 s{sTmp}, s{sTmp}, s{sTmp2}\ns_add_u32 s{sTmp}, s{sTmp}, {WS_H+3*1024}")
        a(f"v_lshlrev_b32 v{t0}, 7, v{lane}")
        vt.issue(f"buffer_load_dword v{vDum}, v{t0}, s[{SWS}:{SWS+3}], s{sTmp} offen", 'x')
        a(f"s_add_u32 s{sTmp}, s{sTmp}, 8192\ns_mov_b64 exec, 0xff")
        vt.issue(f"buffer_load_dword v{vDum}, v{t0}, s[{SWS}:{SWS+3}], s{sTmp} offen", 'x')
        a("s_mov_b64 exec, -1")
    XR=AF+40; AR=AF+50
    lt=LdsTrack(a)
    for k in range(12):
        vt.wait(f"b{k}")
        if k<8: assert f"a{k}" not in vt.q
        if k>=8: lt.wait(f"a{k}")
        if k in (0,3,6,9): SD({0:3,3:4,6:5,9:6}[k])
        fa=AF+20*(k%5); fb=BF+16*(k%NB)
        side=[]
        if k>=1 and k-1+NB<12: side+= [('B',k-1+NB,n) for n in range(4)]
        norder=(1,2,3,0) if k==11 else (0,1,2,3)
        si=0
        for m in range(5):
            for n in norder:
                d=DACC+4*(m*4+n)
                cc="0" if k==0 else f"v[{d}:{d+3}]"
                a(f"v_mfma_f32_16x16x32_bf16 v[{d}:{d+3}], v[{fa+4*m}:{fa+4*m+3}], v[{fb+4*n}:{fb+4*n+3}], {cc}")
                if n==norder[1] and si<len(side):
                    ldB(side[si][1],side[si][2]); si+=1
            kn=k+5
            if kn<8: ldA(kn,m)
            elif kn<12:
                lt.issue(f"ds_read_b128 v[{fa+4*m}:{fa+4*m+3}], v{vSg} offset:{m*4096+(kn-8)*1024}", f"a{kn}")
        while si<len(side):
            ldB(side[si][1],side[si][2]); si+=1
        if k==2:
            pass
        KA=opts.get('ka',9)
        if k==KA-2:
            a("s_mov_b32 exec_lo, 0xfffff\ns_mov_b32 exec_hi, 0")
            vt.issue(f"buffer_load_dword v{vTm}, v{vAf}, s[{SWS}:{SWS+3}], 0 offen sc1", 'af')
            a("s_mov_b64 exec, -1")
        if k==8:
            for m in range(5):
                vt.issue(f"buffer_load_dwordx2 v[{XR+2*m}:{XR+2*m+1}], v{vXo}, s[{SX}:{SX+3}], 0 offen offset:{32*m}", 'e')
        if k==KA:
            vt.wait('af')
            a("s_mov_b32 exec_lo, 0xfffff\ns_mov_b32 exec_hi, 0")
            poll_check(a, 1, vTm)
            a("s_mov_b64 exec, -1")
            lab3=a.newlabel('Lok'); a(f"s_cbranch_scc0 {lab3}")
            if opts.get('only')!=4: poll(a, [vAf], vTm, mask=(0xfffff,0), sleep=4)
            a.label(lab3)
            for m in range(5):
                for r in range(4):
                    a(f"s_mov_b32 s{sTmp}, {(16*m+r)*4096}")
                    vt.issue(f"buffer_load_ushort v{AR+4*m+r}, v{vAt}, s[{SWS}:{SWS+3}], s{sTmp} offen sc1", 'e')
    S(7); SD(7)
    if opts.get('clk'): a("s_mov_b32 s96, s51")
    a("s_barrier")
    for n in range(1,4):
        a(f"s_add_u32 s{sTmp}, s{sWv}, {n}\ns_and_b32 s{sTmp}, s{sTmp}, 3\ns_mul_i32 s{sTmp}, s{sTmp}, {15*1024}\ns_add_u32 s{sTmp}, s{sTmp}, {(n-1)*5*1024}")
        a(f"v_add_u32 v{vRed}, s{sTmp}, v{vL16}")
        for m in range(5):
            d=DACC+4*(m*4+n)
            a(f"ds_write_b128 v{vRed}, v[{d}:{d+3}] offset:{m*1024}")
    a("s_waitcnt lgkmcnt(0)\ns_barrier")
    a(f"s_mul_i32 s{sTmp}, s{sWv}, {15*1024}\nv_add_u32 v{vRed}, s{sTmp}, v{vL16}")
    RB=192
    for si in range(3):
        for m in range(5):
            a(f"ds_read_b128 v[{RB+(si*5+m)*4}:{RB+(si*5+m)*4+3}], v{vRed} offset:{(si*5+m)*1024}")
    SRO=52
    srd(a,SRO,P["out"],X_BYTES)
    for si in range(3):
        a(f"s_waitcnt lgkmcnt({10-5*si})")
        for m in range(5):
            for r in range(4):
                x=DACC+4*(m*4)+r; y=RB+(si*5+m)*4+r
                a(f"v_add_f32 v{x}, v{x}, v{y}")
    a("s_waitcnt vmcnt(0)")
    T=92
    for m in range(5):
        x0=XR+2*m; f0=DACC+16*m
        a(f"v_lshlrev_b32 v{T}, 16, v{x0}\nv_and_b32 v{T+1}, 0xffff0000, v{x0}\nv_lshlrev_b32 v{T+2}, 16, v{x0+1}\nv_and_b32 v{T+3}, 0xffff0000, v{x0+1}")
        for r in range(4): a(f"v_lshlrev_b32 v{AR+4*m+r}, 16, v{AR+4*m+r}")
        for r in range(4): a(f"v_add_f32 v{T+r}, v{T+r}, v{AR+4*m+r}")
        for p in range(2): a(f"v_cvt_pk_bf16_f32 v{T+4+p}, v{T+2*p}, v{T+2*p+1}")
        for p in range(2): a(f"v_cvt_pk_bf16_f32 v{T+6+p}, v{f0+2*p}, v{f0+2*p+1}")
        o=T+8+2*(m%2)
        for p in range(2):
            a(f"v_lshlrev_b32 v{T}, 16, v{T+4+p}\nv_and_b32 v{T+1}, 0xffff0000, v{T+4+p}\nv_lshlrev_b32 v{T+2}, 16, v{T+6+p}\nv_and_b32 v{T+3}, 0xffff0000, v{T+6+p}")
            a(f"v_add_f32 v{T}, v{T}, v{T+2}\nv_add_f32 v{T+1}, v{T+1}, v{T+3}\nv_cvt_pk_bf16_f32 v{o+p}, v{T}, v{T+1}")
        a(f"buffer_store_dwordx2 v[{o}:{o+1}], v{vXo}, s[{SRO}:{SRO+3}], 0 offen offset:{32*m}")
    lab4=a.newlabel('Lnn')
    a(f"s_cmp_lg_u32 s2, 0\ns_cbranch_scc1 {lab4}\ns_cmp_lg_u32 s{sWv}, 0\ns_cbranch_scc1 {lab4}")
    for i in range(4): a(f"v_add_u32 v{100+i}, {64*i}, v{lane}\nv_lshlrev_b32 v{100+i}, 8, v{100+i}\nv_add_u32 v{100+i}, {FL_H}, v{100+i}")
    for i in range(3): a(f"v_add_u32 v{104+i}, {64*i}, v{lane}\nv_min_u32 v{104+i}, 159, v{104+i}\nv_lshlrev_b32 v{104+i}, 6, v{104+i}\nv_add_u32 v{104+i}, {FL_A}, v{104+i}")
    if opts.get('only')!=4: poll(a, [100,101,102,103,104,105,106], 108)
    a(f"s_mov_b32 s{sTmp}, {WS_NONCE}")
    flag_store(a, sTmp, t0)
    a.label(lab4)
```

```python
from f_common import *
def ln_loads(a, sB, raw, sT, off=3, t0=4, t1=5):
    lane=1; w=2
    a(f"v_lshrrev_b32 v{t0}, 4, v{lane}")
    a(f"v_lshl_add_u32 v{t0}, v{w}, 2, v{t0}")
    a(f"s_lshl_b32 s{sT}, s{sB}, 4")
    a(f"v_add_u32 v{t0}, s{sT}, v{t0}")
    a(f"v_mul_u32_u24 v{off}, 1280, v{t0}")
    a(f"v_and_b32 v{t1}, 15, v{lane}")
    a(f"v_lshl_add_u32 v{off}, v{t1}, 4, v{off}")
    for i in range(5):
        a(f"buffer_load_dwordx4 v[{raw+4*i}:{raw+4*i+3}], v{off}, s[{SX}:{SX+3}], 0 offen offset:{256*i}")

def ln_addr(a, sW, sT, sT2, ldsb):
    lane=1; w=2; t0=4; t1=5; ldsa=10; tra=11; sto=12
    a(f"v_lshrrev_b32 v{t0}, 4, v{lane}\nv_lshl_add_u32 v{t0}, v{w}, 2, v{t0}\nv_mul_u32_u24 v{ldsa}, 1344, v{t0}")
    a(f"v_and_b32 v{t1}, 15, v{lane}\nv_lshl_add_u32 v{ldsa}, v{t1}, 4, v{ldsa}\nv_add_u32 v{ldsa}, {ldsb}, v{ldsa}")
    a(f"v_bfe_u32 v{t0}, v{lane}, 2, 2\nv_mul_u32_u24 v{tra}, 1344, v{t0}")
    a(f"v_lshrrev_b32 v{t0}, 4, v{lane}")
    a(f"v_lshl_add_u32 v{tra}, v{t0}, 5, v{tra}")
    a(f"v_and_b32 v{t1}, 3, v{lane}\nv_lshl_add_u32 v{tra}, v{t1}, 3, v{tra}")
    a(f"s_lshr_b32 s{sT}, s{sW}, 1\ns_mul_i32 s{sT}, s{sT}, {8*1344}\ns_and_b32 s{sT2}, s{sW}, 1\ns_mul_i32 s{sT2}, s{sT2}, 640\ns_add_u32 s{sT}, s{sT}, s{sT2}\ns_add_u32 s{sT}, s{sT}, {ldsb}")
    a(f"v_add_u32 v{tra}, s{sT}, v{tra}")
    a(f"v_bfe_u32 v{t1}, v{lane}, 3, 1\nv_lshl_add_u32 v{t1}, v{t0}, 1, v{t1}\nv_lshlrev_b32 v{sto}, 15, v{t1}")
    a(f"v_and_b32 v{t1}, 7, v{lane}\nv_lshl_add_u32 v{sto}, v{t1}, 4, v{sto}")
    a(f"s_lshr_b32 s{sT}, s{sW}, 1\ns_lshl_b32 s{sT}, s{sT}, 7\ns_and_b32 s{sT2}, s{sW}, 1\ns_mul_i32 s{sT2}, s{sT2}, {5*262144}\ns_add_u32 s{sT}, s{sT}, s{sT2}")
    a(f"v_add_u32 v{sto}, s{sT}, v{sto}")

def ln_compute(a, sB, raw, sT):
    lane=1; w=2; t0=4; t1=5; mu=6; rr=7; acc=8; acc2=9; ldsa=10; tra=11; sto=12; sta=13; st2=14
    X=100; outb=140
    for i in range(5):
        for r in range(4):
            a(f"v_lshlrev_b32 v{X+8*i+2*r}, 16, v{raw+4*i+r}\nv_and_b32 v{X+8*i+2*r+1}, 0xffff0000, v{raw+4*i+r}")
    a(f"v_add_f32 v{acc}, v{X}, v{X+2}\nv_add_f32 v{acc2}, v{X+1}, v{X+3}")
    for p in range(2,20): a(f"v_add_f32 v{acc}, v{acc}, v{X+2*p}\nv_add_f32 v{acc2}, v{acc2}, v{X+2*p+1}")
    def red16(r):
        for sh in (8,4,2,1): a(f"v_add_f32_dpp v{r}, v{r}, v{r} row_ror:{sh} row_mask:0xf bank_mask:0xf")
    a(f"v_add_f32 v{mu}, v{acc}, v{acc2}")
    red16(mu)
    a(f"v_mul_f32 v{mu}, {hex(0x3acccccd)}, v{mu}")
    for p in range(40): a(f"v_sub_f32 v{X+p}, v{X+p}, v{mu}")
    a(f"v_mul_f32 v{acc}, v{X}, v{X}\nv_mul_f32 v{acc2}, v{X+1}, v{X+1}")
    for p in range(1,20): a(f"v_fmac_f32 v{acc}, v{X+2*p}, v{X+2*p}\nv_fmac_f32 v{acc2}, v{X+2*p+1}, v{X+2*p+1}")
    a(f"v_add_f32 v{rr}, v{acc}, v{acc2}")
    red16(rr)
    a(f"v_mul_f32 v{rr}, {hex(0x3acccccd)}, v{rr}")
    def rbf(r): a(f"v_cvt_pk_bf16_f32 v{r}, v{r}, v{r}\nv_and_b32 v{r}, 0xffff0000, v{r}")
    rbf(rr); a(f"v_add_f32 v{rr}, {hex(0x3727c5ac)}, v{rr}"); rbf(rr)
    a(f"v_sqrt_f32 v{rr}, v{rr}"); rbf(rr); a(f"v_rcp_f32 v{rr}, v{rr}")
    G=160
    a(f"v_cvt_pk_bf16_f32 v{G}, v{mu}, v{mu}\nv_and_b32 v{G}, 0xffff0000, v{G}\nv_xor_b32 v{G}, 0x80000000, v{G}")
    a(f"v_mov_b32 v{G+1}, v{rr}\nv_mov_b32 v{G+2}, s{S_NONCE}\nv_mov_b32 v{G+3}, s{S_NONCE}")
    a(f"v_lshrrev_b32 v{t0}, 4, v{lane}\nv_lshl_add_u32 v{t0}, v{w}, 2, v{t0}\nv_lshlrev_b32 v{sta}, 4, v{t0}")
    a(f"s_lshl_b32 s{sT}, s{sB}, 8\ns_add_u32 s{sT}, s{sT}, {WS_STATS}")
    a(f"s_mov_b32 exec_lo, 0x00010001\ns_mov_b32 exec_hi, 0x00010001")
    a(f"buffer_store_dwordx4 v[{G}:{G+3}], v{sta}, s[{SWS}:{SWS+3}], s{sT} offen sc1")
    a("s_mov_b64 exec, -1")
    for p in range(40): a(f"v_mul_f32 v{X+p}, v{X+p}, v{rr}")
    for i in range(5):
        for r in range(4): a(f"v_cvt_pk_bf16_f32 v{raw+4*i+r}, v{X+8*i+2*r}, v{X+8*i+2*r+1}")
        a(f"ds_write_b128 v{ldsa}, v[{raw+4*i}:{raw+4*i+3}] offset:{256*i}")
    a("s_waitcnt lgkmcnt(0)\ns_barrier")
    for i in range(5):
        for q in range(2):
            a(f"ds_read_b64_tr_b16 v[{outb+4*i+2*q}:{outb+4*i+2*q+1}], v{tra} offset:{q*4*1344+i*128}")
    a(f"s_lshl_b32 s{sT}, s{sB}, 8\nv_add_u32 v{st2}, s{sT}, v{sto}")
    for i in range(5):
        a(f"s_waitcnt lgkmcnt({8-2*i})")
        a(f"s_mov_b32 s{sT}, {WS_XNT+i*262144}")
        a(f"buffer_store_dwordx4 v[{outb+4*i}:{outb+4*i+3}], v{st2}, s[{SWS}:{SWS+3}], s{sT} offen sc1")
```

```python
from f_common import *
from f_ln8 import *
TBL=18432
ROW=288
KN_OFF=[0, 32448, 36864, 69312]
U_OFF=4416
R_OFF=[U_OFF+18432, 41280, 41280+8448, 41280+2*8448]
RC=2112
LOG2E=0x3fb8aa3b
INV2PI=0x3e22f983

USEPK=0
def cmul(a, d, x, w):
    if USEPK:
        a(f"v_pk_mul_f32 v[{d}:{d+1}], v[{x}:{x+1}], v[{w}:{w+1}] op_sel:[0,0] op_sel_hi:[0,1]")
        a(f"v_pk_fma_f32 v[{d}:{d+1}], v[{x}:{x+1}], v[{w}:{w+1}], v[{d}:{d+1}] op_sel:[1,1,0] op_sel_hi:[1,0,1] neg_lo:[0,1,0]")
    else:
        a(f"v_mul_f32 v{d}, v{x}, v{w}")
        a(f"v_mul_f32 v{d+1}, v{x}, v{w+1}")
        a(f"v_fma_f32 v{d}, -v{x+1}, v{w+1}, v{d}")
        a(f"v_fma_f32 v{d+1}, v{x+1}, v{w}, v{d+1}")

def emit_ssm(a, S_, opts, st=' sc1', ld=' sc1', sb=64):
    global USEPK
    USEPK=opts.get('kpk',0)
    if opts.get('prio'): a(f"s_setprio {opts.get('p0',3)}")
    st_=S_; sQ=46; sPtrDt=P['logdt']; sPtrD=P['Dskip']
    SP=dict(logA=48,Aim=52,Cre=56,Cim=60)
    a(f's_sub_u32 s{sQ}, s2, 256')
    for n_ in SP: srd(a,SP[n_],P[n_],D*N*2)
    S=st_ if st_ else (lambda i: None)
    sWv=sb; sCh=sb+1; sTmp=sb+2; sTmp2=sb+3; sDt=sb+4; sD=sb+5; sTb=sb+6; sCnt=sb+7; sPo=sb+8; sKn=sb+9; sR=sb+10; sMask=sb+12; sBf=sb+14
    lane=1; t0=2; t1=3; vP=238; vTw=5; vTrA=6; vTrB=7
    a(f"v_and_b32 v{lane}, 63, v0")
    a(f"v_lshrrev_b32 v{t0}, 6, v0")
    a(f"v_readfirstlane_b32 s{sWv}, v{t0}")
    a(f"s_lshl_b32 s{sCh}, s{sQ}, 2")
    a(f"s_add_u32 s{sCh}, s{sCh}, s{sWv}")
    if opts.get('fakessm'):
        nonce_load(a)
        a("s_waitcnt vmcnt(0)")
        nonce_ready(a)
        a(f"s_lshl_b32 s{sTmp}, s{sQ}, 6\ns_add_u32 s{sTmp}, s{sTmp}, {FL_A}")
        flag_store(a, sTmp, 2)
        S(7)
        return
    LN2=opts.get('ln2',0)
    sLam=47
    if LN2:
        a(f"s_and_b32 s{sLam}, s2, 7\ns_lshl_b32 s{sLam}, s{sLam}, 5\ns_lshr_b32 s{sTmp}, s{sQ}, 3\ns_add_u32 s{sLam}, s{sLam}, s{sTmp}")
        ln8_loads(a, sLam, 64, 80)
    a(f"s_lshr_b32 s{sTmp}, s{sCh}, 1\ns_lshl_b32 s{sTmp}, s{sTmp}, 2")
    a(f"s_load_dword s{sDt}, s[{sPtrDt}:{sPtrDt+1}], s{sTmp}")
    a(f"s_load_dword s{sD}, s[{sPtrD}:{sPtrD+1}], s{sTmp}")
    PR=240
    a(f"s_mul_i32 s{sPo}, s{sCh}, 384")
    a(f"v_lshlrev_b32 v{vP}, 1, v{lane}")
    for p in range(3):
        for i,nm in enumerate(("logA","Aim","Cre","Cim")):
            a(f"buffer_load_ushort v{PR+4*p+i}, v{vP}, s[{SP[nm]}:{SP[nm]+3}], s{sPo} offen offset:{128*p}")
    nonce_load(a)
    NT=1+(k_touch(a, sWv, lane, 24, 235) if opts.get('ktouch',1)==1 else 0)
    if opts.get('prio'): a(f"s_setprio {opts.get('sprio',1)}")
    if LN2:
        a(f"s_waitcnt vmcnt({12+NT})")
        ln8_compute(a, sLam, sWv, 64, 80, 0)
        a("s_waitcnt lgkmcnt(0)\ns_barrier")
        NT+=4
    a(f"s_mul_i32 s{sTb}, s{sWv}, {TBL}")
    vTw1=8
    a(f"v_mul_u32_u24 v{vTw}, {ROW}, v{lane}")
    a(f"v_add_u32 v{vTw}, s{sTb}, v{vTw}")
    a(f"v_bfe_u32 v{t0}, v{lane}, 2, 1\nv_lshlrev_b32 v{t0}, 4, v{t0}")
    a(f"v_sub_u32 v{vTw1}, v{vTw}, v{t0}\nv_add_u32 v{vTw}, v{vTw}, v{t0}")
    a(f"v_bfe_u32 v{t0}, v{lane}, 4, 1")
    a(f"v_lshlrev_b32 v{t0}, 2, v{t0}")
    a(f"v_bfe_u32 v{t1}, v{lane}, 2, 2")
    a(f"v_add_u32 v{t0}, v{t0}, v{t1}")
    a(f"v_mul_u32_u24 v{vTrA}, {ROW}, v{t0}")
    a(f"v_and_b32 v{t1}, 1, v{lane}")
    a(f"v_lshl_add_u32 v{vTrA}, v{t1}, 3, v{vTrA}")
    a(f"v_bfe_u32 v{t1}, v{lane}, 1, 1\nv_bfe_u32 v{t0}, v{lane}, 4, 1\nv_xor_b32 v{t1}, v{t1}, v{t0}")
    a(f"v_lshl_add_u32 v{vTrA}, v{t1}, 4, v{vTrA}")
    a(f"v_add_u32 v{vTrA}, s{sTb}, v{vTrA}")
    a(f"v_lshrrev_b32 v{t0}, 5, v{lane}")
    a(f"v_mul_u32_u24 v{t1}, 32, v{t0}")
    a(f"v_add_u32 v{vTrB}, v{vTrA}, v{t1}")
    a(f"v_add_u32 v{vTrB}, 192, v{vTrB}")
    a(f"v_mul_u32_u24 v{t1}, 96, v{t0}")
    a(f"v_add_u32 v{vTrA}, v{vTrA}, v{t1}")
    vDt=20; vDs=21
    a("s_waitcnt lgkmcnt(0)")
    a(f"s_and_b32 s{sTmp}, s{sCh}, 1\ns_lshl_b32 s{sTmp}, s{sTmp}, 4")
    a(f"s_lshr_b32 s{sDt}, s{sDt}, s{sTmp}\ns_lshl_b32 s{sDt}, s{sDt}, 16")
    a(f"s_lshr_b32 s{sD}, s{sD}, s{sTmp}\ns_lshl_b32 s{sD}, s{sD}, 16")
    a(f"v_mov_b32 v{vDt}, s{sDt}")
    a(f"v_mul_f32 v{vDt}, {hex(LOG2E)}, v{vDt}")
    a(f"v_exp_f32 v{vDt}, v{vDt}")
    a(f"v_cvt_pk_bf16_f32 v{vDt}, v{vDt}, v{vDt}")
    a(f"v_and_b32 v{vDt}, 0xffff0000, v{vDt}")
    KACC=24
    for r in range(12): a(f"v_mov_b32 v{KACC+r}, 0")
    CUR=36
    AR=40; TH=41; Z1=42; Z8=44; Z128=46; M=48; TT=49
    H=52
    S1=84
    S2=100
    S3=116
    Lr=136
    PK=172
    FR=204
    a(f"s_waitcnt vmcnt({NT})")
    S(1)
    if opts.get('ktouch',1)==2: k_touch(a, sWv, lane, 24, 235, g0=2)
    a(f"s_mov_b32 s{sCnt}, {opts.get('kgrep',3)}")
    if opts.get('nw'):
        labskip=a.newlabel('Lskip')
        a(f"s_cmp_ge_u32 s{sWv}, {opts['nw']}\ns_cbranch_scc1 {labskip}")
    lab=a.newlabel('Lkg'); a.label(lab)
    KG0=len(a.ins)
    for i in range(4): a(f"v_lshlrev_b32 v{CUR+i}, 16, v{PR+i}")
    for i in range(8): a(f"v_mov_b32 v{PR+i}, v{PR+4+i}")
    a(f"v_mul_f32 v{AR}, {hex(LOG2E)}, v{CUR}")
    a(f"v_exp_f32 v{AR}, v{AR}")
    a(f"v_cvt_pk_bf16_f32 v{AR}, v{AR}, v{AR}")
    a(f"v_and_b32 v{AR}, 0xffff0000, v{AR}")
    a(f"v_mul_f32 v{AR}, v{AR}, v{vDt}")
    a(f"v_mul_f32 v{AR}, {hex(LOG2E|0x80000000)}, v{AR}")
    a(f"v_mul_f32 v{TH}, v{CUR+1}, v{vDt}")
    a(f"v_mul_f32 v{TH}, {hex(INV2PI)}, v{TH}")
    def zpow(dst, mult):
        if mult==1:
            a(f"v_exp_f32 v{M}, v{AR}")
            a(f"v_fract_f32 v{TT}, v{TH}")
        else:
            a(f"v_mul_f32 v{M}, {float(mult)}, v{AR}" if mult in (2,4) else f"v_mul_f32 v{M}, {hex(0x41000000)}, v{AR}")
            a(f"v_exp_f32 v{M}, v{M}")
            a(f"v_mul_f32 v{TT}, {hex(0x41000000)}, v{TH}")
            a(f"v_fract_f32 v{TT}, v{TT}")
        a(f"v_cos_f32 v{dst}, v{TT}")
        a(f"v_sin_f32 v{dst+1}, v{TT}")
        a(f"v_mul_f32 v{dst}, v{M}, v{dst}")
        a(f"v_mul_f32 v{dst+1}, v{M}, v{dst+1}")
    zpow(Z1,1); zpow(Z8,8)
    a(f"v_add_f32 v{M}, v{vDt}, v{vDt}")
    a(f"v_mul_f32 v{H}, v{CUR+2}, v{M}")
    a(f"v_mul_f32 v{H+1}, v{CUR+3}, v{M}")
    nchunk=[0]
    def wr(vals, im, neg, c):
        base=PK+4*(nchunk[0]%8); nchunk[0]+=1
        cnt=len(vals)//2
        for p in range(cnt):
            x=vals[2*p]+im; y=vals[2*p+1]+im
            if neg: a(f"v_cvt_pk_bf16_f32 v{base+p}, -v{x}, -v{y}")
            else: a(f"v_cvt_pk_bf16_f32 v{base+p}, v{x}, v{y}")
        reg=vTw if c%2==0 else vTw1
        if cnt==4: a(f"ds_write_b128 v{reg}, v[{base}:{base+3}] offset:{16*c}")
        else: a(f"ds_write_b32 v{reg}, v{base} offset:{16*c}")
    def wrH(vals, i):
        wr(vals,0,False,i); wr(vals,1,True,6+i)
    a(f"v_mov_b32 v{Lr}, 1.0\nv_mov_b32 v{Lr+1}, 0")
    a(f"v_mov_b32 v{Lr+2}, v{Z8}\nv_mov_b32 v{Lr+3}, v{Z8+1}")
    for j in range(2,17):
        cmul(a, Lr+2*j, Lr+2*(j-1), Z8)
        if j<=8:
            r=j-1
            cmul(a, H+2*r, H+2*(r-1), Z1)
        if j==8:
            L0=[Lr+2*i for i in range(8)]
            wr(L0,0,False,12); wr(L0,1,False,14)
        if j==10: wrH([H+2*i for i in range(8)],0)
    L1=[Lr+2*i for i in range(8,16)]
    z128=Lr+32
    for r in range(8):
        cmul(a, H+2*(8+r), H+2*r, z128)
        if r==3: wr(L1,0,False,13)
        if r==7: wr(L1,1,False,15)
    for r in range(4): cmul(a, S1+2*r, H+2*(8+2*r), z128)
    wrH([H+2*i for i in range(8,16)],1)
    for r in range(4): cmul(a, S1+2*(4+r), S1+2*r, z128)
    cmul(a, S2, S1+8, z128); cmul(a, S2+2, S1+8+4, z128)
    wrH([S1+2*i for i in range(8)],2)
    for i in range(1,4):
        for r in range(2): cmul(a, S2+4*i+2*r, S2+4*(i-1)+2*r, z128)
    cmul(a, S3, S2+12, z128)
    for i in range(1,9):
        cmul(a, S3+2*i, S3+2*(i-1), z128)
        if i==2: wrH([S2+2*i_ for i_ in range(8)],3)
    a(f"v_mov_b32 v{S3+18}, 0\nv_mov_b32 v{S3+19}, 0")
    wrH([S3+2*i for i in range(8)],4)
    wrH([S3+16,S3+18],5)
    a("s_waitcnt lgkmcnt(0)")
    FB=52
    for s_ in range(4):
        fb=FB+16*s_
        for q in range(2):
            a(f"ds_read_b64_tr_b16 v[{fb+12+2*q}:{fb+12+2*q+1}], v{vTrB} offset:{(16*s_+8*q)*ROW}")
        for t in range(3):
            for q in range(2):
                a(f"ds_read_b64_tr_b16 v[{fb+4*t+2*q}:{fb+4*t+2*q+1}], v{vTrA} offset:{(16*s_+8*q)*ROW+32*t}")
    for s_ in range(4):
        fb=FB+16*s_
        a(f"s_waitcnt lgkmcnt({min(15,8*(3-s_))})")
        for t in range(3):
            a(f"v_mfma_f32_16x16x32_bf16 v[{KACC+4*t}:{KACC+4*t+3}], v[{fb+4*t}:{fb+4*t+3}], v[{fb+12}:{fb+15}], v[{KACC+4*t}:{KACC+4*t+3}]")
    if LN2:
        labf=a.newlabel('Lnf')
        a(f"s_cmp_lg_u32 s{sCnt}, 3\ns_cbranch_scc1 {labf}")
        a("s_waitcnt vmcnt(0)\ns_barrier")
        nonce_ready(a)
        a(f"s_lshl_b32 s{sTmp}, s{sLam}, 6\ns_add_u32 s{sTmp}, s{sTmp}, {FL_LN}")
        flag_store(a, sTmp, 170)
        a.label(labf)
    if any(opts.get(k_) for k_ in ('kg_nods','kg_nomfma','kg_novalu','kg_nocvt','kg_nowr','kg_nord','kg_notrans','kg_nowait')):
        body=a.ins[KG0:]; keep=[]
        for x in body:
            if opts.get('kg_nods') and x.kind=='ds': continue
            if opts.get('kg_nomfma') and x.kind=='mfma': continue
            if opts.get('kg_novalu') and x.kind in ('valu','trans'): continue
            if opts.get('kg_nocvt') and x.op.startswith('v_cvt_pk'): continue
            if opts.get('kg_nowr') and x.op.startswith('ds_write'): continue
            if opts.get('kg_nord') and x.op.startswith('ds_read'): continue
            if opts.get('kg_notrans') and x.kind=='trans': continue
            if opts.get('kg_nowait') and x.op=='s_waitcnt': continue
            keep.append(x)
        a.ins=a.ins[:KG0]+keep
    a(f"s_sub_u32 s{sCnt}, s{sCnt}, 1")
    a(f"s_cmp_lg_u32 s{sCnt}, 0")
    a("s_nop 4")
    a(f"s_cbranch_scc1 {lab}")
    if opts.get('nw'): a.label(labskip)
    S(2)
    if opts.get('kgexit'): return
    for w in range(4):
        pass
    a(f"s_mov_b32 s{sKn}, {KN_OFF[0]}\ns_mov_b32 s{sR}, {R_OFF[0]}")
    for w in range(1,4):
        a(f"s_cmp_eq_u32 s{sWv}, {w}\ns_cselect_b32 s{sKn}, {KN_OFF[w]}, s{sKn}\ns_cselect_b32 s{sR}, {R_OFF[w]}, s{sR}")
    vJ=36; vG=37; vK=38; vK2=39; B=40
    a(f"v_and_b32 v{vJ}, 15, v{lane}")
    a(f"v_lshrrev_b32 v{vG}, 4, v{lane}")
    a(f"v_lshlrev_b32 v{vK}, 2, v{lane}")
    a(f"v_add_u32 v{vK}, s{sKn}, v{vK}")
    a(f"v_mov_b32 v{B}, 0")
    a(f"s_mov_b64 s[{sMask}:{sMask+1}], 0xfff")
    a(f"s_mov_b64 exec, s[{sMask}:{sMask+1}]")
    a(f"ds_write_b32 v{vK}, v{B}")
    a(f"s_mov_b64 exec, -1")
    a(f"v_lshlrev_b32 v{vK}, 4, v{vJ}")
    a(f"v_add_u32 v{vK}, s{sKn}, v{vK}")
    a(f"v_add_u32 v{vK}, 48, v{vK}")
    T2=KACC+8
    a(f"v_lshlrev_b32 v{vK2}, 10, v{vG}")
    a(f"v_add_u32 v{vK2}, v{vK}, v{vK2}")
    a(f"v_add_u32 v{vK2}, 2048, v{vK2}")
    a(f"v_and_b32 v{t0}, 1, v{vJ}")
    a(f"v_lshlrev_b32 v{t0}, 3, v{t0}")
    a(f"v_sub_u32 v{t1}, v{vK2}, v{t0}")
    for r in range(4):
        a(f"v_cvt_pk_bf16_f32 v{B+2*r}, v{T2+r}, v{T2+r}")
        a(f"v_mov_b32 v{B+2*r+1}, v{B+2*r}")
    def seg3(r):
        a(f"ds_write_b64 v{vK2}, v[{B+2*r}:{B+2*r+1}] offset:{r*256}")
    a(f"v_subrev_u32 v{vK2}, 8, v{vK2}")
    for r in range(4):
        a(f"s_mov_b64 exec, {hex(0x1ffffffff) if r==0 else hex(0xffffffff)}" if False else f"s_mov_b32 exec_lo, -1\ns_mov_b32 exec_hi, {1 if r==0 else 0}")
        a(f"ds_write_b64 v{vK2}, v[{B+2*r}:{B+2*r+1}] offset:{r*256}")
        a(f"ds_write_b64 v{vK2}, v[{B+2*r}:{B+2*r+1}] offset:{r*256+8}")
    for r in range(4):
        a(f"s_mov_b32 exec_lo, -1\ns_mov_b32 exec_hi, {1 if r==0 else 0}")
        a(f"ds_write_b16 v{t1}, v{B+2*r} offset:{r*256+8}")
    a("s_mov_b64 exec, -1")
    T1=KACC+4
    a(f"v_subrev_u32 v{t0}, 2, v{vG}")
    a(f"v_lshlrev_b32 v{t0}, 9, v{t0}")
    a(f"v_add_u32 v{vK2}, v{vK}, v{t0}")
    a(f"v_add_u32 v{vK2}, {1024-4}, v{vK2}")
    a(f"s_mov_b32 exec_lo, 0\ns_mov_b32 exec_hi, -1")
    for b in range(2):
        v0_=T1+2*b; v1_=T1+2*b+1
        a(f"v_cvt_pk_bf16_f32 v{B}, v{v0_}, v{v0_}")
        a(f"v_cvt_pk_bf16_f32 v{B+1}, v{v0_}, v{v1_}")
        a(f"v_cvt_pk_bf16_f32 v{B+2}, v{v1_}, v{v1_}")
        a(f"ds_write_b32 v{vK2}, v{B} offset:{b*256}")
        a(f"ds_write_b64 v{vK2}, v[{B}:{B+1}] offset:{b*256+4}")
        a(f"ds_write_b32 v{vK2}, v{B+2} offset:{b*256+12}")
        a("s_nop 1")
    a(f"s_mov_b32 exec_lo, -1\ns_mov_b32 exec_hi, 0")
    a(f"v_lshlrev_b32 v{t0}, 8, v{vG}")
    a(f"v_add_u32 v{vK2}, v{vK}, v{t0}")
    a(f"v_add_u32 v{vK2}, {512-2}, v{vK2}")
    a(f"v_cvt_pk_bf16_f32 v{B}, v{T1}, v{T1}")
    a(f"v_cvt_pk_bf16_f32 v{B+1}, v{T1+1}, v{T1+2}")
    a(f"v_cvt_pk_bf16_f32 v{B+2}, v{T1+2}, v{T1+2}")
    a(f"v_cvt_pk_bf16_f32 v{B+3}, v{T1+3}, v{T1+3}")
    a(f"ds_write_b16 v{vK2}, v{B}")
    a(f"v_add_u32 v{vK2}, 2, v{vK2}")
    a(f"ds_write_b64 v{vK2}, v[{B}:{B+1}]")
    a(f"ds_write_b32 v{vK2}, v{B+2} offset:8")
    a(f"ds_write_b16 v{vK2}, v{B+3} offset:12")
    a("s_mov_b64 exec, -1")
    a(f"v_lshrrev_b32 v{t0}, 1, v{vG}")
    a(f"v_lshlrev_b32 v{t0}, 8, v{t0}")
    a(f"v_add_u32 v{vK2}, v{vK}, v{t0}")
    a(f"v_and_b32 v{t0}, 1, v{vG}")
    a(f"v_lshl_add_u32 v{vK2}, v{t0}, 3, v{vK2}")
    a(f"v_cvt_pk_bf16_f32 v{B+4}, v{KACC}, v{KACC+1}")
    a(f"v_cvt_pk_bf16_f32 v{B+5}, v{KACC+2}, v{KACC+3}")
    a(f"ds_write_b64 v{vK2}, v[{B+4}:{B+5}]")
    a("s_waitcnt lgkmcnt(0)")
    a("s_barrier")
    S(3)
    vU=36
    a(f"v_lshlrev_b32 v{t0}, 3, v0")
    a(f"v_mov_b32 v{B}, 0\nv_mov_b32 v{B+1}, 0")
    a(f"ds_write_b64 v{t0}, v[{B}:{B+1}] offset:{U_OFF}")
    CACC=24
    vAa=56; vBa=[57,58,59,60]; vRw=61; vKr=62
    AF=64
    BF=96
    vb_=184; vg_=185
    a(f"v_and_b32 v{vb_}, 15, v{lane}")
    a(f"v_lshrrev_b32 v{vg_}, 4, v{lane}")
    a(f"v_and_b32 v{t0}, 3, v{vb_}")
    a(f"v_mul_u32_u24 v{vAa}, {RC}, v{t0}")
    a(f"v_lshrrev_b32 v{t0}, 2, v{vb_}")
    a(f"v_lshlrev_b32 v{t0}, 3, v{t0}")
    a(f"v_sub_u32 v{vAa}, v{vAa}, v{t0}")
    a(f"v_lshrrev_b32 v{t0}, 1, v{vg_}")
    a(f"v_lshlrev_b32 v{t0}, 5, v{t0}")
    a(f"v_sub_u32 v{vAa}, v{vAa}, v{t0}")
    a(f"v_and_b32 v{t0}, 1, v{vg_}")
    a(f"v_lshl_add_u32 v{vAa}, v{t0}, 4, v{vAa}")
    a(f"v_add_u32 v{vAa}, s{sR}, v{vAa}")
    a(f"v_lshlrev_b32 v{t0}, 1, v{vb_}")
    a(f"v_add_u32 v{t0}, 32, v{t0}")
    a(f"v_and_b32 v{t1}, 1, v{vg_}")
    a(f"v_add_u32 v{t0}, v{t0}, v{t1}")
    a(f"v_and_b32 v{t1}, 2, v{vg_}")
    a(f"v_sub_u32 v{t0}, v{t0}, v{t1}")
    for rm in range(4):
        a(f"v_lshrrev_b32 v{t1}, 2, v{t0}")
        a(f"v_subrev_u32 v{t1}, {rm}, v{t1}")
        a(f"v_and_b32 v{t1}, 3, v{t1}")
        a(f"v_xor_b32 v{t1}, s{sWv}, v{t1}")
        a(f"v_lshlrev_b32 v{t1}, 4, v{t1}")
        a(f"v_lshl_add_u32 v{vBa[rm]}, v{t0}, 6, v{t1}")
        a(f"v_add_u32 v{vBa[rm]}, {U_OFF-256*7}, v{vBa[rm]}")
    a(f"v_lshlrev_b32 v{vRw}, 4, v{lane}")
    a(f"v_add_u32 v{vRw}, s{sR}, v{vRw}")
    vL16=63
    a(f"v_lshlrev_b32 v{vL16}, 4, v{lane}")
    a(f"s_mov_b32 s{sBf}, 0xffff")
    RB=160
    def build_R(ps):
        M0=127 if ps==0 else 255
        for rd in range(3):
            if rd==2:
                a(f"s_mov_b32 exec_lo, 3\ns_mov_b32 exec_hi, 0")
            off=40+16*(M0-64*rd)
            a(f"s_add_u32 s{sTmp}, s{sKn}, {off}")
            a(f"v_sub_u32 v{vKr}, s{sTmp}, v{vL16}")
            p=RB
            a(f"ds_read_b64 v[{p}:{p+1}], v{vKr}")
            a(f"ds_read_b128 v[{p+2}:{p+5}], v{vKr} offset:8")
            a("s_waitcnt lgkmcnt(0)")
            o=RB+8
            for mu_ in range(4):
                a(f"v_bfi_b32 v{o+mu_}, s{sBf}, v{p+4-mu_}, v{p+3-mu_}")
                a(f"v_alignbit_b32 v{o+4+mu_}, v{p+4-mu_}, v{p+4-mu_}, 16")
                a(f"v_bfi_b32 v{o+8+mu_}, s{sBf}, v{p+5-mu_}, v{p+4-mu_}")
                a(f"v_alignbit_b32 v{o+12+mu_}, v{p+5-mu_}, v{p+5-mu_}, 16")
            for sg in range(4):
                a(f"ds_write_b128 v{vRw}, v[{o+4*sg}:{o+4*sg+3}] offset:{sg*RC+1024*rd}")
            if rd==2: a("s_mov_b64 exec, -1")
        a("s_waitcnt lgkmcnt(0)")
    def conv_pass(ps):
        nB=8-4*ps
        def rdA(rho,setp):
            out=[]
            for il in range(4):
                kl=rho+8*il
                for hf in range(2):
                    r=AF+16*setp+4*il+2*hf
                    out.append(f"ds_read_b64 v[{r}:{r+1}], v{vAa} offset:{2040-64*kl+8*hf}")
            return out
        def rdB(rho,setp):
            out=[]
            for tau in range(nB):
                r=BF+32*setp+4*tau
                out.append(f"ds_read_b128 v[{r}:{r+3}], v{vBa[rho%4]} offset:{2048*tau+256*(7-rho)}")
            return out
        for x in rdA(0,0)+rdB(0,0): a(x)
        for rho in range(8):
            sp=rho%2
            a("s_waitcnt lgkmcnt(0)")
            nxt=(rdA(rho+1,1-sp)+rdB(rho+1,1-sp)) if rho<7 else []
            ms=[]
            for il in range(4):
                i=il+4*ps
                for tau in range(nB):
                    t=i+tau
                    if t>7: continue
                    ms.append((t,il,tau))
            ni=0
            for n,(t,il,tau) in enumerate(ms):
                d=CACC+4*t; A_=AF+16*sp+4*il; B_=BF+32*sp+4*tau
                cc="0" if (ps==0 and rho==0 and il==0) else f"v[{d}:{d+3}]"
                a(f"v_mfma_f32_16x16x32_bf16 v[{d}:{d+3}], v[{A_}:{A_+3}], v[{B_}:{B_+3}], {cc}")
                k=-(-len(nxt)//len(ms)) if n<len(ms) else 0
                for _ in range(k):
                    if ni<len(nxt): a(nxt[ni]); ni+=1
    build_R(0)
    a("s_waitcnt vmcnt(0)")
    if not LN2: nonce_ready(a)
    if opts.get('prio'): a(f"s_setprio {opts.get('cprio',0)}")
    if opts.get('cnt',0) and not (opts.get('ln8') or LN2):
        lw0=a.newlabel('Lw0')
        a(f"s_cmp_lg_u32 s{sWv}, 0\ns_cbranch_scc1 {lw0}")
        dbg_srd(a, 24)
        cnt_poll(a, 24, 0, 128, B+4, sleep=opts.get('slpl',16))
        a.label(lw0)
    else:
        if opts.get('ln8') or LN2:
            a(f"v_lshlrev_b32 v{B+4}, 6, v0\nv_add_u32 v{B+4}, {FL_LN}, v{B+4}")
        else:
            a(f"v_and_b32 v{B+4}, 31, v0\ns_lshl_b32 s{sTmp}, s{sWv}, 5\nv_add_u32 v{B+4}, s{sTmp}, v{B+4}\nv_lshlrev_b32 v{B+4}, 6, v{B+4}\nv_add_u32 v{B+4}, {FL_LN}, v{B+4}")
        poll(a, [B+4], B+6, mask=(0xffffffff,0) if not (opts.get('ln8') or LN2) else None, sleep=opts.get('slpl',32))
    a("s_barrier")
    a(f"v_lshrrev_b32 v{t0}, 2, v{lane}")
    a(f"v_lshlrev_b32 v{vU}, 7, v{t0}")
    a(f"v_bfe_u32 v{t0}, v{lane}, 4, 2")
    a(f"v_and_b32 v{t1}, 3, v{lane}")
    a(f"v_xor_b32 v{t0}, v{t0}, v{t1}")
    a(f"v_lshl_add_u32 v{vU}, v{t0}, 4, v{vU}")
    a(f"s_lshr_b32 s{sTmp}, s{sQ}, 1\ns_lshl_b32 s{sTmp}, s{sTmp}, 15")
    a(f"s_and_b32 s{sTmp2}, s{sQ}, 1\ns_lshl_b32 s{sTmp2}, s{sTmp2}, 6\ns_add_u32 s{sTmp}, s{sTmp}, s{sTmp2}")
    a(f"s_lshl_b32 s{sTmp2}, s{sWv}, 13\ns_add_u32 s{sTmp}, s{sTmp}, s{sTmp2}")
    if WS_XNT: a(f"s_add_u32 s{sTmp}, s{sTmp}, {WS_XNT}")
    a(f"s_lshl_b32 s{sTmp2}, s{sWv}, 12\ns_add_u32 s{sTmp2}, s{sTmp2}, {U_OFF+2048}")
    for i in range(4):
        a(f"s_add_u32 m0, s{sTmp2}, {i*1024}")
        a(f"buffer_load_dwordx4 v{vU}, s[{SWS}:{SWS+3}], s{sTmp} offen{ld} lds")
        if i<3: a(f"s_add_u32 s{sTmp}, s{sTmp}, 2048")
    a("s_waitcnt vmcnt(0) lgkmcnt(0)")
    a("s_barrier")
    if opts.get('gate',1):
        a(f"s_lshl_b32 s{sTmp}, s{sQ}, 6\ns_add_u32 s{sTmp}, s{sTmp}, {FL_UD}\nv_mov_b32 v{RB}, s{sTmp}")
        poll(a, [RB], RB+1, mask=(1,0), sleep=opts.get('slp',8))
    S(4)
    if opts.get('nw'):
        labskip2=a.newlabel('Lskip')
        a(f"s_cmp_ge_u32 s{sWv}, {opts['nw']}\ns_cbranch_scc1 {labskip2}")
    conv_pass(0)
    S(5)
    build_R(1)
    conv_pass(1)
    if opts.get('prio'): a(f"s_setprio {opts.get('eprio',3)}")
    if opts.get('nw'): a.label(labskip2)
    S(6)
    vE=186; vS=187; vDp=188
    a(f"v_and_b32 v{t0}, 15, v{lane}")
    a(f"v_lshlrev_b32 v{t0}, 1, v{t0}")
    a(f"v_lshrrev_b32 v{t1}, 5, v{lane}")
    a(f"v_add_u32 v{t0}, v{t0}, v{t1}")
    a(f"v_bfe_u32 v{t1}, v{t0}, 2, 2")
    a(f"v_xor_b32 v{t1}, s{sWv}, v{t1}")
    a(f"v_lshlrev_b32 v{t1}, 4, v{t1}")
    a(f"v_lshl_add_u32 v{vE}, v{t0}, 6, v{t1}")
    a(f"v_bfe_u32 v{t1}, v{lane}, 4, 1")
    a(f"v_lshl_add_u32 v{vE}, v{t1}, 3, v{vE}")
    a(f"v_add_u32 v{vE}, {U_OFF+2048}, v{vE}")
    a(f"v_and_b32 v{t0}, 15, v{lane}")
    a(f"v_lshlrev_b32 v{vS}, 5, v{t0}")
    a(f"v_lshrrev_b32 v{t1}, 4, v{lane}")
    a(f"v_lshl_add_u32 v{vS}, v{t1}, 3, v{vS}")
    a(f"s_lshl_b32 s{sTmp}, s{sCh}, 12\ns_add_u32 s{sTmp}, s{sTmp}, {WS_AT}")
    a(f"v_add_u32 v{vS}, s{sTmp}, v{vS}")
    a(f"v_mov_b32 v{vDp}, s{sD}\nv_mov_b32 v{vDp+1}, s{sD}")
    UB=64
    for t in range(8):
        a(f"ds_read_b64 v[{UB+2*t}:{UB+2*t+1}], v{vE} offset:{2048*t}")
    T=96
    for t in range(8):
        a(f"s_waitcnt lgkmcnt({7-t})")
        d=CACC+4*t; u=UB+2*t; o=T+16+2*(t%2)
        a(f"v_lshlrev_b32 v{T}, 16, v{u}\nv_and_b32 v{T+1}, 0xffff0000, v{u}")
        a(f"v_lshlrev_b32 v{T+2}, 16, v{u+1}\nv_and_b32 v{T+3}, 0xffff0000, v{u+1}")
        for p in range(4): a(f"v_mul_f32 v{T+p}, v{T+p}, v{vDp}")
        for p in range(2): a(f"v_cvt_pk_bf16_f32 v{T+4+p}, v{T+2*p}, v{T+2*p+1}")
        for p in range(2): a(f"v_cvt_pk_bf16_f32 v{T+6+p}, v{d+2*p}, v{d+2*p+1}")
        for p in range(2):
            a(f"v_lshlrev_b32 v{T}, 16, v{T+4+p}\nv_and_b32 v{T+1}, 0xffff0000, v{T+4+p}")
            a(f"v_lshlrev_b32 v{T+2}, 16, v{T+6+p}\nv_and_b32 v{T+3}, 0xffff0000, v{T+6+p}")
            a(f"v_add_f32 v{T}, v{T}, v{T+2}\nv_add_f32 v{T+1}, v{T+1}, v{T+3}")
            a(f"v_cvt_pk_bf16_f32 v{o+p}, v{T}, v{T+1}")
        a(f"buffer_store_dwordx2 v[{o}:{o+1}], v{vS}, s[{SWS}:{SWS+3}], 0 offen offset:{512*t}{st}")
    a("s_waitcnt vmcnt(0)\ns_barrier")
    a(f"s_lshl_b32 s{sTmp}, s{sQ}, 6\ns_add_u32 s{sTmp}, s{sTmp}, {FL_A}")
    flag_store(a, sTmp, 2)
    S(7)
```

```python
from f_common import *
from f_ln8 import *
WST=12288
TST=16384
TOK0=4*WST

def emit_gemm(a, S0_, opts):
    dst=opts.get('dstamp')
    def S(i):
        if not dst: S0_(i)
    def SD(i):
        if dst: S0_(i)
    started=[False]
    sT=46; sFT=47; sJT=48; sJF=49
    SW=52
    sWv=56; sWoff=57; sToff=58; sMW=59; sMT=60; sTmp=61; sCnt=62; sTmp2=63; sX=64
    lane=1; t0=2; t1=3; vWa=[4,5,6]; vTok=[7,8,9,10]; vA=11; vA5=12; vB=[13,14,15,16]; vSt=17; vFl=[18]; vPk=[19,20]; vDum=22; vTch=[23,24]
    vStat=24
    ACC=64; Pq=160; Qq=176
    Qq=180
    a(f"s_setprio {opts.get('g0',2)}") if opts.get('prio') else None
    a(f"s_and_b32 s{sX}, s2, 7\ns_lshr_b32 s{sTmp}, s2, 3\ns_and_b32 s{sJT}, s{sTmp}, 7\ns_lshr_b32 s{sJF}, s{sTmp}, 3")
    a(f"s_lshr_b32 s{sT}, s{sX}, 2\ns_lshl_b32 s{sT}, s{sT}, 3\ns_add_u32 s{sT}, s{sT}, s{sJT}")
    a(f"s_and_b32 s{sFT}, s{sX}, 3\ns_lshl_b32 s{sFT}, s{sFT}, 2\ns_add_u32 s{sFT}, s{sFT}, s{sJF}")
    a(f"v_and_b32 v{lane}, 63, v0\nv_lshrrev_b32 v{t0}, 6, v0\nv_readfirstlane_b32 s{sWv}, v{t0}")
    sLam=50
    if opts.get('ln8'): a(f"s_lshl_b32 s{sLam}, s{sX}, 5\ns_lshr_b32 s{sTmp}, s2, 3\ns_add_u32 s{sLam}, s{sLam}, s{sTmp}")
    if opts.get('ln8'): ln8_loads(a, sLam, 64, 76)
    a(f"s_cmp_lt_u32 s{sWv}, 2")
    a(f"s_cselect_b32 s{sTmp2}, 0, 10")
    a(f"s_and_b32 s{sTmp}, s{sWv}, 1\ns_mul_i32 s{sTmp}, s{sTmp}, 192")
    for t in range(3):
        a(f"v_add_u32 v{t0}, s{sTmp}, v{lane}")
        if t: a(f"v_add_u32 v{t0}, {64*t}, v{t0}")
        a(f"v_mul_u32_u24 v{t1}, 5462, v{t0}\nv_lshrrev_b32 v{t1}, 16, v{t1}")
        a(f"v_mul_u32_u24 v{vWa[t]}, 12, v{t1}\nv_sub_u32 v{t0}, v{t0}, v{vWa[t]}")
        a(f"v_add_u32 v{t0}, s{sTmp2}, v{t0}\nv_subrev_u32 v{vWa[t]}, 12, v{t0}")
        a(f"v_cmp_le_u32 vcc, 12, v{t0}\nv_cndmask_b32 v{t0}, v{t0}, v{vWa[t]}, vcc")
        a(f"v_mul_u32_u24 v{t1}, 3072, v{t1}\nv_lshl_add_u32 v{vWa[t]}, v{t0}, 4, v{t1}")
        if t: a(f"v_subrev_u32 v{vWa[t]}, {1024*t}, v{vWa[t]}")
    a(f"s_mul_i32 s{sWoff}, s{sFT}, 192\ns_mul_i32 s{sMW}, s{sWv}, 3072")
    sWlim=41; sC0=51
    ROT=opts.get('rot',1)
    sWlim=75; sTlim=74
    if ROT:
        a(f"s_lshr_b32 s{sTmp}, s{sJT}, 2\ns_add_u32 s{sC0}, s{sJT}, s{sTmp}")
        a(f"s_mul_i32 s{sTmp}, s{sJF}, 5\ns_lshr_b32 s{sTmp}, s{sTmp}, 1\ns_add_u32 s{sC0}, s{sC0}, s{sTmp}")
        a(f"s_cmp_ge_u32 s{sC0}, 10\ns_cselect_b32 s{sTmp}, 10, 0\ns_sub_u32 s{sC0}, s{sC0}, s{sTmp}")
        a(f"s_add_u32 s{sWlim}, s{sWoff}, {640*3072}")
        a(f"s_mul_i32 s{sTmp}, s{sC0}, {64*3072}\ns_add_u32 s{sWoff}, s{sWoff}, s{sTmp}")
    def adv_w():
        t=f"s_add_u32 s{sWoff}, s{sWoff}, {32*3072}"
        if ROT: t+=f"\ns_cmp_ge_u32 s{sWoff}, s{sWlim}\ns_cselect_b32 s{sTmp2}, {640*3072}, 0\ns_sub_u32 s{sWoff}, s{sWoff}, s{sTmp2}"
        return t
    def adv_t():
        t=f"s_add_u32 s{sToff}, s{sToff}, 128"
        if ROT: t+=f"\ns_cmp_ge_u32 s{sToff}, s{sTlim}\ns_cselect_b32 s{sTmp2}, 1280, 0\ns_sub_u32 s{sToff}, s{sToff}, s{sTmp2}"
        return t
    def dma_w(slot):
        if opts.get('nodmaw') and started[0]: return
        a(f"s_add_u32 m0, s{sMW}, {slot*WST}")
        for t in range(3):
            a(f"buffer_load_dwordx4 v{vWa[t]}, s[{SW}:{SW+3}], s{sWoff} offen offset:{1024*t} lds")
        a(adv_w())
    for ii in range(4):
        a(f"v_lshrrev_b32 v{t0}, 3, v{lane}")
        if ii: a(f"v_add_u32 v{t0}, {8*ii}, v{t0}")
        a(f"v_mul_u32_u24 v{vTok[ii]}, 1280, v{t0}")
        a(f"v_bfe_u32 v{t0}, v{t0}, 1, 3\nv_and_b32 v{t1}, 7, v{lane}\nv_xor_b32 v{t0}, v{t0}, v{t1}")
        a(f"v_lshl_add_u32 v{vTok[ii]}, v{t0}, 4, v{vTok[ii]}")
        if ii: a(f"v_subrev_u32 v{vTok[ii]}, {1024*ii}, v{vTok[ii]}")
    a(f"s_lshl_b32 s{sToff}, s{sT}, 7\ns_lshl_b32 s{sTmp}, s{sWv}, 5\ns_add_u32 s{sToff}, s{sToff}, s{sTmp}\ns_mul_i32 s{sToff}, s{sToff}, 1280")
    if ROT:
        a(f"s_add_u32 s{sTlim}, s{sToff}, 1280\ns_lshl_b32 s{sTmp}, s{sC0}, 7\ns_add_u32 s{sToff}, s{sToff}, s{sTmp}")
    a(f"s_lshl_b32 s{sMT}, s{sWv}, 12\ns_add_u32 s{sMT}, s{sMT}, {TOK0}")
    if opts.get('bench'): a(f"s_mov_b32 s77, s{sToff}")
    if opts.get('lateptr',1): ptr_ready(a)
    S(0) if opts.get('lateptr',1) else None
    a(f"s_cmp_lt_u32 s{sWv}, 2")
    a(f"s_cselect_b32 s{SW}, s{P['w1']}, s{P['w3']}\ns_cselect_b32 s{SW+1}, s{P['w1']+1}, s{P['w3']+1}")
    a(f"s_and_b32 s{SW+1}, s{SW+1}, 0xffff\ns_mov_b32 s{SW+2}, {640*1536*2}\ns_mov_b32 s{SW+3}, 0x20000")
    if opts.get('bench'):
        a(f"s_mov_b32 s78, {opts['bench']}")
        a(f"s_mov_b32 s79, s{sWoff}")
    dma_w(0)
    def dma_t(buf):
        if opts.get('nodmat') and started[0]: return
        a(f"s_add_u32 m0, s{sMT}, {buf*TST}")
        for ii in range(4):
            a(f"buffer_load_dwordx4 v{vTok[ii]}, s[{SX}:{SX+3}], s{sToff} offen offset:{1024*ii} lds")
        a(adv_t())
    LATE=opts.get('late12',0)
    dma_t(0)
    if opts.get('pbar',0): a("s_barrier")
    if not LATE: dma_w(1); dma_w(2); dma_t(1)
    if LATE==2: dma_w(1)
    nonce_load(a)
    started[0]=True
    vTw=23; vTt=25
    sTwo=80; sTto=81
    if opts.get('touch',0): a(f"s_lshr_b32 s{sTmp}, s2, 3\ns_lshl_b32 s{sTwo}, s{sTmp}, 1\ns_and_b32 s{sTmp2}, s{sWv}, 1\ns_add_u32 s{sTwo}, s{sTwo}, s{sTmp2}\ns_mul_i32 s{sTwo}, s{sTwo}, {2*3072}")
    if opts.get('touch',0): a(f"s_and_b32 s{sTmp2}, s{sX}, 3\ns_mul_i32 s{sTmp2}, s{sTmp2}, 768\ns_add_u32 s{sTwo}, s{sTwo}, s{sTmp2}\ns_add_u32 s{sTwo}, s{sTwo}, {3*32*3072}")
    if opts.get('touch',0): a(f"v_mul_u32_u24 v{t0}, 10923, v{lane}\nv_lshrrev_b32 v{t0}, 16, v{t0}\nv_mul_u32_u24 v{t1}, 6, v{t0}\nv_sub_u32 v{t1}, v{lane}, v{t1}")
    if opts.get('touch',0): a(f"v_mul_u32_u24 v{vTw}, 3072, v{t0}\nv_lshl_add_u32 v{vTw}, v{t1}, 7, v{vTw}")
    if opts.get('touch',0): a(f"s_lshr_b32 s{sTmp}, s2, 3\ns_lshl_b32 s{sTmp}, s{sTmp}, 2\ns_add_u32 s{sTmp}, s{sTmp}, s{sWv}\ns_lshl_b32 s{sTmp}, s{sTmp}, 3\ns_lshr_b32 s{sTmp2}, s{sX}, 2\ns_lshl_b32 s{sTmp2}, s{sTmp2}, 10\ns_add_u32 s{sTmp}, s{sTmp}, s{sTmp2}")
    if opts.get('touch',0): a(f"s_mul_i32 s{sTto}, s{sTmp}, 1280\ns_add_u32 s{sTto}, s{sTto}, {2*128}")
    if opts.get('touch',0): a(f"v_lshrrev_b32 v{t0}, 1, v{lane}\nv_mul_u32_u24 v{vTt}, 1280, v{t0}\nv_and_b32 v{t0}, 1, v{lane}\nv_lshl_add_u32 v{vTt}, v{t0}, 7, v{vTt}")
    def touch_batch(tok=True):
        if not opts.get('touch',0): return []
        a(f"s_mov_b64 exec, 0xfff")
        a(f"buffer_load_dword v{vDum}, v{vTw}, s[{SW}:{SW+3}], s{sTwo} offen")
        a(f"s_add_u32 s{sTwo}, s{sTwo}, {128*3072}")
        if tok:
            a(f"s_mov_b64 exec, 0xffff")
            a(f"buffer_load_dword v{vDum}, v{vTt}, s[{SX}:{SX+3}], s{sTto} offen")
            a(f"s_add_u32 s{sTto}, s{sTto}, 256")
        a("s_mov_b64 exec, -1")
        return ['x']*(2 if tok else 1)
    pre_touch=touch_batch()
    ntouch=len(pre_touch)
    if opts.get('ln8'):
        npre=3+4+({0:10,1:0,2:3}[LATE])+1+len(pre_touch)
        a(f"s_waitcnt vmcnt({npre})")
        S(1)
        nln=ln8_compute(a, sLam, sWv, 64, 76, 3*WST)
        ntouch+=nln
    a(f"v_lshrrev_b32 v{t0}, 5, v{lane}\nv_lshlrev_b32 v{t0}, 3, v{t0}\nv_bfe_u32 v{t1}, v{lane}, 2, 2\nv_add_u32 v{t0}, v{t0}, v{t1}")
    a(f"v_mul_u32_u24 v{vA}, 192, v{t0}\nv_and_b32 v{t1}, 3, v{lane}\nv_lshl_add_u32 v{vA}, v{t1}, 3, v{vA}")
    a(f"v_bfe_u32 v{t1}, v{lane}, 4, 1\nv_mul_u32_u24 v{t0}, {6144+32}, v{t1}\nv_add_u32 v{vA}, v{vA}, v{t0}")
    a(f"s_lshr_b32 s{sTmp}, s{sWv}, 1\ns_mul_i32 s{sTmp2}, s{sTmp}, 96\nv_add_u32 v{vA}, s{sTmp2}, v{vA}")
    a(f"s_mul_i32 s{sTmp2}, s{sTmp}, 192\nv_mul_u32_u24 v{t0}, s{sTmp2}, v{t1}\nv_sub_u32 v{vA5}, v{vA}, v{t0}")
    a(f"v_and_b32 v{t0}, 31, v{lane}\ns_and_b32 s{sTmp}, s{sWv}, 1\ns_lshl_b32 s{sTmp}, s{sTmp}, 6\nv_add_u32 v{t0}, s{sTmp}, v{t0}")
    a(f"v_bfe_u32 v{t1}, v{t0}, 1, 3\nv_lshrrev_b32 v{vB[3]}, 5, v{lane}\nv_xor_b32 v{t1}, v{t1}, v{vB[3]}")
    a(f"v_lshlrev_b32 v{t0}, 7, v{t0}\nv_add_u32 v{t0}, {TOK0}, v{t0}")
    for sp in range(4):
        a(f"v_xor_b32 v{vB[sp]}, {2*sp}, v{t1}\nv_lshl_add_u32 v{vB[sp]}, v{vB[sp]}, 4, v{t0}")
    a(f"v_bfe_u32 v{t0}, v{lane}, 4, 1\nv_mul_u32_u24 v{vSt}, 49152, v{t0}\nv_lshrrev_b32 v{t0}, 5, v{lane}\nv_lshl_add_u32 v{vSt}, v{t0}, 8, v{vSt}")
    a(f"v_and_b32 v{t0}, 15, v{lane}\nv_lshl_add_u32 v{vSt}, v{t0}, 4, v{vSt}")
    a(f"s_lshl_b32 s{sTmp}, s{sT}, 3\ns_and_b32 s{sTmp2}, s{sWv}, 1\ns_lshl_b32 s{sTmp2}, s{sTmp2}, 2\ns_add_u32 s{sTmp}, s{sTmp}, s{sTmp2}\ns_mul_i32 s{sTmp}, s{sTmp}, 49152")
    a(f"s_mul_i32 s{sTmp2}, s{sFT}, {12*256}\ns_add_u32 s{sTmp}, s{sTmp}, s{sTmp2}\ns_lshr_b32 s{sTmp2}, s{sWv}, 1\ns_mul_i32 s{sTmp2}, s{sTmp2}, {6*256}\ns_add_u32 s{sTmp}, s{sTmp}, s{sTmp2}")
    a(f"s_add_u32 s{sTmp}, s{sTmp}, {WS_H}\nv_add_u32 v{vSt}, s{sTmp}, v{vSt}")
    a(f"v_min_u32 v{t0}, 23, v{lane}\ns_mul_i32 s{sTmp}, s{sWv}, 24\nv_add_u32 v{t0}, s{sTmp}, v{t0}\nv_lshlrev_b32 v{t0}, 6, v{t0}\nv_add_u32 v{vPk[0]}, {FL_PK}, v{t0}")
    CACC=216; SEL=228
    for r in range(12): a(f"v_mov_b32 v{CACC+r}, 0")
    a(f"v_and_b32 v{t0}, 15, v{lane}\nv_bfe_u32 v{t1}, v{lane}, 4, 1\nv_cmp_eq_u32 vcc, v{t0}, v{t1}")
    a(f"v_mov_b32 v{t0}, 0x3f803f80")
    for r in range(4): a(f"v_cndmask_b32 v{SEL+r}, 0, v{t0}, vcc")
    a(f"s_and_b32 s{sTmp}, s{sWv}, 1\ns_cmp_eq_u32 s{sTmp}, 1\ns_cselect_b64 vcc, -1, 0")
    if opts.get('bench'):
        a("s_branch Lbench_go")
        a.label("Lbench_top")
        a(f"s_mov_b32 s{sWoff}, s79\ns_mov_b32 s{sToff}, s77")
        a("s_barrier")
        started[0]=False
        dma_w(0); dma_t(0); dma_w(1); dma_w(2); dma_t(1)
        if ntouch:
            for _ in range(ntouch): a(f"buffer_load_dword v{vDum}, v{vTch[0]}, s[{SX}:{SX+3}], 0 offen")
        started[0]=True
        a.label("Lbench_go")
        a("s_memtime s[74:75]\ns_memrealtime s[70:71]\ns_waitcnt lgkmcnt(0)")
    if not opts.get('ln8'): S(1)
    def reads(setb, st, s):
        slot=st%4; buf=(st//2)%2; sp=2*(st%2)+s
        R=[]
        def rb(nt): R.append((f"ds_read_b128 v[{setb+12+4*nt}:{setb+12+4*nt+3}], v{vB[sp]} offset:{buf*TST+nt*4096}", f"B{nt}"))
        def ra(j):
            for q in range(2):
                reg=vA5 if j==2 else vA
                R.append((f"ds_read_b64_tr_b16 v[{setb+4*j+2*q}:{setb+4*j+2*q+1}], v{reg} offset:{slot*WST+(16*s+4*q)*192+32*j}", f"A{j}"))
        rb(0); ra(0); ra(1); ra(2); rb(1)
        if opts.get('nods'): R=[]
        if opts.get('nodsB'): R=[x for x in R if x[1][0]!='B']
        if opts.get('nodsA'): R=[x for x in R if x[1][0]!='A']
        return R
    def mfma(setb, j, nt, zero=False):
        if opts.get('nomfma'): return
        d=ACC+16*(2*j+nt)
        c="0" if zero else f"v[{d}:{d+15}]"
        a(f"v_mfma_f32_32x32x16_bf16 v[{d}:{d+15}], v[{setb+4*j}:{setb+4*j+3}], v[{setb+12+4*nt}:{setb+12+4*nt+3}], {c}")
    ORDER=[(0,0),(1,0),(2,0),(0,1),(1,1),(2,1)]
    NEED={(0,0):"A0",(1,0):"A1",(2,0):"A2",(0,1):"B1",(1,1):None,(2,1):None}
    vq=['W0']*3+['T0']*4+({0:['W1']*3+['W2']*3+['T1']*4,1:[],2:['W1']*3}[LATE])+['x']+['x']*ntouch
    def vwait(tags):
        nonlocal vq
        idx=max(i for i,t in enumerate(vq) if t in tags)
        n=len(vq)-1-idx
        vq=vq[idx+1:]
        return n
    TOUCH_AT={0:True,3:True,7:True,11:True}
    def dma_list(st):
        L=[]
        if st+3<20 and not opts.get('nodmaw'):
            slot=(st+3)%4
            for t in range(3):
                pre=f"s_add_u32 m0, s{sMW}, {slot*WST}\ns_nop 0\n" if t==0 else ""
                post="\n"+adv_w() if t==2 else ""
                L.append((pre+f"buffer_load_dwordx4 v{vWa[t]}, s[{SW}:{SW+3}], s{sWoff} offen offset:{1024*t} lds"+post, f"W{st+3}"))
        if st%2==0 and st>=2 and st//2+1<10 and not opts.get('nodmat'):
            buf=(st//2+1)%2
            for ii in range(4):
                pre=f"s_add_u32 m0, s{sMT}, {buf*TST}\ns_nop 0\n" if ii==0 else ""
                post="\n"+adv_t() if ii==3 else ""
                L.append((pre+f"buffer_load_dwordx4 v{vTok[ii]}, s[{SX}:{SX+3}], s{sToff} offen offset:{1024*ii} lds"+post, f"T{st//2+1}"))
        return L
    def stage(st, first=False, extra1=None, extra2=None, fixed=None):
        need=[f"W{st}", f"T{st//2}"]
        n=vwait([t for t in need if t in vq]) if any(t in vq for t in need) else len(vq)
        if fixed is not None: assert n==fixed,(st,n,fixed)
        a(f"s_waitcnt vmcnt({n}) lgkmcnt(0)")
        if opts.get('ststamp') and st>0: a(f"v_writelane_b32 v250, s82, {st-1}")
        a("s_barrier")
        if opts.get('ststamp'): a("s_memrealtime s[82:83]")
        if st==0 and LATE:
            started[0]=False
            if LATE==1: dma_w(1); vq.extend(['W1']*3)
            dma_w(2); dma_t(1); vq.extend(['W2']*3+['T1']*4)
            started[0]=True
        if st==3: nonce_ready(a)
        if st==3 and opts.get('ln8'):
            a(f"s_lshl_b32 s{sTmp}, s{sLam}, 6\ns_add_u32 s{sTmp}, s{sTmp}, {FL_LN}")
            flag_store(a, sTmp, t0, keepvcc=True)
        if st in TOUCH_AT: vq.extend(touch_batch(tok=(st<=3 or TOUCH_AT[st])))
        lt=LdsTrack(a)
        DL=dma_list(st); di=0
        spread=opts.get('spread',1)
        if spread==1: order=[4,5,10,11,3,9,2,8]
        elif spread==2: order=[0,1,2,3,4,5,6,7,8,9,10,11]
        elif spread==3: order=[5,5,5,10,10,10,10]
        elif spread==4: order=[0,2,4,6,8,10,11]
        gaps={}
        srt=sorted(order[:len(DL)])
        for i,g in enumerate(srt): gaps.setdefault(g,[]).append(DL[i])
        def do_dma(g):
            for (t,tag) in gaps.get(g,[]):
                a(t); vq.append(tag)
        rdn=opts.get('rdn',2)
        def csum(setb, branch):
            if opts.get('nocs'): return
            lb=a.newlabel('Lcs')
            a(f"{branch} {lb}")
            for j in range(3):
                a(f"v_mfma_f32_16x16x32_bf16 v[{CACC+4*j}:{CACC+4*j+3}], v[{setb+4*j}:{setb+4*j+3}], v[{SEL}:{SEL+3}], v[{CACC+4*j}:{CACC+4*j+3}]")
            a.label(lb)
        cspos=opts.get('cspos',3)
        R=reads(Pq, st, 0); ri=0
        for k,(j,nt) in enumerate(ORDER):
            if not first: mfma(Qq,j,nt)
            if k==cspos and not first: csum(Qq, "s_cbranch_vccz")
            for _ in range(rdn):
                if ri<len(R): lt.issue(R[ri][0], 'P'+R[ri][1]); ri+=1
            do_dma(k)
        if extra1: extra1()
        R=reads(Qq, st, 1); ri=0
        for k,(j,nt) in enumerate(ORDER):
            if NEED[(j,nt)]: lt.wait('P'+NEED[(j,nt)])
            mfma(Pq,j,nt,zero=first)
            if k==cspos: csum(Pq, "s_cbranch_vccnz")
            for _ in range(rdn):
                if ri<len(R): lt.issue(R[ri][0], 'Q'+R[ri][1]); ri+=1
            do_dma(6+k)
        if extra2: extra2()
        return n
    if opts.get('prio') and 'g1' in opts: a(f"s_setprio {opts['g1']}")
    for st in range(0,4): stage(st, first=(st==0))
    S(2) if not opts.get("bench") else None
    if opts.get('clk'): a("s_memtime s[68:69]\ns_waitcnt lgkmcnt(0)\ns_mov_b32 s51, s68")
    if opts.get('ststamp') or opts.get('unroll'):
        for st in range(4,12): stage(st)
    else:
        a(f"s_mov_b32 s{sCnt}, 2")
        lab=a.newlabel('Lup'); a.label(lab)
        pat=[stage(st) for st in range(4,8)]
        a(f"s_sub_u32 s{sCnt}, s{sCnt}, 1\ns_cmp_lg_u32 s{sCnt}, 0\ns_cbranch_scc1 {lab}")
        sav=a.ins; a.ins=[]
        pat2=[stage(st) for st in range(8,12)]
        a.ins=sav
        assert pat==pat2,(pat,pat2)
    FLG=200
    def issue_flags():
        a("s_mov_b64 exec, 0xffff")
        a(f"buffer_load_dword v{FLG}, v{vFl[0]}, s[{SWS}:{SWS+3}], 0 offen sc1"); vq.append('F')
        a("s_mov_b64 exec, -1")
    CK=opts.get('ck',17)
    for st_ in range(12,CK): stage(st_)
    STAT=240
    CSR=208
    PKF=202
    vStA=201
    def check_and_load():
        a(f"v_and_b32 v{t0}, 31, v{lane}\ns_lshl_b32 s{sTmp}, s{sT}, 7\ns_and_b32 s{sTmp2}, s{sWv}, 1\ns_lshl_b32 s{sTmp2}, s{sTmp2}, 6\ns_add_u32 s{sTmp}, s{sTmp}, s{sTmp2}")
        a(f"v_add_u32 v{t0}, s{sTmp}, v{t0}\nv_lshlrev_b32 v{vStA}, 4, v{t0}\nv_add_u32 v{vStA}, {WS_STATS}, v{vStA}")
        for nt in range(2):
            a(f"buffer_load_dwordx4 v[{STAT+4*nt}:{STAT+4*nt+3}], v{vStA}, s[{SWS}:{SWS+3}], 0 offen offset:{512*nt} sc1"); vq.append('S')
        a(f"s_and_b32 s{sTmp}, s{sWv}, 1\ns_cmp_eq_u32 s{sTmp}, 1\ns_cselect_b64 vcc, -1, 0")
        if opts.get('cnt',0):
            dbg_srd(a, 76)
            a(f"s_mov_b64 exec, 1\nv_mov_b32 v{PKF+1}, 64")
            a(f"buffer_load_dword v{PKF}, v{PKF+1}, s[76:79], 0 offen sc1"); vq.append('S')
            a("s_mov_b64 exec, -1")
        else:
            a("s_mov_b32 exec_lo, 0xffffff\ns_mov_b32 exec_hi, 0")
            a(f"buffer_load_dword v{PKF}, v{vPk[0]}, s[{SWS}:{SWS+3}], 0 offen sc1"); vq.append('S')
            a("s_mov_b64 exec, -1")
    stage(CK, extra2=check_and_load)
    for st in range(CK+1,20): stage(st)
    a("s_waitcnt lgkmcnt(0)")
    for (j,nt) in ORDER: mfma(Qq,j,nt)
    if not opts.get('nocs'):
        lbq=a.newlabel('Lcs'); a(f"s_cbranch_vccz {lbq}")
        for j in range(3):
            a(f"v_mfma_f32_16x16x32_bf16 v[{CACC+4*j}:{CACC+4*j+3}], v[{Qq+4*j}:{Qq+4*j+3}], v[{SEL}:{SEL+3}], v[{CACC+4*j}:{CACC+4*j+3}]")
        a.label(lbq)
    if opts.get('bench'):
        a("s_waitcnt vmcnt(0)")
        a("s_memtime s[72:73]\ns_memrealtime s[68:69]\ns_waitcnt lgkmcnt(0)\ns_sub_u32 s72, s72, s74\ns_sub_u32 s68, s68, s70")
        a(f"s_cmp_eq_u32 s78, 1\ns_cselect_b32 s{84+2*7}, s68, s{84+2*7}")
        for r in range(opts['bench']):
            a(f"s_cmp_eq_u32 s78, {opts['bench']-r}\ns_cselect_b32 s{84+2*(4+r)}, s72, s{84+2*(4+r)}")
        a("s_sub_u32 s78, s78, 1\ns_cmp_lg_u32 s78, 0\ns_cbranch_scc1 Lbench_top")
        return
    if opts.get('ststamp'):
        a("s_waitcnt lgkmcnt(0)\nv_writelane_b32 v250, s82, 19\ns_memrealtime s[82:83]\ns_waitcnt lgkmcnt(0)\nv_writelane_b32 v250, s82, 20")
        lq=a.newlabel('Lq')
        a(f"s_cmp_lg_u32 s{sWv}, 0\ns_cbranch_scc1 {lq}")
        a(f"s_lshl_b32 s{sTmp}, s2, 7\ns_add_u32 s{sTmp}, s{sTmp}, 0xF40000\nv_lshlrev_b32 v251, 2, v{lane}\ns_mov_b32 exec_hi, 0")
        a(f"buffer_store_dword v250, v251, s[{SWS}:{SWS+3}], s{sTmp} offen\ns_mov_b64 exec, -1")
        a.label(lq)
    if opts.get('prio') and 'g2' in opts: a(f"s_setprio {opts['g2']}")
    S(3)
    if opts.get('clk'): a("s_memtime s[68:69]\ns_waitcnt lgkmcnt(0)\ns_sub_u32 s51, s68, s51")
    if opts.get('gate',1)==1:
        a(f"s_lshl_b32 s{sTmp}, s2, 6\ns_add_u32 s{sTmp}, s{sTmp}, {FL_UD}")
        flag_store(a, sTmp, t0)
    a("s_waitcnt vmcnt(0)")
    ls=a.newlabel('Lst'); lo=a.newlabel('Lst')
    a("s_mov_b32 s41, 0x40000")
    a.label(ls)
    a(f"v_cmp_ne_u32 vcc, s{S_NONCE}, v{STAT+2}\ns_mov_b64 s[44:45], vcc\nv_cmp_ne_u32 vcc, s{S_NONCE}, v{STAT+6}\ns_or_b64 s[44:45], s[44:45], vcc\ns_cmp_lg_u64 s[44:45], 0")
    a(f"s_cbranch_scc0 {lo}")
    if not (opts.get('nolnwait') or opts.get('only') in (1,5)):
        a("s_sub_u32 s41, s41, 1")
        a(f"s_cbranch_scc1 {lo}")
        a("s_sleep 4")
        for nt in range(2):
            a(f"buffer_load_dwordx4 v[{STAT+4*nt}:{STAT+4*nt+3}], v{vStA}, s[{SWS}:{SWS+3}], 0 offen offset:{512*nt} sc1")
        a("s_waitcnt vmcnt(0)")
        a(f"s_branch {ls}")
    a.label(lo)
    def pk_check():
        labp=a.newlabel('Lok')
        if opts.get('cnt',0):
            a(f"v_readfirstlane_b32 s44, v{PKF}\ns_cmp_ge_u32 s44, 96\ns_cbranch_scc1 {labp}")
            dbg_srd(a, 52)
            if not opts.get('nolnwait') and opts.get('only')!=1: cnt_poll(a, 52, 64, 96, PKF, sleep=4)
        else:
            a("s_mov_b32 exec_lo, 0xffffff\ns_mov_b32 exec_hi, 0")
            poll_check(a, 1, PKF)
            a("s_mov_b64 exec, -1")
            a(f"s_cbranch_scc0 {labp}")
            if not opts.get('nolnwait'): poll(a, [vPk[0]], PKF, mask=(0xffffff,0), sleep=4)
        a.label(labp)
    PKLATE=not opts.get('stgepi',0)
    if not PKLATE: pk_check()
    EA=Pq; EB=Pq+12
    a(f"v_and_b32 v{t0}, 15, v{lane}\nv_lshrrev_b32 v{t1}, 4, v{lane}\nv_lshlrev_b32 v{t1}, 4, v{t1}\nv_lshl_add_u32 v{t1}, v{t0}, 6, v{t1}")
    a(f"s_lshr_b32 s{sTmp}, s{sWv}, 1\ns_lshl_b32 s{sTmp}, s{sTmp}, 1\ns_and_b32 s{sTmp2}, s{sWv}, 1\ns_add_u32 s{sTmp}, s{sTmp}, s{sTmp2}\ns_mul_i32 s{sTmp}, s{sTmp}, 384")
    a(f"v_add_u32 v{t1}, s{sTmp}, v{t1}")
    a(f"s_mov_b32 exec_lo, 0x00030003\ns_mov_b32 exec_hi, 0x00030003")
    for j in range(3): a(f"ds_write_b128 v{t1}, v[{CACC+4*j}:{CACC+4*j+3}] offset:{128*j}")
    a("s_mov_b64 exec, -1")
    a("s_waitcnt lgkmcnt(0)\ns_barrier")
    a(f"v_bfe_u32 v{t1}, v{lane}, 4, 1\nv_lshlrev_b32 v{t1}, 6, v{t1}\nv_lshl_add_u32 v{t1}, v{t0}, 2, v{t1}")
    a(f"s_lshr_b32 s{sTmp}, s{sWv}, 1\ns_mul_i32 s{sTmp}, s{sTmp}, 768\nv_add_u32 v{t1}, s{sTmp}, v{t1}")
    for j in range(3):
        a(f"ds_read_b32 v{CSR+2*j}, v{t1} offset:{128*j}\nds_read_b32 v{CSR+2*j+1}, v{t1} offset:{128*j+384}")
    a(f"v_cmp_gt_u32 vcc, 32, v{lane}")
    a("s_waitcnt lgkmcnt(0)\ns_barrier")
    sT64=65; sCT=66; sA=67; sB=72; sStg=76; sA8=77
    a(f"s_lshr_b32 s{sT64}, s{sX}, 1\ns_lshl_b32 s{sT64}, s{sT64}, 3\ns_add_u32 s{sT64}, s{sT64}, s{sJT}")
    a(f"s_and_b32 s{sCT}, s{sX}, 1\ns_lshl_b32 s{sCT}, s{sCT}, 2\ns_add_u32 s{sCT}, s{sCT}, s{sJF}")
    a(f"s_mul_i32 s{sTmp}, s{sWv}, {12*1024}\ns_mul_i32 s{sTmp2}, s{sCT}, {5*49152}\ns_add_u32 s{sTmp2}, s{sTmp2}, s{sTmp}")
    for m in range(5): a(f"s_add_u32 s{sA+m}, s{sTmp2}, {WS_W2P+m*49152}")
    vL16=4
    a(f"v_lshlrev_b32 v{vL16}, 4, v{lane}")
    a(f"s_mul_i32 s{sStg}, s{sWv}, 20480")
    vt=VmTrack(a)
    sKO=[48,50,51,57,58,59,60,62,78,79,80,81]
    DROT=opts.get('drot',0)
    a(f"s_mul_i32 s{sTmp}, s{sJF}, {3*1024 if DROT else 0}")
    for k in range(12):
        if k==0: a(f"s_mov_b32 s{sKO[0]}, s{sTmp}")
        else:
            a(f"s_add_u32 s{sKO[k]}, s{sKO[k-1]}, 1024\ns_cmp_ge_u32 s{sKO[k]}, {12*1024}\ns_cselect_b32 s{sTmp2}, {12*1024}, 0\ns_sub_u32 s{sKO[k]}, s{sKO[k]}, s{sTmp2}")
    stg=[(m,k) for m in range(5) for k in range(4)]
    STG8=[8192]
    def stage_one():
        if not stg: return
        m,k=stg.pop(0)
        a(f"s_add_u32 m0, s{sStg}, {m*4096+k*1024}\ns_add_u32 s{sA8}, s{sA+m}, s{sKO[8+k]}")
        vt.issue(f"buffer_load_dwordx4 v{vL16}, s[{SWS}:{SWS+3}], s{sA8} offen sc1 lds", 'stg')
    for j in range(3):
        a(f"v_add_f32 v{t0}, v{CSR+2*j}, v{CSR+2*j+1}")
        a(f"v_cvt_pk_bf16_f32 v{t1}, v{t0}, v{t0}\nv_and_b32 v{t1}, 0xffff0000, v{t1}")
        a(f"v_sub_f32 v{t0}, v{t0}, v{t1}")
        a(f"v_cvt_pk_bf16_f32 v{t0}, v{t1}, v{t0}")
        a(f"v_cndmask_b32 v{EA+4*j}, 0, v{t0}, vcc")
        for r in range(1,4): a(f"v_mov_b32 v{EA+4*j+r}, 0")
    for nt in range(2):
        a(f"v_cvt_pk_bf16_f32 v{t0}, v{STAT+4*nt}, v{STAT+4*nt}")
        a(f"v_cndmask_b32 v{EB+4*nt}, 0, v{t0}, vcc")
        for r in range(1,4): a(f"v_mov_b32 v{EB+4*nt+r}, 0")
    for (j,nt) in ORDER: mfma(Pq,j,nt)
    C1=[214,215]; IR2=[208,209]
    for nt in range(2):
        r=STAT+4*nt+1
        a(f"v_mul_f32 v{C1[nt]}, 0xbfb8aa3b, v{r}")
        a(f"v_mul_f32 v{IR2[nt]}, v{r}, v{r}\nv_rcp_f32 v{IR2[nt]}, v{IR2[nt]}")
    T=216; O=232
    k=0
    for (j,nt) in ORDER:
        d=ACC+16*(2*j+nt); o=O+4*(k%2)
        k+=1
        sg=(lambda: stage_one()) if opts.get('stgepi',0) else (lambda: None)
        for i in range(8): a(f"v_mul_f32 v{T+i}, v{d+i}, v{C1[nt]}")
        sg()
        for i in range(8): a(f"v_exp_f32 v{T+i}, v{T+i}")
        sg()
        for i in range(8): a(f"v_mul_f32 v{d+i}, v{d+i}, v{d+8+i}")
        for i in range(8): a(f"v_fma_f32 v{T+i}, v{T+i}, v{IR2[nt]}, v{IR2[nt]}")
        sg()
        for i in range(8): a(f"v_rcp_f32 v{T+i}, v{T+i}")
        sg()
        for i in range(8): a(f"v_mul_f32 v{T+i}, v{T+i}, v{d+i}")
        for p in range(4): a(f"v_cvt_pk_bf16_f32 v{o+p}, v{T+2*p}, v{T+2*p+1}")
        a(f"v_permlane32_swap_b32 v{o}, v{o+2}\nv_permlane32_swap_b32 v{o+1}, v{o+3}")
        a(f"s_mov_b32 s{sTmp}, {nt*2*49152+j*512}")
        vt.issue(f"buffer_store_dwordx4 v[{o}:{o+3}], v{vSt}, s[{SWS}:{SWS+3}], s{sTmp} offen sc1", 'h')
    S(4)
    if opts.get('gate',1)==2:
        a(f"s_lshl_b32 s{sTmp}, s2, 6\ns_add_u32 s{sTmp}, s{sTmp}, {FL_UD}")
        flag_store(a, sTmp, t0)
    vRed=5; vXo=6; vAt=7; vHf=8; vAf=9; vTm=10
    DACC=12
    AF=92
    BF=192
    NB=4
    vDum=vRed
    a(f"s_mul_i32 s{sTmp2}, s{sT64}, {4*49152}\ns_mul_i32 s{sTmp}, s{sWv}, {12*1024}\ns_add_u32 s{sTmp2}, s{sTmp2}, s{sTmp}\ns_add_u32 s{sTmp2}, s{sTmp2}, {WS_H}")
    for n in range(4):
        a(f"s_add_u32 s{sB+n}, s{sWv}, {n}\ns_and_b32 s{sB+n}, s{sB+n}, 3\ns_mul_i32 s{sB+n}, s{sB+n}, 49152\ns_add_u32 s{sB+n}, s{sB+n}, s{sTmp2}")
    def ldA(k,m):
        fb=AF+20*(k%5)
        a(f"s_add_u32 s{sA8}, s{sA+m}, s{sKO[k]}")
        vt.issue(f"buffer_load_dwordx4 v[{fb+4*m}:{fb+4*m+3}], v{vL16}, s[{SWS}:{SWS+3}], s{sA8} offen sc1", f"a{k}")
    def ldB(k,n):
        fb=BF+16*(k%NB)
        a(f"s_add_u32 s{sA8}, s{sB+n}, s{sKO[k]}")
        vt.issue(f"buffer_load_dwordx4 v[{fb+4*n}:{fb+4*n+3}], v{vL16}, s[{SWS}:{SWS+3}], s{sA8} offen sc1", f"b{k}")
    if PKLATE:
        pk_check()
        if not opts.get('cnt',0): a("s_barrier")
    NPRE=opts.get('npre',3)
    for k in range(NPRE):
        for m in range(5): ldA(k,m)
    vt.wait('h')
    a(f"s_lshl_b32 s{sTmp}, s{sT}, 4\ns_add_u32 s{sTmp}, s{sTmp}, s{sFT}\ns_lshl_b32 s{sTmp}, s{sTmp}, 2\ns_add_u32 s{sTmp}, s{sTmp}, s{sWv}\ns_lshl_b32 s{sTmp}, s{sTmp}, 6\ns_add_u32 s{sTmp}, s{sTmp}, {FL_H}")
    a(f"v_mov_b32 v{t0}, 0\nv_mov_b32 v{t1}, s{S_NONCE}\ns_mov_b64 exec, 1")
    vt.issue(f"buffer_store_dword v{t1}, v{t0}, s[{SWS}:{SWS+3}], s{sTmp} offen sc1", 'f')
    a("s_mov_b64 exec, -1")
    S(5)
    for k in range(NPRE,5):
        for m in range(5): ldA(k,m)
    while stg: stage_one()
    a(f"v_and_b32 v{t0}, 15, v{lane}\ns_lshl_b32 s{sTmp}, s{sT64}, 6\ns_lshl_b32 s{sTmp2}, s{sWv}, 4\ns_add_u32 s{sTmp}, s{sTmp}, s{sTmp2}\nv_add_u32 v{t0}, s{sTmp}, v{t0}")
    a(f"v_lshrrev_b32 v{t1}, 4, v{lane}\nv_mul_u32_u24 v{vXo}, 1280, v{t0}\nv_lshl_add_u32 v{vXo}, v{t1}, 3, v{vXo}")
    a(f"s_mul_i32 s{sTmp}, s{sCT}, 160\nv_add_u32 v{vXo}, s{sTmp}, v{vXo}")
    a(f"v_lshlrev_b32 v{vAt}, 14, v{t1}\nv_lshl_add_u32 v{vAt}, v{t0}, 1, v{vAt}")
    a(f"s_mul_i32 s{sTmp}, s{sCT}, {80*4096}\ns_add_u32 s{sTmp}, s{sTmp}, {WS_AT}\nv_add_u32 v{vAt}, s{sTmp}, v{vAt}")
    a(f"s_lshr_b32 s{sTmp}, s{sT64}, 1\ns_lshl_b32 s{sTmp}, s{sTmp}, 6\ns_and_b32 s{sTmp2}, s{sT64}, 1\ns_add_u32 s{sTmp}, s{sTmp}, s{sTmp2}")
    a(f"v_bfe_u32 v{t0}, v{lane}, 1, 4\nv_lshlrev_b32 v{t0}, 2, v{t0}\nv_and_b32 v{t1}, 1, v{lane}\nv_lshl_add_u32 v{t0}, v{t1}, 1, v{t0}\nv_add_u32 v{t0}, s{sTmp}, v{t0}")
    a(f"v_lshlrev_b32 v{t0}, 6, v{t0}\nv_add_u32 v{vHf}, {FL_H}, v{t0}")
    a(f"s_mul_i32 s{sTmp}, s{sCT}, {20*64}\ns_add_u32 s{sTmp}, s{sTmp}, {FL_A}")
    a(f"v_min_u32 v{t0}, 19, v{lane}\nv_lshlrev_b32 v{t0}, 6, v{t0}\nv_add_u32 v{vAf}, s{sTmp}, v{t0}")
    vSg=11
    a(f"v_add_u32 v{vSg}, s{sStg}, v{vL16}")
    SD(1)
    lh=a.newlabel('Lhp')
    a(f"s_cmp_lg_u32 s{sWv}, 0\ns_cbranch_scc1 {lh}")
    poll(a, [vHf], vTm, force=True, mask=(0xffffffff,0), sleep=opts.get('slph',2))
    a.label(lh)
    a("s_waitcnt vmcnt(0)\ns_barrier"); vt.q=[]
    S(6); SD(2)
    for k in range(NB):
        for n in range(4): ldB(k,n)
    if opts.get('touch_h',0):
        a(f"s_lshl_b32 s{sTmp}, s{sT64}, 2\ns_add_u32 s{sTmp}, s{sTmp}, s{sJF}\ns_mul_i32 s{sTmp}, s{sTmp}, 49152\ns_mul_i32 s{sTmp2}, s{sWv}, {12*1024}\ns_add_u32 s{sTmp}, s{sTmp}, s{sTmp2}\ns_add_u32 s{sTmp}, s{sTmp}, {WS_H+3*1024}")
        a(f"v_lshlrev_b32 v{t0}, 7, v{lane}")
        vt.issue(f"buffer_load_dword v{vDum}, v{t0}, s[{SWS}:{SWS+3}], s{sTmp} offen", 'x')
        a(f"s_add_u32 s{sTmp}, s{sTmp}, 8192\ns_mov_b64 exec, 0xff")
        vt.issue(f"buffer_load_dword v{vDum}, v{t0}, s[{SWS}:{SWS+3}], s{sTmp} offen", 'x')
        a("s_mov_b64 exec, -1")
    XR=AF+40; AR=AF+50
    lt=LdsTrack(a)
    for k in range(12):
        vt.wait(f"b{k}")
        if k<8: assert f"a{k}" not in vt.q
        if k>=8: lt.wait(f"a{k}")
        if k in (0,3,6,9): SD({0:3,3:4,6:5,9:6}[k])
        fa=AF+20*(k%5); fb=BF+16*(k%NB)
        side=[]
        if k>=1 and k-1+NB<12: side+= [('B',k-1+NB,n) for n in range(4)]
        norder=(1,2,3,0) if k==11 else (0,1,2,3)
        si=0
        for m in range(5):
            for n in norder:
                d=DACC+4*(m*4+n)
                cc="0" if k==0 else f"v[{d}:{d+3}]"
                a(f"v_mfma_f32_16x16x32_bf16 v[{d}:{d+3}], v[{fa+4*m}:{fa+4*m+3}], v[{fb+4*n}:{fb+4*n+3}], {cc}")
                if n==norder[1] and si<len(side):
                    ldB(side[si][1],side[si][2]); si+=1
            kn=k+5
            if kn<8: ldA(kn,m)
            elif kn<12:
                lt.issue(f"ds_read_b128 v[{fa+4*m}:{fa+4*m+3}], v{vSg} offset:{m*4096+(kn-8)*1024}", f"a{kn}")
        while si<len(side):
            ldB(side[si][1],side[si][2]); si+=1
        if k==2:
            pass
        KA=opts.get('ka',9)
        if k==KA-2:
            a("s_mov_b32 exec_lo, 0xfffff\ns_mov_b32 exec_hi, 0")
            vt.issue(f"buffer_load_dword v{vTm}, v{vAf}, s[{SWS}:{SWS+3}], 0 offen sc1", 'af')
            a("s_mov_b64 exec, -1")
        if k==8:
            for m in range(5):
                vt.issue(f"buffer_load_dwordx2 v[{XR+2*m}:{XR+2*m+1}], v{vXo}, s[{SX}:{SX+3}], 0 offen offset:{32*m}", 'e')
        if k==KA:
            vt.wait('af')
            a("s_mov_b32 exec_lo, 0xfffff\ns_mov_b32 exec_hi, 0")
            poll_check(a, 1, vTm)
            a("s_mov_b64 exec, -1")
            lab3=a.newlabel('Lok'); a(f"s_cbranch_scc0 {lab3}")
            if opts.get('only')!=4: poll(a, [vAf], vTm, mask=(0xfffff,0), sleep=4)
            a.label(lab3)
            for m in range(5):
                for r in range(4):
                    a(f"s_mov_b32 s{sTmp}, {(16*m+r)*4096}")
                    vt.issue(f"buffer_load_ushort v{AR+4*m+r}, v{vAt}, s[{SWS}:{SWS+3}], s{sTmp} offen sc1", 'e')
    S(7); SD(7)
    if opts.get('clk'): a("s_mov_b32 s96, s51")
    a("s_barrier")
    for n in range(1,4):
        a(f"s_add_u32 s{sTmp}, s{sWv}, {n}\ns_and_b32 s{sTmp}, s{sTmp}, 3\ns_mul_i32 s{sTmp}, s{sTmp}, {15*1024}\ns_add_u32 s{sTmp}, s{sTmp}, {(n-1)*5*1024}")
        a(f"v_add_u32 v{vRed}, s{sTmp}, v{vL16}")
        for m in range(5):
            d=DACC+4*(m*4+n)
            a(f"ds_write_b128 v{vRed}, v[{d}:{d+3}] offset:{m*1024}")
    a("s_waitcnt lgkmcnt(0)\ns_barrier")
    a(f"s_mul_i32 s{sTmp}, s{sWv}, {15*1024}\nv_add_u32 v{vRed}, s{sTmp}, v{vL16}")
    RB=192
    for si in range(3):
        for m in range(5):
            a(f"ds_read_b128 v[{RB+(si*5+m)*4}:{RB+(si*5+m)*4+3}], v{vRed} offset:{(si*5+m)*1024}")
    SRO=52
    srd(a,SRO,P["out"],X_BYTES)
    for si in range(3):
        a(f"s_waitcnt lgkmcnt({10-5*si})")
        for m in range(5):
            for r in range(4):
                x=DACC+4*(m*4)+r; y=RB+(si*5+m)*4+r
                a(f"v_add_f32 v{x}, v{x}, v{y}")
    a("s_waitcnt vmcnt(0)")
    T=92
    for m in range(5):
        x0=XR+2*m; f0=DACC+16*m
        a(f"v_lshlrev_b32 v{T}, 16, v{x0}\nv_and_b32 v{T+1}, 0xffff0000, v{x0}\nv_lshlrev_b32 v{T+2}, 16, v{x0+1}\nv_and_b32 v{T+3}, 0xffff0000, v{x0+1}")
        for r in range(4): a(f"v_lshlrev_b32 v{AR+4*m+r}, 16, v{AR+4*m+r}")
        for r in range(4): a(f"v_add_f32 v{T+r}, v{T+r}, v{AR+4*m+r}")
        for p in range(2): a(f"v_cvt_pk_bf16_f32 v{T+4+p}, v{T+2*p}, v{T+2*p+1}")
        for p in range(2): a(f"v_cvt_pk_bf16_f32 v{T+6+p}, v{f0+2*p}, v{f0+2*p+1}")
        o=T+8+2*(m%2)
        for p in range(2):
            a(f"v_lshlrev_b32 v{T}, 16, v{T+4+p}\nv_and_b32 v{T+1}, 0xffff0000, v{T+4+p}\nv_lshlrev_b32 v{T+2}, 16, v{T+6+p}\nv_and_b32 v{T+3}, 0xffff0000, v{T+6+p}")
            a(f"v_add_f32 v{T}, v{T}, v{T+2}\nv_add_f32 v{T+1}, v{T+1}, v{T+3}\nv_cvt_pk_bf16_f32 v{o+p}, v{T}, v{T+1}")
        a(f"buffer_store_dwordx2 v[{o}:{o+1}], v{vXo}, s[{SRO}:{SRO+3}], 0 offen offset:{32*m}"+{0:"",1:" sc1",2:" nt",3:" sc0 sc1"}[opts.get('ost',0)])
    lab4=a.newlabel('Lnn')
    a(f"s_cmp_lg_u32 s2, 0\ns_cbranch_scc1 {lab4}\ns_cmp_lg_u32 s{sWv}, 0\ns_cbranch_scc1 {lab4}")
    for i in range(4): a(f"v_add_u32 v{100+i}, {64*i}, v{lane}\nv_lshlrev_b32 v{100+i}, 8, v{100+i}\nv_add_u32 v{100+i}, {FL_H}, v{100+i}")
    for i in range(3): a(f"v_add_u32 v{104+i}, {64*i}, v{lane}\nv_min_u32 v{104+i}, 159, v{104+i}\nv_lshlrev_b32 v{104+i}, 6, v{104+i}\nv_add_u32 v{104+i}, {FL_A}, v{104+i}")
    if opts.get('only')!=4: poll(a, [100,101,102,103,104,105,106], 108)
    a(f"s_mov_b32 s{sTmp}, {WS_NONCE}")
    flag_store(a, sTmp, t0)
    a.label(lab4)
```

```python
from f_common import *
from f_ln8 import *
TBL=18432
ROW=288
KN_OFF=[0, 32448, 36864, 69312]
U_OFF=4416
R_OFF=[U_OFF+18432, 41280, 41280+8448, 41280+2*8448]
RC=2112
LOG2E=0x3fb8aa3b
INV2PI=0x3e22f983

USEPK=0
def cmul(a, d, x, w):
    if USEPK:
        a(f"v_pk_mul_f32 v[{d}:{d+1}], v[{x}:{x+1}], v[{w}:{w+1}] op_sel:[0,0] op_sel_hi:[0,1]")
        a(f"v_pk_fma_f32 v[{d}:{d+1}], v[{x}:{x+1}], v[{w}:{w+1}], v[{d}:{d+1}] op_sel:[1,1,0] op_sel_hi:[1,0,1] neg_lo:[0,1,0]")
    else:
        a(f"v_mul_f32 v{d}, v{x}, v{w}")
        a(f"v_mul_f32 v{d+1}, v{x}, v{w+1}")
        a(f"v_fma_f32 v{d}, -v{x+1}, v{w+1}, v{d}")
        a(f"v_fma_f32 v{d+1}, v{x+1}, v{w}, v{d+1}")

def emit_ssm(a, S_, opts, st=' sc1', ld=' sc1', sb=64):
    if opts.get('prio'): a(f"s_setprio {opts.get('p0',3)}")
    st_=S_; sQ=46; sPtrDt=P['logdt']; sPtrD=P['Dskip']
    SP=dict(logA=48,Aim=52,Cre=56,Cim=60)
    a(f's_sub_u32 s{sQ}, s2, 256')

    S=st_ if st_ else (lambda i: None)
    sWv=sb; sCh=sb+1; sTmp=sb+2; sTmp2=sb+3; sDt=sb+4; sD=sb+5; sTb=sb+6; sCnt=sb+7; sPo=sb+8; sKn=sb+9; sR=sb+10; sMask=sb+12; sBf=sb+14
    lane=1; t0=2; t1=3; vP=238; vTw=5; vTrA=6; vTrB=7
    a(f"v_and_b32 v{lane}, 63, v0")
    a(f"v_lshrrev_b32 v{t0}, 6, v0")
    a(f"v_readfirstlane_b32 s{sWv}, v{t0}")
    a(f"s_lshl_b32 s{sCh}, s{sQ}, 2")
    a(f"s_add_u32 s{sCh}, s{sCh}, s{sWv}")
    if opts.get('fakessm'):
        nonce_load(a)
        a("s_waitcnt vmcnt(0)")
        nonce_ready(a)
        a(f"s_lshl_b32 s{sTmp}, s{sQ}, 6\ns_add_u32 s{sTmp}, s{sTmp}, {FL_A}")
        flag_store(a, sTmp, 2)
        S(7)
        return
    if opts.get('lateptr',1):
        ptr_ready(a)
        S(0)
    for n_ in SP: srd(a,SP[n_],P[n_],D*N*2)
    LN2=opts.get('ln2',0)
    sLam=47
    if LN2:
        a(f"s_and_b32 s{sLam}, s2, 7\ns_lshl_b32 s{sLam}, s{sLam}, 5\ns_lshr_b32 s{sTmp}, s{sQ}, 3\ns_add_u32 s{sLam}, s{sLam}, s{sTmp}")
        ln8_loads(a, sLam, 64, 80)
    a(f"s_lshr_b32 s{sTmp}, s{sCh}, 1\ns_lshl_b32 s{sTmp}, s{sTmp}, 2")
    a(f"s_load_dword s{sDt}, s[{sPtrDt}:{sPtrDt+1}], s{sTmp}")
    a(f"s_load_dword s{sD}, s[{sPtrD}:{sPtrD+1}], s{sTmp}")
    PR=240
    a(f"s_mul_i32 s{sPo}, s{sCh}, 384")
    a(f"v_lshlrev_b32 v{vP}, 1, v{lane}")
    for p in range(3):
        for i,nm in enumerate(("logA","Aim","Cre","Cim")):
            a(f"buffer_load_ushort v{PR+4*p+i}, v{vP}, s[{SP[nm]}:{SP[nm]+3}], s{sPo} offen offset:{128*p}")
    nonce_load(a)
    NT=1+(k_touch(a, sWv, lane, 24, 235) if opts.get('ktouch',1)==1 else 0)
    if opts.get('tlbw'): NT+=tlb_warm(a, lane, 233, 20)
    if opts.get('prio'): a(f"s_setprio {opts.get('sprio',1)}")
    if LN2:
        a(f"s_waitcnt vmcnt({12+NT})")
        ln8_compute(a, sLam, sWv, 64, 80, 0)
        a("s_waitcnt lgkmcnt(0)\ns_barrier")
        NT+=4
    a(f"s_mul_i32 s{sTb}, s{sWv}, {TBL}")
    vTw1=8
    a(f"v_mul_u32_u24 v{vTw}, {ROW}, v{lane}")
    a(f"v_add_u32 v{vTw}, s{sTb}, v{vTw}")
    a(f"v_bfe_u32 v{t0}, v{lane}, 2, 1\nv_lshlrev_b32 v{t0}, 4, v{t0}")
    a(f"v_sub_u32 v{vTw1}, v{vTw}, v{t0}\nv_add_u32 v{vTw}, v{vTw}, v{t0}")
    a(f"v_bfe_u32 v{t0}, v{lane}, 4, 1")
    a(f"v_lshlrev_b32 v{t0}, 2, v{t0}")
    a(f"v_bfe_u32 v{t1}, v{lane}, 2, 2")
    a(f"v_add_u32 v{t0}, v{t0}, v{t1}")
    a(f"v_mul_u32_u24 v{vTrA}, {ROW}, v{t0}")
    a(f"v_and_b32 v{t1}, 1, v{lane}")
    a(f"v_lshl_add_u32 v{vTrA}, v{t1}, 3, v{vTrA}")
    a(f"v_bfe_u32 v{t1}, v{lane}, 1, 1\nv_bfe_u32 v{t0}, v{lane}, 4, 1\nv_xor_b32 v{t1}, v{t1}, v{t0}")
    a(f"v_lshl_add_u32 v{vTrA}, v{t1}, 4, v{vTrA}")
    a(f"v_add_u32 v{vTrA}, s{sTb}, v{vTrA}")
    a(f"v_lshrrev_b32 v{t0}, 5, v{lane}")
    a(f"v_mul_u32_u24 v{t1}, 32, v{t0}")
    a(f"v_add_u32 v{vTrB}, v{vTrA}, v{t1}")
    a(f"v_add_u32 v{vTrB}, 192, v{vTrB}")
    a(f"v_mul_u32_u24 v{t1}, 96, v{t0}")
    a(f"v_add_u32 v{vTrA}, v{vTrA}, v{t1}")
    vDt=20; vDs=21
    a("s_waitcnt lgkmcnt(0)")
    a(f"s_and_b32 s{sTmp}, s{sCh}, 1\ns_lshl_b32 s{sTmp}, s{sTmp}, 4")
    a(f"s_lshr_b32 s{sDt}, s{sDt}, s{sTmp}\ns_lshl_b32 s{sDt}, s{sDt}, 16")
    a(f"s_lshr_b32 s{sD}, s{sD}, s{sTmp}\ns_lshl_b32 s{sD}, s{sD}, 16")
    a(f"v_mov_b32 v{vDt}, s{sDt}")
    a(f"v_mul_f32 v{vDt}, {hex(LOG2E)}, v{vDt}")
    a(f"v_exp_f32 v{vDt}, v{vDt}")
    a(f"v_cvt_pk_bf16_f32 v{vDt}, v{vDt}, v{vDt}")
    a(f"v_and_b32 v{vDt}, 0xffff0000, v{vDt}")
    KACC=24
    for r in range(12): a(f"v_mov_b32 v{KACC+r}, 0")
    CUR=36
    AR=40; TH=41; Z1=42; Z8=44; Z128=46; M=48; TT=49
    H=52
    S1=84
    S2=100
    S3=116
    Lr=136
    PK=172
    FR=204
    a(f"s_waitcnt vmcnt({NT})")
    S(1)
    if opts.get('ktouch',1)==2: k_touch(a, sWv, lane, 24, 235, g0=2)
    HYB=(opts.get('kpk',0)==2)
    a(f"s_mov_b32 s{sCnt}, {2 if HYB else opts.get('kgrep',3)}")
    def kpass(usepk):
        global USEPK
        USEPK=usepk
        for i in range(4): a(f"v_lshlrev_b32 v{CUR+i}, 16, v{PR+i}")
        for i in range(8): a(f"v_mov_b32 v{PR+i}, v{PR+4+i}")
        a(f"v_mul_f32 v{AR}, {hex(LOG2E)}, v{CUR}")
        a(f"v_exp_f32 v{AR}, v{AR}")
        a(f"v_cvt_pk_bf16_f32 v{AR}, v{AR}, v{AR}")
        a(f"v_and_b32 v{AR}, 0xffff0000, v{AR}")
        a(f"v_mul_f32 v{AR}, v{AR}, v{vDt}")
        a(f"v_mul_f32 v{AR}, {hex(LOG2E|0x80000000)}, v{AR}")
        a(f"v_mul_f32 v{TH}, v{CUR+1}, v{vDt}")
        a(f"v_mul_f32 v{TH}, {hex(INV2PI)}, v{TH}")
        def zpow(dst, mult):
            if mult==1:
                a(f"v_exp_f32 v{M}, v{AR}")
                a(f"v_fract_f32 v{TT}, v{TH}")
            else:
                a(f"v_mul_f32 v{M}, {float(mult)}, v{AR}" if mult in (2,4) else f"v_mul_f32 v{M}, {hex(0x41000000)}, v{AR}")
                a(f"v_exp_f32 v{M}, v{M}")
                a(f"v_mul_f32 v{TT}, {hex(0x41000000)}, v{TH}")
                a(f"v_fract_f32 v{TT}, v{TT}")
            a(f"v_cos_f32 v{dst}, v{TT}")
            a(f"v_sin_f32 v{dst+1}, v{TT}")
            a(f"v_mul_f32 v{dst}, v{M}, v{dst}")
            a(f"v_mul_f32 v{dst+1}, v{M}, v{dst+1}")
        zpow(Z1,1); zpow(Z8,8)
        a(f"v_add_f32 v{M}, v{vDt}, v{vDt}")
        a(f"v_mul_f32 v{H}, v{CUR+2}, v{M}")
        a(f"v_mul_f32 v{H+1}, v{CUR+3}, v{M}")
        nchunk=[0]
        def wr(vals, im, neg, c):
            base=PK+4*(nchunk[0]%8); nchunk[0]+=1
            cnt=len(vals)//2
            for p in range(cnt):
                x=vals[2*p]+im; y=vals[2*p+1]+im
                if neg: a(f"v_cvt_pk_bf16_f32 v{base+p}, -v{x}, -v{y}")
                else: a(f"v_cvt_pk_bf16_f32 v{base+p}, v{x}, v{y}")
            reg=vTw if c%2==0 else vTw1
            if cnt==4: a(f"ds_write_b128 v{reg}, v[{base}:{base+3}] offset:{16*c}")
            else: a(f"ds_write_b32 v{reg}, v{base} offset:{16*c}")
        def wrH(vals, i):
            wr(vals,0,False,i); wr(vals,1,True,6+i)
        a(f"v_mov_b32 v{Lr}, 1.0\nv_mov_b32 v{Lr+1}, 0")
        a(f"v_mov_b32 v{Lr+2}, v{Z8}\nv_mov_b32 v{Lr+3}, v{Z8+1}")
        for j in range(2,17):
            cmul(a, Lr+2*j, Lr+2*(j-1), Z8)
            if j<=8:
                r=j-1
                cmul(a, H+2*r, H+2*(r-1), Z1)
            if j==8:
                L0=[Lr+2*i for i in range(8)]
                wr(L0,0,False,12); wr(L0,1,False,14)
            if j==10: wrH([H+2*i for i in range(8)],0)
        L1=[Lr+2*i for i in range(8,16)]
        z128=Lr+32
        for r in range(8):
            cmul(a, H+2*(8+r), H+2*r, z128)
            if r==3: wr(L1,0,False,13)
            if r==7: wr(L1,1,False,15)
        for r in range(4): cmul(a, S1+2*r, H+2*(8+2*r), z128)
        wrH([H+2*i for i in range(8,16)],1)
        for r in range(4): cmul(a, S1+2*(4+r), S1+2*r, z128)
        cmul(a, S2, S1+8, z128); cmul(a, S2+2, S1+8+4, z128)
        wrH([S1+2*i for i in range(8)],2)
        for i in range(1,4):
            for r in range(2): cmul(a, S2+4*i+2*r, S2+4*(i-1)+2*r, z128)
        cmul(a, S3, S2+12, z128)
        for i in range(1,9):
            cmul(a, S3+2*i, S3+2*(i-1), z128)
            if i==2: wrH([S2+2*i_ for i_ in range(8)],3)
        a(f"v_mov_b32 v{S3+18}, 0\nv_mov_b32 v{S3+19}, 0")
        wrH([S3+2*i for i in range(8)],4)
        wrH([S3+16,S3+18],5)
        a("s_waitcnt lgkmcnt(0)")
        FB=52
        for s_ in range(4):
            fb=FB+16*s_
            for q in range(2):
                a(f"ds_read_b64_tr_b16 v[{fb+12+2*q}:{fb+12+2*q+1}], v{vTrB} offset:{(16*s_+8*q)*ROW}")
            for t in range(3):
                for q in range(2):
                    a(f"ds_read_b64_tr_b16 v[{fb+4*t+2*q}:{fb+4*t+2*q+1}], v{vTrA} offset:{(16*s_+8*q)*ROW+32*t}")
        for s_ in range(4):
            fb=FB+16*s_
            a(f"s_waitcnt lgkmcnt({min(15,8*(3-s_))})")
            for t in range(3):
                a(f"v_mfma_f32_16x16x32_bf16 v[{KACC+4*t}:{KACC+4*t+3}], v[{fb+4*t}:{fb+4*t+3}], v[{fb+12}:{fb+15}], v[{KACC+4*t}:{KACC+4*t+3}]")
    if opts.get('nw'):
        labskip=a.newlabel('Lskip')
        a(f"s_cmp_ge_u32 s{sWv}, {opts['nw']}\ns_cbranch_scc1 {labskip}")
    lab=a.newlabel('Lkg'); a.label(lab)
    KG0=len(a.ins)
    kpass(bool(opts.get('kpk',0)))
    if LN2:
        labf=a.newlabel('Lnf')
        a(f"s_cmp_lg_u32 s{sCnt}, 3\ns_cbranch_scc1 {labf}")
        a("s_waitcnt vmcnt(0)\ns_barrier")
        nonce_ready(a)
        a(f"s_lshl_b32 s{sTmp}, s{sLam}, 6\ns_add_u32 s{sTmp}, s{sTmp}, {FL_LN}")
        flag_store(a, sTmp, 170)
        a.label(labf)
    if any(opts.get(k_) for k_ in ('kg_nods','kg_nomfma','kg_novalu','kg_nocvt','kg_nowr','kg_nord','kg_notrans','kg_nowait')):
        body=a.ins[KG0:]; keep=[]
        for x in body:
            if opts.get('kg_nods') and x.kind=='ds': continue
            if opts.get('kg_nomfma') and x.kind=='mfma': continue
            if opts.get('kg_novalu') and x.kind in ('valu','trans'): continue
            if opts.get('kg_nocvt') and x.op.startswith('v_cvt_pk'): continue
            if opts.get('kg_nowr') and x.op.startswith('ds_write'): continue
            if opts.get('kg_nord') and x.op.startswith('ds_read'): continue
            if opts.get('kg_notrans') and x.kind=='trans': continue
            if opts.get('kg_nowait') and x.op=='s_waitcnt': continue
            keep.append(x)
        a.ins=a.ins[:KG0]+keep
    a(f"s_sub_u32 s{sCnt}, s{sCnt}, 1")
    a(f"s_cmp_lg_u32 s{sCnt}, 0")
    a("s_nop 4")
    a(f"s_cbranch_scc1 {lab}")
    if HYB: kpass(False)
    if opts.get('nw'): a.label(labskip)
    S(2)
    if opts.get('prio') and 'xprio' in opts: a(f"s_setprio {opts['xprio']}")
    if opts.get('kgexit'): return
    for w in range(4):
        pass
    a(f"s_mov_b32 s{sKn}, {KN_OFF[0]}\ns_mov_b32 s{sR}, {R_OFF[0]}")
    for w in range(1,4):
        a(f"s_cmp_eq_u32 s{sWv}, {w}\ns_cselect_b32 s{sKn}, {KN_OFF[w]}, s{sKn}\ns_cselect_b32 s{sR}, {R_OFF[w]}, s{sR}")
    vJ=36; vG=37; vK=38; vK2=39; B=40
    a(f"v_and_b32 v{vJ}, 15, v{lane}")
    a(f"v_lshrrev_b32 v{vG}, 4, v{lane}")
    a(f"v_lshlrev_b32 v{vK}, 2, v{lane}")
    a(f"v_add_u32 v{vK}, s{sKn}, v{vK}")
    a(f"v_mov_b32 v{B}, 0")
    a(f"s_mov_b64 s[{sMask}:{sMask+1}], 0xfff")
    a(f"s_mov_b64 exec, s[{sMask}:{sMask+1}]")
    a(f"ds_write_b32 v{vK}, v{B}")
    a(f"s_mov_b64 exec, -1")
    a(f"v_lshlrev_b32 v{vK}, 4, v{vJ}")
    a(f"v_add_u32 v{vK}, s{sKn}, v{vK}")
    a(f"v_add_u32 v{vK}, 48, v{vK}")
    T2=KACC+8
    a(f"v_lshlrev_b32 v{vK2}, 10, v{vG}")
    a(f"v_add_u32 v{vK2}, v{vK}, v{vK2}")
    a(f"v_add_u32 v{vK2}, 2048, v{vK2}")
    a(f"v_and_b32 v{t0}, 1, v{vJ}")
    a(f"v_lshlrev_b32 v{t0}, 3, v{t0}")
    a(f"v_sub_u32 v{t1}, v{vK2}, v{t0}")
    for r in range(4):
        a(f"v_cvt_pk_bf16_f32 v{B+2*r}, v{T2+r}, v{T2+r}")
        a(f"v_mov_b32 v{B+2*r+1}, v{B+2*r}")
    def seg3(r):
        a(f"ds_write_b64 v{vK2}, v[{B+2*r}:{B+2*r+1}] offset:{r*256}")
    a(f"v_subrev_u32 v{vK2}, 8, v{vK2}")
    for r in range(4):
        a(f"s_mov_b64 exec, {hex(0x1ffffffff) if r==0 else hex(0xffffffff)}" if False else f"s_mov_b32 exec_lo, -1\ns_mov_b32 exec_hi, {1 if r==0 else 0}")
        a(f"ds_write_b64 v{vK2}, v[{B+2*r}:{B+2*r+1}] offset:{r*256}")
        a(f"ds_write_b64 v{vK2}, v[{B+2*r}:{B+2*r+1}] offset:{r*256+8}")
    for r in range(4):
        a(f"s_mov_b32 exec_lo, -1\ns_mov_b32 exec_hi, {1 if r==0 else 0}")
        a(f"ds_write_b16 v{t1}, v{B+2*r} offset:{r*256+8}")
    a("s_mov_b64 exec, -1")
    T1=KACC+4
    a(f"v_subrev_u32 v{t0}, 2, v{vG}")
    a(f"v_lshlrev_b32 v{t0}, 9, v{t0}")
    a(f"v_add_u32 v{vK2}, v{vK}, v{t0}")
    a(f"v_add_u32 v{vK2}, {1024-4}, v{vK2}")
    a(f"s_mov_b32 exec_lo, 0\ns_mov_b32 exec_hi, -1")
    for b in range(2):
        v0_=T1+2*b; v1_=T1+2*b+1
        a(f"v_cvt_pk_bf16_f32 v{B}, v{v0_}, v{v0_}")
        a(f"v_cvt_pk_bf16_f32 v{B+1}, v{v0_}, v{v1_}")
        a(f"v_cvt_pk_bf16_f32 v{B+2}, v{v1_}, v{v1_}")
        a(f"ds_write_b32 v{vK2}, v{B} offset:{b*256}")
        a(f"ds_write_b64 v{vK2}, v[{B}:{B+1}] offset:{b*256+4}")
        a(f"ds_write_b32 v{vK2}, v{B+2} offset:{b*256+12}")
        a("s_nop 1")
    a(f"s_mov_b32 exec_lo, -1\ns_mov_b32 exec_hi, 0")
    a(f"v_lshlrev_b32 v{t0}, 8, v{vG}")
    a(f"v_add_u32 v{vK2}, v{vK}, v{t0}")
    a(f"v_add_u32 v{vK2}, {512-2}, v{vK2}")
    a(f"v_cvt_pk_bf16_f32 v{B}, v{T1}, v{T1}")
    a(f"v_cvt_pk_bf16_f32 v{B+1}, v{T1+1}, v{T1+2}")
    a(f"v_cvt_pk_bf16_f32 v{B+2}, v{T1+2}, v{T1+2}")
    a(f"v_cvt_pk_bf16_f32 v{B+3}, v{T1+3}, v{T1+3}")
    a(f"ds_write_b16 v{vK2}, v{B}")
    a(f"v_add_u32 v{vK2}, 2, v{vK2}")
    a(f"ds_write_b64 v{vK2}, v[{B}:{B+1}]")
    a(f"ds_write_b32 v{vK2}, v{B+2} offset:8")
    a(f"ds_write_b16 v{vK2}, v{B+3} offset:12")
    a("s_mov_b64 exec, -1")
    a(f"v_lshrrev_b32 v{t0}, 1, v{vG}")
    a(f"v_lshlrev_b32 v{t0}, 8, v{t0}")
    a(f"v_add_u32 v{vK2}, v{vK}, v{t0}")
    a(f"v_and_b32 v{t0}, 1, v{vG}")
    a(f"v_lshl_add_u32 v{vK2}, v{t0}, 3, v{vK2}")
    a(f"v_cvt_pk_bf16_f32 v{B+4}, v{KACC}, v{KACC+1}")
    a(f"v_cvt_pk_bf16_f32 v{B+5}, v{KACC+2}, v{KACC+3}")
    a(f"ds_write_b64 v{vK2}, v[{B+4}:{B+5}]")
    a("s_waitcnt lgkmcnt(0)")
    a("s_barrier")
    S(3)
    vU=36
    a(f"v_lshlrev_b32 v{t0}, 3, v0")
    a(f"v_mov_b32 v{B}, 0\nv_mov_b32 v{B+1}, 0")
    a(f"ds_write_b64 v{t0}, v[{B}:{B+1}] offset:{U_OFF}")
    CACC=24
    vAa=56; vBa=[57,58,59,60]; vRw=61; vKr=62
    AF=64
    BF=96
    vb_=184; vg_=185
    a(f"v_and_b32 v{vb_}, 15, v{lane}")
    a(f"v_lshrrev_b32 v{vg_}, 4, v{lane}")
    a(f"v_and_b32 v{t0}, 3, v{vb_}")
    a(f"v_mul_u32_u24 v{vAa}, {RC}, v{t0}")
    a(f"v_lshrrev_b32 v{t0}, 2, v{vb_}")
    a(f"v_lshlrev_b32 v{t0}, 3, v{t0}")
    a(f"v_sub_u32 v{vAa}, v{vAa}, v{t0}")
    a(f"v_lshrrev_b32 v{t0}, 1, v{vg_}")
    a(f"v_lshlrev_b32 v{t0}, 5, v{t0}")
    a(f"v_sub_u32 v{vAa}, v{vAa}, v{t0}")
    a(f"v_and_b32 v{t0}, 1, v{vg_}")
    a(f"v_lshl_add_u32 v{vAa}, v{t0}, 4, v{vAa}")
    a(f"v_add_u32 v{vAa}, s{sR}, v{vAa}")
    a(f"v_lshlrev_b32 v{t0}, 1, v{vb_}")
    a(f"v_add_u32 v{t0}, 32, v{t0}")
    a(f"v_and_b32 v{t1}, 1, v{vg_}")
    a(f"v_add_u32 v{t0}, v{t0}, v{t1}")
    a(f"v_and_b32 v{t1}, 2, v{vg_}")
    a(f"v_sub_u32 v{t0}, v{t0}, v{t1}")
    for rm in range(4):
        a(f"v_lshrrev_b32 v{t1}, 2, v{t0}")
        a(f"v_subrev_u32 v{t1}, {rm}, v{t1}")
        a(f"v_and_b32 v{t1}, 3, v{t1}")
        a(f"v_xor_b32 v{t1}, s{sWv}, v{t1}")
        a(f"v_lshlrev_b32 v{t1}, 4, v{t1}")
        a(f"v_lshl_add_u32 v{vBa[rm]}, v{t0}, 6, v{t1}")
        a(f"v_add_u32 v{vBa[rm]}, {U_OFF-256*7}, v{vBa[rm]}")
    a(f"v_lshlrev_b32 v{vRw}, 4, v{lane}")
    a(f"v_add_u32 v{vRw}, s{sR}, v{vRw}")
    vL16=63
    a(f"v_lshlrev_b32 v{vL16}, 4, v{lane}")
    a(f"s_mov_b32 s{sBf}, 0xffff")
    RB=160
    def build_R(ps):
        M0=127 if ps==0 else 255
        for rd in range(3):
            if rd==2:
                a(f"s_mov_b32 exec_lo, 3\ns_mov_b32 exec_hi, 0")
            off=40+16*(M0-64*rd)
            a(f"s_add_u32 s{sTmp}, s{sKn}, {off}")
            a(f"v_sub_u32 v{vKr}, s{sTmp}, v{vL16}")
            p=RB
            a(f"ds_read_b64 v[{p}:{p+1}], v{vKr}")
            a(f"ds_read_b128 v[{p+2}:{p+5}], v{vKr} offset:8")
            a("s_waitcnt lgkmcnt(0)")
            o=RB+8
            for mu_ in range(4):
                a(f"v_bfi_b32 v{o+mu_}, s{sBf}, v{p+4-mu_}, v{p+3-mu_}")
                a(f"v_alignbit_b32 v{o+4+mu_}, v{p+4-mu_}, v{p+4-mu_}, 16")
                a(f"v_bfi_b32 v{o+8+mu_}, s{sBf}, v{p+5-mu_}, v{p+4-mu_}")
                a(f"v_alignbit_b32 v{o+12+mu_}, v{p+5-mu_}, v{p+5-mu_}, 16")
            for sg in range(4):
                a(f"ds_write_b128 v{vRw}, v[{o+4*sg}:{o+4*sg+3}] offset:{sg*RC+1024*rd}")
            if rd==2: a("s_mov_b64 exec, -1")
        a("s_waitcnt lgkmcnt(0)")
    def conv_pass(ps):
        nB=8-4*ps
        def rdA(rho,setp):
            out=[]
            for il in range(4):
                kl=rho+8*il
                for hf in range(2):
                    r=AF+16*setp+4*il+2*hf
                    out.append(f"ds_read_b64 v[{r}:{r+1}], v{vAa} offset:{2040-64*kl+8*hf}")
            return out
        def rdB(rho,setp):
            out=[]
            for tau in range(nB):
                r=BF+32*setp+4*tau
                out.append(f"ds_read_b128 v[{r}:{r+3}], v{vBa[rho%4]} offset:{2048*tau+256*(7-rho)}")
            return out
        for x in rdA(0,0)+rdB(0,0): a(x)
        for rho in range(8):
            sp=rho%2
            a("s_waitcnt lgkmcnt(0)")
            nxt=(rdA(rho+1,1-sp)+rdB(rho+1,1-sp)) if rho<7 else []
            ms=[]
            for il in range(4):
                i=il+4*ps
                for tau in range(nB):
                    t=i+tau
                    if t>7: continue
                    ms.append((t,il,tau))
            ni=0
            for n,(t,il,tau) in enumerate(ms):
                d=CACC+4*t; A_=AF+16*sp+4*il; B_=BF+32*sp+4*tau
                cc="0" if (ps==0 and rho==0 and il==0) else f"v[{d}:{d+3}]"
                a(f"v_mfma_f32_16x16x32_bf16 v[{d}:{d+3}], v[{A_}:{A_+3}], v[{B_}:{B_+3}], {cc}")
                k=-(-len(nxt)//len(ms)) if n<len(ms) else 0
                for _ in range(k):
                    if ni<len(nxt): a(nxt[ni]); ni+=1
    build_R(0)
    a("s_waitcnt vmcnt(0)")
    if not LN2: nonce_ready(a)
    if opts.get('prio') and 'xprio' not in opts: a(f"s_setprio {opts.get('cprio',0)}")
    if opts.get('cnt',0) and not (opts.get('ln8') or LN2):
        lw0=a.newlabel('Lw0')
        a(f"s_cmp_lg_u32 s{sWv}, 0\ns_cbranch_scc1 {lw0}")
        dbg_srd(a, 24)
        cnt_poll(a, 24, 0, 128, B+4, sleep=opts.get('slpl',16))
        a.label(lw0)
    else:
        if opts.get('ln8') or LN2:
            a(f"v_lshlrev_b32 v{B+4}, 6, v0\nv_add_u32 v{B+4}, {FL_LN}, v{B+4}")
        else:
            a(f"v_and_b32 v{B+4}, 31, v0\ns_lshl_b32 s{sTmp}, s{sWv}, 5\nv_add_u32 v{B+4}, s{sTmp}, v{B+4}\nv_lshlrev_b32 v{B+4}, 6, v{B+4}\nv_add_u32 v{B+4}, {FL_LN}, v{B+4}")
        poll(a, [B+4], B+6, mask=(0xffffffff,0) if not (opts.get('ln8') or LN2) else None, sleep=opts.get('slpl',32))
    a("s_barrier")
    a(f"v_lshrrev_b32 v{t0}, 2, v{lane}")
    a(f"v_lshlrev_b32 v{vU}, 7, v{t0}")
    a(f"v_bfe_u32 v{t0}, v{lane}, 4, 2")
    a(f"v_and_b32 v{t1}, 3, v{lane}")
    a(f"v_xor_b32 v{t0}, v{t0}, v{t1}")
    a(f"v_lshl_add_u32 v{vU}, v{t0}, 4, v{vU}")
    a(f"s_lshr_b32 s{sTmp}, s{sQ}, 1\ns_lshl_b32 s{sTmp}, s{sTmp}, 15")
    a(f"s_and_b32 s{sTmp2}, s{sQ}, 1\ns_lshl_b32 s{sTmp2}, s{sTmp2}, 6\ns_add_u32 s{sTmp}, s{sTmp}, s{sTmp2}")
    a(f"s_lshl_b32 s{sTmp2}, s{sWv}, 13\ns_add_u32 s{sTmp}, s{sTmp}, s{sTmp2}")
    if WS_XNT: a(f"s_add_u32 s{sTmp}, s{sTmp}, {WS_XNT}")
    a(f"s_lshl_b32 s{sTmp2}, s{sWv}, 12\ns_add_u32 s{sTmp2}, s{sTmp2}, {U_OFF+2048}")
    for i in range(4):
        a(f"s_add_u32 m0, s{sTmp2}, {i*1024}")
        a(f"buffer_load_dwordx4 v{vU}, s[{SWS}:{SWS+3}], s{sTmp} offen{ld} lds")
        if i<3: a(f"s_add_u32 s{sTmp}, s{sTmp}, 2048")
    a("s_waitcnt vmcnt(0) lgkmcnt(0)")
    a("s_barrier")
    if opts.get('gate',1):
        a(f"s_lshl_b32 s{sTmp}, s{sQ}, 6\ns_add_u32 s{sTmp}, s{sTmp}, {FL_UD}\nv_mov_b32 v{RB}, s{sTmp}")
        poll(a, [RB], RB+1, mask=(1,0), sleep=opts.get('slp',8))
    if opts.get('prio') and 'xprio' in opts: a(f"s_setprio {opts.get('cprio',0)}")
    S(4)
    if opts.get('nw'):
        labskip2=a.newlabel('Lskip')
        a(f"s_cmp_ge_u32 s{sWv}, {opts['nw']}\ns_cbranch_scc1 {labskip2}")
    conv_pass(0)
    S(5)
    build_R(1)
    conv_pass(1)
    if opts.get('prio'): a(f"s_setprio {opts.get('eprio',3)}")
    if opts.get('nw'): a.label(labskip2)
    S(6)
    vE=186; vS=187; vDp=188
    a(f"v_and_b32 v{t0}, 15, v{lane}")
    a(f"v_lshlrev_b32 v{t0}, 1, v{t0}")
    a(f"v_lshrrev_b32 v{t1}, 5, v{lane}")
    a(f"v_add_u32 v{t0}, v{t0}, v{t1}")
    a(f"v_bfe_u32 v{t1}, v{t0}, 2, 2")
    a(f"v_xor_b32 v{t1}, s{sWv}, v{t1}")
    a(f"v_lshlrev_b32 v{t1}, 4, v{t1}")
    a(f"v_lshl_add_u32 v{vE}, v{t0}, 6, v{t1}")
    a(f"v_bfe_u32 v{t1}, v{lane}, 4, 1")
    a(f"v_lshl_add_u32 v{vE}, v{t1}, 3, v{vE}")
    a(f"v_add_u32 v{vE}, {U_OFF+2048}, v{vE}")
    a(f"v_and_b32 v{t0}, 15, v{lane}")
    a(f"v_lshlrev_b32 v{vS}, 5, v{t0}")
    a(f"v_lshrrev_b32 v{t1}, 4, v{lane}")
    a(f"v_lshl_add_u32 v{vS}, v{t1}, 3, v{vS}")
    a(f"s_lshl_b32 s{sTmp}, s{sCh}, 12\ns_add_u32 s{sTmp}, s{sTmp}, {WS_AT}")
    a(f"v_add_u32 v{vS}, s{sTmp}, v{vS}")
    a(f"v_mov_b32 v{vDp}, s{sD}\nv_mov_b32 v{vDp+1}, s{sD}")
    UB=64
    for t in range(8):
        a(f"ds_read_b64 v[{UB+2*t}:{UB+2*t+1}], v{vE} offset:{2048*t}")
    T=96
    for t in range(8):
        a(f"s_waitcnt lgkmcnt({7-t})")
        d=CACC+4*t; u=UB+2*t; o=T+16+2*(t%2)
        a(f"v_lshlrev_b32 v{T}, 16, v{u}\nv_and_b32 v{T+1}, 0xffff0000, v{u}")
        a(f"v_lshlrev_b32 v{T+2}, 16, v{u+1}\nv_and_b32 v{T+3}, 0xffff0000, v{u+1}")
        for p in range(4): a(f"v_mul_f32 v{T+p}, v{T+p}, v{vDp}")
        for p in range(2): a(f"v_cvt_pk_bf16_f32 v{T+4+p}, v{T+2*p}, v{T+2*p+1}")
        for p in range(2): a(f"v_cvt_pk_bf16_f32 v{T+6+p}, v{d+2*p}, v{d+2*p+1}")
        for p in range(2):
            a(f"v_lshlrev_b32 v{T}, 16, v{T+4+p}\nv_and_b32 v{T+1}, 0xffff0000, v{T+4+p}")
            a(f"v_lshlrev_b32 v{T+2}, 16, v{T+6+p}\nv_and_b32 v{T+3}, 0xffff0000, v{T+6+p}")
            a(f"v_add_f32 v{T}, v{T}, v{T+2}\nv_add_f32 v{T+1}, v{T+1}, v{T+3}")
            a(f"v_cvt_pk_bf16_f32 v{o+p}, v{T}, v{T+1}")
        a(f"buffer_store_dwordx2 v[{o}:{o+1}], v{vS}, s[{SWS}:{SWS+3}], 0 offen offset:{512*t}{st}")
    a("s_waitcnt vmcnt(0)\ns_barrier")
    a(f"s_lshl_b32 s{sTmp}, s{sQ}, 6\ns_add_u32 s{sTmp}, s{sTmp}, {FL_A}")
    flag_store(a, sTmp, 2)
    S(7)
```

```python
from f_common import *
from f_ln16 import *
from f_ln8 import *
def pack_issue(a, sUnit, sLds, SW2, sb, ga, t0, t1):
    lane=1
    sS=sb; sLg=sb+1; sT=sb+2; sO=sb+3
    a(f"s_mul_i32 s{sS}, s{sUnit}, 6554\ns_lshr_b32 s{sS}, s{sS}, 16")
    a(f"s_mul_i32 s{sT}, s{sS}, 10\ns_sub_u32 s{sLg}, s{sUnit}, s{sT}")
    a(f"v_lshrrev_b32 v{t0}, 3, v{lane}\nv_mul_u32_u24 v{ga}, 1280, v{t0}\nv_and_b32 v{t1}, 7, v{lane}\nv_lshl_add_u32 v{ga}, v{t1}, 4, v{ga}")
    a(f"s_mul_i32 s{sT}, s{sS}, {32*1280}\ns_lshl_b32 s{sO}, s{sLg}, 7\ns_add_u32 s{sT}, s{sT}, s{sO}")
    for i in range(4):
        a(f"s_add_u32 m0, s{sLds}, {i*1024}\ns_nop 0")
        a(f"buffer_load_dwordx4 v{ga}, s[{SW2}:{SW2+3}], s{sT} offen lds")
        if i<3: a(f"s_add_u32 s{sT}, s{sT}, {8*1280}")
def pack_finish(a, sLds, sb, t0, t1, ra, so, d):
    lane=1
    sS=sb; sLg=sb+1; sT=sb+2; sO=sb+3
    a(f"v_lshrrev_b32 v{t0}, 4, v{lane}\nv_lshlrev_b32 v{ra}, 3, v{t0}\nv_bfe_u32 v{t1}, v{lane}, 2, 2\nv_add_u32 v{ra}, v{ra}, v{t1}\nv_lshlrev_b32 v{ra}, 7, v{ra}")
    a(f"v_and_b32 v{t1}, 3, v{lane}\nv_lshl_add_u32 v{ra}, v{t1}, 3, v{ra}\nv_add_u32 v{ra}, s{sLds}, v{ra}\nv_lshlrev_b32 v{so}, 4, v{lane}")
    a(f"s_mul_i32 s{sT}, s{sLg}, {4*49152}\ns_lshl_b32 s{sO}, s{sS}, 10\ns_add_u32 s{sT}, s{sT}, s{sO}\ns_add_u32 s{sT}, s{sT}, {WS_W2P}")
    for mt in range(4):
        for q in range(2):
            a(f"ds_read_b64_tr_b16 v[{d+4*mt+2*q}:{d+4*mt+2*q+1}], v{ra} offset:{q*512+mt*32}")
    for mt in range(4):
        a(f"s_waitcnt lgkmcnt({6-2*mt})")
        a(f"buffer_store_dwordx4 v[{d+4*mt}:{d+4*mt+3}], v{so}, s[{SWS}:{SWS+3}], s{sT} offen sc1")
        if mt<3: a(f"s_add_u32 s{sT}, s{sT}, 49152")

def emit_aux(a, S, opts):
    sU=46; sWv=47; sT=48; sT2=49; sB1=50; sB2=51; SW2=56; sUa=60; sUb=61; sLa=62; sLb=63; sPa=64; sPb=68
    lane=1; w=2
    RAW1=16; RAW2=36
    doln=not opts.get('ln8') and not opts.get('ln2')
    LN2=opts.get('ln2',0); sLam=52
    if opts.get('prio'): a(f"s_setprio {opts.get('p0',3)}")
    a(f"s_sub_u32 s{sU}, s2, 416")
    a(f"v_and_b32 v{lane}, 63, v0\nv_lshrrev_b32 v{w}, 6, v0")
    if opts.get('lateptr',1):
        ptr_ready(a)
        S(0)
    if doln:
        a(f"s_and_b32 s{sB1}, s{sU}, 7\ns_lshl_b32 s{sB1}, s{sB1}, 4\ns_lshr_b32 s{sT}, s{sU}, 3\ns_add_u32 s{sB1}, s{sB1}, s{sT}\ns_add_u32 s{sB2}, s{sB1}, 12")
        ln_loads(a, sB1, RAW1, sT)
        l2=a.newlabel('Lax')
        a(f"s_cmp_ge_u32 s{sU}, 32\ns_cbranch_scc1 {l2}")
        ln_loads(a, sB2, RAW2, sT)
        a.label(l2)
    a(f"v_readfirstlane_b32 s{sWv}, v{w}")
    srd(a,SW2,P["w2"],F*D*2)
    a(f"s_lshl_b32 s{sUa}, s{sU}, 2\ns_add_u32 s{sUa}, s{sUa}, s{sWv}\ns_add_u32 s{sUb}, s{sUa}, 96")
    a(f"s_lshl_b32 s{sLa}, s{sWv}, 12\ns_add_u32 s{sLb}, s{sLa}, 40960")
    SWP=72; vPw=90; vPt=93; vDm=96; sI=76; sI24=77
    def prefetch_setup():
        a(f"s_lshr_b32 s{sI}, s{sU}, 3\ns_lshl_b32 s{sI}, s{sI}, 2\ns_add_u32 s{sI}, s{sI}, s{sWv}")
        a(f"s_cmp_ge_u32 s{sI}, 24\ns_cselect_b32 s{SWP}, s{P['w3']}, s{P['w1']}\ns_cselect_b32 s{SWP+1}, s{P['w3']+1}, s{P['w1']+1}\ns_cselect_b32 s{sT}, 24, 0")
        a(f"s_sub_u32 s{sI24}, s{sI}, s{sT}\ns_and_b32 s{SWP+1}, s{SWP+1}, 0xffff\ns_mov_b32 s{SWP+2}, {D*F*2}\ns_mov_b32 s{SWP+3}, 0x20000")
        for t in range(3):
            a(f"s_lshl_b32 s{sT}, s{sI24}, 6\ns_add_u32 s{sT}, s{sT}, {t*1536}\nv_add_u32 v4, s{sT}, v{lane}")
            a(f"v_mul_u32_u24 v5, 10923, v4\nv_lshrrev_b32 v5, 16, v5\nv_mul_u32_u24 v6, 6, v5\nv_sub_u32 v6, v4, v6")
            a(f"v_add_u32 v5, 96, v5\nv_mul_u32_u24 v5, 3072, v5\nv_lshl_add_u32 v{vPw+t}, v6, 7, v5")
            a(f"s_lshl_b32 s{sT}, s{sI}, 6\ns_add_u32 s{sT}, s{sT}, {t*3072}\nv_add_u32 v4, s{sT}, v{lane}")
            a(f"v_lshrrev_b32 v5, 10, v4\nv_add_u32 v5, 2, v5\nv_min_u32 v5, 9, v5\nv_and_b32 v4, 1023, v4\nv_mul_u32_u24 v4, 1280, v4\nv_lshl_add_u32 v{vPt+t}, v5, 7, v4")
        a(f"s_and_b32 s{sT}, s{sU}, 3\ns_mul_i32 s78, s{sT}, 768")
        a(f"s_bfe_u32 s{sT}, s{sU}, 0x10002\ns_mul_i32 s79, s{sT}, {1024*1280}")
    def prefetch(t):
        if not opts.get('atouch',1): return
        a(f"buffer_load_dword v{vDm}, v{vPw+t}, s[{SWP}:{SWP+3}], s78 offen")
        a(f"buffer_load_dword v{vDm}, v{vPt+t}, s[{SX}:{SX+3}], s79 offen")
    def pack_loads():
        pack_issue(a, sUa, sLa, SW2, sPa, 60, 4, 5)
        l3=a.newlabel('Lax')
        a(f"s_cmp_lt_u32 s{sUa}, 288\ns_cbranch_scc1 {l3}")
        pack_issue(a, sUb, sLb, SW2, sPb, 60, 4, 5)
        a.label(l3)
    if doln:
        nonce_load(a)
        nt=1+(k_touch(a, sWv, lane, 72, 90) if opts.get('ktouch',1)==1 else 0)
        if opts.get('tlbw')==1: tlb_warm(a, lane, 96, 76)
        if opts.get('pkearly',0): pack_loads()
        if opts.get('prio'): a(f"s_setprio {opts.get('aprio',1)}")
        ln_addr(a, sWv, sT, sT2, 16384)
        S(1)
        if opts.get('pkearly',0): a("s_waitcnt vmcnt(4) lgkmcnt(0)")
        else: a(f"s_waitcnt vmcnt({nt-1+(2 if opts.get('tlbw')==1 else 0)}) lgkmcnt(0)")
        nonce_ready(a)
        S(2)
        if opts.get('ktouch',1)==2: k_touch(a, sWv, lane, 72, 90, g0=2)
        if not opts.get('pkearly',0): pack_loads()
        ln_compute(a, sB1, RAW1, sT)
        l4=a.newlabel('Lax')
        a(f"s_cmp_ge_u32 s{sU}, 32\ns_cbranch_scc1 {l4}")
        a("s_barrier")
        ln_compute(a, sB2, RAW2, sT)
        a.label(l4)
        S(3)
        a("s_waitcnt vmcnt(0)\ns_barrier")
        a(f"s_lshl_b32 s{sT}, s{sB1}, 6\ns_add_u32 s{sT}, s{sT}, {FL_LN}")
        flag_store(a, sT, 4)
        if opts.get('cnt',0):
            dbg_srd(a, 76)
            cnt_add(a, 76, 0, 4)
        l5=a.newlabel('Lax')
        a(f"s_cmp_ge_u32 s{sU}, 32\ns_cbranch_scc1 {l5}")
        a(f"s_lshl_b32 s{sT}, s{sB2}, 6\ns_add_u32 s{sT}, s{sT}, {FL_LN}")
        flag_store(a, sT, 4)
        if opts.get('cnt',0): cnt_add(a, 76, 0, 4)
        a.label(l5)
        S(4)
        if opts.get('prio'): a("s_setprio 0")
    elif LN2:
        a(f"s_and_b32 s{sLam}, s2, 7\ns_lshl_b32 s{sLam}, s{sLam}, 5\ns_sub_u32 s{sT}, s2, 256\ns_lshr_b32 s{sT}, s{sT}, 3\ns_add_u32 s{sLam}, s{sLam}, s{sT}")
        ln8_loads(a, sLam, 100, 72)
        nonce_load(a)
        if opts.get('prio'): a(f"s_setprio {opts.get('aprio',1)}")
        S(1)
        a("s_waitcnt vmcnt(1) lgkmcnt(0)")
        S(2)
        if opts.get('ktouch',1)==2: k_touch(a, sWv, lane, 76, 90, g0=2)
        pack_loads()
        ln8_compute(a, sLam, sWv, 100, 72, 16384)
        S(3)
        a("s_waitcnt vmcnt(0)\ns_barrier")
        nonce_ready(a)
        a(f"s_lshl_b32 s{sT}, s{sLam}, 6\ns_add_u32 s{sT}, s{sT}, {FL_LN}")
        flag_store(a, sT, 4)
        S(4)
    else:
        nonce_load(a)
        nt=k_touch(a, sWv, lane, 72, 90) if opts.get('ktouch',1) else 0
        if opts.get('prio'): a(f"s_setprio {opts.get('aprio',1)}")
        if nt: a("s_waitcnt vmcnt(4)")
        pack_loads()
        S(1)
        a("s_waitcnt vmcnt(0) lgkmcnt(0)")
        nonce_ready(a)
        S(2)
    pack_finish(a, sLa, sPa, 4, 5, 60, 61, 64)
    l6=a.newlabel('Lax')
    a(f"s_cmp_lt_u32 s{sUa}, 288\ns_cbranch_scc1 {l6}")
    pack_finish(a, sLb, sPb, 4, 5, 60, 61, 80)
    a.label(l6)
    a("s_waitcnt vmcnt(0)\ns_barrier")
    if opts.get('cnt',0):
        dbg_srd(a, 76)
        cnt_add(a, 76, 64, 4)
    else:
        a(f"s_lshl_b32 s{sT}, s{sU}, 6\ns_add_u32 s{sT}, s{sT}, {FL_PK}")
        flag_store(a, sT, 4)
    S(7)
```

```python
from common import *
import common
WS_STATS=0xD80000
WS_CS   =0xD98000
WS_NONCE=0xDA0000
FL_LN=0xE14000
FL_CS=0xE04000
FL_PK=0xE08000
FL_H =0xE20000
FL_A =0xE10000
FL_UD=0xE18000
S_PTR=4
P=dict(u=4,logA=6,Aim=8,Cre=10,Cim=12,logdt=14,Dskip=16,x=18,w1=20,w3=22,w2=24,out=26,dbg=28,ws=30)
SWS=32
SX =36
S_NONCE=40

def prologue(a, opts={}):
    a("s_load_dwordx16 s[4:19], s[0:1], 0")
    a("s_load_dwordx8 s[20:27], s[0:1], 64")
    a("s_load_dwordx4 s[28:31], s[0:1], 96")
    if opts.get('codetouch',1):
        lab=a.newlabel('Lct')
        a("s_getpc_b64 s[100:101]")
        a.label("Lpcbase")
        a("s_lshr_b32 s41, s2, 3")
        a.raw("  s_mul_i32 s41, s41, ((Lcode_end-Lpcbase+8191)/8192)")
        a("v_add_u32 v1, s41, v0")
        a("v_lshlrev_b32 v1, 7, v1")
        a.raw("  v_cmp_gt_u32 vcc, ((Lcode_end-Lpcbase+8191)/8192), v0")
        a("s_and_saveexec_b64 s[42:43], vcc")
        a(f"s_cbranch_execz {lab}")
        a.raw("  v_min_u32 v1, (Lcode_end-Lpcbase-4), v1")
        a("v_and_b32 v1, 0xfffffffc, v1")
        a("global_load_dword v255, v1, s[100:101]")
        a.label(lab)
        a("s_mov_b64 exec, s[42:43]")
    if not opts.get('lateptr',1): ptr_ready(a)

def ptr_ready(a):
    a("s_waitcnt lgkmcnt(0)")
    srd(a,SWS,P["ws"],WS_SIZE); srd(a,SX,P["u"],X_BYTES)

V_NONCE=254
def nonce_load(a):
    a(f"v_mov_b32 v{V_NONCE}, {WS_NONCE}")
    a(f"buffer_load_dword v{V_NONCE}, v{V_NONCE}, s[{SWS}:{SWS+3}], 0 offen sc1")
def nonce_ready(a):
    a(f"v_readfirstlane_b32 s{S_NONCE}, v{V_NONCE}")
    a(f"s_add_u32 s{S_NONCE}, s{S_NONCE}, 0x9e3779b1")

def flag_store(a, sIdxOff, vt, keepvcc=False):
    lab=a.newlabel('Lfs')
    m="s[44:45]" if keepvcc else "vcc"
    a(f"v_cmp_eq_u32 {m}, 0, v0")
    a(f"s_and_saveexec_b64 s[42:43], {m}")
    a(f"s_cbranch_execz {lab}")
    a(f"v_mov_b32 v{vt}, 0\nv_mov_b32 v{vt+1}, s{S_NONCE}")
    a(f"buffer_store_dword v{vt+1}, v{vt}, s[{SWS}:{SWS+3}], s{sIdxOff} offen sc1")
    a.label(lab)
    a("s_mov_b64 exec, s[42:43]")

NOPOLL=[False]
SLEEP=[4]
def poll(a, vaddrs, vtmp, force=False, mask=None, sleep=None):
    if NOPOLL[0] and not force:
        a("s_waitcnt vmcnt(0)"); return
    lab=a.newlabel('Lpoll'); out=a.newlabel('Lpout'); first=a.newlabel('Lpf')
    sl=SLEEP[0] if sleep is None else sleep
    if mask: a(f"s_mov_b32 exec_lo, {hex(mask[0])}\ns_mov_b32 exec_hi, {hex(mask[1])}")
    a("s_mov_b32 s41, 0x40000")
    a(f"s_branch {first}")
    a.label(lab)
    if sl: a(f"s_sleep {sl}")
    a.label(first)
    for i,va in enumerate(vaddrs):
        a(f"buffer_load_dword v{vtmp+i}, v{va}, s[{SWS}:{SWS+3}], 0 offen sc1")
    a("s_sub_u32 s41, s41, 1")
    a(f"s_cbranch_scc1 {out}")
    a("s_waitcnt vmcnt(0)")
    poll_check(a, len(vaddrs), vtmp)
    a(f"s_cbranch_scc1 {lab}")
    a.label(out)
    a("s_waitcnt vmcnt(0)")
    if mask: a("s_mov_b64 exec, -1")

def poll_check(a, n, vtmp):
    for i in range(n):
        a(f"v_cmp_ne_u32 vcc, s{S_NONCE}, v{vtmp+i}")
        if i==0: a("s_mov_b64 s[44:45], vcc")
        else: a("s_or_b64 s[44:45], s[44:45], vcc")
    a("s_cmp_lg_u64 s[44:45], 0")

def k_touch(a, sWv, lane, sb, vb, g0=1):
    SR=sb; sO=sb+4; sT=sb+5; sS=sb+6; sJ=sb+7
    assert sb%4==0
    a(f"s_sub_u32 s{sJ}, s2, 256\ns_lshr_b32 s{sJ}, s{sJ}, 3")
    a(f"s_cmp_eq_u32 s{sWv}, 0\ns_cselect_b32 s{SR}, s{P['w1']}, s{P['w3']}\ns_cselect_b32 s{SR+1}, s{P['w1']+1}, s{P['w3']+1}")
    a(f"s_cmp_ge_u32 s{sWv}, 2\ns_cselect_b32 s{SR}, s{P['u']}, s{SR}\ns_cselect_b32 s{SR+1}, s{P['u']+1}, s{SR+1}")
    a(f"s_cselect_b32 s{SR+2}, {X_BYTES}, {D*F*2}" if False else f"s_mov_b32 s{SR+2}, {D*F*2}\ns_cselect_b32 s{SR+2}, {X_BYTES}, s{SR+2}")
    a(f"s_and_b32 s{SR+1}, s{SR+1}, 0xffff\ns_mov_b32 s{SR+3}, 0x20000")
    lw=a.newlabel('Lkt'); le=a.newlabel('Lkt')
    a(f"s_cmp_ge_u32 s{sWv}, 2\ns_cbranch_scc1 {lw}")
    a(f"v_mul_u32_u24 v{vb}, 10923, v{lane}\nv_lshrrev_b32 v{vb}, 16, v{vb}\nv_mul_u32_u24 v{vb+1}, 6, v{vb}\nv_sub_u32 v{vb+1}, v{lane}, v{vb+1}")
    a(f"v_mul_u32_u24 v{vb}, 3072, v{vb}\nv_lshl_add_u32 v{vb}, v{vb+1}, 7, v{vb}")
    a(f"s_mul_i32 s{sO}, s{sJ}, {2*3072}\ns_and_b32 s{sT}, s2, 3\ns_mul_i32 s{sT}, s{sT}, 768\ns_add_u32 s{sO}, s{sO}, s{sT}\ns_add_u32 s{sO}, s{sO}, {g0*64*3072}")
    a(f"s_mov_b32 s{sS}, {64*3072}\ns_mov_b64 exec, 0xfff")
    a(f"s_branch {le}")
    a.label(lw)
    a(f"v_mul_u32_u24 v{vb}, 1280, v{lane}")
    a(f"s_bfe_u32 s{sT}, s2, 0x10002\ns_lshl_b32 s{sO}, s{sT}, 10\ns_lshl_b32 s{sT}, s{sJ}, 5\ns_add_u32 s{sO}, s{sO}, s{sT}\ns_and_b32 s{sT}, s{sWv}, 1\ns_lshl_b32 s{sT}, s{sT}, 4\ns_add_u32 s{sO}, s{sO}, s{sT}")
    a(f"s_mul_i32 s{sO}, s{sO}, 1280\ns_add_u32 s{sO}, s{sO}, 128")
    a(f"s_mov_b32 s{sS}, 128\ns_mov_b64 exec, 0xffff")
    a.label(le)
    for g in range(g0,10):
        a(f"buffer_load_dword v{vb+2}, v{vb}, s[{SR}:{SR+3}], s{sO} offen")
        if g<9: a(f"s_add_u32 s{sO}, s{sO}, s{sS}")
    a("s_mov_b64 exec, -1")
    return 10-g0

SDB=24
def dbg_srd(a, q):
    a(f"s_mov_b32 s{q}, s{P['dbg']}\ns_and_b32 s{q+1}, s{P['dbg']+1}, 0xffff\ns_mov_b32 s{q+2}, 256\ns_mov_b32 s{q+3}, 0x20000")
def cnt_add(a, q, off, vt, sOff=None):
    lab=a.newlabel('Lca')
    a(f"v_cmp_eq_u32 vcc, 0, v0\ns_and_saveexec_b64 s[42:43], vcc\ns_cbranch_execz {lab}")
    a(f"v_mov_b32 v{vt}, {off}\nv_mov_b32 v{vt+1}, 1")
    so = f"s{sOff}" if sOff is not None else "0"
    a(f"buffer_atomic_add v{vt+1}, v{vt}, s[{q}:{q+3}], {so} offen sc1")
    a.label(lab)
    a("s_mov_b64 exec, s[42:43]")
def cnt_poll(a, q, off, target, vt, sleep=8, sOff=None, check_only=False):
    lab=a.newlabel('Lcp'); out=a.newlabel('Lcp'); first=a.newlabel('Lcp')
    so = f"s{sOff}" if sOff is not None else "0"
    a(f"s_mov_b64 exec, 1\nv_mov_b32 v{vt}, {off}\ns_mov_b32 s41, 0x40000\ns_branch {first}")
    a.label(lab)
    if sleep: a(f"s_sleep {sleep}")
    a.label(first)
    a(f"buffer_load_dword v{vt+1}, v{vt}, s[{q}:{q+3}], {so} offen sc1")
    a(f"s_sub_u32 s41, s41, 1\ns_cbranch_scc1 {out}\ns_waitcnt vmcnt(0)")
    a(f"v_readfirstlane_b32 s44, v{vt+1}\ns_cmp_lt_u32 s44, {target}\ns_cbranch_scc1 {lab}")
    a.label(out)
    a("s_waitcnt vmcnt(0)\ns_mov_b64 exec, -1")

def tlb_warm(a, lane, vt, sq):
    a(f"v_lshlrev_b32 v{vt}, 21, v{lane}\ns_mov_b64 exec, 0xff")
    a(f"buffer_load_dword v{vt+1}, v{vt}, s[{SWS}:{SWS+3}], 0 offen")
    a(f"s_mov_b32 s{sq}, s{P['out']}\ns_and_b32 s{sq+1}, s{P['out']+1}, 0xffff\ns_mov_b32 s{sq+2}, {X_BYTES}\ns_mov_b32 s{sq+3}, 0x20000")
    a(f"s_mov_b64 exec, 0x3")
    a(f"buffer_load_dword v{vt+1}, v{vt}, s[{sq}:{sq+3}], 0 offen")
    a("s_mov_b64 exec, -1")
    return 2
```

```python
from f_common import *
from f_ln8 import *
WST=12288
TST=16384
TOK0=4*WST

def emit_gemm(a, S0_, opts):
    dst=opts.get('dstamp')
    def S(i):
        if not dst: S0_(i)
    def SD(i):
        if dst: S0_(i)
    started=[False]
    sT=46; sFT=47; sJT=48; sJF=49
    SW=52
    sWv=56; sWoff=57; sToff=58; sMW=59; sMT=60; sTmp=61; sCnt=62; sTmp2=63; sX=64
    lane=1; t0=2; t1=3; vWa=[4,5,6]; vTok=[7,8,9,10]; vA=11; vA5=12; vB=[13,14,15,16]; vSt=17; vFl=[18]; vPk=[19,20]; vDum=22; vTch=[23,24]
    vStat=24
    ACC=64; Pq=160; Qq=176
    Qq=180
    a(f"s_setprio {opts.get('g0',2)}") if opts.get('prio') else None
    a(f"s_and_b32 s{sX}, s2, 7\ns_lshr_b32 s{sTmp}, s2, 3\ns_and_b32 s{sJT}, s{sTmp}, 7\ns_lshr_b32 s{sJF}, s{sTmp}, 3")
    a(f"s_lshr_b32 s{sT}, s{sX}, 2\ns_lshl_b32 s{sT}, s{sT}, 3\ns_add_u32 s{sT}, s{sT}, s{sJT}")
    a(f"s_and_b32 s{sFT}, s{sX}, 3\ns_lshl_b32 s{sFT}, s{sFT}, 2\ns_add_u32 s{sFT}, s{sFT}, s{sJF}")
    a(f"v_and_b32 v{lane}, 63, v0\nv_lshrrev_b32 v{t0}, 6, v0\nv_readfirstlane_b32 s{sWv}, v{t0}")
    sLam=50
    if opts.get('ln8'): a(f"s_lshl_b32 s{sLam}, s{sX}, 5\ns_lshr_b32 s{sTmp}, s2, 3\ns_add_u32 s{sLam}, s{sLam}, s{sTmp}")
    if opts.get('ln8'): ln8_loads(a, sLam, 64, 76)
    a(f"s_cmp_lt_u32 s{sWv}, 2")
    a(f"s_cselect_b32 s{sTmp2}, 0, 10")
    a(f"s_and_b32 s{sTmp}, s{sWv}, 1\ns_mul_i32 s{sTmp}, s{sTmp}, 192")
    for t in range(3):
        a(f"v_add_u32 v{t0}, s{sTmp}, v{lane}")
        if t: a(f"v_add_u32 v{t0}, {64*t}, v{t0}")
        a(f"v_mul_u32_u24 v{t1}, 5462, v{t0}\nv_lshrrev_b32 v{t1}, 16, v{t1}")
        a(f"v_mul_u32_u24 v{vWa[t]}, 12, v{t1}\nv_sub_u32 v{t0}, v{t0}, v{vWa[t]}")
        a(f"v_add_u32 v{t0}, s{sTmp2}, v{t0}\nv_subrev_u32 v{vWa[t]}, 12, v{t0}")
        a(f"v_cmp_le_u32 vcc, 12, v{t0}\nv_cndmask_b32 v{t0}, v{t0}, v{vWa[t]}, vcc")
        a(f"v_mul_u32_u24 v{t1}, 3072, v{t1}\nv_lshl_add_u32 v{vWa[t]}, v{t0}, 4, v{t1}")
        if t: a(f"v_subrev_u32 v{vWa[t]}, {1024*t}, v{vWa[t]}")
    a(f"s_mul_i32 s{sWoff}, s{sFT}, 192\ns_mul_i32 s{sMW}, s{sWv}, 3072")
    sWlim=41; sC0=51
    ROT=opts.get('rot',1)
    sWlim=75; sTlim=74
    if ROT:
        a(f"s_lshr_b32 s{sTmp}, s{sJT}, 2\ns_add_u32 s{sC0}, s{sJT}, s{sTmp}")
        a(f"s_mul_i32 s{sTmp}, s{sJF}, 5\ns_lshr_b32 s{sTmp}, s{sTmp}, 1\ns_add_u32 s{sC0}, s{sC0}, s{sTmp}")
        a(f"s_cmp_ge_u32 s{sC0}, 10\ns_cselect_b32 s{sTmp}, 10, 0\ns_sub_u32 s{sC0}, s{sC0}, s{sTmp}")
        a(f"s_add_u32 s{sWlim}, s{sWoff}, {640*3072}")
        a(f"s_mul_i32 s{sTmp}, s{sC0}, {64*3072}\ns_add_u32 s{sWoff}, s{sWoff}, s{sTmp}")
    def adv_w():
        t=f"s_add_u32 s{sWoff}, s{sWoff}, {32*3072}"
        if ROT: t+=f"\ns_cmp_ge_u32 s{sWoff}, s{sWlim}\ns_cselect_b32 s{sTmp2}, {640*3072}, 0\ns_sub_u32 s{sWoff}, s{sWoff}, s{sTmp2}"
        return t
    def adv_t():
        t=f"s_add_u32 s{sToff}, s{sToff}, 128"
        if ROT: t+=f"\ns_cmp_ge_u32 s{sToff}, s{sTlim}\ns_cselect_b32 s{sTmp2}, 1280, 0\ns_sub_u32 s{sToff}, s{sToff}, s{sTmp2}"
        return t
    def dma_w(slot):
        if opts.get('nodmaw') and started[0]: return
        a(f"s_add_u32 m0, s{sMW}, {slot*WST}")
        for t in range(3):
            a(f"buffer_load_dwordx4 v{vWa[t]}, s[{SW}:{SW+3}], s{sWoff} offen offset:{1024*t} lds")
        a(adv_w())
    for ii in range(4):
        a(f"v_lshrrev_b32 v{t0}, 3, v{lane}")
        if ii: a(f"v_add_u32 v{t0}, {8*ii}, v{t0}")
        a(f"v_mul_u32_u24 v{vTok[ii]}, 1280, v{t0}")
        a(f"v_bfe_u32 v{t0}, v{t0}, 1, 3\nv_and_b32 v{t1}, 7, v{lane}\nv_xor_b32 v{t0}, v{t0}, v{t1}")
        a(f"v_lshl_add_u32 v{vTok[ii]}, v{t0}, 4, v{vTok[ii]}")
        if ii: a(f"v_subrev_u32 v{vTok[ii]}, {1024*ii}, v{vTok[ii]}")
    a(f"s_lshl_b32 s{sToff}, s{sT}, 7\ns_lshl_b32 s{sTmp}, s{sWv}, 5\ns_add_u32 s{sToff}, s{sToff}, s{sTmp}\ns_mul_i32 s{sToff}, s{sToff}, 1280")
    if ROT:
        a(f"s_add_u32 s{sTlim}, s{sToff}, 1280\ns_lshl_b32 s{sTmp}, s{sC0}, 7\ns_add_u32 s{sToff}, s{sToff}, s{sTmp}")
    a(f"s_lshl_b32 s{sMT}, s{sWv}, 12\ns_add_u32 s{sMT}, s{sMT}, {TOK0}")
    if opts.get('bench'): a(f"s_mov_b32 s77, s{sToff}")
    if opts.get('lateptr',1): ptr_ready(a)
    S(0) if opts.get('lateptr',1) else None
    a(f"s_cmp_lt_u32 s{sWv}, 2")
    a(f"s_cselect_b32 s{SW}, s{P['w1']}, s{P['w3']}\ns_cselect_b32 s{SW+1}, s{P['w1']+1}, s{P['w3']+1}")
    a(f"s_and_b32 s{SW+1}, s{SW+1}, 0xffff\ns_mov_b32 s{SW+2}, {640*1536*2}\ns_mov_b32 s{SW+3}, 0x20000")
    if opts.get('bench'):
        a(f"s_mov_b32 s78, {opts['bench']}")
        a(f"s_mov_b32 s79, s{sWoff}")
    dma_w(0)
    def dma_t(buf):
        if opts.get('nodmat') and started[0]: return
        a(f"s_add_u32 m0, s{sMT}, {buf*TST}")
        for ii in range(4):
            a(f"buffer_load_dwordx4 v{vTok[ii]}, s[{SX}:{SX+3}], s{sToff} offen offset:{1024*ii} lds")
        a(adv_t())
    LATE=opts.get('late12',0)
    dma_t(0)
    if opts.get('pbar',0): a("s_barrier")
    if not LATE: dma_w(1); dma_w(2); dma_t(1)
    if LATE==2: dma_w(1)
    nonce_load(a)
    started[0]=True
    vTw=23; vTt=25
    sTwo=80; sTto=81
    if opts.get('touch',0): a(f"s_lshr_b32 s{sTmp}, s2, 3\ns_lshl_b32 s{sTwo}, s{sTmp}, 1\ns_and_b32 s{sTmp2}, s{sWv}, 1\ns_add_u32 s{sTwo}, s{sTwo}, s{sTmp2}\ns_mul_i32 s{sTwo}, s{sTwo}, {2*3072}")
    if opts.get('touch',0): a(f"s_and_b32 s{sTmp2}, s{sX}, 3\ns_mul_i32 s{sTmp2}, s{sTmp2}, 768\ns_add_u32 s{sTwo}, s{sTwo}, s{sTmp2}\ns_add_u32 s{sTwo}, s{sTwo}, {3*32*3072}")
    if opts.get('touch',0): a(f"v_mul_u32_u24 v{t0}, 10923, v{lane}\nv_lshrrev_b32 v{t0}, 16, v{t0}\nv_mul_u32_u24 v{t1}, 6, v{t0}\nv_sub_u32 v{t1}, v{lane}, v{t1}")
    if opts.get('touch',0): a(f"v_mul_u32_u24 v{vTw}, 3072, v{t0}\nv_lshl_add_u32 v{vTw}, v{t1}, 7, v{vTw}")
    if opts.get('touch',0): a(f"s_lshr_b32 s{sTmp}, s2, 3\ns_lshl_b32 s{sTmp}, s{sTmp}, 2\ns_add_u32 s{sTmp}, s{sTmp}, s{sWv}\ns_lshl_b32 s{sTmp}, s{sTmp}, 3\ns_lshr_b32 s{sTmp2}, s{sX}, 2\ns_lshl_b32 s{sTmp2}, s{sTmp2}, 10\ns_add_u32 s{sTmp}, s{sTmp}, s{sTmp2}")
    if opts.get('touch',0): a(f"s_mul_i32 s{sTto}, s{sTmp}, 1280\ns_add_u32 s{sTto}, s{sTto}, {2*128}")
    if opts.get('touch',0): a(f"v_lshrrev_b32 v{t0}, 1, v{lane}\nv_mul_u32_u24 v{vTt}, 1280, v{t0}\nv_and_b32 v{t0}, 1, v{lane}\nv_lshl_add_u32 v{vTt}, v{t0}, 7, v{vTt}")
    def touch_batch(tok=True):
        if not opts.get('touch',0): return []
        a(f"s_mov_b64 exec, 0xfff")
        a(f"buffer_load_dword v{vDum}, v{vTw}, s[{SW}:{SW+3}], s{sTwo} offen")
        a(f"s_add_u32 s{sTwo}, s{sTwo}, {128*3072}")
        if tok:
            a(f"s_mov_b64 exec, 0xffff")
            a(f"buffer_load_dword v{vDum}, v{vTt}, s[{SX}:{SX+3}], s{sTto} offen")
            a(f"s_add_u32 s{sTto}, s{sTto}, 256")
        a("s_mov_b64 exec, -1")
        return ['x']*(2 if tok else 1)
    pre_touch=touch_batch()
    ntouch=len(pre_touch)
    if opts.get('ln8'):
        npre=3+4+({0:10,1:0,2:3}[LATE])+1+len(pre_touch)
        a(f"s_waitcnt vmcnt({npre})")
        S(1)
        nln=ln8_compute(a, sLam, sWv, 64, 76, 3*WST)
        ntouch+=nln
    a(f"v_lshrrev_b32 v{t0}, 5, v{lane}\nv_lshlrev_b32 v{t0}, 3, v{t0}\nv_bfe_u32 v{t1}, v{lane}, 2, 2\nv_add_u32 v{t0}, v{t0}, v{t1}")
    a(f"v_mul_u32_u24 v{vA}, 192, v{t0}\nv_and_b32 v{t1}, 3, v{lane}\nv_lshl_add_u32 v{vA}, v{t1}, 3, v{vA}")
    a(f"v_bfe_u32 v{t1}, v{lane}, 4, 1\nv_mul_u32_u24 v{t0}, {6144+32}, v{t1}\nv_add_u32 v{vA}, v{vA}, v{t0}")
    a(f"s_lshr_b32 s{sTmp}, s{sWv}, 1\ns_mul_i32 s{sTmp2}, s{sTmp}, 96\nv_add_u32 v{vA}, s{sTmp2}, v{vA}")
    a(f"s_mul_i32 s{sTmp2}, s{sTmp}, 192\nv_mul_u32_u24 v{t0}, s{sTmp2}, v{t1}\nv_sub_u32 v{vA5}, v{vA}, v{t0}")
    a(f"v_and_b32 v{t0}, 31, v{lane}\ns_and_b32 s{sTmp}, s{sWv}, 1\ns_lshl_b32 s{sTmp}, s{sTmp}, 6\nv_add_u32 v{t0}, s{sTmp}, v{t0}")
    a(f"v_bfe_u32 v{t1}, v{t0}, 1, 3\nv_lshrrev_b32 v{vB[3]}, 5, v{lane}\nv_xor_b32 v{t1}, v{t1}, v{vB[3]}")
    a(f"v_lshlrev_b32 v{t0}, 7, v{t0}\nv_add_u32 v{t0}, {TOK0}, v{t0}")
    for sp in range(4):
        a(f"v_xor_b32 v{vB[sp]}, {2*sp}, v{t1}\nv_lshl_add_u32 v{vB[sp]}, v{vB[sp]}, 4, v{t0}")
    a(f"v_bfe_u32 v{t0}, v{lane}, 4, 1\nv_mul_u32_u24 v{vSt}, 49152, v{t0}\nv_lshrrev_b32 v{t0}, 5, v{lane}\nv_lshl_add_u32 v{vSt}, v{t0}, 8, v{vSt}")
    a(f"v_and_b32 v{t0}, 15, v{lane}\nv_lshl_add_u32 v{vSt}, v{t0}, 4, v{vSt}")
    a(f"s_lshl_b32 s{sTmp}, s{sT}, 3\ns_and_b32 s{sTmp2}, s{sWv}, 1\ns_lshl_b32 s{sTmp2}, s{sTmp2}, 2\ns_add_u32 s{sTmp}, s{sTmp}, s{sTmp2}\ns_mul_i32 s{sTmp}, s{sTmp}, 49152")
    a(f"s_mul_i32 s{sTmp2}, s{sFT}, {12*256}\ns_add_u32 s{sTmp}, s{sTmp}, s{sTmp2}\ns_lshr_b32 s{sTmp2}, s{sWv}, 1\ns_mul_i32 s{sTmp2}, s{sTmp2}, {6*256}\ns_add_u32 s{sTmp}, s{sTmp}, s{sTmp2}")
    a(f"s_add_u32 s{sTmp}, s{sTmp}, {WS_H}\nv_add_u32 v{vSt}, s{sTmp}, v{vSt}")
    a(f"v_min_u32 v{t0}, 23, v{lane}\ns_mul_i32 s{sTmp}, s{sWv}, 24\nv_add_u32 v{t0}, s{sTmp}, v{t0}\nv_lshlrev_b32 v{t0}, 6, v{t0}\nv_add_u32 v{vPk[0]}, {FL_PK}, v{t0}")
    CACC=216; SEL=228
    for r in range(12): a(f"v_mov_b32 v{CACC+r}, 0")
    a(f"v_and_b32 v{t0}, 15, v{lane}\nv_bfe_u32 v{t1}, v{lane}, 4, 1\nv_cmp_eq_u32 vcc, v{t0}, v{t1}")
    a(f"v_mov_b32 v{t0}, 0x3f803f80")
    for r in range(4): a(f"v_cndmask_b32 v{SEL+r}, 0, v{t0}, vcc")
    a(f"s_and_b32 s{sTmp}, s{sWv}, 1\ns_cmp_eq_u32 s{sTmp}, 1\ns_cselect_b64 vcc, -1, 0")
    if opts.get('bench'):
        a("s_branch Lbench_go")
        a.label("Lbench_top")
        a(f"s_mov_b32 s{sWoff}, s79\ns_mov_b32 s{sToff}, s77")
        a("s_barrier")
        started[0]=False
        dma_w(0); dma_t(0); dma_w(1); dma_w(2); dma_t(1)
        if ntouch:
            for _ in range(ntouch): a(f"buffer_load_dword v{vDum}, v{vTch[0]}, s[{SX}:{SX+3}], 0 offen")
        started[0]=True
        a.label("Lbench_go")
        a("s_memtime s[74:75]\ns_memrealtime s[70:71]\ns_waitcnt lgkmcnt(0)")
    if not opts.get('ln8'): S(1)
    def reads(setb, st, s):
        slot=st%4; buf=(st//2)%2; sp=2*(st%2)+s
        R=[]
        def rb(nt): R.append((f"ds_read_b128 v[{setb+12+4*nt}:{setb+12+4*nt+3}], v{vB[sp]} offset:{buf*TST+nt*4096}", f"B{nt}"))
        def ra(j):
            for q in range(2):
                reg=vA5 if j==2 else vA
                R.append((f"ds_read_b64_tr_b16 v[{setb+4*j+2*q}:{setb+4*j+2*q+1}], v{reg} offset:{slot*WST+(16*s+4*q)*192+32*j}", f"A{j}"))
        rb(0); ra(0); ra(1); ra(2); rb(1)
        if opts.get('nods'): R=[]
        if opts.get('nodsB'): R=[x for x in R if x[1][0]!='B']
        if opts.get('nodsA'): R=[x for x in R if x[1][0]!='A']
        return R
    def mfma(setb, j, nt, zero=False):
        if opts.get('nomfma'): return
        d=ACC+16*(2*j+nt)
        c="0" if zero else f"v[{d}:{d+15}]"
        a(f"v_mfma_f32_32x32x16_bf16 v[{d}:{d+15}], v[{setb+4*j}:{setb+4*j+3}], v[{setb+12+4*nt}:{setb+12+4*nt+3}], {c}")
    ORDER=[(0,0),(1,0),(2,0),(0,1),(1,1),(2,1)]
    NEED={(0,0):"A0",(1,0):"A1",(2,0):"A2",(0,1):"B1",(1,1):None,(2,1):None}
    vq=['W0']*3+['T0']*4+({0:['W1']*3+['W2']*3+['T1']*4,1:[],2:['W1']*3}[LATE])+['x']+['x']*ntouch
    def vwait(tags):
        nonlocal vq
        idx=max(i for i,t in enumerate(vq) if t in tags)
        n=len(vq)-1-idx
        vq=vq[idx+1:]
        return n
    TOUCH_AT={0:True,3:True,7:True,11:True}
    def dma_list(st):
        L=[]
        if st+3<20 and not opts.get('nodmaw'):
            slot=(st+3)%4
            for t in range(3):
                pre=f"s_add_u32 m0, s{sMW}, {slot*WST}\ns_nop 0\n" if t==0 else ""
                post="\n"+adv_w() if t==2 else ""
                L.append((pre+f"buffer_load_dwordx4 v{vWa[t]}, s[{SW}:{SW+3}], s{sWoff} offen offset:{1024*t} lds"+post, f"W{st+3}"))
        if st%2==0 and st>=2 and st//2+1<10 and not opts.get('nodmat'):
            buf=(st//2+1)%2
            for ii in range(4):
                pre=f"s_add_u32 m0, s{sMT}, {buf*TST}\ns_nop 0\n" if ii==0 else ""
                post="\n"+adv_t() if ii==3 else ""
                L.append((pre+f"buffer_load_dwordx4 v{vTok[ii]}, s[{SX}:{SX+3}], s{sToff} offen offset:{1024*ii} lds"+post, f"T{st//2+1}"))
        return L
    def stage(st, first=False, extra1=None, extra2=None, fixed=None):
        need=[f"W{st}", f"T{st//2}"]
        n=vwait([t for t in need if t in vq]) if any(t in vq for t in need) else len(vq)
        if fixed is not None: assert n==fixed,(st,n,fixed)
        a(f"s_waitcnt vmcnt({n}) lgkmcnt(0)")
        if opts.get('ststamp') and st>0: a(f"v_writelane_b32 v250, s82, {st-1}")
        a("s_barrier")
        if opts.get('ststamp'): a("s_memrealtime s[82:83]")
        if st==0 and LATE:
            started[0]=False
            if LATE==1: dma_w(1); vq.extend(['W1']*3)
            dma_w(2); dma_t(1); vq.extend(['W2']*3+['T1']*4)
            started[0]=True
        if st==3: nonce_ready(a)
        if st==3 and opts.get('ln8'):
            a(f"s_lshl_b32 s{sTmp}, s{sLam}, 6\ns_add_u32 s{sTmp}, s{sTmp}, {FL_LN}")
            flag_store(a, sTmp, t0, keepvcc=True)
        if st in TOUCH_AT: vq.extend(touch_batch(tok=(st<=3 or TOUCH_AT[st])))
        lt=LdsTrack(a)
        DL=dma_list(st); di=0
        spread=opts.get('spread',1)
        if spread==1: order=[4,5,10,11,3,9,2,8]
        elif spread==2: order=[0,1,2,3,4,5,6,7,8,9,10,11]
        elif spread==3: order=[5,5,5,10,10,10,10]
        elif spread==4: order=[0,2,4,6,8,10,11]
        gaps={}
        srt=sorted(order[:len(DL)])
        for i,g in enumerate(srt): gaps.setdefault(g,[]).append(DL[i])
        def do_dma(g):
            for (t,tag) in gaps.get(g,[]):
                a(t); vq.append(tag)
        rdn=opts.get('rdn',2)
        def csum(setb, branch):
            if opts.get('nocs'): return
            lb=a.newlabel('Lcs')
            a(f"{branch} {lb}")
            for j in range(3):
                a(f"v_mfma_f32_16x16x32_bf16 v[{CACC+4*j}:{CACC+4*j+3}], v[{setb+4*j}:{setb+4*j+3}], v[{SEL}:{SEL+3}], v[{CACC+4*j}:{CACC+4*j+3}]")
            a.label(lb)
        cspos=opts.get('cspos',3)
        R=reads(Pq, st, 0); ri=0
        for k,(j,nt) in enumerate(ORDER):
            if not first: mfma(Qq,j,nt)
            if k==cspos and not first: csum(Qq, "s_cbranch_vccz")
            for _ in range(rdn):
                if ri<len(R): lt.issue(R[ri][0], 'P'+R[ri][1]); ri+=1
            do_dma(k)
        if extra1: extra1()
        R=reads(Qq, st, 1); ri=0
        for k,(j,nt) in enumerate(ORDER):
            if NEED[(j,nt)]: lt.wait('P'+NEED[(j,nt)])
            mfma(Pq,j,nt,zero=first)
            if k==cspos: csum(Pq, "s_cbranch_vccnz")
            for _ in range(rdn):
                if ri<len(R): lt.issue(R[ri][0], 'Q'+R[ri][1]); ri+=1
            do_dma(6+k)
        if extra2: extra2()
        return n
    if opts.get('prio') and 'g1' in opts: a(f"s_setprio {opts['g1']}")
    for st in range(0,4): stage(st, first=(st==0))
    S(2) if not opts.get("bench") else None
    if opts.get('clk'): a("s_memtime s[68:69]\ns_waitcnt lgkmcnt(0)\ns_mov_b32 s51, s68")
    if opts.get('ststamp') or opts.get('unroll'):
        for st in range(4,12): stage(st)
    else:
        a(f"s_mov_b32 s{sCnt}, 2")
        lab=a.newlabel('Lup'); a.label(lab)
        pat=[stage(st) for st in range(4,8)]
        a(f"s_sub_u32 s{sCnt}, s{sCnt}, 1\ns_cmp_lg_u32 s{sCnt}, 0\ns_cbranch_scc1 {lab}")
        sav=a.ins; a.ins=[]
        pat2=[stage(st) for st in range(8,12)]
        a.ins=sav
        assert pat==pat2,(pat,pat2)
    FLG=200
    def issue_flags():
        a("s_mov_b64 exec, 0xffff")
        a(f"buffer_load_dword v{FLG}, v{vFl[0]}, s[{SWS}:{SWS+3}], 0 offen sc1"); vq.append('F')
        a("s_mov_b64 exec, -1")
    CK=opts.get('ck',17)
    for st_ in range(12,CK): stage(st_)
    STAT=240
    CSR=208
    PKF=202
    vStA=201
    def check_and_load():
        a(f"v_and_b32 v{t0}, 31, v{lane}\ns_lshl_b32 s{sTmp}, s{sT}, 7\ns_and_b32 s{sTmp2}, s{sWv}, 1\ns_lshl_b32 s{sTmp2}, s{sTmp2}, 6\ns_add_u32 s{sTmp}, s{sTmp}, s{sTmp2}")
        a(f"v_add_u32 v{t0}, s{sTmp}, v{t0}\nv_lshlrev_b32 v{vStA}, 4, v{t0}\nv_add_u32 v{vStA}, {WS_STATS}, v{vStA}")
        for nt in range(2):
            a(f"buffer_load_dwordx4 v[{STAT+4*nt}:{STAT+4*nt+3}], v{vStA}, s[{SWS}:{SWS+3}], 0 offen offset:{512*nt} sc1"); vq.append('S')
        a(f"s_and_b32 s{sTmp}, s{sWv}, 1\ns_cmp_eq_u32 s{sTmp}, 1\ns_cselect_b64 vcc, -1, 0")
        if opts.get('cnt',0):
            dbg_srd(a, 76)
            a(f"s_mov_b64 exec, 1\nv_mov_b32 v{PKF+1}, 64")
            a(f"buffer_load_dword v{PKF}, v{PKF+1}, s[76:79], 0 offen sc1"); vq.append('S')
            a("s_mov_b64 exec, -1")
        else:
            a("s_mov_b32 exec_lo, 0xffffff\ns_mov_b32 exec_hi, 0")
            a(f"buffer_load_dword v{PKF}, v{vPk[0]}, s[{SWS}:{SWS+3}], 0 offen sc1"); vq.append('S')
            a("s_mov_b64 exec, -1")
    stage(CK, extra2=check_and_load)
    for st in range(CK+1,20): stage(st)
    a("s_waitcnt lgkmcnt(0)")
    for (j,nt) in ORDER: mfma(Qq,j,nt)
    if not opts.get('nocs'):
        lbq=a.newlabel('Lcs'); a(f"s_cbranch_vccz {lbq}")
        for j in range(3):
            a(f"v_mfma_f32_16x16x32_bf16 v[{CACC+4*j}:{CACC+4*j+3}], v[{Qq+4*j}:{Qq+4*j+3}], v[{SEL}:{SEL+3}], v[{CACC+4*j}:{CACC+4*j+3}]")
        a.label(lbq)
    if opts.get('bench'):
        a("s_waitcnt vmcnt(0)")
        a("s_memtime s[72:73]\ns_memrealtime s[68:69]\ns_waitcnt lgkmcnt(0)\ns_sub_u32 s72, s72, s74\ns_sub_u32 s68, s68, s70")
        a(f"s_cmp_eq_u32 s78, 1\ns_cselect_b32 s{84+2*7}, s68, s{84+2*7}")
        for r in range(opts['bench']):
            a(f"s_cmp_eq_u32 s78, {opts['bench']-r}\ns_cselect_b32 s{84+2*(4+r)}, s72, s{84+2*(4+r)}")
        a("s_sub_u32 s78, s78, 1\ns_cmp_lg_u32 s78, 0\ns_cbranch_scc1 Lbench_top")
        return
    if opts.get('ststamp'):
        a("s_waitcnt lgkmcnt(0)\nv_writelane_b32 v250, s82, 19\ns_memrealtime s[82:83]\ns_waitcnt lgkmcnt(0)\nv_writelane_b32 v250, s82, 20")
        lq=a.newlabel('Lq')
        a(f"s_cmp_lg_u32 s{sWv}, 0\ns_cbranch_scc1 {lq}")
        a(f"s_lshl_b32 s{sTmp}, s2, 7\ns_add_u32 s{sTmp}, s{sTmp}, 0xF40000\nv_lshlrev_b32 v251, 2, v{lane}\ns_mov_b32 exec_hi, 0")
        a(f"buffer_store_dword v250, v251, s[{SWS}:{SWS+3}], s{sTmp} offen\ns_mov_b64 exec, -1")
        a.label(lq)
    if opts.get('prio') and 'g2' in opts: a(f"s_setprio {opts['g2']}")
    S(3)
    if opts.get('clk'): a("s_memtime s[68:69]\ns_waitcnt lgkmcnt(0)\ns_sub_u32 s51, s68, s51")
    if opts.get('gate',1)==1:
        a(f"s_lshl_b32 s{sTmp}, s2, 6\ns_add_u32 s{sTmp}, s{sTmp}, {FL_UD}")
        flag_store(a, sTmp, t0)
    a("s_waitcnt vmcnt(0)")
    ls=a.newlabel('Lst'); lo=a.newlabel('Lst')
    a("s_mov_b32 s41, 0x40000")
    a.label(ls)
    a(f"v_cmp_ne_u32 vcc, s{S_NONCE}, v{STAT+2}\ns_mov_b64 s[44:45], vcc\nv_cmp_ne_u32 vcc, s{S_NONCE}, v{STAT+6}\ns_or_b64 s[44:45], s[44:45], vcc\ns_cmp_lg_u64 s[44:45], 0")
    a(f"s_cbranch_scc0 {lo}")
    if not (opts.get('nolnwait') or opts.get('only') in (1,5)):
        a("s_sub_u32 s41, s41, 1")
        a(f"s_cbranch_scc1 {lo}")
        a("s_sleep 4")
        for nt in range(2):
            a(f"buffer_load_dwordx4 v[{STAT+4*nt}:{STAT+4*nt+3}], v{vStA}, s[{SWS}:{SWS+3}], 0 offen offset:{512*nt} sc1")
        a("s_waitcnt vmcnt(0)")
        a(f"s_branch {ls}")
    a.label(lo)
    def pk_check():
        labp=a.newlabel('Lok')
        if opts.get('cnt',0):
            a(f"v_readfirstlane_b32 s44, v{PKF}\ns_cmp_ge_u32 s44, 96\ns_cbranch_scc1 {labp}")
            dbg_srd(a, 52)
            if not opts.get('nolnwait') and opts.get('only')!=1: cnt_poll(a, 52, 64, 96, PKF, sleep=4)
        else:
            a("s_mov_b32 exec_lo, 0xffffff\ns_mov_b32 exec_hi, 0")
            poll_check(a, 1, PKF)
            a("s_mov_b64 exec, -1")
            a(f"s_cbranch_scc0 {labp}")
            if not opts.get('nolnwait'): poll(a, [vPk[0]], PKF, mask=(0xffffff,0), sleep=4)
        a.label(labp)
    PKLATE=not opts.get('stgepi',0)
    if not PKLATE: pk_check()
    EA=Pq; EB=Pq+12
    a(f"v_and_b32 v{t0}, 15, v{lane}\nv_lshrrev_b32 v{t1}, 4, v{lane}\nv_lshlrev_b32 v{t1}, 4, v{t1}\nv_lshl_add_u32 v{t1}, v{t0}, 6, v{t1}")
    a(f"s_lshr_b32 s{sTmp}, s{sWv}, 1\ns_lshl_b32 s{sTmp}, s{sTmp}, 1\ns_and_b32 s{sTmp2}, s{sWv}, 1\ns_add_u32 s{sTmp}, s{sTmp}, s{sTmp2}\ns_mul_i32 s{sTmp}, s{sTmp}, 384")
    a(f"v_add_u32 v{t1}, s{sTmp}, v{t1}")
    a(f"s_mov_b32 exec_lo, 0x00030003\ns_mov_b32 exec_hi, 0x00030003")
    for j in range(3): a(f"ds_write_b128 v{t1}, v[{CACC+4*j}:{CACC+4*j+3}] offset:{128*j}")
    a("s_mov_b64 exec, -1")
    a("s_waitcnt lgkmcnt(0)\ns_barrier")
    a(f"v_bfe_u32 v{t1}, v{lane}, 4, 1\nv_lshlrev_b32 v{t1}, 6, v{t1}\nv_lshl_add_u32 v{t1}, v{t0}, 2, v{t1}")
    a(f"s_lshr_b32 s{sTmp}, s{sWv}, 1\ns_mul_i32 s{sTmp}, s{sTmp}, 768\nv_add_u32 v{t1}, s{sTmp}, v{t1}")
    for j in range(3):
        a(f"ds_read_b32 v{CSR+2*j}, v{t1} offset:{128*j}\nds_read_b32 v{CSR+2*j+1}, v{t1} offset:{128*j+384}")
    a(f"v_cmp_gt_u32 vcc, 32, v{lane}")
    a("s_waitcnt lgkmcnt(0)\ns_barrier")
    sT64=65; sCT=66; sA=67; sB=72; sStg=76; sA8=77
    if opts.get('dmap',0)==0:
        a(f"s_lshr_b32 s{sT64}, s{sX}, 1\ns_lshl_b32 s{sT64}, s{sT64}, 3\ns_add_u32 s{sT64}, s{sT64}, s{sJT}")
        a(f"s_and_b32 s{sCT}, s{sX}, 1\ns_lshl_b32 s{sCT}, s{sCT}, 2\ns_add_u32 s{sCT}, s{sCT}, s{sJF}")
    else:
        a(f"s_lshr_b32 s{sTmp}, s2, 3\ns_and_b32 s{sT64}, s{sTmp}, 3\ns_lshr_b32 s{sCT}, s{sTmp}, 2\ns_lshl_b32 s{sTmp}, s{sX}, 2\ns_add_u32 s{sT64}, s{sT64}, s{sTmp}")
    a(f"s_mul_i32 s{sTmp}, s{sWv}, {12*1024}\ns_mul_i32 s{sTmp2}, s{sCT}, {5*49152}\ns_add_u32 s{sTmp2}, s{sTmp2}, s{sTmp}")
    for m in range(5): a(f"s_add_u32 s{sA+m}, s{sTmp2}, {WS_W2P+m*49152}")
    vL16=4
    a(f"v_lshlrev_b32 v{vL16}, 4, v{lane}")
    a(f"s_mul_i32 s{sStg}, s{sWv}, 20480")
    vt=VmTrack(a)
    sKO=[48,50,51,57,58,59,60,62,78,79,80,81]
    DROT=opts.get('drot',0)
    a(f"s_mul_i32 s{sTmp}, s{sJF}, {3*1024 if DROT else 0}")
    for k in range(12):
        if k==0: a(f"s_mov_b32 s{sKO[0]}, s{sTmp}")
        else:
            a(f"s_add_u32 s{sKO[k]}, s{sKO[k-1]}, 1024\ns_cmp_ge_u32 s{sKO[k]}, {12*1024}\ns_cselect_b32 s{sTmp2}, {12*1024}, 0\ns_sub_u32 s{sKO[k]}, s{sKO[k]}, s{sTmp2}")
    stg=[(m,k) for m in range(5) for k in range(4)]
    STG8=[8192]
    def stage_one():
        if not stg: return
        m,k=stg.pop(0)
        a(f"s_add_u32 m0, s{sStg}, {m*4096+k*1024}\ns_add_u32 s{sA8}, s{sA+m}, s{sKO[8+k]}")
        vt.issue(f"buffer_load_dwordx4 v{vL16}, s[{SWS}:{SWS+3}], s{sA8} offen sc1 lds", 'stg')
    for j in range(3):
        a(f"v_add_f32 v{t0}, v{CSR+2*j}, v{CSR+2*j+1}")
        a(f"v_cvt_pk_bf16_f32 v{t1}, v{t0}, v{t0}\nv_and_b32 v{t1}, 0xffff0000, v{t1}")
        a(f"v_sub_f32 v{t0}, v{t0}, v{t1}")
        a(f"v_cvt_pk_bf16_f32 v{t0}, v{t1}, v{t0}")
        a(f"v_cndmask_b32 v{EA+4*j}, 0, v{t0}, vcc")
        for r in range(1,4): a(f"v_mov_b32 v{EA+4*j+r}, 0")
    for nt in range(2):
        a(f"v_cvt_pk_bf16_f32 v{t0}, v{STAT+4*nt}, v{STAT+4*nt}")
        a(f"v_cndmask_b32 v{EB+4*nt}, 0, v{t0}, vcc")
        for r in range(1,4): a(f"v_mov_b32 v{EB+4*nt+r}, 0")
    for (j,nt) in ORDER: mfma(Pq,j,nt)
    C1=[214,215]; IR2=[208,209]
    for nt in range(2):
        r=STAT+4*nt+1
        a(f"v_mul_f32 v{C1[nt]}, 0xbfb8aa3b, v{r}")
        a(f"v_mul_f32 v{IR2[nt]}, v{r}, v{r}\nv_rcp_f32 v{IR2[nt]}, v{IR2[nt]}")
    T=216; O=232
    k=0
    for (j,nt) in ORDER:
        d=ACC+16*(2*j+nt); o=O+4*(k%2)
        k+=1
        sg=(lambda: stage_one()) if opts.get('stgepi',0) else (lambda: None)
        for i in range(8): a(f"v_mul_f32 v{T+i}, v{d+i}, v{C1[nt]}")
        sg()
        for i in range(8): a(f"v_exp_f32 v{T+i}, v{T+i}")
        sg()
        for i in range(8): a(f"v_mul_f32 v{d+i}, v{d+i}, v{d+8+i}")
        for i in range(8): a(f"v_fma_f32 v{T+i}, v{T+i}, v{IR2[nt]}, v{IR2[nt]}")
        sg()
        for i in range(8): a(f"v_rcp_f32 v{T+i}, v{T+i}")
        sg()
        for i in range(8): a(f"v_mul_f32 v{T+i}, v{T+i}, v{d+i}")
        for p in range(4): a(f"v_cvt_pk_bf16_f32 v{o+p}, v{T+2*p}, v{T+2*p+1}")
        a(f"v_permlane32_swap_b32 v{o}, v{o+2}\nv_permlane32_swap_b32 v{o+1}, v{o+3}")
        a(f"s_mov_b32 s{sTmp}, {nt*2*49152+j*512}")
        vt.issue(f"buffer_store_dwordx4 v[{o}:{o+3}], v{vSt}, s[{SWS}:{SWS+3}], s{sTmp} offen sc1", 'h')
    S(4)
    if opts.get('gate',1)==2:
        a(f"s_lshl_b32 s{sTmp}, s2, 6\ns_add_u32 s{sTmp}, s{sTmp}, {FL_UD}")
        flag_store(a, sTmp, t0)
    vRed=5; vXo=6; vAt=7; vHf=8; vAf=9; vTm=10
    DACC=12
    AF=92
    BF=192
    NB=4
    vDum=vRed
    a(f"s_mul_i32 s{sTmp2}, s{sT64}, {4*49152}\ns_mul_i32 s{sTmp}, s{sWv}, {12*1024}\ns_add_u32 s{sTmp2}, s{sTmp2}, s{sTmp}\ns_add_u32 s{sTmp2}, s{sTmp2}, {WS_H}")
    for n in range(4):
        a(f"s_add_u32 s{sB+n}, s{sWv}, {n}\ns_and_b32 s{sB+n}, s{sB+n}, 3\ns_mul_i32 s{sB+n}, s{sB+n}, 49152\ns_add_u32 s{sB+n}, s{sB+n}, s{sTmp2}")
    def ldA(k,m):
        fb=AF+20*(k%5)
        a(f"s_add_u32 s{sA8}, s{sA+m}, s{sKO[k]}")
        vt.issue(f"buffer_load_dwordx4 v[{fb+4*m}:{fb+4*m+3}], v{vL16}, s[{SWS}:{SWS+3}], s{sA8} offen sc1", f"a{k}")
    def ldB(k,n):
        fb=BF+16*(k%NB)
        a(f"s_add_u32 s{sA8}, s{sB+n}, s{sKO[k]}")
        vt.issue(f"buffer_load_dwordx4 v[{fb+4*n}:{fb+4*n+3}], v{vL16}, s[{SWS}:{SWS+3}], s{sA8} offen sc1", f"b{k}")
    if PKLATE:
        pk_check()
        if not opts.get('cnt',0): a("s_barrier")
    NPRE=opts.get('npre',3)
    for k in range(NPRE):
        for m in range(5): ldA(k,m)
    vt.wait('h')
    a(f"s_lshl_b32 s{sTmp}, s{sT}, 4\ns_add_u32 s{sTmp}, s{sTmp}, s{sFT}\ns_lshl_b32 s{sTmp}, s{sTmp}, 2\ns_add_u32 s{sTmp}, s{sTmp}, s{sWv}\ns_lshl_b32 s{sTmp}, s{sTmp}, 6\ns_add_u32 s{sTmp}, s{sTmp}, {FL_H}")
    a(f"v_mov_b32 v{t0}, 0\nv_mov_b32 v{t1}, s{S_NONCE}\ns_mov_b64 exec, 1")
    vt.issue(f"buffer_store_dword v{t1}, v{t0}, s[{SWS}:{SWS+3}], s{sTmp} offen sc1", 'f')
    a("s_mov_b64 exec, -1")
    S(5)
    for k in range(NPRE,5):
        for m in range(5): ldA(k,m)
    while stg: stage_one()
    a(f"v_and_b32 v{t0}, 15, v{lane}\ns_lshl_b32 s{sTmp}, s{sT64}, 6\ns_lshl_b32 s{sTmp2}, s{sWv}, 4\ns_add_u32 s{sTmp}, s{sTmp}, s{sTmp2}\nv_add_u32 v{t0}, s{sTmp}, v{t0}")
    a(f"v_lshrrev_b32 v{t1}, 4, v{lane}\nv_mul_u32_u24 v{vXo}, 1280, v{t0}\nv_lshl_add_u32 v{vXo}, v{t1}, 3, v{vXo}")
    a(f"s_mul_i32 s{sTmp}, s{sCT}, 160\nv_add_u32 v{vXo}, s{sTmp}, v{vXo}")
    a(f"v_lshlrev_b32 v{vAt}, 14, v{t1}\nv_lshl_add_u32 v{vAt}, v{t0}, 1, v{vAt}")
    a(f"s_mul_i32 s{sTmp}, s{sCT}, {80*4096}\ns_add_u32 s{sTmp}, s{sTmp}, {WS_AT}\nv_add_u32 v{vAt}, s{sTmp}, v{vAt}")
    a(f"s_lshr_b32 s{sTmp}, s{sT64}, 1\ns_lshl_b32 s{sTmp}, s{sTmp}, 6\ns_and_b32 s{sTmp2}, s{sT64}, 1\ns_add_u32 s{sTmp}, s{sTmp}, s{sTmp2}")
    a(f"v_bfe_u32 v{t0}, v{lane}, 1, 4\nv_lshlrev_b32 v{t0}, 2, v{t0}\nv_and_b32 v{t1}, 1, v{lane}\nv_lshl_add_u32 v{t0}, v{t1}, 1, v{t0}\nv_add_u32 v{t0}, s{sTmp}, v{t0}")
    a(f"v_lshlrev_b32 v{t0}, 6, v{t0}\nv_add_u32 v{vHf}, {FL_H}, v{t0}")
    a(f"s_mul_i32 s{sTmp}, s{sCT}, {20*64}\ns_add_u32 s{sTmp}, s{sTmp}, {FL_A}")
    a(f"v_min_u32 v{t0}, 19, v{lane}\nv_lshlrev_b32 v{t0}, 6, v{t0}\nv_add_u32 v{vAf}, s{sTmp}, v{t0}")
    vSg=11
    a(f"v_add_u32 v{vSg}, s{sStg}, v{vL16}")
    SD(1)
    lh=a.newlabel('Lhp')
    a(f"s_cmp_lg_u32 s{sWv}, 0\ns_cbranch_scc1 {lh}")
    poll(a, [vHf], vTm, force=True, mask=(0xffffffff,0), sleep=opts.get('slph',2))
    a.label(lh)
    a("s_waitcnt vmcnt(0)\ns_barrier"); vt.q=[]
    S(6); SD(2)
    for k in range(NB):
        for n in range(4): ldB(k,n)
    if opts.get('touch_h',0):
        a(f"s_lshl_b32 s{sTmp}, s{sT64}, 2\ns_add_u32 s{sTmp}, s{sTmp}, s{sJF}\ns_mul_i32 s{sTmp}, s{sTmp}, 49152\ns_mul_i32 s{sTmp2}, s{sWv}, {12*1024}\ns_add_u32 s{sTmp}, s{sTmp}, s{sTmp2}\ns_add_u32 s{sTmp}, s{sTmp}, {WS_H+3*1024}")
        a(f"v_lshlrev_b32 v{t0}, 7, v{lane}")
        vt.issue(f"buffer_load_dword v{vDum}, v{t0}, s[{SWS}:{SWS+3}], s{sTmp} offen", 'x')
        a(f"s_add_u32 s{sTmp}, s{sTmp}, 8192\ns_mov_b64 exec, 0xff")
        vt.issue(f"buffer_load_dword v{vDum}, v{t0}, s[{SWS}:{SWS+3}], s{sTmp} offen", 'x')
        a("s_mov_b64 exec, -1")
    XR=AF+40; AR=AF+50
    lt=LdsTrack(a)
    for k in range(12):
        vt.wait(f"b{k}")
        if k<8: assert f"a{k}" not in vt.q
        if k>=8: lt.wait(f"a{k}")
        if k in (0,3,6,9): SD({0:3,3:4,6:5,9:6}[k])
        fa=AF+20*(k%5); fb=BF+16*(k%NB)
        side=[]
        if k>=1 and k-1+NB<12: side+= [('B',k-1+NB,n) for n in range(4)]
        norder=(1,2,3,0) if k==11 else (0,1,2,3)
        si=0
        for m in range(5):
            for n in norder:
                d=DACC+4*(m*4+n)
                cc="0" if k==0 else f"v[{d}:{d+3}]"
                a(f"v_mfma_f32_16x16x32_bf16 v[{d}:{d+3}], v[{fa+4*m}:{fa+4*m+3}], v[{fb+4*n}:{fb+4*n+3}], {cc}")
                if n==norder[1] and si<len(side):
                    ldB(side[si][1],side[si][2]); si+=1
            kn=k+5
            if kn<8: ldA(kn,m)
            elif kn<12:
                lt.issue(f"ds_read_b128 v[{fa+4*m}:{fa+4*m+3}], v{vSg} offset:{m*4096+(kn-8)*1024}", f"a{kn}")
        while si<len(side):
            ldB(side[si][1],side[si][2]); si+=1
        if k==2:
            pass
        KA=opts.get('ka',9)
        if k==KA-2:
            a("s_mov_b32 exec_lo, 0xfffff\ns_mov_b32 exec_hi, 0")
            vt.issue(f"buffer_load_dword v{vTm}, v{vAf}, s[{SWS}:{SWS+3}], 0 offen sc1", 'af')
            a("s_mov_b64 exec, -1")
        if k==8:
            for m in range(5):
                vt.issue(f"buffer_load_dwordx2 v[{XR+2*m}:{XR+2*m+1}], v{vXo}, s[{SX}:{SX+3}], 0 offen offset:{32*m}", 'e')
        if k==KA:
            vt.wait('af')
            a("s_mov_b32 exec_lo, 0xfffff\ns_mov_b32 exec_hi, 0")
            poll_check(a, 1, vTm)
            a("s_mov_b64 exec, -1")
            lab3=a.newlabel('Lok'); a(f"s_cbranch_scc0 {lab3}")
            if opts.get('only')!=4: poll(a, [vAf], vTm, mask=(0xfffff,0), sleep=4)
            a.label(lab3)
            for m in range(5):
                for r in range(4):
                    a(f"s_mov_b32 s{sTmp}, {(16*m+r)*4096}")
                    vt.issue(f"buffer_load_ushort v{AR+4*m+r}, v{vAt}, s[{SWS}:{SWS+3}], s{sTmp} offen sc1", 'e')
    S(7); SD(7)
    if opts.get('clk'): a("s_mov_b32 s96, s51")
    a("s_barrier")
    for n in range(1,4):
        a(f"s_add_u32 s{sTmp}, s{sWv}, {n}\ns_and_b32 s{sTmp}, s{sTmp}, 3\ns_mul_i32 s{sTmp}, s{sTmp}, {15*1024}\ns_add_u32 s{sTmp}, s{sTmp}, {(n-1)*5*1024}")
        a(f"v_add_u32 v{vRed}, s{sTmp}, v{vL16}")
        for m in range(5):
            d=DACC+4*(m*4+n)
            a(f"ds_write_b128 v{vRed}, v[{d}:{d+3}] offset:{m*1024}")
    a("s_waitcnt lgkmcnt(0)\ns_barrier")
    a(f"s_mul_i32 s{sTmp}, s{sWv}, {15*1024}\nv_add_u32 v{vRed}, s{sTmp}, v{vL16}")
    RB=192
    for si in range(3):
        for m in range(5):
            a(f"ds_read_b128 v[{RB+(si*5+m)*4}:{RB+(si*5+m)*4+3}], v{vRed} offset:{(si*5+m)*1024}")
    SRO=52
    srd(a,SRO,P["out"],X_BYTES)
    for si in range(3):
        a(f"s_waitcnt lgkmcnt({10-5*si})")
        for m in range(5):
            for r in range(4):
                x=DACC+4*(m*4)+r; y=RB+(si*5+m)*4+r
                a(f"v_add_f32 v{x}, v{x}, v{y}")
    a("s_waitcnt vmcnt(0)")
    T=92
    for m in range(5):
        x0=XR+2*m; f0=DACC+16*m
        a(f"v_lshlrev_b32 v{T}, 16, v{x0}\nv_and_b32 v{T+1}, 0xffff0000, v{x0}\nv_lshlrev_b32 v{T+2}, 16, v{x0+1}\nv_and_b32 v{T+3}, 0xffff0000, v{x0+1}")
        for r in range(4): a(f"v_lshlrev_b32 v{AR+4*m+r}, 16, v{AR+4*m+r}")
        for r in range(4): a(f"v_add_f32 v{T+r}, v{T+r}, v{AR+4*m+r}")
        for p in range(2): a(f"v_cvt_pk_bf16_f32 v{T+4+p}, v{T+2*p}, v{T+2*p+1}")
        for p in range(2): a(f"v_cvt_pk_bf16_f32 v{T+6+p}, v{f0+2*p}, v{f0+2*p+1}")
        o=T+8+2*(m%2)
        for p in range(2):
            a(f"v_lshlrev_b32 v{T}, 16, v{T+4+p}\nv_and_b32 v{T+1}, 0xffff0000, v{T+4+p}\nv_lshlrev_b32 v{T+2}, 16, v{T+6+p}\nv_and_b32 v{T+3}, 0xffff0000, v{T+6+p}")
            a(f"v_add_f32 v{T}, v{T}, v{T+2}\nv_add_f32 v{T+1}, v{T+1}, v{T+3}\nv_cvt_pk_bf16_f32 v{o+p}, v{T}, v{T+1}")
        a(f"buffer_store_dwordx2 v[{o}:{o+1}], v{vXo}, s[{SRO}:{SRO+3}], 0 offen offset:{32*m}"+{0:"",1:" sc1",2:" nt",3:" sc0 sc1"}[opts.get('ost',0)])
    lab4=a.newlabel('Lnn')
    a(f"s_cmp_lg_u32 s2, 0\ns_cbranch_scc1 {lab4}\ns_cmp_lg_u32 s{sWv}, 0\ns_cbranch_scc1 {lab4}")
    for i in range(4): a(f"v_add_u32 v{100+i}, {64*i}, v{lane}\nv_lshlrev_b32 v{100+i}, 8, v{100+i}\nv_add_u32 v{100+i}, {FL_H}, v{100+i}")
    for i in range(3): a(f"v_add_u32 v{104+i}, {64*i}, v{lane}\nv_min_u32 v{104+i}, 159, v{104+i}\nv_lshlrev_b32 v{104+i}, 6, v{104+i}\nv_add_u32 v{104+i}, {FL_A}, v{104+i}")
    if opts.get('only')!=4: poll(a, [100,101,102,103,104,105,106], 108)
    a(f"s_mov_b32 s{sTmp}, {WS_NONCE}")
    flag_store(a, sTmp, t0)
    a.label(lab4)
```

```python
from f_common import *
from f_ln8 import *
TBL=18432
ROW=288
KN_OFF=[0, 32448, 36864, 69312]
U_OFF=4416
R_OFF=[U_OFF+18432, 41280, 41280+8448, 41280+2*8448]
RC=2112
LOG2E=0x3fb8aa3b
INV2PI=0x3e22f983

USEPK=0
def cmul(a, d, x, w):
    if USEPK:
        a(f"v_pk_mul_f32 v[{d}:{d+1}], v[{x}:{x+1}], v[{w}:{w+1}] op_sel:[0,0] op_sel_hi:[0,1]")
        a(f"v_pk_fma_f32 v[{d}:{d+1}], v[{x}:{x+1}], v[{w}:{w+1}], v[{d}:{d+1}] op_sel:[1,1,0] op_sel_hi:[1,0,1] neg_lo:[0,1,0]")
    else:
        a(f"v_mul_f32 v{d}, v{x}, v{w}")
        a(f"v_mul_f32 v{d+1}, v{x}, v{w+1}")
        a(f"v_fma_f32 v{d}, -v{x+1}, v{w+1}, v{d}")
        a(f"v_fma_f32 v{d+1}, v{x+1}, v{w}, v{d+1}")

def emit_ssm(a, S_, opts, st=' sc1', ld=' sc1', sb=64):
    if opts.get('prio'): a(f"s_setprio {opts.get('p0',3)}")
    st_=S_; sQ=46; sPtrDt=P['logdt']; sPtrD=P['Dskip']
    SP=dict(logA=48,Aim=52,Cre=56,Cim=60)
    a(f's_sub_u32 s{sQ}, s2, 256')

    S=st_ if st_ else (lambda i: None)
    sWv=sb; sCh=sb+1; sTmp=sb+2; sTmp2=sb+3; sDt=sb+4; sD=sb+5; sTb=sb+6; sCnt=sb+7; sPo=sb+8; sKn=sb+9; sR=sb+10; sMask=sb+12; sBf=sb+14
    lane=1; t0=2; t1=3; vP=238; vTw=5; vTrA=6; vTrB=7
    a(f"v_and_b32 v{lane}, 63, v0")
    a(f"v_lshrrev_b32 v{t0}, 6, v0")
    a(f"v_readfirstlane_b32 s{sWv}, v{t0}")
    a(f"s_lshl_b32 s{sCh}, s{sQ}, 2")
    a(f"s_add_u32 s{sCh}, s{sCh}, s{sWv}")
    if opts.get('fakessm'):
        nonce_load(a)
        a("s_waitcnt vmcnt(0)")
        nonce_ready(a)
        a(f"s_lshl_b32 s{sTmp}, s{sQ}, 6\ns_add_u32 s{sTmp}, s{sTmp}, {FL_A}")
        flag_store(a, sTmp, 2)
        S(7)
        return
    if opts.get('lateptr',1):
        ptr_ready(a)
        S(0)
    for n_ in SP: srd(a,SP[n_],P[n_],D*N*2)
    LN2=opts.get('ln2',0)
    sLam=47
    if LN2:
        a(f"s_and_b32 s{sLam}, s2, 7\ns_lshl_b32 s{sLam}, s{sLam}, 5\ns_lshr_b32 s{sTmp}, s{sQ}, 3\ns_add_u32 s{sLam}, s{sLam}, s{sTmp}")
        ln8_loads(a, sLam, 64, 80)
    a(f"s_lshr_b32 s{sTmp}, s{sCh}, 1\ns_lshl_b32 s{sTmp}, s{sTmp}, 2")
    a(f"s_load_dword s{sDt}, s[{sPtrDt}:{sPtrDt+1}], s{sTmp}")
    a(f"s_load_dword s{sD}, s[{sPtrD}:{sPtrD+1}], s{sTmp}")
    PR=240
    a(f"s_mul_i32 s{sPo}, s{sCh}, 384")
    a(f"v_lshlrev_b32 v{vP}, 1, v{lane}")
    for p in range(3):
        for i,nm in enumerate(("logA","Aim","Cre","Cim")):
            a(f"buffer_load_ushort v{PR+4*p+i}, v{vP}, s[{SP[nm]}:{SP[nm]+3}], s{sPo} offen offset:{128*p}")
    nonce_load(a)
    NT=1+(k_touch(a, sWv, lane, 24, 235) if opts.get('ktouch',1)==1 else 0)
    if opts.get('tlbw')==1: NT+=tlb_warm(a, lane, 233, 20)
    if opts.get('tlbw')==2:
        lt_=a.newlabel('Ltlb')
        a(f"s_cmp_ge_u32 s2, 264\ns_cbranch_scc1 {lt_}\ns_cmp_lg_u32 s{sWv}, 3\ns_cbranch_scc1 {lt_}")
        tlb_warm(a, lane, 233, 20)
        a.label(lt_)
    if opts.get('prio'): a(f"s_setprio {opts.get('sprio',1)}")
    if LN2:
        a(f"s_waitcnt vmcnt({12+NT})")
        ln8_compute(a, sLam, sWv, 64, 80, 0)
        a("s_waitcnt lgkmcnt(0)\ns_barrier")
        NT+=4
    a(f"s_mul_i32 s{sTb}, s{sWv}, {TBL}")
    vTw1=8
    a(f"v_mul_u32_u24 v{vTw}, {ROW}, v{lane}")
    a(f"v_add_u32 v{vTw}, s{sTb}, v{vTw}")
    a(f"v_bfe_u32 v{t0}, v{lane}, 2, 1\nv_lshlrev_b32 v{t0}, 4, v{t0}")
    a(f"v_sub_u32 v{vTw1}, v{vTw}, v{t0}\nv_add_u32 v{vTw}, v{vTw}, v{t0}")
    a(f"v_bfe_u32 v{t0}, v{lane}, 4, 1")
    a(f"v_lshlrev_b32 v{t0}, 2, v{t0}")
    a(f"v_bfe_u32 v{t1}, v{lane}, 2, 2")
    a(f"v_add_u32 v{t0}, v{t0}, v{t1}")
    a(f"v_mul_u32_u24 v{vTrA}, {ROW}, v{t0}")
    a(f"v_and_b32 v{t1}, 1, v{lane}")
    a(f"v_lshl_add_u32 v{vTrA}, v{t1}, 3, v{vTrA}")
    a(f"v_bfe_u32 v{t1}, v{lane}, 1, 1\nv_bfe_u32 v{t0}, v{lane}, 4, 1\nv_xor_b32 v{t1}, v{t1}, v{t0}")
    a(f"v_lshl_add_u32 v{vTrA}, v{t1}, 4, v{vTrA}")
    a(f"v_add_u32 v{vTrA}, s{sTb}, v{vTrA}")
    a(f"v_lshrrev_b32 v{t0}, 5, v{lane}")
    a(f"v_mul_u32_u24 v{t1}, 32, v{t0}")
    a(f"v_add_u32 v{vTrB}, v{vTrA}, v{t1}")
    a(f"v_add_u32 v{vTrB}, 192, v{vTrB}")
    a(f"v_mul_u32_u24 v{t1}, 96, v{t0}")
    a(f"v_add_u32 v{vTrA}, v{vTrA}, v{t1}")
    vDt=20; vDs=21
    a("s_waitcnt lgkmcnt(0)")
    a(f"s_and_b32 s{sTmp}, s{sCh}, 1\ns_lshl_b32 s{sTmp}, s{sTmp}, 4")
    a(f"s_lshr_b32 s{sDt}, s{sDt}, s{sTmp}\ns_lshl_b32 s{sDt}, s{sDt}, 16")
    a(f"s_lshr_b32 s{sD}, s{sD}, s{sTmp}\ns_lshl_b32 s{sD}, s{sD}, 16")
    a(f"v_mov_b32 v{vDt}, s{sDt}")
    a(f"v_mul_f32 v{vDt}, {hex(LOG2E)}, v{vDt}")
    a(f"v_exp_f32 v{vDt}, v{vDt}")
    a(f"v_cvt_pk_bf16_f32 v{vDt}, v{vDt}, v{vDt}")
    a(f"v_and_b32 v{vDt}, 0xffff0000, v{vDt}")
    KACC=24
    for r in range(12): a(f"v_mov_b32 v{KACC+r}, 0")
    CUR=36
    AR=40; TH=41; Z1=42; Z8=44; Z128=46; M=48; TT=49
    H=52
    S1=84
    S2=100
    S3=116
    Lr=136
    PK=172
    FR=204
    a(f"s_waitcnt vmcnt({NT})")
    S(1)
    if opts.get('ktouch',1)==2: k_touch(a, sWv, lane, 24, 235, g0=2)
    HYB=(opts.get('kpk',0)==2)
    a(f"s_mov_b32 s{sCnt}, {2 if HYB else opts.get('kgrep',3)}")
    def kpass(usepk):
        global USEPK
        USEPK=usepk
        for i in range(4): a(f"v_lshlrev_b32 v{CUR+i}, 16, v{PR+i}")
        for i in range(8): a(f"v_mov_b32 v{PR+i}, v{PR+4+i}")
        a(f"v_mul_f32 v{AR}, {hex(LOG2E)}, v{CUR}")
        a(f"v_exp_f32 v{AR}, v{AR}")
        a(f"v_cvt_pk_bf16_f32 v{AR}, v{AR}, v{AR}")
        a(f"v_and_b32 v{AR}, 0xffff0000, v{AR}")
        a(f"v_mul_f32 v{AR}, v{AR}, v{vDt}")
        a(f"v_mul_f32 v{AR}, {hex(LOG2E|0x80000000)}, v{AR}")
        a(f"v_mul_f32 v{TH}, v{CUR+1}, v{vDt}")
        a(f"v_mul_f32 v{TH}, {hex(INV2PI)}, v{TH}")
        def zpow(dst, mult):
            if mult==1:
                a(f"v_exp_f32 v{M}, v{AR}")
                a(f"v_fract_f32 v{TT}, v{TH}")
            else:
                a(f"v_mul_f32 v{M}, {float(mult)}, v{AR}" if mult in (2,4) else f"v_mul_f32 v{M}, {hex(0x41000000)}, v{AR}")
                a(f"v_exp_f32 v{M}, v{M}")
                a(f"v_mul_f32 v{TT}, {hex(0x41000000)}, v{TH}")
                a(f"v_fract_f32 v{TT}, v{TT}")
            a(f"v_cos_f32 v{dst}, v{TT}")
            a(f"v_sin_f32 v{dst+1}, v{TT}")
            a(f"v_mul_f32 v{dst}, v{M}, v{dst}")
            a(f"v_mul_f32 v{dst+1}, v{M}, v{dst+1}")
        zpow(Z1,1); zpow(Z8,8)
        a(f"v_add_f32 v{M}, v{vDt}, v{vDt}")
        a(f"v_mul_f32 v{H}, v{CUR+2}, v{M}")
        a(f"v_mul_f32 v{H+1}, v{CUR+3}, v{M}")
        nchunk=[0]
        def wr(vals, im, neg, c):
            base=PK+4*(nchunk[0]%8); nchunk[0]+=1
            cnt=len(vals)//2
            for p in range(cnt):
                x=vals[2*p]+im; y=vals[2*p+1]+im
                if neg: a(f"v_cvt_pk_bf16_f32 v{base+p}, -v{x}, -v{y}")
                else: a(f"v_cvt_pk_bf16_f32 v{base+p}, v{x}, v{y}")
            reg=vTw if c%2==0 else vTw1
            if cnt==4: a(f"ds_write_b128 v{reg}, v[{base}:{base+3}] offset:{16*c}")
            else: a(f"ds_write_b32 v{reg}, v{base} offset:{16*c}")
        def wrH(vals, i):
            wr(vals,0,False,i); wr(vals,1,True,6+i)
        a(f"v_mov_b32 v{Lr}, 1.0\nv_mov_b32 v{Lr+1}, 0")
        a(f"v_mov_b32 v{Lr+2}, v{Z8}\nv_mov_b32 v{Lr+3}, v{Z8+1}")
        for j in range(2,17):
            cmul(a, Lr+2*j, Lr+2*(j-1), Z8)
            if j<=8:
                r=j-1
                cmul(a, H+2*r, H+2*(r-1), Z1)
            if j==8:
                L0=[Lr+2*i for i in range(8)]
                wr(L0,0,False,12); wr(L0,1,False,14)
            if j==10: wrH([H+2*i for i in range(8)],0)
        L1=[Lr+2*i for i in range(8,16)]
        z128=Lr+32
        for r in range(8):
            cmul(a, H+2*(8+r), H+2*r, z128)
            if r==3: wr(L1,0,False,13)
            if r==7: wr(L1,1,False,15)
        for r in range(4): cmul(a, S1+2*r, H+2*(8+2*r), z128)
        wrH([H+2*i for i in range(8,16)],1)
        for r in range(4): cmul(a, S1+2*(4+r), S1+2*r, z128)
        cmul(a, S2, S1+8, z128); cmul(a, S2+2, S1+8+4, z128)
        wrH([S1+2*i for i in range(8)],2)
        for i in range(1,4):
            for r in range(2): cmul(a, S2+4*i+2*r, S2+4*(i-1)+2*r, z128)
        cmul(a, S3, S2+12, z128)
        for i in range(1,9):
            cmul(a, S3+2*i, S3+2*(i-1), z128)
            if i==2: wrH([S2+2*i_ for i_ in range(8)],3)
        a(f"v_mov_b32 v{S3+18}, 0\nv_mov_b32 v{S3+19}, 0")
        wrH([S3+2*i for i in range(8)],4)
        wrH([S3+16,S3+18],5)
        a("s_waitcnt lgkmcnt(0)")
        FB=52
        for s_ in range(4):
            fb=FB+16*s_
            for q in range(2):
                a(f"ds_read_b64_tr_b16 v[{fb+12+2*q}:{fb+12+2*q+1}], v{vTrB} offset:{(16*s_+8*q)*ROW}")
            for t in range(3):
                for q in range(2):
                    a(f"ds_read_b64_tr_b16 v[{fb+4*t+2*q}:{fb+4*t+2*q+1}], v{vTrA} offset:{(16*s_+8*q)*ROW+32*t}")
        for s_ in range(4):
            fb=FB+16*s_
            a(f"s_waitcnt lgkmcnt({min(15,8*(3-s_))})")
            for t in range(3):
                a(f"v_mfma_f32_16x16x32_bf16 v[{KACC+4*t}:{KACC+4*t+3}], v[{fb+4*t}:{fb+4*t+3}], v[{fb+12}:{fb+15}], v[{KACC+4*t}:{KACC+4*t+3}]")
    if opts.get('nw'):
        labskip=a.newlabel('Lskip')
        a(f"s_cmp_ge_u32 s{sWv}, {opts['nw']}\ns_cbranch_scc1 {labskip}")
    lab=a.newlabel('Lkg'); a.label(lab)
    KG0=len(a.ins)
    kpass(bool(opts.get('kpk',0)))
    if LN2:
        labf=a.newlabel('Lnf')
        a(f"s_cmp_lg_u32 s{sCnt}, 3\ns_cbranch_scc1 {labf}")
        a("s_waitcnt vmcnt(0)\ns_barrier")
        nonce_ready(a)
        a(f"s_lshl_b32 s{sTmp}, s{sLam}, 6\ns_add_u32 s{sTmp}, s{sTmp}, {FL_LN}")
        flag_store(a, sTmp, 170)
        a.label(labf)
    if any(opts.get(k_) for k_ in ('kg_nods','kg_nomfma','kg_novalu','kg_nocvt','kg_nowr','kg_nord','kg_notrans','kg_nowait')):
        body=a.ins[KG0:]; keep=[]
        for x in body:
            if opts.get('kg_nods') and x.kind=='ds': continue
            if opts.get('kg_nomfma') and x.kind=='mfma': continue
            if opts.get('kg_novalu') and x.kind in ('valu','trans'): continue
            if opts.get('kg_nocvt') and x.op.startswith('v_cvt_pk'): continue
            if opts.get('kg_nowr') and x.op.startswith('ds_write'): continue
            if opts.get('kg_nord') and x.op.startswith('ds_read'): continue
            if opts.get('kg_notrans') and x.kind=='trans': continue
            if opts.get('kg_nowait') and x.op=='s_waitcnt': continue
            keep.append(x)
        a.ins=a.ins[:KG0]+keep
    a(f"s_sub_u32 s{sCnt}, s{sCnt}, 1")
    a(f"s_cmp_lg_u32 s{sCnt}, 0")
    a("s_nop 4")
    a(f"s_cbranch_scc1 {lab}")
    if HYB: kpass(False)
    if opts.get('nw'): a.label(labskip)
    S(2)
    if opts.get('prio') and 'xprio' in opts: a(f"s_setprio {opts['xprio']}")
    if opts.get('kgexit'): return
    for w in range(4):
        pass
    a(f"s_mov_b32 s{sKn}, {KN_OFF[0]}\ns_mov_b32 s{sR}, {R_OFF[0]}")
    for w in range(1,4):
        a(f"s_cmp_eq_u32 s{sWv}, {w}\ns_cselect_b32 s{sKn}, {KN_OFF[w]}, s{sKn}\ns_cselect_b32 s{sR}, {R_OFF[w]}, s{sR}")
    vJ=36; vG=37; vK=38; vK2=39; B=40
    a(f"v_and_b32 v{vJ}, 15, v{lane}")
    a(f"v_lshrrev_b32 v{vG}, 4, v{lane}")
    a(f"v_lshlrev_b32 v{vK}, 2, v{lane}")
    a(f"v_add_u32 v{vK}, s{sKn}, v{vK}")
    a(f"v_mov_b32 v{B}, 0")
    a(f"s_mov_b64 s[{sMask}:{sMask+1}], 0xfff")
    a(f"s_mov_b64 exec, s[{sMask}:{sMask+1}]")
    a(f"ds_write_b32 v{vK}, v{B}")
    a(f"s_mov_b64 exec, -1")
    a(f"v_lshlrev_b32 v{vK}, 4, v{vJ}")
    a(f"v_add_u32 v{vK}, s{sKn}, v{vK}")
    a(f"v_add_u32 v{vK}, 48, v{vK}")
    T2=KACC+8
    a(f"v_lshlrev_b32 v{vK2}, 10, v{vG}")
    a(f"v_add_u32 v{vK2}, v{vK}, v{vK2}")
    a(f"v_add_u32 v{vK2}, 2048, v{vK2}")
    a(f"v_and_b32 v{t0}, 1, v{vJ}")
    a(f"v_lshlrev_b32 v{t0}, 3, v{t0}")
    a(f"v_sub_u32 v{t1}, v{vK2}, v{t0}")
    for r in range(4):
        a(f"v_cvt_pk_bf16_f32 v{B+2*r}, v{T2+r}, v{T2+r}")
        a(f"v_mov_b32 v{B+2*r+1}, v{B+2*r}")
    def seg3(r):
        a(f"ds_write_b64 v{vK2}, v[{B+2*r}:{B+2*r+1}] offset:{r*256}")
    a(f"v_subrev_u32 v{vK2}, 8, v{vK2}")
    for r in range(4):
        a(f"s_mov_b64 exec, {hex(0x1ffffffff) if r==0 else hex(0xffffffff)}" if False else f"s_mov_b32 exec_lo, -1\ns_mov_b32 exec_hi, {1 if r==0 else 0}")
        a(f"ds_write_b64 v{vK2}, v[{B+2*r}:{B+2*r+1}] offset:{r*256}")
        a(f"ds_write_b64 v{vK2}, v[{B+2*r}:{B+2*r+1}] offset:{r*256+8}")
    for r in range(4):
        a(f"s_mov_b32 exec_lo, -1\ns_mov_b32 exec_hi, {1 if r==0 else 0}")
        a(f"ds_write_b16 v{t1}, v{B+2*r} offset:{r*256+8}")
    a("s_mov_b64 exec, -1")
    T1=KACC+4
    a(f"v_subrev_u32 v{t0}, 2, v{vG}")
    a(f"v_lshlrev_b32 v{t0}, 9, v{t0}")
    a(f"v_add_u32 v{vK2}, v{vK}, v{t0}")
    a(f"v_add_u32 v{vK2}, {1024-4}, v{vK2}")
    a(f"s_mov_b32 exec_lo, 0\ns_mov_b32 exec_hi, -1")
    for b in range(2):
        v0_=T1+2*b; v1_=T1+2*b+1
        a(f"v_cvt_pk_bf16_f32 v{B}, v{v0_}, v{v0_}")
        a(f"v_cvt_pk_bf16_f32 v{B+1}, v{v0_}, v{v1_}")
        a(f"v_cvt_pk_bf16_f32 v{B+2}, v{v1_}, v{v1_}")
        a(f"ds_write_b32 v{vK2}, v{B} offset:{b*256}")
        a(f"ds_write_b64 v{vK2}, v[{B}:{B+1}] offset:{b*256+4}")
        a(f"ds_write_b32 v{vK2}, v{B+2} offset:{b*256+12}")
        a("s_nop 1")
    a(f"s_mov_b32 exec_lo, -1\ns_mov_b32 exec_hi, 0")
    a(f"v_lshlrev_b32 v{t0}, 8, v{vG}")
    a(f"v_add_u32 v{vK2}, v{vK}, v{t0}")
    a(f"v_add_u32 v{vK2}, {512-2}, v{vK2}")
    a(f"v_cvt_pk_bf16_f32 v{B}, v{T1}, v{T1}")
    a(f"v_cvt_pk_bf16_f32 v{B+1}, v{T1+1}, v{T1+2}")
    a(f"v_cvt_pk_bf16_f32 v{B+2}, v{T1+2}, v{T1+2}")
    a(f"v_cvt_pk_bf16_f32 v{B+3}, v{T1+3}, v{T1+3}")
    a(f"ds_write_b16 v{vK2}, v{B}")
    a(f"v_add_u32 v{vK2}, 2, v{vK2}")
    a(f"ds_write_b64 v{vK2}, v[{B}:{B+1}]")
    a(f"ds_write_b32 v{vK2}, v{B+2} offset:8")
    a(f"ds_write_b16 v{vK2}, v{B+3} offset:12")
    a("s_mov_b64 exec, -1")
    a(f"v_lshrrev_b32 v{t0}, 1, v{vG}")
    a(f"v_lshlrev_b32 v{t0}, 8, v{t0}")
    a(f"v_add_u32 v{vK2}, v{vK}, v{t0}")
    a(f"v_and_b32 v{t0}, 1, v{vG}")
    a(f"v_lshl_add_u32 v{vK2}, v{t0}, 3, v{vK2}")
    a(f"v_cvt_pk_bf16_f32 v{B+4}, v{KACC}, v{KACC+1}")
    a(f"v_cvt_pk_bf16_f32 v{B+5}, v{KACC+2}, v{KACC+3}")
    a(f"ds_write_b64 v{vK2}, v[{B+4}:{B+5}]")
    a("s_waitcnt lgkmcnt(0)")
    a("s_barrier")
    S(3)
    vU=36
    a(f"v_lshlrev_b32 v{t0}, 3, v0")
    a(f"v_mov_b32 v{B}, 0\nv_mov_b32 v{B+1}, 0")
    a(f"ds_write_b64 v{t0}, v[{B}:{B+1}] offset:{U_OFF}")
    CACC=24
    vAa=56; vBa=[57,58,59,60]; vRw=61; vKr=62
    AF=64
    BF=96
    vb_=184; vg_=185
    a(f"v_and_b32 v{vb_}, 15, v{lane}")
    a(f"v_lshrrev_b32 v{vg_}, 4, v{lane}")
    a(f"v_and_b32 v{t0}, 3, v{vb_}")
    a(f"v_mul_u32_u24 v{vAa}, {RC}, v{t0}")
    a(f"v_lshrrev_b32 v{t0}, 2, v{vb_}")
    a(f"v_lshlrev_b32 v{t0}, 3, v{t0}")
    a(f"v_sub_u32 v{vAa}, v{vAa}, v{t0}")
    a(f"v_lshrrev_b32 v{t0}, 1, v{vg_}")
    a(f"v_lshlrev_b32 v{t0}, 5, v{t0}")
    a(f"v_sub_u32 v{vAa}, v{vAa}, v{t0}")
    a(f"v_and_b32 v{t0}, 1, v{vg_}")
    a(f"v_lshl_add_u32 v{vAa}, v{t0}, 4, v{vAa}")
    a(f"v_add_u32 v{vAa}, s{sR}, v{vAa}")
    a(f"v_lshlrev_b32 v{t0}, 1, v{vb_}")
    a(f"v_add_u32 v{t0}, 32, v{t0}")
    a(f"v_and_b32 v{t1}, 1, v{vg_}")
    a(f"v_add_u32 v{t0}, v{t0}, v{t1}")
    a(f"v_and_b32 v{t1}, 2, v{vg_}")
    a(f"v_sub_u32 v{t0}, v{t0}, v{t1}")
    for rm in range(4):
        a(f"v_lshrrev_b32 v{t1}, 2, v{t0}")
        a(f"v_subrev_u32 v{t1}, {rm}, v{t1}")
        a(f"v_and_b32 v{t1}, 3, v{t1}")
        a(f"v_xor_b32 v{t1}, s{sWv}, v{t1}")
        a(f"v_lshlrev_b32 v{t1}, 4, v{t1}")
        a(f"v_lshl_add_u32 v{vBa[rm]}, v{t0}, 6, v{t1}")
        a(f"v_add_u32 v{vBa[rm]}, {U_OFF-256*7}, v{vBa[rm]}")
    a(f"v_lshlrev_b32 v{vRw}, 4, v{lane}")
    a(f"v_add_u32 v{vRw}, s{sR}, v{vRw}")
    vL16=63
    a(f"v_lshlrev_b32 v{vL16}, 4, v{lane}")
    a(f"s_mov_b32 s{sBf}, 0xffff")
    RB=160
    def build_R(ps):
        M0=127 if ps==0 else 255
        for rd in range(3):
            if rd==2:
                a(f"s_mov_b32 exec_lo, 3\ns_mov_b32 exec_hi, 0")
            off=40+16*(M0-64*rd)
            a(f"s_add_u32 s{sTmp}, s{sKn}, {off}")
            a(f"v_sub_u32 v{vKr}, s{sTmp}, v{vL16}")
            p=RB
            a(f"ds_read_b64 v[{p}:{p+1}], v{vKr}")
            a(f"ds_read_b128 v[{p+2}:{p+5}], v{vKr} offset:8")
            a("s_waitcnt lgkmcnt(0)")
            o=RB+8
            for mu_ in range(4):
                a(f"v_bfi_b32 v{o+mu_}, s{sBf}, v{p+4-mu_}, v{p+3-mu_}")
                a(f"v_alignbit_b32 v{o+4+mu_}, v{p+4-mu_}, v{p+4-mu_}, 16")
                a(f"v_bfi_b32 v{o+8+mu_}, s{sBf}, v{p+5-mu_}, v{p+4-mu_}")
                a(f"v_alignbit_b32 v{o+12+mu_}, v{p+5-mu_}, v{p+5-mu_}, 16")
            for sg in range(4):
                a(f"ds_write_b128 v{vRw}, v[{o+4*sg}:{o+4*sg+3}] offset:{sg*RC+1024*rd}")
            if rd==2: a("s_mov_b64 exec, -1")
        a("s_waitcnt lgkmcnt(0)")
    def conv_pass(ps):
        nB=8-4*ps
        def rdA(rho,setp):
            out=[]
            for il in range(4):
                kl=rho+8*il
                for hf in range(2):
                    r=AF+16*setp+4*il+2*hf
                    out.append(f"ds_read_b64 v[{r}:{r+1}], v{vAa} offset:{2040-64*kl+8*hf}")
            return out
        def rdB(rho,setp):
            out=[]
            for tau in range(nB):
                r=BF+32*setp+4*tau
                out.append(f"ds_read_b128 v[{r}:{r+3}], v{vBa[rho%4]} offset:{2048*tau+256*(7-rho)}")
            return out
        for x in rdA(0,0)+rdB(0,0): a(x)
        for rho in range(8):
            sp=rho%2
            a("s_waitcnt lgkmcnt(0)")
            nxt=(rdA(rho+1,1-sp)+rdB(rho+1,1-sp)) if rho<7 else []
            ms=[]
            for il in range(4):
                i=il+4*ps
                for tau in range(nB):
                    t=i+tau
                    if t>7: continue
                    ms.append((t,il,tau))
            ni=0
            for n,(t,il,tau) in enumerate(ms):
                d=CACC+4*t; A_=AF+16*sp+4*il; B_=BF+32*sp+4*tau
                cc="0" if (ps==0 and rho==0 and il==0) else f"v[{d}:{d+3}]"
                a(f"v_mfma_f32_16x16x32_bf16 v[{d}:{d+3}], v[{A_}:{A_+3}], v[{B_}:{B_+3}], {cc}")
                k=-(-len(nxt)//len(ms)) if n<len(ms) else 0
                for _ in range(k):
                    if ni<len(nxt): a(nxt[ni]); ni+=1
    build_R(0)
    a("s_waitcnt vmcnt(0)")
    if not LN2: nonce_ready(a)
    if opts.get('prio') and 'xprio' not in opts: a(f"s_setprio {opts.get('cprio',0)}")
    if opts.get('cnt',0) and not (opts.get('ln8') or LN2):
        lw0=a.newlabel('Lw0')
        a(f"s_cmp_lg_u32 s{sWv}, 0\ns_cbranch_scc1 {lw0}")
        dbg_srd(a, 24)
        cnt_poll(a, 24, 0, 128, B+4, sleep=opts.get('slpl',16))
        a.label(lw0)
    else:
        if opts.get('ln8') or LN2:
            a(f"v_lshlrev_b32 v{B+4}, 6, v0\nv_add_u32 v{B+4}, {FL_LN}, v{B+4}")
        else:
            a(f"v_and_b32 v{B+4}, 31, v0\ns_lshl_b32 s{sTmp}, s{sWv}, 5\nv_add_u32 v{B+4}, s{sTmp}, v{B+4}\nv_lshlrev_b32 v{B+4}, 6, v{B+4}\nv_add_u32 v{B+4}, {FL_LN}, v{B+4}")
        poll(a, [B+4], B+6, mask=(0xffffffff,0) if not (opts.get('ln8') or LN2) else None, sleep=opts.get('slpl',32))
    a("s_barrier")
    a(f"v_lshrrev_b32 v{t0}, 2, v{lane}")
    a(f"v_lshlrev_b32 v{vU}, 7, v{t0}")
    a(f"v_bfe_u32 v{t0}, v{lane}, 4, 2")
    a(f"v_and_b32 v{t1}, 3, v{lane}")
    a(f"v_xor_b32 v{t0}, v{t0}, v{t1}")
    a(f"v_lshl_add_u32 v{vU}, v{t0}, 4, v{vU}")
    a(f"s_lshr_b32 s{sTmp}, s{sQ}, 1\ns_lshl_b32 s{sTmp}, s{sTmp}, 15")
    a(f"s_and_b32 s{sTmp2}, s{sQ}, 1\ns_lshl_b32 s{sTmp2}, s{sTmp2}, 6\ns_add_u32 s{sTmp}, s{sTmp}, s{sTmp2}")
    a(f"s_lshl_b32 s{sTmp2}, s{sWv}, 13\ns_add_u32 s{sTmp}, s{sTmp}, s{sTmp2}")
    if WS_XNT: a(f"s_add_u32 s{sTmp}, s{sTmp}, {WS_XNT}")
    a(f"s_lshl_b32 s{sTmp2}, s{sWv}, 12\ns_add_u32 s{sTmp2}, s{sTmp2}, {U_OFF+2048}")
    for i in range(4):
        a(f"s_add_u32 m0, s{sTmp2}, {i*1024}")
        a(f"buffer_load_dwordx4 v{vU}, s[{SWS}:{SWS+3}], s{sTmp} offen{ld} lds")
        if i<3: a(f"s_add_u32 s{sTmp}, s{sTmp}, 2048")
    a("s_waitcnt vmcnt(0) lgkmcnt(0)")
    a("s_barrier")
    if opts.get('gate',1):
        a(f"s_lshl_b32 s{sTmp}, s{sQ}, 6\ns_add_u32 s{sTmp}, s{sTmp}, {FL_UD}\nv_mov_b32 v{RB}, s{sTmp}")
        poll(a, [RB], RB+1, mask=(1,0), sleep=opts.get('slp',8))
    if opts.get('prio') and 'xprio' in opts: a(f"s_setprio {opts.get('cprio',0)}")
    S(4)
    if opts.get('nw'):
        labskip2=a.newlabel('Lskip')
        a(f"s_cmp_ge_u32 s{sWv}, {opts['nw']}\ns_cbranch_scc1 {labskip2}")
    conv_pass(0)
    S(5)
    build_R(1)
    conv_pass(1)
    if opts.get('prio'): a(f"s_setprio {opts.get('eprio',3)}")
    if opts.get('nw'): a.label(labskip2)
    S(6)
    vE=186; vS=187; vDp=188
    a(f"v_and_b32 v{t0}, 15, v{lane}")
    a(f"v_lshlrev_b32 v{t0}, 1, v{t0}")
    a(f"v_lshrrev_b32 v{t1}, 5, v{lane}")
    a(f"v_add_u32 v{t0}, v{t0}, v{t1}")
    a(f"v_bfe_u32 v{t1}, v{t0}, 2, 2")
    a(f"v_xor_b32 v{t1}, s{sWv}, v{t1}")
    a(f"v_lshlrev_b32 v{t1}, 4, v{t1}")
    a(f"v_lshl_add_u32 v{vE}, v{t0}, 6, v{t1}")
    a(f"v_bfe_u32 v{t1}, v{lane}, 4, 1")
    a(f"v_lshl_add_u32 v{vE}, v{t1}, 3, v{vE}")
    a(f"v_add_u32 v{vE}, {U_OFF+2048}, v{vE}")
    a(f"v_and_b32 v{t0}, 15, v{lane}")
    a(f"v_lshlrev_b32 v{vS}, 5, v{t0}")
    a(f"v_lshrrev_b32 v{t1}, 4, v{lane}")
    a(f"v_lshl_add_u32 v{vS}, v{t1}, 3, v{vS}")
    a(f"s_lshl_b32 s{sTmp}, s{sCh}, 12\ns_add_u32 s{sTmp}, s{sTmp}, {WS_AT}")
    a(f"v_add_u32 v{vS}, s{sTmp}, v{vS}")
    a(f"v_mov_b32 v{vDp}, s{sD}\nv_mov_b32 v{vDp+1}, s{sD}")
    UB=64
    for t in range(8):
        a(f"ds_read_b64 v[{UB+2*t}:{UB+2*t+1}], v{vE} offset:{2048*t}")
    T=96
    for t in range(8):
        a(f"s_waitcnt lgkmcnt({7-t})")
        d=CACC+4*t; u=UB+2*t; o=T+16+2*(t%2)
        a(f"v_lshlrev_b32 v{T}, 16, v{u}\nv_and_b32 v{T+1}, 0xffff0000, v{u}")
        a(f"v_lshlrev_b32 v{T+2}, 16, v{u+1}\nv_and_b32 v{T+3}, 0xffff0000, v{u+1}")
        for p in range(4): a(f"v_mul_f32 v{T+p}, v{T+p}, v{vDp}")
        for p in range(2): a(f"v_cvt_pk_bf16_f32 v{T+4+p}, v{T+2*p}, v{T+2*p+1}")
        for p in range(2): a(f"v_cvt_pk_bf16_f32 v{T+6+p}, v{d+2*p}, v{d+2*p+1}")
        for p in range(2):
            a(f"v_lshlrev_b32 v{T}, 16, v{T+4+p}\nv_and_b32 v{T+1}, 0xffff0000, v{T+4+p}")
            a(f"v_lshlrev_b32 v{T+2}, 16, v{T+6+p}\nv_and_b32 v{T+3}, 0xffff0000, v{T+6+p}")
            a(f"v_add_f32 v{T}, v{T}, v{T+2}\nv_add_f32 v{T+1}, v{T+1}, v{T+3}")
            a(f"v_cvt_pk_bf16_f32 v{o+p}, v{T}, v{T+1}")
        a(f"buffer_store_dwordx2 v[{o}:{o+1}], v{vS}, s[{SWS}:{SWS+3}], 0 offen offset:{512*t}{st}")
    a("s_waitcnt vmcnt(0)\ns_barrier")
    a(f"s_lshl_b32 s{sTmp}, s{sQ}, 6\ns_add_u32 s{sTmp}, s{sTmp}, {FL_A}")
    flag_store(a, sTmp, 2)
    S(7)
```

```python
from f_common import *
from f_ln8 import *
WST=12288
TST=16384
TOK0=4*WST

def emit_gemm(a, S0_, opts):
    dst=opts.get('dstamp')
    def S(i):
        if not dst: S0_(i)
    def SD(i):
        if dst: S0_(i)
    started=[False]
    sT=46; sFT=47; sJT=48; sJF=49
    SW=52
    sWv=56; sWoff=57; sToff=58; sMW=59; sMT=60; sTmp=61; sCnt=62; sTmp2=63; sX=64
    lane=1; t0=2; t1=3; vWa=[4,5,6]; vTok=[7,8,9,10]; vA=11; vA5=12; vB=[13,14,15,16]; vSt=17; vFl=[18]; vPk=[19,20]; vDum=22; vTch=[23,24]
    vStat=24
    ACC=64; Pq=160; Qq=176
    Qq=180
    a(f"s_setprio {opts.get('g0',2)}") if opts.get('prio') else None
    a(f"s_and_b32 s{sX}, s2, 7\ns_lshr_b32 s{sTmp}, s2, 3\ns_and_b32 s{sJT}, s{sTmp}, 7\ns_lshr_b32 s{sJF}, s{sTmp}, 3")
    a(f"s_lshr_b32 s{sT}, s{sX}, 2\ns_lshl_b32 s{sT}, s{sT}, 3\ns_add_u32 s{sT}, s{sT}, s{sJT}")
    a(f"s_and_b32 s{sFT}, s{sX}, 3\ns_lshl_b32 s{sFT}, s{sFT}, 2\ns_add_u32 s{sFT}, s{sFT}, s{sJF}")
    a(f"v_and_b32 v{lane}, 63, v0\nv_lshrrev_b32 v{t0}, 6, v0\nv_readfirstlane_b32 s{sWv}, v{t0}")
    sLam=50
    if opts.get('ln8'): a(f"s_lshl_b32 s{sLam}, s{sX}, 5\ns_lshr_b32 s{sTmp}, s2, 3\ns_add_u32 s{sLam}, s{sLam}, s{sTmp}")
    if opts.get('ln8'): ln8_loads(a, sLam, 64, 76)
    a(f"s_cmp_lt_u32 s{sWv}, 2")
    a(f"s_cselect_b32 s{sTmp2}, 0, 10")
    a(f"s_and_b32 s{sTmp}, s{sWv}, 1\ns_mul_i32 s{sTmp}, s{sTmp}, 192")
    for t in range(3):
        a(f"v_add_u32 v{t0}, s{sTmp}, v{lane}")
        if t: a(f"v_add_u32 v{t0}, {64*t}, v{t0}")
        a(f"v_mul_u32_u24 v{t1}, 5462, v{t0}\nv_lshrrev_b32 v{t1}, 16, v{t1}")
        a(f"v_mul_u32_u24 v{vWa[t]}, 12, v{t1}\nv_sub_u32 v{t0}, v{t0}, v{vWa[t]}")
        a(f"v_add_u32 v{t0}, s{sTmp2}, v{t0}\nv_subrev_u32 v{vWa[t]}, 12, v{t0}")
        a(f"v_cmp_le_u32 vcc, 12, v{t0}\nv_cndmask_b32 v{t0}, v{t0}, v{vWa[t]}, vcc")
        a(f"v_mul_u32_u24 v{t1}, 3072, v{t1}\nv_lshl_add_u32 v{vWa[t]}, v{t0}, 4, v{t1}")
        if t: a(f"v_subrev_u32 v{vWa[t]}, {1024*t}, v{vWa[t]}")
    a(f"s_mul_i32 s{sWoff}, s{sFT}, 192\ns_mul_i32 s{sMW}, s{sWv}, 3072")
    sWlim=41; sC0=51
    ROT=opts.get('rot',1)
    sWlim=75; sTlim=74
    if ROT:
        a(f"s_lshr_b32 s{sTmp}, s{sJT}, 2\ns_add_u32 s{sC0}, s{sJT}, s{sTmp}")
        a(f"s_mul_i32 s{sTmp}, s{sJF}, 5\ns_lshr_b32 s{sTmp}, s{sTmp}, 1\ns_add_u32 s{sC0}, s{sC0}, s{sTmp}")
        a(f"s_cmp_ge_u32 s{sC0}, 10\ns_cselect_b32 s{sTmp}, 10, 0\ns_sub_u32 s{sC0}, s{sC0}, s{sTmp}")
        a(f"s_add_u32 s{sWlim}, s{sWoff}, {640*3072}")
        a(f"s_mul_i32 s{sTmp}, s{sC0}, {64*3072}\ns_add_u32 s{sWoff}, s{sWoff}, s{sTmp}")
    def adv_w():
        t=f"s_add_u32 s{sWoff}, s{sWoff}, {32*3072}"
        if ROT: t+=f"\ns_cmp_ge_u32 s{sWoff}, s{sWlim}\ns_cselect_b32 s{sTmp2}, {640*3072}, 0\ns_sub_u32 s{sWoff}, s{sWoff}, s{sTmp2}"
        return t
    def adv_t():
        t=f"s_add_u32 s{sToff}, s{sToff}, 128"
        if ROT: t+=f"\ns_cmp_ge_u32 s{sToff}, s{sTlim}\ns_cselect_b32 s{sTmp2}, 1280, 0\ns_sub_u32 s{sToff}, s{sToff}, s{sTmp2}"
        return t
    def dma_w(slot):
        if opts.get('nodmaw') and started[0]: return
        a(f"s_add_u32 m0, s{sMW}, {slot*WST}")
        for t in range(3):
            a(f"buffer_load_dwordx4 v{vWa[t]}, s[{SW}:{SW+3}], s{sWoff} offen offset:{1024*t} lds")
        a(adv_w())
    for ii in range(4):
        a(f"v_lshrrev_b32 v{t0}, 3, v{lane}")
        if ii: a(f"v_add_u32 v{t0}, {8*ii}, v{t0}")
        a(f"v_mul_u32_u24 v{vTok[ii]}, 1280, v{t0}")
        a(f"v_bfe_u32 v{t0}, v{t0}, 1, 3\nv_and_b32 v{t1}, 7, v{lane}\nv_xor_b32 v{t0}, v{t0}, v{t1}")
        a(f"v_lshl_add_u32 v{vTok[ii]}, v{t0}, 4, v{vTok[ii]}")
        if ii: a(f"v_subrev_u32 v{vTok[ii]}, {1024*ii}, v{vTok[ii]}")
    a(f"s_lshl_b32 s{sToff}, s{sT}, 7\ns_lshl_b32 s{sTmp}, s{sWv}, 5\ns_add_u32 s{sToff}, s{sToff}, s{sTmp}\ns_mul_i32 s{sToff}, s{sToff}, 1280")
    if ROT:
        a(f"s_add_u32 s{sTlim}, s{sToff}, 1280\ns_lshl_b32 s{sTmp}, s{sC0}, 7\ns_add_u32 s{sToff}, s{sToff}, s{sTmp}")
    a(f"s_lshl_b32 s{sMT}, s{sWv}, 12\ns_add_u32 s{sMT}, s{sMT}, {TOK0}")
    if opts.get('bench'): a(f"s_mov_b32 s77, s{sToff}")
    if opts.get('lateptr',1): ptr_ready(a)
    S(0) if opts.get('lateptr',1) else None
    a(f"s_cmp_lt_u32 s{sWv}, 2")
    a(f"s_cselect_b32 s{SW}, s{P['w1']}, s{P['w3']}\ns_cselect_b32 s{SW+1}, s{P['w1']+1}, s{P['w3']+1}")
    a(f"s_and_b32 s{SW+1}, s{SW+1}, 0xffff\ns_mov_b32 s{SW+2}, {640*1536*2}\ns_mov_b32 s{SW+3}, 0x20000")
    if opts.get('bench'):
        a(f"s_mov_b32 s78, {opts['bench']}")
        a(f"s_mov_b32 s79, s{sWoff}")
    dma_w(0)
    def dma_t(buf):
        if opts.get('nodmat') and started[0]: return
        a(f"s_add_u32 m0, s{sMT}, {buf*TST}")
        for ii in range(4):
            a(f"buffer_load_dwordx4 v{vTok[ii]}, s[{SX}:{SX+3}], s{sToff} offen offset:{1024*ii} lds")
        a(adv_t())
    LATE=opts.get('late12',0)
    dma_t(0)
    if opts.get('pbar',0): a("s_barrier")
    if not LATE: dma_w(1); dma_w(2); dma_t(1)
    if LATE==2: dma_w(1)
    nonce_load(a)
    started[0]=True
    vTw=23; vTt=25
    sTwo=80; sTto=81
    if opts.get('touch',0): a(f"s_lshr_b32 s{sTmp}, s2, 3\ns_lshl_b32 s{sTwo}, s{sTmp}, 1\ns_and_b32 s{sTmp2}, s{sWv}, 1\ns_add_u32 s{sTwo}, s{sTwo}, s{sTmp2}\ns_mul_i32 s{sTwo}, s{sTwo}, {2*3072}")
    if opts.get('touch',0): a(f"s_and_b32 s{sTmp2}, s{sX}, 3\ns_mul_i32 s{sTmp2}, s{sTmp2}, 768\ns_add_u32 s{sTwo}, s{sTwo}, s{sTmp2}\ns_add_u32 s{sTwo}, s{sTwo}, {3*32*3072}")
    if opts.get('touch',0): a(f"v_mul_u32_u24 v{t0}, 10923, v{lane}\nv_lshrrev_b32 v{t0}, 16, v{t0}\nv_mul_u32_u24 v{t1}, 6, v{t0}\nv_sub_u32 v{t1}, v{lane}, v{t1}")
    if opts.get('touch',0): a(f"v_mul_u32_u24 v{vTw}, 3072, v{t0}\nv_lshl_add_u32 v{vTw}, v{t1}, 7, v{vTw}")
    if opts.get('touch',0): a(f"s_lshr_b32 s{sTmp}, s2, 3\ns_lshl_b32 s{sTmp}, s{sTmp}, 2\ns_add_u32 s{sTmp}, s{sTmp}, s{sWv}\ns_lshl_b32 s{sTmp}, s{sTmp}, 3\ns_lshr_b32 s{sTmp2}, s{sX}, 2\ns_lshl_b32 s{sTmp2}, s{sTmp2}, 10\ns_add_u32 s{sTmp}, s{sTmp}, s{sTmp2}")
    if opts.get('touch',0): a(f"s_mul_i32 s{sTto}, s{sTmp}, 1280\ns_add_u32 s{sTto}, s{sTto}, {2*128}")
    if opts.get('touch',0): a(f"v_lshrrev_b32 v{t0}, 1, v{lane}\nv_mul_u32_u24 v{vTt}, 1280, v{t0}\nv_and_b32 v{t0}, 1, v{lane}\nv_lshl_add_u32 v{vTt}, v{t0}, 7, v{vTt}")
    def touch_batch(tok=True):
        if not opts.get('touch',0): return []
        a(f"s_mov_b64 exec, 0xfff")
        a(f"buffer_load_dword v{vDum}, v{vTw}, s[{SW}:{SW+3}], s{sTwo} offen")
        a(f"s_add_u32 s{sTwo}, s{sTwo}, {128*3072}")
        if tok:
            a(f"s_mov_b64 exec, 0xffff")
            a(f"buffer_load_dword v{vDum}, v{vTt}, s[{SX}:{SX+3}], s{sTto} offen")
            a(f"s_add_u32 s{sTto}, s{sTto}, 256")
        a("s_mov_b64 exec, -1")
        return ['x']*(2 if tok else 1)
    pre_touch=touch_batch()
    ntouch=len(pre_touch)
    if opts.get('ln8'):
        npre=3+4+({0:10,1:0,2:3}[LATE])+1+len(pre_touch)
        a(f"s_waitcnt vmcnt({npre})")
        S(1)
        nln=ln8_compute(a, sLam, sWv, 64, 76, 3*WST)
        ntouch+=nln
    a(f"v_lshrrev_b32 v{t0}, 5, v{lane}\nv_lshlrev_b32 v{t0}, 3, v{t0}\nv_bfe_u32 v{t1}, v{lane}, 2, 2\nv_add_u32 v{t0}, v{t0}, v{t1}")
    a(f"v_mul_u32_u24 v{vA}, 192, v{t0}\nv_and_b32 v{t1}, 3, v{lane}\nv_lshl_add_u32 v{vA}, v{t1}, 3, v{vA}")
    a(f"v_bfe_u32 v{t1}, v{lane}, 4, 1\nv_mul_u32_u24 v{t0}, {6144+32}, v{t1}\nv_add_u32 v{vA}, v{vA}, v{t0}")
    a(f"s_lshr_b32 s{sTmp}, s{sWv}, 1\ns_mul_i32 s{sTmp2}, s{sTmp}, 96\nv_add_u32 v{vA}, s{sTmp2}, v{vA}")
    a(f"s_mul_i32 s{sTmp2}, s{sTmp}, 192\nv_mul_u32_u24 v{t0}, s{sTmp2}, v{t1}\nv_sub_u32 v{vA5}, v{vA}, v{t0}")
    a(f"v_and_b32 v{t0}, 31, v{lane}\ns_and_b32 s{sTmp}, s{sWv}, 1\ns_lshl_b32 s{sTmp}, s{sTmp}, 6\nv_add_u32 v{t0}, s{sTmp}, v{t0}")
    a(f"v_bfe_u32 v{t1}, v{t0}, 1, 3\nv_lshrrev_b32 v{vB[3]}, 5, v{lane}\nv_xor_b32 v{t1}, v{t1}, v{vB[3]}")
    a(f"v_lshlrev_b32 v{t0}, 7, v{t0}\nv_add_u32 v{t0}, {TOK0}, v{t0}")
    for sp in range(4):
        a(f"v_xor_b32 v{vB[sp]}, {2*sp}, v{t1}\nv_lshl_add_u32 v{vB[sp]}, v{vB[sp]}, 4, v{t0}")
    a(f"v_bfe_u32 v{t0}, v{lane}, 4, 1\nv_mul_u32_u24 v{vSt}, 49152, v{t0}\nv_lshrrev_b32 v{t0}, 5, v{lane}\nv_lshl_add_u32 v{vSt}, v{t0}, 8, v{vSt}")
    a(f"v_and_b32 v{t0}, 15, v{lane}\nv_lshl_add_u32 v{vSt}, v{t0}, 4, v{vSt}")
    a(f"s_lshl_b32 s{sTmp}, s{sT}, 3\ns_and_b32 s{sTmp2}, s{sWv}, 1\ns_lshl_b32 s{sTmp2}, s{sTmp2}, 2\ns_add_u32 s{sTmp}, s{sTmp}, s{sTmp2}\ns_mul_i32 s{sTmp}, s{sTmp}, 49152")
    a(f"s_mul_i32 s{sTmp2}, s{sFT}, {12*256}\ns_add_u32 s{sTmp}, s{sTmp}, s{sTmp2}\ns_lshr_b32 s{sTmp2}, s{sWv}, 1\ns_mul_i32 s{sTmp2}, s{sTmp2}, {6*256}\ns_add_u32 s{sTmp}, s{sTmp}, s{sTmp2}")
    a(f"s_add_u32 s{sTmp}, s{sTmp}, {WS_H}\nv_add_u32 v{vSt}, s{sTmp}, v{vSt}")
    a(f"v_min_u32 v{t0}, 23, v{lane}\ns_mul_i32 s{sTmp}, s{sWv}, 24\nv_add_u32 v{t0}, s{sTmp}, v{t0}\nv_lshlrev_b32 v{t0}, 6, v{t0}\nv_add_u32 v{vPk[0]}, {FL_PK}, v{t0}")
    CACC=216; SEL=228
    for r in range(12): a(f"v_mov_b32 v{CACC+r}, 0")
    a(f"v_and_b32 v{t0}, 15, v{lane}\nv_bfe_u32 v{t1}, v{lane}, 4, 1\nv_cmp_eq_u32 vcc, v{t0}, v{t1}")
    a(f"v_mov_b32 v{t0}, 0x3f803f80")
    for r in range(4): a(f"v_cndmask_b32 v{SEL+r}, 0, v{t0}, vcc")
    a(f"s_and_b32 s{sTmp}, s{sWv}, 1\ns_cmp_eq_u32 s{sTmp}, 1\ns_cselect_b64 vcc, -1, 0")
    if opts.get('bench'):
        a("s_branch Lbench_go")
        a.label("Lbench_top")
        a(f"s_mov_b32 s{sWoff}, s79\ns_mov_b32 s{sToff}, s77")
        a("s_barrier")
        started[0]=False
        dma_w(0); dma_t(0); dma_w(1); dma_w(2); dma_t(1)
        if ntouch:
            for _ in range(ntouch): a(f"buffer_load_dword v{vDum}, v{vTch[0]}, s[{SX}:{SX+3}], 0 offen")
        started[0]=True
        a.label("Lbench_go")
        a("s_memtime s[74:75]\ns_memrealtime s[70:71]\ns_waitcnt lgkmcnt(0)")
    if not opts.get('ln8'): S(1)
    def reads(setb, st, s):
        slot=st%4; buf=(st//2)%2; sp=2*(st%2)+s
        R=[]
        def rb(nt): R.append((f"ds_read_b128 v[{setb+12+4*nt}:{setb+12+4*nt+3}], v{vB[sp]} offset:{buf*TST+nt*4096}", f"B{nt}"))
        def ra(j):
            for q in range(2):
                reg=vA5 if j==2 else vA
                R.append((f"ds_read_b64_tr_b16 v[{setb+4*j+2*q}:{setb+4*j+2*q+1}], v{reg} offset:{slot*WST+(16*s+4*q)*192+32*j}", f"A{j}"))
        rb(0); ra(0); ra(1); ra(2); rb(1)
        if opts.get('nods'): R=[]
        if opts.get('nodsB'): R=[x for x in R if x[1][0]!='B']
        if opts.get('nodsA'): R=[x for x in R if x[1][0]!='A']
        return R
    def mfma(setb, j, nt, zero=False):
        if opts.get('nomfma'): return
        d=ACC+16*(2*j+nt)
        c="0" if zero else f"v[{d}:{d+15}]"
        a(f"v_mfma_f32_32x32x16_bf16 v[{d}:{d+15}], v[{setb+4*j}:{setb+4*j+3}], v[{setb+12+4*nt}:{setb+12+4*nt+3}], {c}")
    ORDER=[(0,0),(1,0),(2,0),(0,1),(1,1),(2,1)]
    NEED={(0,0):"A0",(1,0):"A1",(2,0):"A2",(0,1):"B1",(1,1):None,(2,1):None}
    vq=['W0']*3+['T0']*4+({0:['W1']*3+['W2']*3+['T1']*4,1:[],2:['W1']*3}[LATE])+['x']+['x']*ntouch
    def vwait(tags):
        nonlocal vq
        idx=max(i for i,t in enumerate(vq) if t in tags)
        n=len(vq)-1-idx
        vq=vq[idx+1:]
        return n
    TOUCH_AT={0:True,3:True,7:True,11:True}
    def dma_list(st):
        L=[]
        if st+3<20 and not opts.get('nodmaw'):
            slot=(st+3)%4
            for t in range(3):
                pre=f"s_add_u32 m0, s{sMW}, {slot*WST}\ns_nop 0\n" if t==0 else ""
                post="\n"+adv_w() if t==2 else ""
                L.append((pre+f"buffer_load_dwordx4 v{vWa[t]}, s[{SW}:{SW+3}], s{sWoff} offen offset:{1024*t} lds"+post, f"W{st+3}"))
        if st%2==0 and st>=2 and st//2+1<10 and not opts.get('nodmat'):
            buf=(st//2+1)%2
            for ii in range(4):
                pre=f"s_add_u32 m0, s{sMT}, {buf*TST}\ns_nop 0\n" if ii==0 else ""
                post="\n"+adv_t() if ii==3 else ""
                L.append((pre+f"buffer_load_dwordx4 v{vTok[ii]}, s[{SX}:{SX+3}], s{sToff} offen offset:{1024*ii} lds"+post, f"T{st//2+1}"))
        return L
    def stage(st, first=False, extra1=None, extra2=None, fixed=None):
        need=[f"W{st}", f"T{st//2}"]
        n=vwait([t for t in need if t in vq]) if any(t in vq for t in need) else len(vq)
        if fixed is not None: assert n==fixed,(st,n,fixed)
        a(f"s_waitcnt vmcnt({n}) lgkmcnt(0)")
        if opts.get('ststamp') and st>0: a(f"v_writelane_b32 v250, s82, {st-1}")
        a("s_barrier")
        if opts.get('ststamp'): a("s_memrealtime s[82:83]")
        if st==0 and LATE:
            started[0]=False
            if LATE==1: dma_w(1); vq.extend(['W1']*3)
            dma_w(2); dma_t(1); vq.extend(['W2']*3+['T1']*4)
            started[0]=True
        if st==3: nonce_ready(a)
        if st==3 and opts.get('ln8'):
            a(f"s_lshl_b32 s{sTmp}, s{sLam}, 6\ns_add_u32 s{sTmp}, s{sTmp}, {FL_LN}")
            flag_store(a, sTmp, t0, keepvcc=True)
        if st in TOUCH_AT: vq.extend(touch_batch(tok=(st<=3 or TOUCH_AT[st])))
        lt=LdsTrack(a)
        DL=dma_list(st); di=0
        spread=opts.get('spread',1)
        if spread==1: order=[4,5,10,11,3,9,2,8]
        elif spread==2: order=[0,1,2,3,4,5,6,7,8,9,10,11]
        elif spread==3: order=[5,5,5,10,10,10,10]
        elif spread==4: order=[0,2,4,6,8,10,11]
        gaps={}
        srt=sorted(order[:len(DL)])
        for i,g in enumerate(srt): gaps.setdefault(g,[]).append(DL[i])
        def do_dma(g):
            for (t,tag) in gaps.get(g,[]):
                a(t); vq.append(tag)
        rdn=opts.get('rdn',2)
        def csum(setb, branch):
            if opts.get('nocs'): return
            lb=a.newlabel('Lcs')
            a(f"{branch} {lb}")
            for j in range(3):
                a(f"v_mfma_f32_16x16x32_bf16 v[{CACC+4*j}:{CACC+4*j+3}], v[{setb+4*j}:{setb+4*j+3}], v[{SEL}:{SEL+3}], v[{CACC+4*j}:{CACC+4*j+3}]")
            a.label(lb)
        cspos=opts.get('cspos',3)
        R=reads(Pq, st, 0); ri=0
        for k,(j,nt) in enumerate(ORDER):
            if not first: mfma(Qq,j,nt)
            if k==cspos and not first: csum(Qq, "s_cbranch_vccz")
            for _ in range(rdn):
                if ri<len(R): lt.issue(R[ri][0], 'P'+R[ri][1]); ri+=1
            do_dma(k)
        if extra1: extra1()
        R=reads(Qq, st, 1); ri=0
        for k,(j,nt) in enumerate(ORDER):
            if NEED[(j,nt)]: lt.wait('P'+NEED[(j,nt)])
            mfma(Pq,j,nt,zero=first)
            if k==cspos: csum(Pq, "s_cbranch_vccnz")
            for _ in range(rdn):
                if ri<len(R): lt.issue(R[ri][0], 'Q'+R[ri][1]); ri+=1
            do_dma(6+k)
        if extra2: extra2()
        return n
    if opts.get('prio') and 'g1' in opts: a(f"s_setprio {opts['g1']}")
    for st in range(0,4): stage(st, first=(st==0))
    S(2) if not opts.get("bench") else None
    if opts.get('clk'): a("s_memtime s[68:69]\ns_waitcnt lgkmcnt(0)\ns_mov_b32 s51, s68")
    if opts.get('ststamp') or opts.get('unroll'):
        for st in range(4,12): stage(st)
    else:
        a(f"s_mov_b32 s{sCnt}, 2")
        lab=a.newlabel('Lup'); a.label(lab)
        pat=[stage(st) for st in range(4,8)]
        a(f"s_sub_u32 s{sCnt}, s{sCnt}, 1\ns_cmp_lg_u32 s{sCnt}, 0\ns_cbranch_scc1 {lab}")
        sav=a.ins; a.ins=[]
        pat2=[stage(st) for st in range(8,12)]
        a.ins=sav
        assert pat==pat2,(pat,pat2)
    FLG=200
    def issue_flags():
        a("s_mov_b64 exec, 0xffff")
        a(f"buffer_load_dword v{FLG}, v{vFl[0]}, s[{SWS}:{SWS+3}], 0 offen sc1"); vq.append('F')
        a("s_mov_b64 exec, -1")
    CK=opts.get('ck',17)
    for st_ in range(12,CK): stage(st_)
    STAT=240
    CSR=208
    PKF=202
    vStA=201
    def check_and_load():
        a(f"v_and_b32 v{t0}, 31, v{lane}\ns_lshl_b32 s{sTmp}, s{sT}, 7\ns_and_b32 s{sTmp2}, s{sWv}, 1\ns_lshl_b32 s{sTmp2}, s{sTmp2}, 6\ns_add_u32 s{sTmp}, s{sTmp}, s{sTmp2}")
        a(f"v_add_u32 v{t0}, s{sTmp}, v{t0}\nv_lshlrev_b32 v{vStA}, 4, v{t0}\nv_add_u32 v{vStA}, {WS_STATS}, v{vStA}")
        for nt in range(2):
            a(f"buffer_load_dwordx4 v[{STAT+4*nt}:{STAT+4*nt+3}], v{vStA}, s[{SWS}:{SWS+3}], 0 offen offset:{512*nt} sc1"); vq.append('S')
        a(f"s_and_b32 s{sTmp}, s{sWv}, 1\ns_cmp_eq_u32 s{sTmp}, 1\ns_cselect_b64 vcc, -1, 0")
        if opts.get('cnt',0):
            dbg_srd(a, 76)
            a(f"s_mov_b64 exec, 1\nv_mov_b32 v{PKF+1}, 64")
            a(f"buffer_load_dword v{PKF}, v{PKF+1}, s[76:79], 0 offen sc1"); vq.append('S')
            a("s_mov_b64 exec, -1")
        else:
            a("s_mov_b32 exec_lo, 0xffffff\ns_mov_b32 exec_hi, 0")
            a(f"buffer_load_dword v{PKF}, v{vPk[0]}, s[{SWS}:{SWS+3}], 0 offen sc1"); vq.append('S')
            a("s_mov_b64 exec, -1")
    stage(CK, extra2=check_and_load)
    for st in range(CK+1,20): stage(st)
    a("s_waitcnt lgkmcnt(0)")
    for (j,nt) in ORDER: mfma(Qq,j,nt)
    if not opts.get('nocs'):
        lbq=a.newlabel('Lcs'); a(f"s_cbranch_vccz {lbq}")
        for j in range(3):
            a(f"v_mfma_f32_16x16x32_bf16 v[{CACC+4*j}:{CACC+4*j+3}], v[{Qq+4*j}:{Qq+4*j+3}], v[{SEL}:{SEL+3}], v[{CACC+4*j}:{CACC+4*j+3}]")
        a.label(lbq)
    if opts.get('bench'):
        a("s_waitcnt vmcnt(0)")
        a("s_memtime s[72:73]\ns_memrealtime s[68:69]\ns_waitcnt lgkmcnt(0)\ns_sub_u32 s72, s72, s74\ns_sub_u32 s68, s68, s70")
        a(f"s_cmp_eq_u32 s78, 1\ns_cselect_b32 s{84+2*7}, s68, s{84+2*7}")
        for r in range(opts['bench']):
            a(f"s_cmp_eq_u32 s78, {opts['bench']-r}\ns_cselect_b32 s{84+2*(4+r)}, s72, s{84+2*(4+r)}")
        a("s_sub_u32 s78, s78, 1\ns_cmp_lg_u32 s78, 0\ns_cbranch_scc1 Lbench_top")
        return
    if opts.get('ststamp'):
        a("s_waitcnt lgkmcnt(0)\nv_writelane_b32 v250, s82, 19\ns_memrealtime s[82:83]\ns_waitcnt lgkmcnt(0)\nv_writelane_b32 v250, s82, 20")
        lq=a.newlabel('Lq')
        a(f"s_cmp_lg_u32 s{sWv}, 0\ns_cbranch_scc1 {lq}")
        a(f"s_lshl_b32 s{sTmp}, s2, 7\ns_add_u32 s{sTmp}, s{sTmp}, 0xF40000\nv_lshlrev_b32 v251, 2, v{lane}\ns_mov_b32 exec_hi, 0")
        a(f"buffer_store_dword v250, v251, s[{SWS}:{SWS+3}], s{sTmp} offen\ns_mov_b64 exec, -1")
        a.label(lq)
    if opts.get('prio') and 'g2' in opts: a(f"s_setprio {opts['g2']}")
    S(3)
    if opts.get('clk'): a("s_memtime s[68:69]\ns_waitcnt lgkmcnt(0)\ns_sub_u32 s51, s68, s51")
    if opts.get('gate',1)==1:
        a(f"s_lshl_b32 s{sTmp}, s2, 6\ns_add_u32 s{sTmp}, s{sTmp}, {FL_UD}")
        flag_store(a, sTmp, t0)
    a("s_waitcnt vmcnt(0)")
    ls=a.newlabel('Lst'); lo=a.newlabel('Lst')
    a("s_mov_b32 s41, 0x40000")
    a.label(ls)
    a(f"v_cmp_ne_u32 vcc, s{S_NONCE}, v{STAT+2}\ns_mov_b64 s[44:45], vcc\nv_cmp_ne_u32 vcc, s{S_NONCE}, v{STAT+6}\ns_or_b64 s[44:45], s[44:45], vcc\ns_cmp_lg_u64 s[44:45], 0")
    a(f"s_cbranch_scc0 {lo}")
    if not (opts.get('nolnwait') or opts.get('only') in (1,5)):
        a("s_sub_u32 s41, s41, 1")
        a(f"s_cbranch_scc1 {lo}")
        a("s_sleep 4")
        for nt in range(2):
            a(f"buffer_load_dwordx4 v[{STAT+4*nt}:{STAT+4*nt+3}], v{vStA}, s[{SWS}:{SWS+3}], 0 offen offset:{512*nt} sc1")
        a("s_waitcnt vmcnt(0)")
        a(f"s_branch {ls}")
    a.label(lo)
    def pk_check():
        labp=a.newlabel('Lok')
        if opts.get('cnt',0):
            a(f"v_readfirstlane_b32 s44, v{PKF}\ns_cmp_ge_u32 s44, 96\ns_cbranch_scc1 {labp}")
            dbg_srd(a, 52)
            if not opts.get('nolnwait') and opts.get('only')!=1: cnt_poll(a, 52, 64, 96, PKF, sleep=4)
        else:
            a("s_mov_b32 exec_lo, 0xffffff\ns_mov_b32 exec_hi, 0")
            poll_check(a, 1, PKF)
            a("s_mov_b64 exec, -1")
            a(f"s_cbranch_scc0 {labp}")
            if not opts.get('nolnwait'): poll(a, [vPk[0]], PKF, mask=(0xffffff,0), sleep=4)
        a.label(labp)
    PKLATE=not opts.get('stgepi',0)
    if not PKLATE: pk_check()
    EA=Pq; EB=Pq+12
    a(f"v_and_b32 v{t0}, 15, v{lane}\nv_lshrrev_b32 v{t1}, 4, v{lane}\nv_lshlrev_b32 v{t1}, 4, v{t1}\nv_lshl_add_u32 v{t1}, v{t0}, 6, v{t1}")
    a(f"s_lshr_b32 s{sTmp}, s{sWv}, 1\ns_lshl_b32 s{sTmp}, s{sTmp}, 1\ns_and_b32 s{sTmp2}, s{sWv}, 1\ns_add_u32 s{sTmp}, s{sTmp}, s{sTmp2}\ns_mul_i32 s{sTmp}, s{sTmp}, 384")
    a(f"v_add_u32 v{t1}, s{sTmp}, v{t1}")
    a(f"s_mov_b32 exec_lo, 0x00030003\ns_mov_b32 exec_hi, 0x00030003")
    for j in range(3): a(f"ds_write_b128 v{t1}, v[{CACC+4*j}:{CACC+4*j+3}] offset:{128*j}")
    a("s_mov_b64 exec, -1")
    a("s_waitcnt lgkmcnt(0)\ns_barrier")
    a(f"v_bfe_u32 v{t1}, v{lane}, 4, 1\nv_lshlrev_b32 v{t1}, 6, v{t1}\nv_lshl_add_u32 v{t1}, v{t0}, 2, v{t1}")
    a(f"s_lshr_b32 s{sTmp}, s{sWv}, 1\ns_mul_i32 s{sTmp}, s{sTmp}, 768\nv_add_u32 v{t1}, s{sTmp}, v{t1}")
    for j in range(3):
        a(f"ds_read_b32 v{CSR+2*j}, v{t1} offset:{128*j}\nds_read_b32 v{CSR+2*j+1}, v{t1} offset:{128*j+384}")
    a(f"v_cmp_gt_u32 vcc, 32, v{lane}")
    a("s_waitcnt lgkmcnt(0)\ns_barrier")
    sT64=65; sCT=66; sA=67; sB=72; sStg=76; sA8=77
    if opts.get('dmap',0)==0:
        a(f"s_lshr_b32 s{sT64}, s{sX}, 1\ns_lshl_b32 s{sT64}, s{sT64}, 3\ns_add_u32 s{sT64}, s{sT64}, s{sJT}")
        a(f"s_and_b32 s{sCT}, s{sX}, 1\ns_lshl_b32 s{sCT}, s{sCT}, 2\ns_add_u32 s{sCT}, s{sCT}, s{sJF}")
    else:
        a(f"s_lshr_b32 s{sTmp}, s2, 3\ns_and_b32 s{sT64}, s{sTmp}, 3\ns_lshr_b32 s{sCT}, s{sTmp}, 2\ns_lshl_b32 s{sTmp}, s{sX}, 2\ns_add_u32 s{sT64}, s{sT64}, s{sTmp}")
    a(f"s_mul_i32 s{sTmp}, s{sWv}, {12*1024}\ns_mul_i32 s{sTmp2}, s{sCT}, {5*49152}\ns_add_u32 s{sTmp2}, s{sTmp2}, s{sTmp}")
    for m in range(5): a(f"s_add_u32 s{sA+m}, s{sTmp2}, {WS_W2P+m*49152}")
    vL16=4
    a(f"v_lshlrev_b32 v{vL16}, 4, v{lane}")
    a(f"s_mul_i32 s{sStg}, s{sWv}, 20480")
    vt=VmTrack(a)
    sKO=[48,50,51,57,58,59,60,62,78,79,80,81]
    DROT=opts.get('drot',0)
    a(f"s_mul_i32 s{sTmp}, s{sJF}, {3*1024 if DROT else 0}")
    for k in range(12):
        if k==0: a(f"s_mov_b32 s{sKO[0]}, s{sTmp}")
        else:
            a(f"s_add_u32 s{sKO[k]}, s{sKO[k-1]}, 1024\ns_cmp_ge_u32 s{sKO[k]}, {12*1024}\ns_cselect_b32 s{sTmp2}, {12*1024}, 0\ns_sub_u32 s{sKO[k]}, s{sKO[k]}, s{sTmp2}")
    stg=[(m,k) for m in range(5) for k in range(4)]
    STG8=[8192]
    def stage_one():
        if not stg: return
        m,k=stg.pop(0)
        a(f"s_add_u32 m0, s{sStg}, {m*4096+k*1024}\ns_add_u32 s{sA8}, s{sA+m}, s{sKO[8+k]}")
        vt.issue(f"buffer_load_dwordx4 v{vL16}, s[{SWS}:{SWS+3}], s{sA8} offen sc1 lds", 'stg')
    for j in range(3):
        a(f"v_add_f32 v{t0}, v{CSR+2*j}, v{CSR+2*j+1}")
        a(f"v_cvt_pk_bf16_f32 v{t1}, v{t0}, v{t0}\nv_and_b32 v{t1}, 0xffff0000, v{t1}")
        a(f"v_sub_f32 v{t0}, v{t0}, v{t1}")
        a(f"v_cvt_pk_bf16_f32 v{t0}, v{t1}, v{t0}")
        a(f"v_cndmask_b32 v{EA+4*j}, 0, v{t0}, vcc")
        for r in range(1,4): a(f"v_mov_b32 v{EA+4*j+r}, 0")
    for nt in range(2):
        a(f"v_cvt_pk_bf16_f32 v{t0}, v{STAT+4*nt}, v{STAT+4*nt}")
        a(f"v_cndmask_b32 v{EB+4*nt}, 0, v{t0}, vcc")
        for r in range(1,4): a(f"v_mov_b32 v{EB+4*nt+r}, 0")
    for (j,nt) in ORDER: mfma(Pq,j,nt)
    C1=[214,215]; IR2=[208,209]
    for nt in range(2):
        r=STAT+4*nt+1
        a(f"v_mul_f32 v{C1[nt]}, 0xbfb8aa3b, v{r}")
        a(f"v_mul_f32 v{IR2[nt]}, v{r}, v{r}\nv_rcp_f32 v{IR2[nt]}, v{IR2[nt]}")
    T=216; O=232
    k=0
    for (j,nt) in ORDER:
        d=ACC+16*(2*j+nt); o=O+4*(k%2)
        k+=1
        sg=(lambda: stage_one()) if opts.get('stgepi',0) else (lambda: None)
        for i in range(8): a(f"v_mul_f32 v{T+i}, v{d+i}, v{C1[nt]}")
        sg()
        for i in range(8): a(f"v_exp_f32 v{T+i}, v{T+i}")
        sg()
        for i in range(8): a(f"v_mul_f32 v{d+i}, v{d+i}, v{d+8+i}")
        for i in range(8): a(f"v_fma_f32 v{T+i}, v{T+i}, v{IR2[nt]}, v{IR2[nt]}")
        sg()
        for i in range(8): a(f"v_rcp_f32 v{T+i}, v{T+i}")
        sg()
        for i in range(8): a(f"v_mul_f32 v{T+i}, v{T+i}, v{d+i}")
        for p in range(4): a(f"v_cvt_pk_bf16_f32 v{o+p}, v{T+2*p}, v{T+2*p+1}")
        a(f"v_permlane32_swap_b32 v{o}, v{o+2}\nv_permlane32_swap_b32 v{o+1}, v{o+3}")
        a(f"s_mov_b32 s{sTmp}, {nt*2*49152+j*512}")
        vt.issue(f"buffer_store_dwordx4 v[{o}:{o+3}], v{vSt}, s[{SWS}:{SWS+3}], s{sTmp} offen sc1", 'h')
    S(4)
    if opts.get('gate',1)==2:
        a(f"s_lshl_b32 s{sTmp}, s2, 6\ns_add_u32 s{sTmp}, s{sTmp}, {FL_UD}")
        flag_store(a, sTmp, t0)
    vRed=5; vXo=6; vAt=7; vHf=8; vAf=9; vTm=10
    DACC=12
    AF=92
    BF=192
    NB=4
    vDum=vRed
    a(f"s_mul_i32 s{sTmp2}, s{sT64}, {4*49152}\ns_mul_i32 s{sTmp}, s{sWv}, {12*1024}\ns_add_u32 s{sTmp2}, s{sTmp2}, s{sTmp}\ns_add_u32 s{sTmp2}, s{sTmp2}, {WS_H}")
    for n in range(4):
        a(f"s_add_u32 s{sB+n}, s{sWv}, {n}\ns_and_b32 s{sB+n}, s{sB+n}, 3\ns_mul_i32 s{sB+n}, s{sB+n}, 49152\ns_add_u32 s{sB+n}, s{sB+n}, s{sTmp2}")
    def ldA(k,m):
        fb=AF+20*(k%5)
        a(f"s_add_u32 s{sA8}, s{sA+m}, s{sKO[k]}")
        vt.issue(f"buffer_load_dwordx4 v[{fb+4*m}:{fb+4*m+3}], v{vL16}, s[{SWS}:{SWS+3}], s{sA8} offen sc1", f"a{k}")
    def ldB(k,n):
        fb=BF+16*(k%NB)
        a(f"s_add_u32 s{sA8}, s{sB+n}, s{sKO[k]}")
        vt.issue(f"buffer_load_dwordx4 v[{fb+4*n}:{fb+4*n+3}], v{vL16}, s[{SWS}:{SWS+3}], s{sA8} offen sc1", f"b{k}")
    if PKLATE:
        pk_check()
        if not opts.get('cnt',0): a("s_barrier")
    NPRE=opts.get('npre',3)
    for k in range(NPRE):
        for m in range(5): ldA(k,m)
    vt.wait('h')
    a(f"s_lshl_b32 s{sTmp}, s{sT}, 4\ns_add_u32 s{sTmp}, s{sTmp}, s{sFT}\ns_lshl_b32 s{sTmp}, s{sTmp}, 2\ns_add_u32 s{sTmp}, s{sTmp}, s{sWv}\ns_lshl_b32 s{sTmp}, s{sTmp}, 6\ns_add_u32 s{sTmp}, s{sTmp}, {FL_H}")
    a(f"v_mov_b32 v{t0}, 0\nv_mov_b32 v{t1}, s{S_NONCE}\ns_mov_b64 exec, 1")
    vt.issue(f"buffer_store_dword v{t1}, v{t0}, s[{SWS}:{SWS+3}], s{sTmp} offen sc1", 'f')
    a("s_mov_b64 exec, -1")
    S(5)
    for k in range(NPRE,5):
        for m in range(5): ldA(k,m)
    while stg: stage_one()
    a(f"v_and_b32 v{t0}, 15, v{lane}\ns_lshl_b32 s{sTmp}, s{sT64}, 6\ns_lshl_b32 s{sTmp2}, s{sWv}, 4\ns_add_u32 s{sTmp}, s{sTmp}, s{sTmp2}\nv_add_u32 v{t0}, s{sTmp}, v{t0}")
    a(f"v_lshrrev_b32 v{t1}, 4, v{lane}\nv_mul_u32_u24 v{vXo}, 1280, v{t0}\nv_lshl_add_u32 v{vXo}, v{t1}, 3, v{vXo}")
    a(f"s_mul_i32 s{sTmp}, s{sCT}, 160\nv_add_u32 v{vXo}, s{sTmp}, v{vXo}")
    a(f"v_lshlrev_b32 v{vAt}, 14, v{t1}\nv_lshl_add_u32 v{vAt}, v{t0}, 1, v{vAt}")
    a(f"s_mul_i32 s{sTmp}, s{sCT}, {80*4096}\ns_add_u32 s{sTmp}, s{sTmp}, {WS_AT}\nv_add_u32 v{vAt}, s{sTmp}, v{vAt}")
    a(f"s_lshr_b32 s{sTmp}, s{sT64}, 1\ns_lshl_b32 s{sTmp}, s{sTmp}, 6\ns_and_b32 s{sTmp2}, s{sT64}, 1\ns_add_u32 s{sTmp}, s{sTmp}, s{sTmp2}")
    a(f"v_bfe_u32 v{t0}, v{lane}, 1, 4\nv_lshlrev_b32 v{t0}, 2, v{t0}\nv_and_b32 v{t1}, 1, v{lane}\nv_lshl_add_u32 v{t0}, v{t1}, 1, v{t0}\nv_add_u32 v{t0}, s{sTmp}, v{t0}")
    a(f"v_lshlrev_b32 v{t0}, 6, v{t0}\nv_add_u32 v{vHf}, {FL_H}, v{t0}")
    a(f"s_mul_i32 s{sTmp}, s{sCT}, {20*64}\ns_add_u32 s{sTmp}, s{sTmp}, {FL_A}")
    a(f"v_min_u32 v{t0}, 19, v{lane}\nv_lshlrev_b32 v{t0}, 6, v{t0}\nv_add_u32 v{vAf}, s{sTmp}, v{t0}")
    vSg=11
    a(f"v_add_u32 v{vSg}, s{sStg}, v{vL16}")
    SD(1)
    lh=a.newlabel('Lhp')
    a(f"s_cmp_lg_u32 s{sWv}, 0\ns_cbranch_scc1 {lh}")
    poll(a, [vHf], vTm, force=True, mask=(0xffffffff,0), sleep=opts.get('slph',2))
    a.label(lh)
    a("s_waitcnt vmcnt(0)\ns_barrier"); vt.q=[]
    S(6); SD(2)
    for k in range(NB):
        for n in range(4): ldB(k,n)
    if opts.get('touch_h',0):
        a(f"s_lshl_b32 s{sTmp}, s{sT64}, 2\ns_add_u32 s{sTmp}, s{sTmp}, s{sJF}\ns_mul_i32 s{sTmp}, s{sTmp}, 49152\ns_mul_i32 s{sTmp2}, s{sWv}, {12*1024}\ns_add_u32 s{sTmp}, s{sTmp}, s{sTmp2}\ns_add_u32 s{sTmp}, s{sTmp}, {WS_H+3*1024}")
        a(f"v_lshlrev_b32 v{t0}, 7, v{lane}")
        vt.issue(f"buffer_load_dword v{vDum}, v{t0}, s[{SWS}:{SWS+3}], s{sTmp} offen", 'x')
        a(f"s_add_u32 s{sTmp}, s{sTmp}, 8192\ns_mov_b64 exec, 0xff")
        vt.issue(f"buffer_load_dword v{vDum}, v{t0}, s[{SWS}:{SWS+3}], s{sTmp} offen", 'x')
        a("s_mov_b64 exec, -1")
    DS=opts.get('dsched',0)
    if not DS:
        XR=AF+40; AR=AF+50
        lt=LdsTrack(a)
        for k in range(12):
            vt.wait(f"b{k}")
            if k<8: assert f"a{k}" not in vt.q
            if k>=8: lt.wait(f"a{k}")
            if k in (0,3,6,9): SD({0:3,3:4,6:5,9:6}[k])
            fa=AF+20*(k%5); fb=BF+16*(k%NB)
            side=[]
            if k>=1 and k-1+NB<12: side+= [('B',k-1+NB,n) for n in range(4)]
            norder=(1,2,3,0) if k==11 else (0,1,2,3)
            si=0
            for m in range(5):
                for n in norder:
                    d=DACC+4*(m*4+n)
                    cc="0" if k==0 else f"v[{d}:{d+3}]"
                    a(f"v_mfma_f32_16x16x32_bf16 v[{d}:{d+3}], v[{fa+4*m}:{fa+4*m+3}], v[{fb+4*n}:{fb+4*n+3}], {cc}")
                    if n==norder[1] and si<len(side):
                        ldB(side[si][1],side[si][2]); si+=1
                kn=k+5
                if kn<8: ldA(kn,m)
                elif kn<12:
                    lt.issue(f"ds_read_b128 v[{fa+4*m}:{fa+4*m+3}], v{vSg} offset:{m*4096+(kn-8)*1024}", f"a{kn}")
            while si<len(side):
                ldB(side[si][1],side[si][2]); si+=1
            if k==2:
                pass
            KA=opts.get('ka',9)
            if k==KA-2:
                a("s_mov_b32 exec_lo, 0xfffff\ns_mov_b32 exec_hi, 0")
                vt.issue(f"buffer_load_dword v{vTm}, v{vAf}, s[{SWS}:{SWS+3}], 0 offen sc1", 'af')
                a("s_mov_b64 exec, -1")
            if k==8:
                for m in range(5):
                    vt.issue(f"buffer_load_dwordx2 v[{XR+2*m}:{XR+2*m+1}], v{vXo}, s[{SX}:{SX+3}], 0 offen offset:{32*m}", 'e')
            if k==KA:
                vt.wait('af')
                a("s_mov_b32 exec_lo, 0xfffff\ns_mov_b32 exec_hi, 0")
                poll_check(a, 1, vTm)
                a("s_mov_b64 exec, -1")
                lab3=a.newlabel('Lok'); a(f"s_cbranch_scc0 {lab3}")
                if opts.get('only')!=4: poll(a, [vAf], vTm, mask=(0xfffff,0), sleep=4)
                a.label(lab3)
                for m in range(5):
                    for r in range(4):
                        a(f"s_mov_b32 s{sTmp}, {(16*m+r)*4096}")
                        vt.issue(f"buffer_load_ushort v{AR+4*m+r}, v{vAt}, s[{SWS}:{SWS+3}], s{sTmp} offen sc1", 'e')
    else:
        G=[AF+20*i for i in range(5)]; Y=[BF+16*i for i in range(4)]
        slotA={0:G[0],1:G[1],2:G[2],3:G[3],4:G[4],5:G[1],6:G[2],7:G[3],8:G[0],9:G[2],10:G[3],11:G[0]}
        slotB={0:Y[0],1:Y[1],2:Y[2],3:Y[3],4:Y[0],5:G[0],6:Y[1],7:Y[2],8:Y[3],9:Y[0],10:G[4],11:G[1]}
        ISSUE={1:[('B',4),('B',5)],2:[('B',6),('A',5)],3:[('B',7),('A',6)],4:[('B',8),('A',7)],5:[('B',9),('B',10)],
               6:[('B',11),('L',8)],7:[('L',9)],8:[('L',10)],9:[('L',11)]}
        XR=Y[1]; AR=Y[2]
        lt=LdsTrack(a)
        def ld(kind,kk,i):
            if kind=='B':
                fb=slotB[kk]
                a(f"s_add_u32 s{sA8}, s{sB+i}, s{sKO[kk]}")
                vt.issue(f"buffer_load_dwordx4 v[{fb+4*i}:{fb+4*i+3}], v{vL16}, s[{SWS}:{SWS+3}], s{sA8} offen sc1", f"b{kk}")
            elif kind=='A':
                fa=slotA[kk]
                a(f"s_add_u32 s{sA8}, s{sA+i}, s{sKO[kk]}")
                vt.issue(f"buffer_load_dwordx4 v[{fa+4*i}:{fa+4*i+3}], v{vL16}, s[{SWS}:{SWS+3}], s{sA8} offen sc1", f"a{kk}")
            else:
                fa=slotA[kk]
                lt.issue(f"ds_read_b128 v[{fa+4*i}:{fa+4*i+3}], v{vSg} offset:{i*4096+(kk-8)*1024}", f"a{kk}")
        for k in range(12):
            need=[t for t in (f"a{k}",f"b{k}") if t in vt.q]
            if need:
                last=max(need,key=lambda t: max(i for i,x in enumerate(vt.q) if x==t))
                vt.wait(last)
            assert f"a{k}" not in vt.q and f"b{k}" not in vt.q
            if k>=8: lt.wait(f"a{k}")
            if k in (0,3,6,9): SD({0:3,3:4,6:5,9:6}[k])
            fa=slotA[k]; fb=slotB[k]
            side=[]
            for (kind,kk) in ISSUE.get(k,[]):
                side+=[(kind,kk,i) for i in range(4 if kind=='B' else 5)]
            norder=(1,2,3,0) if k==11 else (0,1,2,3)
            si=0; cnt=0
            for m in range(5):
                for n in norder:
                    d=DACC+4*(m*4+n)
                    cc="0" if k==0 else f"v[{d}:{d+3}]"
                    a(f"v_mfma_f32_16x16x32_bf16 v[{d}:{d+3}], v[{fa+4*m}:{fa+4*m+3}], v[{fb+4*n}:{fb+4*n+3}], {cc}")
                    cnt+=1
                    if cnt%2==0 and si<len(side):
                        ld(*side[si]); si+=1
            while si<len(side):
                ld(*side[si]); si+=1
            KA=opts.get('ka',9)
            if k==KA-2:
                a("s_mov_b32 exec_lo, 0xfffff\ns_mov_b32 exec_hi, 0")
                vt.issue(f"buffer_load_dword v{vTm}, v{vAf}, s[{SWS}:{SWS+3}], 0 offen sc1", 'af')
                a("s_mov_b64 exec, -1")
            if k==8:
                for m in range(5):
                    vt.issue(f"buffer_load_dwordx2 v[{XR+2*m}:{XR+2*m+1}], v{vXo}, s[{SX}:{SX+3}], 0 offen offset:{32*m}", 'e')
            if k==KA:
                vt.wait('af')
                a("s_mov_b32 exec_lo, 0xfffff\ns_mov_b32 exec_hi, 0")
                poll_check(a, 1, vTm)
                a("s_mov_b64 exec, -1")
                lab3=a.newlabel('Lok'); a(f"s_cbranch_scc0 {lab3}")
                if opts.get('only')!=4: poll(a, [vAf], vTm, mask=(0xfffff,0), sleep=4)
                a.label(lab3)
                for m in range(5):
                    for r in range(4):
                        a(f"s_mov_b32 s{sTmp}, {(16*m+r)*4096}")
                        vt.issue(f"buffer_load_ushort v{AR+4*m+r}, v{vAt}, s[{SWS}:{SWS+3}], s{sTmp} offen sc1", 'e')
    S(7); SD(7)
    if opts.get('clk'): a("s_mov_b32 s96, s51")
    a("s_barrier")
    for n in range(1,4):
        a(f"s_add_u32 s{sTmp}, s{sWv}, {n}\ns_and_b32 s{sTmp}, s{sTmp}, 3\ns_mul_i32 s{sTmp}, s{sTmp}, {15*1024}\ns_add_u32 s{sTmp}, s{sTmp}, {(n-1)*5*1024}")
        a(f"v_add_u32 v{vRed}, s{sTmp}, v{vL16}")
        for m in range(5):
            d=DACC+4*(m*4+n)
            a(f"ds_write_b128 v{vRed}, v[{d}:{d+3}] offset:{m*1024}")
    a("s_waitcnt lgkmcnt(0)\ns_barrier")
    a(f"s_mul_i32 s{sTmp}, s{sWv}, {15*1024}\nv_add_u32 v{vRed}, s{sTmp}, v{vL16}")
    RB=192 if not opts.get('dsched',0) else 92
    for si in range(3):
        for m in range(5):
            a(f"ds_read_b128 v[{RB+(si*5+m)*4}:{RB+(si*5+m)*4+3}], v{vRed} offset:{(si*5+m)*1024}")
    SRO=52
    srd(a,SRO,P["out"],X_BYTES)
    for si in range(3):
        a(f"s_waitcnt lgkmcnt({10-5*si})")
        for m in range(5):
            for r in range(4):
                x=DACC+4*(m*4)+r; y=RB+(si*5+m)*4+r
                a(f"v_add_f32 v{x}, v{x}, v{y}")
    a("s_waitcnt vmcnt(0)")
    T=92 if not opts.get('dsched',0) else 160
    for m in range(5):
        x0=XR+2*m; f0=DACC+16*m
        a(f"v_lshlrev_b32 v{T}, 16, v{x0}\nv_and_b32 v{T+1}, 0xffff0000, v{x0}\nv_lshlrev_b32 v{T+2}, 16, v{x0+1}\nv_and_b32 v{T+3}, 0xffff0000, v{x0+1}")
        for r in range(4): a(f"v_lshlrev_b32 v{AR+4*m+r}, 16, v{AR+4*m+r}")
        for r in range(4): a(f"v_add_f32 v{T+r}, v{T+r}, v{AR+4*m+r}")
        for p in range(2): a(f"v_cvt_pk_bf16_f32 v{T+4+p}, v{T+2*p}, v{T+2*p+1}")
        for p in range(2): a(f"v_cvt_pk_bf16_f32 v{T+6+p}, v{f0+2*p}, v{f0+2*p+1}")
        o=T+8+2*(m%2)
        for p in range(2):
            a(f"v_lshlrev_b32 v{T}, 16, v{T+4+p}\nv_and_b32 v{T+1}, 0xffff0000, v{T+4+p}\nv_lshlrev_b32 v{T+2}, 16, v{T+6+p}\nv_and_b32 v{T+3}, 0xffff0000, v{T+6+p}")
            a(f"v_add_f32 v{T}, v{T}, v{T+2}\nv_add_f32 v{T+1}, v{T+1}, v{T+3}\nv_cvt_pk_bf16_f32 v{o+p}, v{T}, v{T+1}")
        a(f"buffer_store_dwordx2 v[{o}:{o+1}], v{vXo}, s[{SRO}:{SRO+3}], 0 offen offset:{32*m}"+{0:"",1:" sc1",2:" nt",3:" sc0 sc1"}[opts.get('ost',0)])
    lab4=a.newlabel('Lnn')
    a(f"s_cmp_lg_u32 s2, 0\ns_cbranch_scc1 {lab4}\ns_cmp_lg_u32 s{sWv}, 0\ns_cbranch_scc1 {lab4}")
    for i in range(4): a(f"v_add_u32 v{100+i}, {64*i}, v{lane}\nv_lshlrev_b32 v{100+i}, 8, v{100+i}\nv_add_u32 v{100+i}, {FL_H}, v{100+i}")
    for i in range(3): a(f"v_add_u32 v{104+i}, {64*i}, v{lane}\nv_min_u32 v{104+i}, 159, v{104+i}\nv_lshlrev_b32 v{104+i}, 6, v{104+i}\nv_add_u32 v{104+i}, {FL_A}, v{104+i}")
    if opts.get('only')!=4: poll(a, [100,101,102,103,104,105,106], 108)
    a(f"s_mov_b32 s{sTmp}, {WS_NONCE}")
    flag_store(a, sTmp, t0)
    a.label(lab4)
```

```python
from f_common import *
from f_ln8 import *
TBL=18432
ROW=288
KN_OFF=[0, 32448, 36864, 69312]
U_OFF=4416
R_OFF=[U_OFF+18432, 41280, 41280+8448, 41280+2*8448]
RC=2112
LOG2E=0x3fb8aa3b
INV2PI=0x3e22f983

USEPK=0
def cmul(a, d, x, w):
    if USEPK:
        a(f"v_pk_mul_f32 v[{d}:{d+1}], v[{x}:{x+1}], v[{w}:{w+1}] op_sel:[0,0] op_sel_hi:[0,1]")
        a(f"v_pk_fma_f32 v[{d}:{d+1}], v[{x}:{x+1}], v[{w}:{w+1}], v[{d}:{d+1}] op_sel:[1,1,0] op_sel_hi:[1,0,1] neg_lo:[0,1,0]")
    elif NEG.get(w) is not None:
        a(f"v_mul_f32 v{d}, v{x}, v{w}")
        a(f"v_mul_f32 v{d+1}, v{x}, v{w+1}")
        a(f"v_fmac_f32 v{d}, v{x+1}, v{NEG[w]}")
        a(f"v_fmac_f32 v{d+1}, v{x+1}, v{w}")
    else:
        a(f"v_mul_f32 v{d}, v{x}, v{w}")
        a(f"v_mul_f32 v{d+1}, v{x}, v{w+1}")
        a(f"v_fma_f32 v{d}, -v{x+1}, v{w+1}, v{d}")
        a(f"v_fma_f32 v{d+1}, v{x+1}, v{w}, v{d+1}")

NEG={}
def emit_ssm(a, S_, opts, st=' sc1', ld=' sc1', sb=64):
    if opts.get('prio'): a(f"s_setprio {opts.get('p0',3)}")
    st_=S_; sQ=46; sPtrDt=P['logdt']; sPtrD=P['Dskip']
    SP=dict(logA=48,Aim=52,Cre=56,Cim=60)
    a(f's_sub_u32 s{sQ}, s2, 256')

    S=st_ if st_ else (lambda i: None)
    sWv=sb; sCh=sb+1; sTmp=sb+2; sTmp2=sb+3; sDt=sb+4; sD=sb+5; sTb=sb+6; sCnt=sb+7; sPo=sb+8; sKn=sb+9; sR=sb+10; sMask=sb+12; sBf=sb+14
    lane=1; t0=2; t1=3; vP=238; vTw=5; vTrA=6; vTrB=7
    a(f"v_and_b32 v{lane}, 63, v0")
    a(f"v_lshrrev_b32 v{t0}, 6, v0")
    a(f"v_readfirstlane_b32 s{sWv}, v{t0}")
    a(f"s_lshl_b32 s{sCh}, s{sQ}, 2")
    a(f"s_add_u32 s{sCh}, s{sCh}, s{sWv}")
    if opts.get('fakessm'):
        nonce_load(a)
        a("s_waitcnt vmcnt(0)")
        nonce_ready(a)
        a(f"s_lshl_b32 s{sTmp}, s{sQ}, 6\ns_add_u32 s{sTmp}, s{sTmp}, {FL_A}")
        flag_store(a, sTmp, 2)
        S(7)
        return
    if opts.get('lateptr',1):
        ptr_ready(a)
        S(0)
    for n_ in SP: srd(a,SP[n_],P[n_],D*N*2)
    LN2=opts.get('ln2',0)
    sLam=47
    if LN2:
        a(f"s_and_b32 s{sLam}, s2, 7\ns_lshl_b32 s{sLam}, s{sLam}, 5\ns_lshr_b32 s{sTmp}, s{sQ}, 3\ns_add_u32 s{sLam}, s{sLam}, s{sTmp}")
        ln8_loads(a, sLam, 64, 80)
    a(f"s_lshr_b32 s{sTmp}, s{sCh}, 1\ns_lshl_b32 s{sTmp}, s{sTmp}, 2")
    a(f"s_load_dword s{sDt}, s[{sPtrDt}:{sPtrDt+1}], s{sTmp}")
    a(f"s_load_dword s{sD}, s[{sPtrD}:{sPtrD+1}], s{sTmp}")
    PR=240
    a(f"s_mul_i32 s{sPo}, s{sCh}, 384")
    a(f"v_lshlrev_b32 v{vP}, 1, v{lane}")
    for p in range(3):
        for i,nm in enumerate(("logA","Aim","Cre","Cim")):
            a(f"buffer_load_ushort v{PR+4*p+i}, v{vP}, s[{SP[nm]}:{SP[nm]+3}], s{sPo} offen offset:{128*p}")
    nonce_load(a)
    NT=1+(k_touch(a, sWv, lane, 24, 235) if opts.get('ktouch',1)==1 else 0)
    if opts.get('tlbw')==1: NT+=tlb_warm(a, lane, 233, 20)
    if opts.get('tlbw')==2:
        lt_=a.newlabel('Ltlb')
        a(f"s_cmp_ge_u32 s2, 264\ns_cbranch_scc1 {lt_}\ns_cmp_lg_u32 s{sWv}, 3\ns_cbranch_scc1 {lt_}")
        tlb_warm(a, lane, 233, 20)
        a.label(lt_)
    if opts.get('prio'): a(f"s_setprio {opts.get('sprio',1)}")
    if LN2:
        a(f"s_waitcnt vmcnt({12+NT})")
        ln8_compute(a, sLam, sWv, 64, 80, 0)
        a("s_waitcnt lgkmcnt(0)\ns_barrier")
        NT+=4
    a(f"s_mul_i32 s{sTb}, s{sWv}, {TBL}")
    vTw1=8
    a(f"v_mul_u32_u24 v{vTw}, {ROW}, v{lane}")
    a(f"v_add_u32 v{vTw}, s{sTb}, v{vTw}")
    a(f"v_bfe_u32 v{t0}, v{lane}, 2, 1\nv_lshlrev_b32 v{t0}, 4, v{t0}")
    a(f"v_sub_u32 v{vTw1}, v{vTw}, v{t0}\nv_add_u32 v{vTw}, v{vTw}, v{t0}")
    a(f"v_bfe_u32 v{t0}, v{lane}, 4, 1")
    a(f"v_lshlrev_b32 v{t0}, 2, v{t0}")
    a(f"v_bfe_u32 v{t1}, v{lane}, 2, 2")
    a(f"v_add_u32 v{t0}, v{t0}, v{t1}")
    a(f"v_mul_u32_u24 v{vTrA}, {ROW}, v{t0}")
    a(f"v_and_b32 v{t1}, 1, v{lane}")
    a(f"v_lshl_add_u32 v{vTrA}, v{t1}, 3, v{vTrA}")
    a(f"v_bfe_u32 v{t1}, v{lane}, 1, 1\nv_bfe_u32 v{t0}, v{lane}, 4, 1\nv_xor_b32 v{t1}, v{t1}, v{t0}")
    a(f"v_lshl_add_u32 v{vTrA}, v{t1}, 4, v{vTrA}")
    a(f"v_add_u32 v{vTrA}, s{sTb}, v{vTrA}")
    a(f"v_lshrrev_b32 v{t0}, 5, v{lane}")
    a(f"v_mul_u32_u24 v{t1}, 32, v{t0}")
    a(f"v_add_u32 v{vTrB}, v{vTrA}, v{t1}")
    a(f"v_add_u32 v{vTrB}, 192, v{vTrB}")
    a(f"v_mul_u32_u24 v{t1}, 96, v{t0}")
    a(f"v_add_u32 v{vTrA}, v{vTrA}, v{t1}")
    vDt=20; vDs=21
    a("s_waitcnt lgkmcnt(0)")
    a(f"s_and_b32 s{sTmp}, s{sCh}, 1\ns_lshl_b32 s{sTmp}, s{sTmp}, 4")
    a(f"s_lshr_b32 s{sDt}, s{sDt}, s{sTmp}\ns_lshl_b32 s{sDt}, s{sDt}, 16")
    a(f"s_lshr_b32 s{sD}, s{sD}, s{sTmp}\ns_lshl_b32 s{sD}, s{sD}, 16")
    a(f"v_mov_b32 v{vDt}, s{sDt}")
    a(f"v_mul_f32 v{vDt}, {hex(LOG2E)}, v{vDt}")
    a(f"v_exp_f32 v{vDt}, v{vDt}")
    a(f"v_cvt_pk_bf16_f32 v{vDt}, v{vDt}, v{vDt}")
    a(f"v_and_b32 v{vDt}, 0xffff0000, v{vDt}")
    KACC=24
    for r in range(12): a(f"v_mov_b32 v{KACC+r}, 0")
    CUR=36
    AR=40; TH=41; Z1=42; Z8=44; Z128=46; M=48; TT=49
    H=52
    S1=84
    S2=100
    S3=116
    Lr=136
    PK=172
    FR=204
    a(f"s_mov_b32 s{sKn}, {KN_OFF[0]}\ns_mov_b32 s{sR}, {R_OFF[0]}")
    for w in range(1,4):
        a(f"s_cmp_eq_u32 s{sWv}, {w}\ns_cselect_b32 s{sKn}, {KN_OFF[w]}, s{sKn}\ns_cselect_b32 s{sR}, {R_OFF[w]}, s{sR}")
    vAa=224; vBa=[225,226,227,228]; vRw=229; vKr=231
    vb_=220; vg_=221
    a(f"v_and_b32 v{vb_}, 15, v{lane}")
    a(f"v_lshrrev_b32 v{vg_}, 4, v{lane}")
    a(f"v_and_b32 v{t0}, 3, v{vb_}")
    a(f"v_mul_u32_u24 v{vAa}, {RC}, v{t0}")
    a(f"v_lshrrev_b32 v{t0}, 2, v{vb_}")
    a(f"v_lshlrev_b32 v{t0}, 3, v{t0}")
    a(f"v_sub_u32 v{vAa}, v{vAa}, v{t0}")
    a(f"v_lshrrev_b32 v{t0}, 1, v{vg_}")
    a(f"v_lshlrev_b32 v{t0}, 5, v{t0}")
    a(f"v_sub_u32 v{vAa}, v{vAa}, v{t0}")
    a(f"v_and_b32 v{t0}, 1, v{vg_}")
    a(f"v_lshl_add_u32 v{vAa}, v{t0}, 4, v{vAa}")
    a(f"v_add_u32 v{vAa}, s{sR}, v{vAa}")
    a(f"v_lshlrev_b32 v{t0}, 1, v{vb_}")
    a(f"v_add_u32 v{t0}, 32, v{t0}")
    a(f"v_and_b32 v{t1}, 1, v{vg_}")
    a(f"v_add_u32 v{t0}, v{t0}, v{t1}")
    a(f"v_and_b32 v{t1}, 2, v{vg_}")
    a(f"v_sub_u32 v{t0}, v{t0}, v{t1}")
    for rm in range(4):
        a(f"v_lshrrev_b32 v{t1}, 2, v{t0}")
        a(f"v_subrev_u32 v{t1}, {rm}, v{t1}")
        a(f"v_and_b32 v{t1}, 3, v{t1}")
        a(f"v_xor_b32 v{t1}, s{sWv}, v{t1}")
        a(f"v_lshlrev_b32 v{t1}, 4, v{t1}")
        a(f"v_lshl_add_u32 v{vBa[rm]}, v{t0}, 6, v{t1}")
        a(f"v_add_u32 v{vBa[rm]}, {U_OFF-256*7}, v{vBa[rm]}")
    a(f"v_lshlrev_b32 v{vRw}, 4, v{lane}")
    a(f"v_add_u32 v{vRw}, s{sR}, v{vRw}")
    vL16=230
    a(f"v_lshlrev_b32 v{vL16}, 4, v{lane}")
    a(f"s_mov_b32 s{sBf}, 0xffff")
    vU=232
    a(f"v_lshrrev_b32 v{t0}, 2, v{lane}")
    a(f"v_lshlrev_b32 v{vU}, 7, v{t0}")
    a(f"v_bfe_u32 v{t0}, v{lane}, 4, 2")
    a(f"v_and_b32 v{t1}, 3, v{lane}")
    a(f"v_xor_b32 v{t0}, v{t0}, v{t1}")
    a(f"v_lshl_add_u32 v{vU}, v{t0}, 4, v{vU}")
    vE=216; vS=217; vDp=218
    a(f"v_and_b32 v{t0}, 15, v{lane}")
    a(f"v_lshlrev_b32 v{t0}, 1, v{t0}")
    a(f"v_lshrrev_b32 v{t1}, 5, v{lane}")
    a(f"v_add_u32 v{t0}, v{t0}, v{t1}")
    a(f"v_bfe_u32 v{t1}, v{t0}, 2, 2")
    a(f"v_xor_b32 v{t1}, s{sWv}, v{t1}")
    a(f"v_lshlrev_b32 v{t1}, 4, v{t1}")
    a(f"v_lshl_add_u32 v{vE}, v{t0}, 6, v{t1}")
    a(f"v_bfe_u32 v{t1}, v{lane}, 4, 1")
    a(f"v_lshl_add_u32 v{vE}, v{t1}, 3, v{vE}")
    a(f"v_add_u32 v{vE}, {U_OFF+2048}, v{vE}")
    a(f"v_and_b32 v{t0}, 15, v{lane}")
    a(f"v_lshlrev_b32 v{vS}, 5, v{t0}")
    a(f"v_lshrrev_b32 v{t1}, 4, v{lane}")
    a(f"v_lshl_add_u32 v{vS}, v{t1}, 3, v{vS}")
    a(f"s_lshl_b32 s{sTmp}, s{sCh}, 12\ns_add_u32 s{sTmp}, s{sTmp}, {WS_AT}")
    a(f"v_add_u32 v{vS}, s{sTmp}, v{vS}")
    a(f"s_waitcnt vmcnt({NT})")
    S(1)
    if opts.get('ktouch',1)==2: k_touch(a, sWv, lane, 24, 235, g0=2)
    HYB=(opts.get('kpk',0)==2)
    a(f"s_mov_b32 s{sCnt}, {2 if HYB else opts.get('kgrep',3)}")
    def kpass(usepk):
        global USEPK
        USEPK=usepk
        for i in range(4): a(f"v_lshlrev_b32 v{CUR+i}, 16, v{PR+i}")
        for i in range(8): a(f"v_mov_b32 v{PR+i}, v{PR+4+i}")
        a(f"v_mul_f32 v{AR}, {hex(LOG2E)}, v{CUR}")
        a(f"v_exp_f32 v{AR}, v{AR}")
        a(f"v_cvt_pk_bf16_f32 v{AR}, v{AR}, v{AR}")
        a(f"v_and_b32 v{AR}, 0xffff0000, v{AR}")
        a(f"v_mul_f32 v{AR}, v{AR}, v{vDt}")
        a(f"v_mul_f32 v{AR}, {hex(LOG2E|0x80000000)}, v{AR}")
        a(f"v_mul_f32 v{TH}, v{CUR+1}, v{vDt}")
        a(f"v_mul_f32 v{TH}, {hex(INV2PI)}, v{TH}")
        def zpow(dst, mult):
            if mult==1:
                a(f"v_exp_f32 v{M}, v{AR}")
                a(f"v_fract_f32 v{TT}, v{TH}")
            else:
                a(f"v_mul_f32 v{M}, {float(mult)}, v{AR}" if mult in (2,4) else f"v_mul_f32 v{M}, {hex(0x41000000)}, v{AR}")
                a(f"v_exp_f32 v{M}, v{M}")
                a(f"v_mul_f32 v{TT}, {hex(0x41000000)}, v{TH}")
                a(f"v_fract_f32 v{TT}, v{TT}")
            a(f"v_cos_f32 v{dst}, v{TT}")
            a(f"v_sin_f32 v{dst+1}, v{TT}")
            a(f"v_mul_f32 v{dst}, v{M}, v{dst}")
            a(f"v_mul_f32 v{dst+1}, v{M}, v{dst+1}")
        zpow(Z1,1); zpow(Z8,8)
        if opts.get('vop2'):
            NEG[Z1]=208; NEG[Z8]=209
            a(f"v_xor_b32 v208, 0x80000000, v{Z1+1}\nv_xor_b32 v209, 0x80000000, v{Z8+1}")
        a(f"v_add_f32 v{M}, v{vDt}, v{vDt}")
        a(f"v_mul_f32 v{H}, v{CUR+2}, v{M}")
        a(f"v_mul_f32 v{H+1}, v{CUR+3}, v{M}")
        nchunk=[0]
        def wr(vals, im, neg, c):
            base=PK+4*(nchunk[0]%8); nchunk[0]+=1
            cnt=len(vals)//2
            for p in range(cnt):
                x=vals[2*p]+im; y=vals[2*p+1]+im
                if neg: a(f"v_cvt_pk_bf16_f32 v{base+p}, -v{x}, -v{y}")
                else: a(f"v_cvt_pk_bf16_f32 v{base+p}, v{x}, v{y}")
            reg=vTw if c%2==0 else vTw1
            if cnt==4: a(f"ds_write_b128 v{reg}, v[{base}:{base+3}] offset:{16*c}")
            else: a(f"ds_write_b32 v{reg}, v{base} offset:{16*c}")
        def wrH(vals, i):
            wr(vals,0,False,i); wr(vals,1,True,6+i)
        a(f"v_mov_b32 v{Lr}, 1.0\nv_mov_b32 v{Lr+1}, 0")
        a(f"v_mov_b32 v{Lr+2}, v{Z8}\nv_mov_b32 v{Lr+3}, v{Z8+1}")
        for j in range(2,17):
            cmul(a, Lr+2*j, Lr+2*(j-1), Z8)
            if j<=8:
                r=j-1
                cmul(a, H+2*r, H+2*(r-1), Z1)
            if j==8:
                L0=[Lr+2*i for i in range(8)]
                wr(L0,0,False,12); wr(L0,1,False,14)
            if j==10: wrH([H+2*i for i in range(8)],0)
        L1=[Lr+2*i for i in range(8,16)]
        z128=Lr+32
        if opts.get('vop2'):
            NEG[z128]=210
            a(f"v_xor_b32 v210, 0x80000000, v{z128+1}")
        for r in range(8):
            cmul(a, H+2*(8+r), H+2*r, z128)
            if r==3: wr(L1,0,False,13)
            if r==7: wr(L1,1,False,15)
        for r in range(4): cmul(a, S1+2*r, H+2*(8+2*r), z128)
        wrH([H+2*i for i in range(8,16)],1)
        for r in range(4): cmul(a, S1+2*(4+r), S1+2*r, z128)
        cmul(a, S2, S1+8, z128); cmul(a, S2+2, S1+8+4, z128)
        wrH([S1+2*i for i in range(8)],2)
        for i in range(1,4):
            for r in range(2): cmul(a, S2+4*i+2*r, S2+4*(i-1)+2*r, z128)
        cmul(a, S3, S2+12, z128)
        for i in range(1,9):
            cmul(a, S3+2*i, S3+2*(i-1), z128)
            if i==2: wrH([S2+2*i_ for i_ in range(8)],3)
        a(f"v_mov_b32 v{S3+18}, 0\nv_mov_b32 v{S3+19}, 0")
        wrH([S3+2*i for i in range(8)],4)
        wrH([S3+16,S3+18],5)
        a("s_waitcnt lgkmcnt(0)")
        FB=52
        for s_ in range(4):
            fb=FB+16*s_
            for q in range(2):
                a(f"ds_read_b64_tr_b16 v[{fb+12+2*q}:{fb+12+2*q+1}], v{vTrB} offset:{(16*s_+8*q)*ROW}")
            for t in range(3):
                for q in range(2):
                    a(f"ds_read_b64_tr_b16 v[{fb+4*t+2*q}:{fb+4*t+2*q+1}], v{vTrA} offset:{(16*s_+8*q)*ROW+32*t}")
        for s_ in range(4):
            fb=FB+16*s_
            a(f"s_waitcnt lgkmcnt({min(15,8*(3-s_))})")
            for t in range(3):
                a(f"v_mfma_f32_16x16x32_bf16 v[{KACC+4*t}:{KACC+4*t+3}], v[{fb+4*t}:{fb+4*t+3}], v[{fb+12}:{fb+15}], v[{KACC+4*t}:{KACC+4*t+3}]")
    if opts.get('nw'):
        labskip=a.newlabel('Lskip')
        a(f"s_cmp_ge_u32 s{sWv}, {opts['nw']}\ns_cbranch_scc1 {labskip}")
    lab=a.newlabel('Lkg'); a.label(lab)
    KG0=len(a.ins)
    kpass(bool(opts.get('kpk',0)))
    if LN2:
        labf=a.newlabel('Lnf')
        a(f"s_cmp_lg_u32 s{sCnt}, 3\ns_cbranch_scc1 {labf}")
        a("s_waitcnt vmcnt(0)\ns_barrier")
        nonce_ready(a)
        a(f"s_lshl_b32 s{sTmp}, s{sLam}, 6\ns_add_u32 s{sTmp}, s{sTmp}, {FL_LN}")
        flag_store(a, sTmp, 170)
        a.label(labf)
    if any(opts.get(k_) for k_ in ('kg_nods','kg_nomfma','kg_novalu','kg_nocvt','kg_nowr','kg_nord','kg_notrans','kg_nowait')):
        body=a.ins[KG0:]; keep=[]
        for x in body:
            if opts.get('kg_nods') and x.kind=='ds': continue
            if opts.get('kg_nomfma') and x.kind=='mfma': continue
            if opts.get('kg_novalu') and x.kind in ('valu','trans'): continue
            if opts.get('kg_nocvt') and x.op.startswith('v_cvt_pk'): continue
            if opts.get('kg_nowr') and x.op.startswith('ds_write'): continue
            if opts.get('kg_nord') and x.op.startswith('ds_read'): continue
            if opts.get('kg_notrans') and x.kind=='trans': continue
            if opts.get('kg_nowait') and x.op=='s_waitcnt': continue
            keep.append(x)
        a.ins=a.ins[:KG0]+keep
    a(f"s_sub_u32 s{sCnt}, s{sCnt}, 1")
    a(f"s_cmp_lg_u32 s{sCnt}, 0")
    a("s_nop 4")
    a(f"s_cbranch_scc1 {lab}")
    if HYB: kpass(False)
    if opts.get('nw'): a.label(labskip)
    S(2)
    if opts.get('prio') and 'xprio' in opts: a(f"s_setprio {opts['xprio']}")
    if opts.get('kgexit'): return
    for w in range(4):
        pass
    vJ=36; vG=37; vK=38; vK2=39; B=40
    a(f"v_and_b32 v{vJ}, 15, v{lane}")
    a(f"v_lshrrev_b32 v{vG}, 4, v{lane}")
    a(f"v_lshlrev_b32 v{vK}, 2, v{lane}")
    a(f"v_add_u32 v{vK}, s{sKn}, v{vK}")
    a(f"v_mov_b32 v{B}, 0")
    a(f"s_mov_b64 s[{sMask}:{sMask+1}], 0xfff")
    a(f"s_mov_b64 exec, s[{sMask}:{sMask+1}]")
    a(f"ds_write_b32 v{vK}, v{B}")
    a(f"s_mov_b64 exec, -1")
    a(f"v_lshlrev_b32 v{vK}, 4, v{vJ}")
    a(f"v_add_u32 v{vK}, s{sKn}, v{vK}")
    a(f"v_add_u32 v{vK}, 48, v{vK}")
    T2=KACC+8
    a(f"v_lshlrev_b32 v{vK2}, 10, v{vG}")
    a(f"v_add_u32 v{vK2}, v{vK}, v{vK2}")
    a(f"v_add_u32 v{vK2}, 2048, v{vK2}")
    a(f"v_and_b32 v{t0}, 1, v{vJ}")
    a(f"v_lshlrev_b32 v{t0}, 3, v{t0}")
    a(f"v_sub_u32 v{t1}, v{vK2}, v{t0}")
    for r in range(4):
        a(f"v_cvt_pk_bf16_f32 v{B+2*r}, v{T2+r}, v{T2+r}")
        a(f"v_mov_b32 v{B+2*r+1}, v{B+2*r}")
    def seg3(r):
        a(f"ds_write_b64 v{vK2}, v[{B+2*r}:{B+2*r+1}] offset:{r*256}")
    a(f"v_subrev_u32 v{vK2}, 8, v{vK2}")
    for r in range(4):
        a(f"s_mov_b64 exec, {hex(0x1ffffffff) if r==0 else hex(0xffffffff)}" if False else f"s_mov_b32 exec_lo, -1\ns_mov_b32 exec_hi, {1 if r==0 else 0}")
        a(f"ds_write_b64 v{vK2}, v[{B+2*r}:{B+2*r+1}] offset:{r*256}")
        a(f"ds_write_b64 v{vK2}, v[{B+2*r}:{B+2*r+1}] offset:{r*256+8}")
    for r in range(4):
        a(f"s_mov_b32 exec_lo, -1\ns_mov_b32 exec_hi, {1 if r==0 else 0}")
        a(f"ds_write_b16 v{t1}, v{B+2*r} offset:{r*256+8}")
    a("s_mov_b64 exec, -1")
    T1=KACC+4
    a(f"v_subrev_u32 v{t0}, 2, v{vG}")
    a(f"v_lshlrev_b32 v{t0}, 9, v{t0}")
    a(f"v_add_u32 v{vK2}, v{vK}, v{t0}")
    a(f"v_add_u32 v{vK2}, {1024-4}, v{vK2}")
    a(f"s_mov_b32 exec_lo, 0\ns_mov_b32 exec_hi, -1")
    for b in range(2):
        v0_=T1+2*b; v1_=T1+2*b+1
        a(f"v_cvt_pk_bf16_f32 v{B}, v{v0_}, v{v0_}")
        a(f"v_cvt_pk_bf16_f32 v{B+1}, v{v0_}, v{v1_}")
        a(f"v_cvt_pk_bf16_f32 v{B+2}, v{v1_}, v{v1_}")
        a(f"ds_write_b32 v{vK2}, v{B} offset:{b*256}")
        a(f"ds_write_b64 v{vK2}, v[{B}:{B+1}] offset:{b*256+4}")
        a(f"ds_write_b32 v{vK2}, v{B+2} offset:{b*256+12}")
        a("s_nop 1")
    a(f"s_mov_b32 exec_lo, -1\ns_mov_b32 exec_hi, 0")
    a(f"v_lshlrev_b32 v{t0}, 8, v{vG}")
    a(f"v_add_u32 v{vK2}, v{vK}, v{t0}")
    a(f"v_add_u32 v{vK2}, {512-2}, v{vK2}")
    a(f"v_cvt_pk_bf16_f32 v{B}, v{T1}, v{T1}")
    a(f"v_cvt_pk_bf16_f32 v{B+1}, v{T1+1}, v{T1+2}")
    a(f"v_cvt_pk_bf16_f32 v{B+2}, v{T1+2}, v{T1+2}")
    a(f"v_cvt_pk_bf16_f32 v{B+3}, v{T1+3}, v{T1+3}")
    a(f"ds_write_b16 v{vK2}, v{B}")
    a(f"v_add_u32 v{vK2}, 2, v{vK2}")
    a(f"ds_write_b64 v{vK2}, v[{B}:{B+1}]")
    a(f"ds_write_b32 v{vK2}, v{B+2} offset:8")
    a(f"ds_write_b16 v{vK2}, v{B+3} offset:12")
    a("s_mov_b64 exec, -1")
    a(f"v_lshrrev_b32 v{t0}, 1, v{vG}")
    a(f"v_lshlrev_b32 v{t0}, 8, v{t0}")
    a(f"v_add_u32 v{vK2}, v{vK}, v{t0}")
    a(f"v_and_b32 v{t0}, 1, v{vG}")
    a(f"v_lshl_add_u32 v{vK2}, v{t0}, 3, v{vK2}")
    a(f"v_cvt_pk_bf16_f32 v{B+4}, v{KACC}, v{KACC+1}")
    a(f"v_cvt_pk_bf16_f32 v{B+5}, v{KACC+2}, v{KACC+3}")
    a(f"ds_write_b64 v{vK2}, v[{B+4}:{B+5}]")
    a("s_waitcnt lgkmcnt(0)")
    a("s_barrier")
    S(3)
    a(f"v_lshlrev_b32 v{t0}, 3, v0")
    a(f"v_mov_b32 v{B}, 0\nv_mov_b32 v{B+1}, 0")
    a(f"ds_write_b64 v{t0}, v[{B}:{B+1}] offset:{U_OFF}")
    CACC=24
    AF=64
    BF=96
    RB=160
    def build_R(ps):
        M0=127 if ps==0 else 255
        for rd in range(3):
            if rd==2:
                a(f"s_mov_b32 exec_lo, 3\ns_mov_b32 exec_hi, 0")
            off=40+16*(M0-64*rd)
            a(f"s_add_u32 s{sTmp}, s{sKn}, {off}")
            a(f"v_sub_u32 v{vKr}, s{sTmp}, v{vL16}")
            p=RB
            a(f"ds_read_b64 v[{p}:{p+1}], v{vKr}")
            a(f"ds_read_b128 v[{p+2}:{p+5}], v{vKr} offset:8")
            a("s_waitcnt lgkmcnt(0)")
            o=RB+8
            for mu_ in range(4):
                a(f"v_bfi_b32 v{o+mu_}, s{sBf}, v{p+4-mu_}, v{p+3-mu_}")
                a(f"v_alignbit_b32 v{o+4+mu_}, v{p+4-mu_}, v{p+4-mu_}, 16")
                a(f"v_bfi_b32 v{o+8+mu_}, s{sBf}, v{p+5-mu_}, v{p+4-mu_}")
                a(f"v_alignbit_b32 v{o+12+mu_}, v{p+5-mu_}, v{p+5-mu_}, 16")
            for sg in range(4):
                a(f"ds_write_b128 v{vRw}, v[{o+4*sg}:{o+4*sg+3}] offset:{sg*RC+1024*rd}")
            if rd==2: a("s_mov_b64 exec, -1")
        a("s_waitcnt lgkmcnt(0)")
    def conv_pass(ps):
        nB=8-4*ps
        def rdA(rho,setp):
            out=[]
            for il in range(4):
                kl=rho+8*il
                for hf in range(2):
                    r=AF+16*setp+4*il+2*hf
                    out.append(f"ds_read_b64 v[{r}:{r+1}], v{vAa} offset:{2040-64*kl+8*hf}")
            return out
        def rdB(rho,setp):
            out=[]
            for tau in range(nB):
                r=BF+32*setp+4*tau
                out.append(f"ds_read_b128 v[{r}:{r+3}], v{vBa[rho%4]} offset:{2048*tau+256*(7-rho)}")
            return out
        for x in rdA(0,0)+rdB(0,0): a(x)
        for rho in range(8):
            sp=rho%2
            a("s_waitcnt lgkmcnt(0)")
            nxt=(rdA(rho+1,1-sp)+rdB(rho+1,1-sp)) if rho<7 else []
            ms=[]
            for il in range(4):
                i=il+4*ps
                for tau in range(nB):
                    t=i+tau
                    if t>7: continue
                    ms.append((t,il,tau))
            ni=0
            for n,(t,il,tau) in enumerate(ms):
                d=CACC+4*t; A_=AF+16*sp+4*il; B_=BF+32*sp+4*tau
                cc="0" if (ps==0 and rho==0 and il==0) else f"v[{d}:{d+3}]"
                a(f"v_mfma_f32_16x16x32_bf16 v[{d}:{d+3}], v[{A_}:{A_+3}], v[{B_}:{B_+3}], {cc}")
                k=-(-len(nxt)//len(ms)) if n<len(ms) else 0
                for _ in range(k):
                    if ni<len(nxt): a(nxt[ni]); ni+=1
    build_R(0)
    a("s_waitcnt vmcnt(0)")
    if not LN2: nonce_ready(a)
    if opts.get('prio') and 'xprio' not in opts: a(f"s_setprio {opts.get('cprio',0)}")
    if opts.get('cnt',0) and not (opts.get('ln8') or LN2):
        lw0=a.newlabel('Lw0')
        a(f"s_cmp_lg_u32 s{sWv}, 0\ns_cbranch_scc1 {lw0}")
        dbg_srd(a, 24)
        cnt_poll(a, 24, 0, 128, B+4, sleep=opts.get('slpl',16))
        a.label(lw0)
    else:
        if opts.get('ln8') or LN2:
            a(f"v_lshlrev_b32 v{B+4}, 6, v0\nv_add_u32 v{B+4}, {FL_LN}, v{B+4}")
        else:
            a(f"v_and_b32 v{B+4}, 31, v0\ns_lshl_b32 s{sTmp}, s{sWv}, 5\nv_add_u32 v{B+4}, s{sTmp}, v{B+4}\nv_lshlrev_b32 v{B+4}, 6, v{B+4}\nv_add_u32 v{B+4}, {FL_LN}, v{B+4}")
        poll(a, [B+4], B+6, mask=(0xffffffff,0) if not (opts.get('ln8') or LN2) else None, sleep=opts.get('slpl',32))
    a("s_barrier")
    a(f"s_lshr_b32 s{sTmp}, s{sQ}, 1\ns_lshl_b32 s{sTmp}, s{sTmp}, 15")
    a(f"s_and_b32 s{sTmp2}, s{sQ}, 1\ns_lshl_b32 s{sTmp2}, s{sTmp2}, 6\ns_add_u32 s{sTmp}, s{sTmp}, s{sTmp2}")
    a(f"s_lshl_b32 s{sTmp2}, s{sWv}, 13\ns_add_u32 s{sTmp}, s{sTmp}, s{sTmp2}")
    if WS_XNT: a(f"s_add_u32 s{sTmp}, s{sTmp}, {WS_XNT}")
    a(f"s_lshl_b32 s{sTmp2}, s{sWv}, 12\ns_add_u32 s{sTmp2}, s{sTmp2}, {U_OFF+2048}")
    for i in range(4):
        a(f"s_add_u32 m0, s{sTmp2}, {i*1024}")
        a(f"buffer_load_dwordx4 v{vU}, s[{SWS}:{SWS+3}], s{sTmp} offen{ld} lds")
        if i<3: a(f"s_add_u32 s{sTmp}, s{sTmp}, 2048")
    a("s_waitcnt vmcnt(0) lgkmcnt(0)")
    a("s_barrier")
    if opts.get('gate',1):
        a(f"s_lshl_b32 s{sTmp}, s{sQ}, 6\ns_add_u32 s{sTmp}, s{sTmp}, {FL_UD}\nv_mov_b32 v{RB}, s{sTmp}")
        poll(a, [RB], RB+1, mask=(1,0), sleep=opts.get('slp',8))
    if opts.get('prio') and 'xprio' in opts: a(f"s_setprio {opts.get('cprio',0)}")
    S(4)
    if opts.get('nw'):
        labskip2=a.newlabel('Lskip')
        a(f"s_cmp_ge_u32 s{sWv}, {opts['nw']}\ns_cbranch_scc1 {labskip2}")
    conv_pass(0)
    S(5)
    build_R(1)
    conv_pass(1)
    if opts.get('prio'): a(f"s_setprio {opts.get('eprio',3)}")
    if opts.get('nw'): a.label(labskip2)
    S(6)
    a(f"v_mov_b32 v{vDp}, s{sD}\nv_mov_b32 v{vDp+1}, s{sD}")
    UB=64
    for t in range(8):
        a(f"ds_read_b64 v[{UB+2*t}:{UB+2*t+1}], v{vE} offset:{2048*t}")
    T=96
    for t in range(8):
        a(f"s_waitcnt lgkmcnt({7-t})")
        d=CACC+4*t; u=UB+2*t; o=T+16+2*(t%2)
        a(f"v_lshlrev_b32 v{T}, 16, v{u}\nv_and_b32 v{T+1}, 0xffff0000, v{u}")
        a(f"v_lshlrev_b32 v{T+2}, 16, v{u+1}\nv_and_b32 v{T+3}, 0xffff0000, v{u+1}")
        for p in range(4): a(f"v_mul_f32 v{T+p}, v{T+p}, v{vDp}")
        for p in range(2): a(f"v_cvt_pk_bf16_f32 v{T+4+p}, v{T+2*p}, v{T+2*p+1}")
        for p in range(2): a(f"v_cvt_pk_bf16_f32 v{T+6+p}, v{d+2*p}, v{d+2*p+1}")
        for p in range(2):
            a(f"v_lshlrev_b32 v{T}, 16, v{T+4+p}\nv_and_b32 v{T+1}, 0xffff0000, v{T+4+p}")
            a(f"v_lshlrev_b32 v{T+2}, 16, v{T+6+p}\nv_and_b32 v{T+3}, 0xffff0000, v{T+6+p}")
            a(f"v_add_f32 v{T}, v{T}, v{T+2}\nv_add_f32 v{T+1}, v{T+1}, v{T+3}")
            a(f"v_cvt_pk_bf16_f32 v{o+p}, v{T}, v{T+1}")
        a(f"buffer_store_dwordx2 v[{o}:{o+1}], v{vS}, s[{SWS}:{SWS+3}], 0 offen offset:{512*t}{st}")
    a("s_waitcnt vmcnt(0)\ns_barrier")
    a(f"s_lshl_b32 s{sTmp}, s{sQ}, 6\ns_add_u32 s{sTmp}, s{sTmp}, {FL_A}")
    flag_store(a, sTmp, 2)
    S(7)
```
